```python
import torch

def _softmax(x, axis=-1):
    return torch.softmax(x, dim=axis)
def _gelu(x):
    return torch.nn.functional.gelu(x, approximate="tanh")
def _silu(x):
    return torch.nn.functional.silu(x)
def _sigmoid(x):
    return torch.sigmoid(x)
def _layernorm(x, axis=-1, eps=1e-5):
    m = x.mean(dim=axis, keepdim=True)
    v = x.var(dim=axis, keepdim=True, unbiased=False)
    return (x - m) / torch.sqrt(v + eps)
def _scatter_add(tgt, idx, src, axis=0):
    return tgt.clone().index_add_(axis, idx, src)
def _segment_sum(src, seg, n):
    out = torch.zeros((n,) + src.shape[1:], dtype=src.dtype)
    return out.index_add_(0, seg, src)
def _pad(x, pw):
    flat = tuple(v for pair in reversed(pw) for v in pair)
    return torch.nn.functional.pad(x, flat)

kernel_name = 'sequential_preLN__softmax_full_mha__swiglu_ffn__prompt'

def setup_inputs():

    _w = (lambda a: (lambda t: t.to(torch.bfloat16) if t.is_floating_point() else t)(torch.as_tensor(a)))
    def _A_setup():
        B, S, D = 1, 2048, 512
        return {
            "x": _w((lambda *s: torch.randn(*s, dtype=torch.bfloat16) * 0.05)(B, S, D)),
            "wqkv": _w((lambda *s: torch.randn(*s, dtype=torch.bfloat16) * 0.05)(D, 3 * D)),
            "wo": _w((lambda *s: torch.randn(*s, dtype=torch.bfloat16) * 0.05)(D, D)),
        }
    _A_in = _A_setup()

    def _B_setup():
        B, S, D, F = 1, 2048, 512, 1792
        return {
            "x": _w((lambda *s: torch.randn(*s, dtype=torch.bfloat16) * 0.05)(B, S, D)),
            "w_gate": _w((lambda *s: torch.randn(*s, dtype=torch.bfloat16) * 0.05)(D, F)),
            "w_up": _w((lambda *s: torch.randn(*s, dtype=torch.bfloat16) * 0.05)(D, F)),
            "w_down": _w((lambda *s: torch.randn(*s, dtype=torch.bfloat16) * 0.05)(F, D)),
        }
    _B_in = _B_setup()

    return {
        "A_x": _A_in["x"],
        "A_wqkv": _A_in["wqkv"],
        "A_wo": _A_in["wo"],
        "B_x": _B_in["x"],
        "B_w_gate": _B_in["w_gate"],
        "B_w_up": _B_in["w_up"],
        "B_w_down": _B_in["w_down"],
    }

def reference(A_x, A_wqkv, A_wo, B_x, B_w_gate, B_w_up, B_w_down):
    def _A_ref(x, wqkv, wo):
        B, S, D = x.shape
        H = 32; Dh = D // H
        qkv = (lambda x, *d: x.permute(*d))((x @ wqkv).reshape(B, S, 3, H, Dh), 2, 0, 3, 1, 4)
        q, k, v = qkv[0], qkv[1], qkv[2]
        scale = Dh ** -0.5
        scores = torch.einsum("bhqd,bhkd->bhqk", q, k) * scale
        p = _softmax(scores, axis=-1)
        o = torch.einsum("bhqk,bhkd->bhqd", p, v)
        return (lambda x, *d: x.permute(*d))(o, 0, 2, 1, 3).reshape(B, S, D) @ wo

    def _B_ref(x, w_gate, w_up, w_down):
        g = _silu(x @ w_gate)
        u = x @ w_up
        return (g * u) @ w_down

    x = A_x
    h = x + _A_ref(_layernorm(x, axis=-1), A_wqkv, A_wo)
    h2 = h + _B_ref(_layernorm(h, axis=-1), B_w_gate, B_w_up, B_w_down)
    return h2
```

```python
from dsl import Kern

MB = 1 << 20
QF = 0 * MB
KF = 2 * MB
VF = 4 * MB
OF = 6 * MB
HF = 8 * MB
ST = 10 * MB
CS = 11 * MB
AF = 12 * MB
WS_BYTES = 0x10000000

LOG2E = 1.4426950408889634


def f32(x):
    import struct
    return "0x%08x" % struct.unpack("<I", struct.pack("<f", x))[0]


def srd(k, d, lo, hi, nbytes):
    k(f"""
    s_mov_b32 s{d}, s{lo}
    s_mov_b32 s{d+1}, s{hi}
    s_mov_b32 s{d+2}, {nbytes:#x}
    s_mov_b32 s{d+3}, 0x20000
    """)


def code_prefetch(k, vtmp, vdst, sp, nthreads, nbytes):
    k(f"s_getpc_b64 s[{sp}:{sp+1}]")
    k.label(f"L_{k.name}_pc")
    k(f"v_lshlrev_b32 v{vtmp}, 6, v0")
    per = nthreads * 64
    n = (nbytes + per - 1) // per
    for i in range(n):
        if i:
            k(f"v_add_u32 v{vtmp}, {per}, v{vtmp}")
        k(f"v_min_u32 v{vdst}, L_{k.name}_codeend-L_{k.name}_pc, v{vtmp}")
        k(f"global_load_dword v{vdst}, v{vdst}, s[{sp}:{sp+1}]")
    return n
```

```python
import re

TRANS = ("v_exp_f32", "v_log_f32", "v_rcp_f32", "v_rsq_f32", "v_sqrt_f32", "v_sin_f32", "v_cos_f32",
         "v_exp_f16", "v_rcp_iflag_f32")

_reg_re = re.compile(r"(?<![\w.])(v|a|s)(\d+)(?![\w])|(?<![\w.])(v|a|s)\[(\d+):(\d+)\]|(?<![\w])(vcc|exec|m0)(?![\w])")


def regs_of(tok):
    out = []
    for m in _reg_re.finditer(tok):
        if m.group(1):
            out.append((m.group(1), int(m.group(2))))
        elif m.group(3):
            out += [(m.group(3), i) for i in range(int(m.group(4)), int(m.group(5)) + 1)]
        else:
            out.append((m.group(6), 0))
    return out


def split_ops(s):
    ops, depth, cur = [], 0, ""
    for ch in s:
        if ch == "[":
            depth += 1
        if ch == "]":
            depth -= 1
        if ch == "," and depth == 0:
            ops.append(cur.strip())
            cur = ""
        else:
            cur += ch
    if cur.strip():
        ops.append(cur.strip())
    return ops


class Ins:
    __slots__ = ("text", "op", "w", "r", "kind", "passes", "mA", "mB", "mC", "ws", "storedata")

    def __init__(self, text):
        self.text = text
        t = text.split(";")[0].strip()
        parts = t.split(None, 1)
        self.op = parts[0]
        rest = parts[1] if len(parts) > 1 else ""
        ops = split_ops(rest)
        op = self.op
        self.w, self.r = [], []
        self.kind = "other"
        self.passes = 0
        self.mA = self.mB = self.mC = ()
        self.ws = 1
        self.storedata = ()
        if op == "s_nop":
            self.ws = int(ops[0], 0) + 1
            self.kind = "nop"
        elif op.startswith("v_mfma"):
            self.kind = "mfma"
            self.passes = 8 if "32x32x16" in op else 4 if "16x16x32" in op else None
            assert self.passes
            self.w = regs_of(ops[0])
            self.mA, self.mB, self.mC = regs_of(ops[1]), regs_of(ops[2]), regs_of(ops[3])
            self.r = self.mA + self.mB + self.mC
        elif op.startswith("v_"):
            self.kind = "trans" if op.replace("_e64", "").replace("_e32", "") in TRANS else "valu"
            if op.startswith("v_permlane") and "swap" in op:
                self.kind = "permlane"
                self.w = regs_of(ops[0]) + regs_of(ops[1])
                self.r = list(self.w)
            elif op.startswith("v_cmp"):
                self.w = regs_of(ops[0])
                for o in ops[1:]:
                    self.r += regs_of(o)
                if op.startswith("v_cmpx"):
                    self.w.append(("exec", 0))
            else:
                self.w = regs_of(ops[0])
                srcs = ops[1:]
                if "_co_" in op or op.startswith("v_div_scale") or op.startswith("v_mad_u64"):
                    self.w += regs_of(ops[1])
                    srcs = ops[2:]
                for o in srcs:
                    self.r += regs_of(o)
                if op.startswith(("v_fmac", "v_dot2c", "v_pk_fmac", "v_writelane")):
                    self.r += regs_of(ops[0])
                if op.startswith(("v_readfirstlane", "v_readlane")):
                    self.kind = "readlane"
                if "dpp" in text or "row_" in text or "quad_perm" in text:
                    self.kind = "dpp"
        elif op.startswith("ds_"):
            self.kind = "ds"
            if op.startswith(("ds_read", "ds_bpermute", "ds_permute", "ds_swizzle")) or "_rtn" in op:
                self.w = regs_of(ops[0])
                for o in ops[1:]:
                    self.r += regs_of(o)
            else:
                for o in ops:
                    self.r += regs_of(o)
        elif op in ("buffer_wbl2", "buffer_inv"):
            self.kind = "vmem"
        elif op.startswith(("buffer_", "global_")):
            self.kind = "vmem"
            is_lds = bool(re.search(r"\blds\b", rest)) or "_lds_" in op
            if is_lds:
                self.kind = "dma"
                for o in ops:
                    self.r += regs_of(o)
                self.r.append(("m0", 0))
            elif "_load" in op:
                self.w = regs_of(ops[0])
                for o in ops[1:]:
                    self.r += regs_of(o)
            else:
                for o in ops:
                    self.r += regs_of(o)
                if "x4" in op or "x3" in op:
                    self.storedata = regs_of(ops[0] if op.startswith("buffer_") else ops[1])
        elif op.startswith("s_"):
            self.kind = "salu"
            if op.startswith(("s_cmp", "s_cbranch", "s_branch", "s_waitcnt", "s_barrier", "s_setprio", "s_endpgm",
                              "s_sleep", "s_bitcmp", "s_setreg", "s_sethalt")):
                for o in ops:
                    self.r += regs_of(o)
            else:
                self.w = regs_of(ops[0])
                for o in ops[1:]:
                    self.r += regs_of(o)
                if "saveexec" in op:
                    self.w.append(("exec", 0))
        else:
            raise ValueError("unknown instr " + text)


def need(prod, cons):
    n = 0
    pw = set(prod.w)
    isvalu_p = prod.kind in ("valu", "trans", "permlane", "readlane", "dpp")
    isvalu_c = cons.kind in ("valu", "trans", "permlane", "readlane", "dpp")
    cr, cw = set(cons.r), set(cons.w)
    if prod.kind == "mfma":
        p = prod.passes
        big = {2: 5, 4: 8, 8: 12, 16: 20}[p]
        if cons.kind == "mfma":
            if pw & (set(cons.mA) | set(cons.mB)):
                n = max(n, big)
            if pw & set(cons.mC):
                if list(cons.mC) == list(prod.w) and cons.passes == p:
                    pass
                else:
                    n = max(n, {2: 4, 4: 6, 8: 10, 16: 18}[p])
            elif pw & cw:
                n = max(n, {2: 4, 4: 6, 8: 10, 16: 18}[p])
        else:
            if pw & (cr | cw):
                n = max(n, big)
            if isvalu_c and (set(prod.mC) & cw):
                n = max(n, {2: 1, 4: 3, 8: 7, 16: 15}[p])
            if cons.kind in ("ds", "vmem") and (set(prod.mC) & cw):
                n = max(n, {2: 1, 4: 3, 8: 7, 16: 15}[p])
    if isvalu_p:
        vw = {x for x in pw if x[0] in ("v", "a")}
        sw = {x for x in pw if x[0] in ("s", "vcc")}
        if cons.kind == "mfma" and (vw & cr):
            n = max(n, 2)
        if cons.kind == "mfma" and ("exec", 0) in pw:
            n = max(n, 4)
        if cons.kind == "permlane" and (vw & cr):
            n = max(n, 2)
        if cons.kind == "dpp" and (vw & cr):
            n = max(n, 2)
        if cons.kind == "readlane" and (vw & cr):
            n = max(n, 1)
        if prod.kind == "trans" and isvalu_c and cons.kind != "trans" and (vw & (cr | cw)):
            n = max(n, 1)
        if prod.kind == "trans" and cons.kind in ("mfma",) and (vw & cr):
            n = max(n, 2)
        if sw:
            if cons.kind in ("vmem", "dma") and (sw & cr):
                n = max(n, 5)
            if isvalu_c and (sw & cr):
                n = max(n, 4 if cons.kind == "readlane" else 2)
            if cons.kind == "salu" and (sw & cr):
                n = max(n, 1)
        if ("exec", 0) in pw and cons.kind in ("readlane", "permlane"):
            n = max(n, 4)
        if ("exec", 0) in pw and cons.kind == "dpp":
            n = max(n, 5)
    if prod.kind == "salu" and ("m0", 0) in pw and cons.kind == "dma":
        n = max(n, 1)
    if prod.storedata and (set(prod.storedata) & cw):
        n = max(n, 2)
    return n


class Kern:
    def __init__(self, name):
        self.name = name
        self.items = []
        self.maxv = 0
        self.maxs = 0
        self.maxa = -1

    def raw(self, s):
        self.items.append(s)

    def label(self, l):
        self.items.append(f"{l}:")

    def c(self, s):
        self.items.append(f"    ; {s}")

    def __call__(self, text):
        for line in text.strip().split("\n"):
            line = line.strip()
            if not line or line.startswith(";"):
                continue
            ins = Ins(line)
            self._pad(ins)
            self.items.append(ins)
            for k, i in ins.w + ins.r:
                if k == "v":
                    self.maxv = max(self.maxv, i)
                elif k == "s":
                    self.maxs = max(self.maxs, i)
                elif k == "a":
                    self.maxa = max(self.maxa, i)

    def _hist(self, upto=None):
        it = self.items if upto is None else self.items[:upto]
        for x in reversed(it):
            if isinstance(x, Ins):
                yield x

    def _pad(self, ins):
        dist = 0
        req = 0
        for p in self._hist():
            nd = need(p, ins)
            if nd > dist:
                req = max(req, nd - dist)
            dist += p.ws
            if dist >= 20:
                break
        while req > 0:
            k = min(req, 16)
            self.items.append(Ins(f"s_nop {k-1}"))
            req -= k

    def check_backedge(self, label):
        idx = self.items.index(f"{label}:")
        head = [x for x in self.items[idx:] if isinstance(x, Ins)]
        tail = list(self._hist())
        d0 = 0
        for c in head:
            dist = d0
            for p in tail:
                nd = need(p, c)
                if nd > dist:
                    raise RuntimeError(f"back-edge hazard in {self.name}: {p.text} -> {c.text} need {nd} have {dist}")
                dist += p.ws
                if dist >= 20:
                    break
            d0 += c.ws
            if d0 >= 20:
                break

    def text(self):
        out = []
        for x in self.items:
            out.append("    " + x.text if isinstance(x, Ins) else x)
        return "\n".join(out) + "\n"

    def full(self, nv=None, ns=None):
        nvv = self.maxv + 1
        acc = (nvv + 3) // 4 * 4
        tot = acc + self.maxa + 1 if self.maxa >= 0 else nvv
        if nv:
            tot = max(tot, nv)
        nss = max(self.maxs + 1, ns or 0)
        n = self.name
        return f"""
.text
.globl {n}
.p2align 8
.type {n},@function
{n}:
{self.text()}
.section .rodata,"a"
.p2align 6
.amdhsa_kernel {n}
  .amdhsa_next_free_vgpr {tot}
  .amdhsa_next_free_sgpr {nss}
  .amdhsa_accum_offset {acc}
  .amdhsa_group_segment_fixed_size 0
  .amdhsa_kernarg_size 80
  .amdhsa_user_sgpr_count 2
  .amdhsa_user_sgpr_kernarg_segment_ptr 1
  .amdhsa_system_sgpr_workgroup_id_x 1
  .amdhsa_float_denorm_mode_32 3
  .amdhsa_float_denorm_mode_16_64 3
.end_amdhsa_kernel
"""
```

```python
from common import *


def gen():
    k = Kern("qkv_kernel")
    NST = 5
    STAGE = 28672
    VXD = 10
    VWD = 14
    VXA = 20
    VWA = 32
    FR = 44
    ACC = 80
    CSA = 128
    SEL = 144
    T = 156
    SUM = 164
    k("""
    s_load_dwordx4 s[4:7], s[0:1], 0
    s_load_dwordx2 s[8:9], s[0:1], 72
    s_cmp_ge_u32 s2, 256
    s_cbranch_scc1 L_k1_end
    """)
    npf = code_prefetch(k, 2, 168, 24, 256, 12288)
    k("""
    v_and_b32 v1, 63, v0
    v_lshrrev_b32 v2, 6, v0
    """)
    k("v_readfirstlane_b32 s26, v2")
    k("""
    s_lshr_b32 s27, s2, 1
    s_and_b32 s27, s27, 3
    s_lshl_b32 s27, s27, 2
    s_lshr_b32 s28, s2, 3
    s_and_b32 s28, s28, 3
    s_add_u32 s27, s27, s28
    s_and_b32 s28, s2, 1
    s_lshl_b32 s28, s28, 3
    s_lshr_b32 s29, s2, 5
    s_add_u32 s28, s28, s29
    """)
    k("""
    s_lshl_b32 s29, s27, 2
    s_add_u32 s29, s29, s26
    """)
    k("""
    v_lshrrev_b32 v2, 3, v1
    v_and_b32 v3, 7, v1
    s_lshl_b32 s30, s29, 15
    """)
    for i in range(4):
        k(f"""
        v_add_u32 v4, {8*i}, v2
        v_lshrrev_b32 v5, 1, v4
        v_and_b32 v5, 7, v5
        v_xor_b32 v5, v5, v3
        v_lshlrev_b32 v5, 4, v5
        v_lshl_add_u32 v5, v4, 10, v5
        v_add_u32 v{VXD+i}, s30, v5
        """)
    k("""
    s_mul_i32 s31, s26, 192
    s_lshl_b32 s32, s28, 6
    s_mov_b32 s33, 43691
    """)
    for j in range(3):
        k(f"""
        v_add_u32 v4, s31, v1
        v_add_u32 v4, {64*j}, v4
        v_mul_lo_u32 v5, v4, s33
        v_lshrrev_b32 v5, 19, v5
        v_mul_u32_u24 v6, 12, v5
        v_sub_u32 v6, v4, v6
        v_lshrrev_b32 v7, 2, v6
        v_and_b32 v6, 3, v6
        v_mul_u32_u24 v5, 3072, v5
        v_lshl_add_u32 v5, v7, 10, v5
        v_lshl_add_u32 v5, v6, 4, v5
        v_add_u32 v{VWD+j}, s32, v5
        """)
    k("s_waitcnt lgkmcnt(0)")
    srd(k, 12, 4, 5, 2 * MB)
    srd(k, 16, 6, 7, 512 * 3072)
    srd(k, 20, 8, 9, WS_BYTES)
    k("""
    s_lshl_b32 s34, s26, 12
    s_mul_i32 s35, s26, 3072
    s_add_u32 s35, s35, 16384
    """)

    def dma_chunk(c):
        st = (c % NST) * STAGE
        k(f"s_mov_b32 s36, {c*128}")
        k(f"s_mov_b32 s37, {c*64*3072}")
        for i in range(4):
            k(f"s_add_u32 m0, s34, {st + i*1024}")
            k(f"buffer_load_dwordx4 v{VXD+i}, s[12:15], s36 offen lds")
        for j in range(3):
            k(f"s_add_u32 m0, s35, {st + j*1024}")
            k(f"buffer_load_dwordx4 v{VWD+j}, s[16:19], s37 offen lds")

    for c in range(NST):
        dma_chunk(c)
    k("""
    v_and_b32 v2, 31, v1
    v_lshrrev_b32 v3, 5, v1
    v_lshrrev_b32 v4, 1, v2
    v_and_b32 v4, 7, v4
    v_lshlrev_b32 v5, 7, v2
    v_add_u32 v5, s34, v5
    """)
    k("""
    v_bfe_u32 v6, v1, 2, 2
    v_lshl_add_u32 v6, v3, 3, v6
    v_mul_u32_u24 v6, 192, v6
    v_bfe_u32 v7, v1, 4, 1
    v_lshl_add_u32 v6, v7, 5, v6
    v_and_b32 v7, 3, v1
    v_lshl_add_u32 v6, v7, 3, v6
    v_add_u32 v6, 16384, v6
    """)
    for p in range(4):
        k(f"""
        s_add_u32 s36, s26, {p}
        s_and_b32 s36, s36, 3
        s_lshl_b32 s37, s36, 1
        s_mul_i32 s38, s36, 3072
        v_add_u32 v7, s37, v3
        v_xor_b32 v7, v7, v4
        v_lshl_add_u32 v{VXA+p}, v7, 4, v5
        v_add_u32 v{VWA+p}, s38, v6
        """)
        for st in (1, 2):
            k(f"v_add_u32 v{VXA+4*st+p}, {st*2*STAGE}, v{VXA+p}")
            k(f"v_add_u32 v{VWA+4*st+p}, {st*2*STAGE}, v{VWA+p}")
    k("v_lshrrev_b32 v7, 3, v2")
    for t in range(3):
        k(f"v_cmp_eq_u32 vcc, {t}, v7")
        k(f"v_mov_b32 v8, 0x3f803f80")
        k(f"v_cndmask_b32 v{SEL+4*t}, 0, v8, vcc")
        for i in range(1, 4):
            k(f"v_mov_b32 v{SEL+4*t+i}, v{SEL+4*t}")
    for i in range(64):
        k(f"v_mov_b32 v{ACC+i}, 0")
    for i in range(4):
        k(f"v_mov_b32 v{SUM+i}, 0")

    def reads(n):
        c, p = n // 4, n % 4
        st = c % NST
        sset, off = st // 2, (st % 2) * STAGE
        b = FR + (n % 2) * 16
        k(f"ds_read_b128 v[{b}:{b+3}], v{VXA+4*sset+p} offset:{off}")
        for t in range(3):
            for ab in range(2):
                r = b + 4 + 4 * t + 2 * ab
                k(f"ds_read_b64_tr_b16 v[{r}:{r+1}], v{VWA+4*sset+p} offset:{off + ab*768 + t*64}")

    def wait_for(c):
        issued = min(7, 4 + max(0, c - 1))
        return 7 * (issued - c)

    k(f"s_waitcnt vmcnt({wait_for(0)})")
    k("s_barrier")
    reads(0)
    for n in range(32):
        k("s_waitcnt lgkmcnt(0)")
        if n + 1 < 32:
            if (n + 1) % 4 == 0:
                c = (n + 1) // 4
                k(f"s_waitcnt vmcnt({wait_for(c)})")
                k("s_barrier")
                if c + 4 <= 7:
                    dma_chunk(c + 4)
            reads(n + 1)
        b = FR + (n % 2) * 16
        X = f"v[{b}:{b+3}]"
        W = [f"v[{b+4+4*t}:{b+7+4*t}]" for t in range(3)]
        A = [f"v[{ACC+16*t}:{ACC+16*t+15}]" for t in range(3)]
        mf = [f"v_mfma_f32_32x32x16_bf16 {A[0]}, {W[0]}, {X}, {A[0]}",
              f"v_mfma_f32_32x32x16_bf16 {A[1]}, {W[1]}, {X}, {A[1]}",
              f"v_mfma_f32_32x32x16_bf16 {A[2]}, {X}, {W[2]}, {A[2]}"]
        if n % 4 == 0:
            for t in range(3):
                mf.append(f"v_mfma_f32_32x32x16_bf16 v[{CSA}:{CSA+15}], v[{SEL+4*t}:{SEL+4*t+3}], {W[t]}, v[{CSA}:{CSA+15}]")
        st = []
        for i in range(4):
            lo, hi = T + 2 * i, T + 2 * i + 1
            st += [f"v_lshlrev_b32 v{lo}, 16, v{b+i}", f"v_and_b32 v{hi}, 0xffff0000, v{b+i}",
                   f"v_add_f32 v{SUM}, v{SUM}, v{lo}", f"v_add_f32 v{SUM+1}, v{SUM+1}, v{hi}",
                   f"v_fmac_f32 v{SUM+2}, v{lo}, v{lo}", f"v_fmac_f32 v{SUM+3}, v{hi}, v{hi}"]
        per = len(st) // len(mf)
        for i, m in enumerate(mf):
            k(m)
            for s_ in st[i * per:(i + 1) * per]:
                k(s_)
    k("""
    v_add_f32 v164, v164, v165
    v_add_f32 v166, v166, v167
    v_mov_b32 v165, v164
    v_mov_b32 v167, v166
    v_permlane32_swap_b32 v164, v165
    v_permlane32_swap_b32 v166, v167
    v_add_f32 v164, v164, v165
    v_add_f32 v166, v166, v167
    """)
    k(f"""
    v_mul_f32 v164, {f32(1/512)}, v164
    v_mul_f32 v166, {f32(1/512)}, v166
    v_fma_f32 v166, -v164, v164, v166
    v_max_f32 v166, 0, v166
    v_add_f32 v166, {f32(1e-5)}, v166
    v_rsq_f32 v165, v166
    """)
    k("s_barrier")
    k("""
    s_mul_i32 s36, s26, 384
    v_lshlrev_b32 v4, 2, v2
    v_add_u32 v5, s36, v4
    """)
    for t in range(3):
        k(f"ds_write_b32 v5, v{CSA+4*t} offset:{t*128}")
    k("""
    s_lshl_b32 s37, s26, 10
    s_add_u32 s37, s37, 2048
    v_add_u32 v6, s37, v4
    ds_write_b32 v6, v164
    ds_write_b32 v6, v165 offset:128
    s_waitcnt lgkmcnt(0)
    s_barrier
    """)
    k("v_lshlrev_b32 v7, 2, v1")
    for w in range(4):
        k(f"ds_read_b32 v{T+w}, v7 offset:{w*384}")
        k(f"ds_read_b32 v{T+4+w}, v4 offset:{w*384+256}")
    k("v_lshlrev_b32 v8, 4, v3")
    k("v_add_u32 v8, s37, v8")
    MR = FR
    for g in range(4):
        k(f"ds_read_b128 v[{MR+4*g}:{MR+4*g+3}], v8 offset:{g*32}")
        k(f"ds_read_b128 v[{MR+16+4*g}:{MR+16+4*g+3}], v8 offset:{128+g*32}")
    k("s_waitcnt lgkmcnt(8)")
    k(f"""
    v_add_f32 v{T}, v{T}, v{T+1}
    v_add_f32 v{T+2}, v{T+2}, v{T+3}
    v_add_f32 v{T+4}, v{T+4}, v{T+5}
    v_add_f32 v{T+6}, v{T+6}, v{T+7}
    v_add_f32 v{T}, v{T}, v{T+2}
    v_add_f32 v{T+4}, v{T+4}, v{T+6}
    v_add_u32 v7, s37, v7
    ds_write_b32 v7, v{T} offset:256
    """)
    k("s_waitcnt lgkmcnt(1)")
    AV = ACC + 32
    for r in range(16):
        k(f"v_fma_f32 v{AV+r}, -v{MR+r}, v{T+4}, v{AV+r}")
        k(f"v_mul_f32 v{AV+r}, v{AV+r}, v{MR+16+r}")
    k("s_waitcnt lgkmcnt(0)")
    CQ = CSA
    for t in range(2):
        for g in range(4):
            k(f"ds_read_b128 v[{CQ+16*t+4*g}:{CQ+16*t+4*g+3}], v8 offset:{256 + t*128 + g*32}")
    for i in range(8):
        k(f"v_cvt_pk_bf16_f32 v{AV+i}, v{AV+2*i}, v{AV+2*i+1}")
    k("""
    v_bfe_u32 v4, v1, 4, 1
    v_and_b32 v5, 15, v1
    v_lshlrev_b32 v5, 4, v5
    v_lshl_add_u32 v5, v3, 8, v5
    v_lshl_add_u32 v5, v4, 16, v5
    s_lshl_b32 s38, s28, 17
    s_lshl_b32 s39, s29, 10
    s_add_u32 s38, s38, s39
    """)
    k(f"s_add_u32 s39, s38, {VF}")
    k(f"buffer_store_dwordx4 v[{AV}:{AV+3}], v5, s[20:23], s39 offen")
    k(f"buffer_store_dwordx4 v[{AV+4}:{AV+7}], v5, s[20:23], s39 offen offset:512")
    k(f"v_mul_f32 v166, {f32(0.25*LOG2E)}, v165")
    k("v_lshlrev_b32 v6, 4, v1")
    k("s_waitcnt lgkmcnt(0)")
    for t in range(2):
        A = ACC + 16 * t
        sc = 166 if t == 0 else 165
        for r in range(16):
            k(f"v_fma_f32 v{A+r}, -v164, v{CQ+16*t+r}, v{A+r}")
            k(f"v_mul_f32 v{A+r}, v{A+r}, v{sc}")
        for i in range(8):
            k(f"v_cvt_pk_bf16_f32 v{A+i}, v{A+2*i}, v{A+2*i+1}")
        base = QF if t == 0 else KF
        k(f"s_add_u32 s39, s38, {base}")
        k(f"s_add_u32 s40, s38, {base+65536}")
        k(f"buffer_store_dwordx4 v[{A}:{A+3}], v6, s[20:23], s39 offen")
        k(f"buffer_store_dwordx4 v[{A+4}:{A+7}], v6, s[20:23], s40 offen")
    k.label("L_k1_end")
    k("s_endpgm")
    return k, "grid=(256,1,1) block=(256,1,1) lds=%d" % (NST * STAGE)
```

```python
from common import *

VBASE = 65536
VSTR = 1040
LDS = VBASE + 66 * VSTR


def gen():
    k = Kern("attn_kernel")
    Q = 4
    KFR = 8
    VFR = 16
    S = 32
    C = 64
    O = 80
    P0 = 96
    P1 = 100
    AK, AV0, AV1 = 104, 105, 106
    TMP = 108
    PF = 116
    k("""
    s_load_dwordx2 s[8:9], s[0:1], 72
    s_cmp_ge_u32 s2, 256
    s_cbranch_scc1 L_k2_end
    """)
    code_prefetch(k, 2, PF, 24, 512, 8192)
    k("""
    v_and_b32 v1, 63, v0
    v_lshrrev_b32 v2, 6, v0
    """)
    k("v_readfirstlane_b32 s26, v2")
    k("""
    s_and_b32 s27, s2, 31
    s_lshr_b32 s28, s2, 5
    s_lshl_b32 s28, s28, 3
    s_add_u32 s28, s28, s26
    v_lshlrev_b32 v2, 4, v1
    s_lshl_b32 s29, s27, 16
    s_lshl_b32 s30, s26, 10
    s_add_u32 s31, s29, s30
    """)
    k(f"""
    s_mul_i32 s32, s26, {VSTR}
    s_add_u32 s32, s32, {VBASE}
    s_lshl_b32 s33, s28, 10
    s_add_u32 s33, s33, s29
    s_waitcnt lgkmcnt(0)
    """)
    srd(k, 20, 8, 9, WS_BYTES)
    k(f"buffer_load_dwordx4 v[{Q}:{Q+3}], v2, s[20:23], s33 offen")
    for c in range(8):
        k(f"s_add_u32 s34, s31, {KF + c*8192}")
        k(f"s_add_u32 m0, s30, {c*8192}")
        k(f"buffer_load_dwordx4 v2, s[20:23], s34 offen lds")
        k(f"s_add_u32 s34, s31, {VF + c*8192}")
        k(f"s_add_u32 m0, s32, {c*8*VSTR}")
        k(f"buffer_load_dwordx4 v2, s[20:23], s34 offen lds")
    k(f"""
    v_mov_b32 v{TMP}, 0x3f803f80
    v_mov_b32 v{TMP+1}, 0x3f803f80
    v_mov_b32 v{TMP+2}, 0x3f803f80
    v_mov_b32 v{TMP+3}, 0x3f803f80
    v_mul_u32_u24 v3, {VSTR}, v1
    v_add_u32 v3, {VBASE+1024}, v3
    s_cmp_lg_u32 s26, 0
    s_cbranch_scc1 L_k2_noones
    ds_write_b128 v3, v[{TMP}:{TMP+3}]
    """)
    k.label("L_k2_noones")
    k(f"""
    v_mov_b32 v{AK}, v2
    v_and_b32 v3, 15, v1
    v_lshlrev_b32 v3, 4, v3
    v_lshrrev_b32 v{TMP+4}, 5, v1
    v_lshl_add_u32 v3, v{TMP+4}, 8, v3
    v_and_b32 v{TMP+5}, 16, v1
    v_cmp_eq_u32 vcc, 0, v{TMP+5}
    v_mov_b32 v{TMP+6}, 1024
    v_mov_b32 v{TMP+7}, 512
    v_cndmask_b32 v{AV0}, v{TMP+6}, v3, vcc
    v_cndmask_b32 v{AV1}, v{TMP+7}, v3, vcc
    v_add_u32 v{AV0}, {VBASE}, v{AV0}
    v_add_u32 v{AV1}, {VBASE}, v{AV1}
    """)
    for i in range(16):
        k(f"v_mov_b32 v{O+i}, 0")
    k("s_waitcnt vmcnt(12) lgkmcnt(0)")
    k("s_barrier")
    Qr = f"v[{Q}:{Q+3}]"

    def Kr(b): return f"v[{KFR+4*b}:{KFR+4*b+3}]"
    def Vr(b, j): return f"v[{VFR+8*b+4*j}:{VFR+8*b+4*j+3}]"
    def Sr(b): return f"v[{S+16*b}:{S+16*b+15}]"
    Cr = f"v[{C}:{C+15}]"
    Or = f"v[{O}:{O+15}]"
    def rdK(t, b): k(f"ds_read_b128 {Kr(b)}, v{AK} offset:{t*1024}")
    def rdV(t, b):
        k(f"ds_read_b128 {Vr(b,0)}, v{AV0} offset:{t*VSTR}")
        k(f"ds_read_b128 {Vr(b,1)}, v{AV1} offset:{t*VSTR+512}")
    rdK(0, 0)
    rdK(1, 1)
    rdV(0, 0)
    k("s_waitcnt lgkmcnt(3)")
    k(f"v_mfma_f32_32x32x16_bf16 {Sr(1)}, {Kr(0)}, {Qr}, 0")
    s1 = S + 16
    k(f"v_max3_f32 v{TMP}, v{s1}, v{s1+1}, v{s1+2}")
    k(f"v_max3_f32 v{TMP+1}, v{s1+3}, v{s1+4}, v{s1+5}")
    k(f"v_max3_f32 v{TMP+2}, v{s1+6}, v{s1+7}, v{s1+8}")
    k(f"v_max3_f32 v{TMP+3}, v{s1+9}, v{s1+10}, v{s1+11}")
    k(f"v_max3_f32 v{TMP}, v{TMP}, v{s1+12}, v{s1+13}")
    k(f"v_max3_f32 v{TMP+1}, v{TMP+1}, v{s1+14}, v{s1+15}")
    k(f"v_max3_f32 v{TMP}, v{TMP}, v{TMP+1}, v{TMP+2}")
    k(f"v_max_f32 v{TMP}, v{TMP}, v{TMP+3}")
    k(f"v_mov_b32 v{TMP+1}, v{TMP}")
    k(f"v_permlane32_swap_b32 v{TMP}, v{TMP+1}")
    k(f"v_max_f32 v{TMP}, v{TMP}, v{TMP+1}")
    for i in range(16):
        k(f"v_sub_f32 v{C+i}, 0, v{TMP}")
    k(f"v_mfma_f32_32x32x16_bf16 {Sr(0)}, {Kr(0)}, {Qr}, {Cr}")

    def E(b, a, n):
        for i in range(a, a + n):
            k(f"v_exp_f32 v{S+16*b+i}, v{S+16*b+i}")
    def CV(dst, b, i):
        k(f"v_cvt_pk_bf16_f32 v{dst}, v{S+16*b+2*i}, v{S+16*b+2*i+1}")

    def tile(t, first=False):
        b = t % 2
        nb = 1 - b
        k("s_waitcnt lgkmcnt(0)")
        k(f"v_mfma_f32_32x32x16_bf16 {Sr(nb)}, {Kr(nb)}, {Qr}, {Cr}")
        rdK(t + 2, b)
        E(b, 0, 4)
        if not first:
            k(f"v_mfma_f32_32x32x16_bf16 {Or}, {Vr(nb,1)}, v[{P1}:{P1+3}], {Or}")
        rdV(t + 1, nb)
        E(b, 4, 2)
        CV(P0, b, 0)
        E(b, 6, 2)
        CV(P0 + 1, b, 1)
        E(b, 8, 2)
        CV(P0 + 2, b, 2)
        E(b, 10, 2)
        CV(P0 + 3, b, 3)
        E(b, 12, 2)
        k(f"v_mfma_f32_32x32x16_bf16 {Or}, {Vr(b,0)}, v[{P0}:{P0+3}], {Or}")
        E(b, 14, 2)
        CV(P1, b, 4)
        CV(P1 + 1, b, 5)
        CV(P1 + 2, b, 6)
        CV(P1 + 3, b, 7)

    def bump():
        k(f"v_add_u32 v{AK}, 8192, v{AK}")
        k(f"v_add_u32 v{AV0}, {8*VSTR}, v{AV0}")
        k(f"v_add_u32 v{AV1}, {8*VSTR}, v{AV1}")

    for t in range(8):
        tile(t, first=(t == 0))
    bump()
    k("s_waitcnt vmcnt(0)")
    k("s_barrier")
    k("s_mov_b32 s35, 7")
    k.raw(".p2align 6")
    k.label("L_k2_loop")
    for t in range(8):
        tile(t)
    bump()
    k("s_sub_u32 s35, s35, 1")
    k("s_cmp_lg_u32 s35, 0")
    k("s_cbranch_scc1 L_k2_loop")
    k.check_backedge("L_k2_loop")
    k(f"v_mfma_f32_32x32x16_bf16 {Or}, {Vr(1,1)}, v[{P1}:{P1+3}], {Or}")
    k("s_waitcnt lgkmcnt(0)")
    k(f"v_max3_f32 v{TMP}, abs(v{O}), abs(v{O+1}), abs(v{O+2})")
    k(f"v_max3_f32 v{TMP+1}, abs(v{O+3}), abs(v{O+4}), abs(v{O+5})")
    k(f"v_max3_f32 v{TMP}, v{TMP}, abs(v{O+6}), abs(v{O+7})")
    k(f"v_add_f32 v{TMP+2}, v{O}, v{O+1}")
    k(f"v_add_f32 v{TMP+3}, v{O+2}, v{O+3}")
    k(f"v_add_f32 v{TMP+4}, v{O+4}, v{O+5}")
    k(f"v_add_f32 v{TMP+5}, v{O+6}, v{O+7}")
    k(f"v_add_f32 v{TMP+2}, v{TMP+2}, v{TMP+3}")
    k(f"v_add_f32 v{TMP+4}, v{TMP+4}, v{TMP+5}")
    k(f"v_add_f32 v{TMP+2}, v{TMP+2}, v{TMP+4}")
    k(f"v_max_f32 v{TMP}, v{TMP}, v{TMP+1}")
    k(f"s_mov_b32 s36, {f32(2.0**100)}")
    k(f"s_mov_b32 s37, 0x7f000000")
    k(f"v_cmp_gt_f32 vcc, s36, v{O+8}")
    k(f"v_cmp_gt_f32 s[38:39], s37, v{TMP}")
    k(f"v_cmp_o_f32 s[40:41], v{TMP+2}, v{TMP+2}")
    k("s_and_b64 vcc, vcc, s[38:39]")
    k("s_and_b64 vcc, vcc, s[40:41]")
    k("s_cmp_eq_u64 vcc, exec")
    k("s_cbranch_scc0 L_k2_slow")
    k.label("L_k2_fin")
    k(f"v_rcp_f32 v{TMP}, v{O+8}")
    for i in range(8):
        k(f"v_mul_f32 v{O+i}, v{O+i}, v{TMP}")
    for i in range(4):
        k(f"v_cvt_pk_bf16_f32 v{O+i}, v{O+2*i}, v{O+2*i+1}")
    k(f"""
    s_lshl_b32 s36, s28, 15
    s_lshl_b32 s37, s27, 10
    s_add_u32 s36, s36, s37
    s_add_u32 s36, s36, {OF}
    buffer_store_dwordx4 v[{O}:{O+3}], v2, s[20:23], s36 offen
    """)
    k.label("L_k2_end")
    k("s_endpgm")
    k.label("L_k2_slow")
    M = TMP + 6
    k(f"v_subrev_u32 v{AK}, 65536, v{AK}")
    k(f"v_subrev_u32 v{AV0}, {64*VSTR}, v{AV0}")
    k(f"v_subrev_u32 v{AV1}, {64*VSTR}, v{AV1}")
    for i in range(16):
        k(f"v_mov_b32 v{O+i}, 0")
    k(f"v_mov_b32 v{M}, 0xff7fffff")
    k("s_mov_b32 s35, 64")
    k.label("L_k2_sloop")
    rdK(0, 0)
    rdV(0, 0)
    k("s_waitcnt lgkmcnt(0)")
    k(f"v_mfma_f32_32x32x16_bf16 {Sr(0)}, {Kr(0)}, {Qr}, 0")
    s0 = S
    k(f"v_max3_f32 v{TMP}, v{s0}, v{s0+1}, v{s0+2}")
    k(f"v_max3_f32 v{TMP+1}, v{s0+3}, v{s0+4}, v{s0+5}")
    k(f"v_max3_f32 v{TMP+2}, v{s0+6}, v{s0+7}, v{s0+8}")
    k(f"v_max3_f32 v{TMP+3}, v{s0+9}, v{s0+10}, v{s0+11}")
    k(f"v_max3_f32 v{TMP}, v{TMP}, v{s0+12}, v{s0+13}")
    k(f"v_max3_f32 v{TMP+1}, v{TMP+1}, v{s0+14}, v{s0+15}")
    k(f"v_max3_f32 v{TMP}, v{TMP}, v{TMP+1}, v{TMP+2}")
    k(f"v_max_f32 v{TMP}, v{TMP}, v{TMP+3}")
    k(f"v_mov_b32 v{TMP+1}, v{TMP}")
    k(f"v_permlane32_swap_b32 v{TMP}, v{TMP+1}")
    k(f"v_max3_f32 v{TMP}, v{TMP}, v{TMP+1}, v{M}")
    k(f"v_sub_f32 v{TMP+1}, v{M}, v{TMP}")
    k(f"v_exp_f32 v{TMP+1}, v{TMP+1}")
    k(f"v_mov_b32 v{M}, v{TMP}")
    for i in range(16):
        k(f"v_mul_f32 v{O+i}, v{O+i}, v{TMP+1}")
    for i in range(16):
        k(f"v_sub_f32 v{s0+i}, v{s0+i}, v{M}")
    E(0, 0, 16)
    for i in range(4):
        CV(P0 + i, 0, i)
        CV(P1 + i, 0, 4 + i)
    k(f"v_mfma_f32_32x32x16_bf16 {Or}, {Vr(0,0)}, v[{P0}:{P0+3}], {Or}")
    k(f"v_mfma_f32_32x32x16_bf16 {Or}, {Vr(0,1)}, v[{P1}:{P1+3}], {Or}")
    k(f"v_add_u32 v{AK}, 1024, v{AK}")
    k(f"v_add_u32 v{AV0}, {VSTR}, v{AV0}")
    k(f"v_add_u32 v{AV1}, {VSTR}, v{AV1}")
    k("s_nop 15")
    k("s_sub_u32 s35, s35, 1")
    k("s_cmp_lg_u32 s35, 0")
    k("s_cbranch_scc1 L_k2_sloop")
    k.check_backedge("L_k2_sloop")
    k("s_nop 15")
    k("s_branch L_k2_fin")
    return k, f"grid=(256,1,1) block=(512,1,1) lds={LDS}"
```

```python
from common import *


def gen(which):
    wo = which == "wo"
    name = "wo_kernel" if wo else "down_kernel"
    L = "k3" if wo else "k5"
    KS = 32 if wo else 112
    NCH = KS // 4
    NST = 8 if wo else 9
    STAGE = 16384
    BSRC = OF if wo else AF
    MT_STRIDE = KS * 1024
    k = Kern(name)
    VBD = 10
    VWD = 11
    VBA = 12
    VWA = 15
    RES = 20
    FR = 28
    ACC = 48
    T = 64
    PF = 80
    if wo:
        k("""
        s_load_dwordx2 s[4:5], s[0:1], 0
        s_load_dwordx2 s[6:7], s[0:1], 16
        s_load_dwordx2 s[8:9], s[0:1], 72
        """)
    else:
        k("""
        s_load_dwordx4 s[4:7], s[0:1], 48
        s_load_dwordx2 s[8:9], s[0:1], 72
        """)
    k(f"""
    s_cmp_ge_u32 s2, 256
    s_cbranch_scc1 L_{L}_end
    """)
    code_prefetch(k, 2, PF, 24, 256, 12288)
    k("""
    v_and_b32 v1, 63, v0
    v_lshrrev_b32 v2, 6, v0
    """)
    k("v_readfirstlane_b32 s26, v2")
    k("""
    s_and_b32 s27, s2, 7
    s_lshl_b32 s27, s27, 2
    s_lshr_b32 s28, s2, 3
    s_and_b32 s28, s28, 3
    s_add_u32 s27, s27, s28
    s_lshr_b32 s28, s2, 5
    s_and_b32 s29, s26, 1
    s_lshr_b32 s30, s26, 1
    """)
    k(f"""
    s_lshl_b32 s31, s27, 1
    s_add_u32 s31, s31, s30
    s_mul_i32 s32, s31, {MT_STRIDE}
    s_lshl_b32 s33, s29, 11
    s_add_u32 s32, s32, s33
    s_add_u32 s32, s32, {BSRC}
    v_lshlrev_b32 v{VBD}, 4, v1
    s_lshl_b32 s34, s26, 11
    """)
    k(f"""
    v_lshrrev_b32 v2, 3, v1
    v_bfe_u32 v3, v1, 2, 1
    v_bfe_u32 v4, v1, 4, 1
    v_xor_b32 v3, v3, v4
    v_and_b32 v4, 3, v1
    v_lshlrev_b32 v4, 4, v4
    v_lshl_add_u32 v4, v3, 6, v4
    v_lshl_add_u32 v4, v2, 10, v4
    s_lshl_b32 s35, s26, 14
    s_lshl_b32 s36, s28, 7
    s_add_u32 s35, s35, s36
    v_add_u32 v{VWD}, s35, v4
    s_waitcnt lgkmcnt(0)
    """)
    if wo:
        srd(k, 12, 4, 5, 2 * MB)
        srd(k, 16, 6, 7, 512 * 1024)
    else:
        srd(k, 12, 6, 7, 2 * MB)
        srd(k, 16, 4, 5, 1792 * 1024)
    srd(k, 20, 8, 9, WS_BYTES)
    k(f"""
    v_and_b32 v2, 31, v1
    v_lshrrev_b32 v3, 5, v1
    s_lshl_b32 s37, s28, 1
    s_add_u32 s37, s37, s29
    """)
    if wo:
        k(f"""
        v_lshlrev_b32 v4, 10, v2
        v_lshl_add_u32 v4, v3, 3, v4
        s_lshl_b32 s38, s31, 15
        s_lshl_b32 s39, s37, 6
        s_add_u32 s38, s38, s39
        """)
        for g in range(4):
            k(f"buffer_load_dwordx2 v[{RES+2*g}:{RES+2*g+1}], v4, s[12:15], s38 offen offset:{g*16}")
        nres = 4
    else:
        k(f"""
        s_lshl_b32 s38, s31, 15
        s_lshl_b32 s39, s37, 11
        s_add_u32 s38, s38, s39
        s_add_u32 s38, s38, {HF}
        buffer_load_dwordx4 v[{RES}:{RES+3}], v{VBD}, s[20:23], s38 offen
        buffer_load_dwordx4 v[{RES+4}:{RES+7}], v{VBD}, s[20:23], s38 offen offset:1024
        """)

    def dma_chunk(c):
        st = (c % NST) * STAGE
        k(f"s_add_u32 s40, s32, {c*4096}")
        k(f"s_add_u32 m0, s34, {st}")
        k(f"buffer_load_dwordx4 v{VBD}, s[20:23], s40 offen lds")
        k(f"buffer_load_dwordx4 v{VBD}, s[20:23], s40 offen offset:1024 lds")
        k(f"s_mov_b32 s40, {c*65536}")
        k(f"s_add_u32 m0, s34, {st+8192}")
        k(f"buffer_load_dwordx4 v{VWD}, s[16:19], s40 offen lds")
        k(f"s_mov_b32 s40, {c*65536+8192}")
        k(f"s_add_u32 m0, s34, {st+8192+1024}")
        k(f"buffer_load_dwordx4 v{VWD}, s[16:19], s40 offen lds")

    npro = min(NST, NCH) if wo else NST - 1
    for c in range(npro):
        dma_chunk(c)
    k(f"""
    s_lshl_b32 s40, s30, 12
    v_add_u32 v{VBA}, s40, v{VBD}
    v_bfe_u32 v4, v1, 2, 2
    v_lshl_add_u32 v5, v3, 2, v4
    v_lshlrev_b32 v5, 7, v5
    v_lshrrev_b32 v4, 1, v4
    v_xor_b32 v4, s29, v4
    v_lshl_add_u32 v5, v4, 6, v5
    v_bfe_u32 v4, v1, 4, 1
    v_lshl_add_u32 v5, v4, 5, v5
    v_and_b32 v4, 3, v1
    v_lshl_add_u32 v5, v4, 3, v5
    v_add_u32 v{VWA}, 8192, v5
    """)
    for s_ in (1, 2):
        k(f"v_add_u32 v{VBA+s_}, {s_*65536}, v{VBA}")
        k(f"v_add_u32 v{VWA+s_}, {s_*65536}, v{VWA}")
    for i in range(16):
        k(f"v_mov_b32 v{ACC+i}, 0")

    def reads(n):
        c, s_ = n // 4, n % 4
        st = (c % NST) * STAGE
        sset, off = st // 65536, st % 65536
        b = FR + (n % 2) * 8
        k(f"ds_read_b128 v[{b}:{b+3}], v{VBA+sset} offset:{off + s_*1024}")
        k(f"ds_read_b64_tr_b16 v[{b+4}:{b+5}], v{VWA+sset} offset:{off + s_*2048}")
        k(f"ds_read_b64_tr_b16 v[{b+6}:{b+7}], v{VWA+sset} offset:{off + s_*2048 + 1024}")

    issued = npro

    def sync(c):
        nonlocal issued
        k(f"s_waitcnt vmcnt({4*(issued - 1 - c)})")
        k("s_barrier")
        while issued < NCH and issued <= c - 1 + NST:
            dma_chunk(issued)
            issued += 1

    sync(0)
    reads(0)
    for n in range(KS):
        k("s_waitcnt lgkmcnt(0)")
        if n + 1 < KS:
            if (n + 1) % 4 == 0:
                sync((n + 1) // 4)
            reads(n + 1)
        b = FR + (n % 2) * 8
        k(f"v_mfma_f32_32x32x16_bf16 v[{ACC}:{ACC+15}], v[{b+4}:{b+7}], v[{b}:{b+3}], v[{ACC}:{ACC+15}]")
    for i in range(8):
        k(f"v_lshlrev_b32 v{T+2*i}, 16, v{RES+i}")
        k(f"v_and_b32 v{T+2*i+1}, 0xffff0000, v{RES+i}")
    for r in range(16):
        k(f"v_add_f32 v{ACC+r}, v{ACC+r}, v{T+r}")
    if wo:
        k(f"v_add_f32 v{T}, v{ACC}, v{ACC+1}")
        k(f"v_mul_f32 v{T+1}, v{ACC}, v{ACC}")
        k(f"v_fmac_f32 v{T+1}, v{ACC+1}, v{ACC+1}")
        for r in range(2, 16):
            k(f"v_add_f32 v{T}, v{T}, v{ACC+r}")
            k(f"v_fmac_f32 v{T+1}, v{ACC+r}, v{ACC+r}")
        k(f"""
        v_mov_b32 v{T+2}, v{T}
        v_mov_b32 v{T+3}, v{T+1}
        v_permlane32_swap_b32 v{T}, v{T+2}
        v_permlane32_swap_b32 v{T+1}, v{T+3}
        v_add_f32 v{T}, v{T}, v{T+2}
        v_add_f32 v{T+1}, v{T+1}, v{T+3}
        """)
        for i in range(8):
            k(f"v_cvt_pk_bf16_f32 v{ACC+i}, v{ACC+2*i}, v{ACC+2*i+1}")
        k(f"""
        s_lshl_b32 s38, s31, 15
        s_lshl_b32 s39, s37, 11
        s_add_u32 s38, s38, s39
        s_add_u32 s38, s38, {HF}
        buffer_store_dwordx4 v[{ACC}:{ACC+3}], v{VBD}, s[20:23], s38 offen
        buffer_store_dwordx4 v[{ACC+4}:{ACC+7}], v{VBD}, s[20:23], s38 offen offset:1024
        v_lshlrev_b32 v4, 7, v2
        s_lshl_b32 s38, s31, 12
        s_lshl_b32 s39, s37, 3
        s_add_u32 s38, s38, s39
        s_add_u32 s38, s38, {ST}
        buffer_store_dwordx2 v[{T}:{T+1}], v4, s[20:23], s38 offen
        """)
    else:
        for i in range(8):
            k(f"v_cvt_pk_bf16_f32 v{ACC+i}, v{ACC+2*i}, v{ACC+2*i+1}")
        k(f"""
        v_permlane32_swap_b32 v{ACC}, v{ACC+2}
        v_permlane32_swap_b32 v{ACC+1}, v{ACC+3}
        v_permlane32_swap_b32 v{ACC+4}, v{ACC+6}
        v_permlane32_swap_b32 v{ACC+5}, v{ACC+7}
        v_lshlrev_b32 v4, 10, v2
        v_lshl_add_u32 v4, v3, 4, v4
        s_lshl_b32 s38, s31, 15
        s_lshl_b32 s39, s37, 6
        s_add_u32 s38, s38, s39
        buffer_store_dwordx4 v[{ACC}:{ACC+3}], v4, s[12:15], s38 offen
        buffer_store_dwordx4 v[{ACC+4}:{ACC+7}], v4, s[12:15], s38 offen offset:32
        """)
    k.label(f"L_{L}_end")
    k("s_endpgm")
    return k, f"grid=(256,1,1) block=(256,1,1) lds={NST*STAGE}"
```

```python
from common import *


def gen():
    k = Kern("gu_kernel")
    NST = 5
    UOFF = 14336 + 128
    STAGE = UOFF + 14336
    CSL = NST * STAGE
    LDS = CSL + 1024
    VWD = 10
    VWA = 17
    VL16 = 20
    VCSA = 21
    STT = 24
    FR = 40
    ACC = 96
    T = 208
    CSR = 240
    PF = 244
    MEAN, C1, C2 = 245, 246, 247
    k("""
    s_load_dwordx4 s[4:7], s[0:1], 32
    s_load_dwordx2 s[8:9], s[0:1], 72
    s_cmp_ge_u32 s2, 256
    s_cbranch_scc1 L_k4_end
    """)
    code_prefetch(k, 2, PF, 24, 256, 16384)
    k("""
    v_and_b32 v1, 63, v0
    v_lshrrev_b32 v2, 6, v0
    """)
    k("v_readfirstlane_b32 s26, v2")
    k("""
    s_lshr_b32 s27, s2, 1
    s_and_b32 s27, s27, 3
    s_lshl_b32 s27, s27, 2
    s_lshr_b32 s28, s2, 3
    s_and_b32 s28, s28, 3
    s_add_u32 s27, s27, s28
    s_and_b32 s28, s2, 1
    s_lshl_b32 s28, s28, 3
    s_lshr_b32 s29, s2, 5
    s_add_u32 s28, s28, s29
    s_lshl_b32 s29, s27, 2
    s_add_u32 s29, s29, s26
    """)
    k("""
    s_and_b32 s30, s26, 1
    s_mul_i32 s31, s30, 448
    s_mul_i32 s32, s28, 224
    s_movk_i32 s33, 4682
    """)
    for j in range(7):
        k(f"""
        v_add_u32 v4, s31, v1
        v_add_u32 v4, {64*j}, v4
        v_mul_lo_u32 v5, v4, s33
        v_lshrrev_b32 v5, 16, v5
        v_mul_u32_u24 v6, 14, v5
        v_sub_u32 v6, v4, v6
        v_mul_u32_u24 v5, 3584, v5
        v_lshl_add_u32 v5, v6, 4, v5
        v_add_u32 v{VWD+j}, s32, v5
        """)
    k(f"v_lshlrev_b32 v{VL16}, 4, v1")
    k("s_waitcnt lgkmcnt(0)")
    k(f"""
    s_cmp_lt_u32 s26, 2
    s_cselect_b32 s16, s4, s6
    s_cselect_b32 s17, s5, s7
    s_cselect_b32 s34, 0, {UOFF}
    s_mov_b32 s18, {512*3584}
    s_mov_b32 s19, 0x20000
    """)
    srd(k, 20, 8, 9, WS_BYTES)
    k(f"""
    s_mul_i32 s35, s30, 7168
    s_add_u32 s34, s34, s35
    s_lshl_b32 s38, s29, 15
    s_add_u32 s38, s38, {HF}
    """)

    def group(c):
        st = (c % NST) * STAGE
        k(f"s_mov_b32 s36, {c*64*3584}")
        for j in range(7):
            k(f"s_add_u32 m0, s34, {st + j*1024}")
            k(f"buffer_load_dwordx4 v{VWD+j}, s[16:19], s36 offen lds")
        k(f"s_add_u32 s39, s38, {c*4096}")
        for i in range(4):
            n = 4 * c + i
            k(f"buffer_load_dwordx4 a[{4*n}:{4*n+3}], v{VL16}, s[20:23], s39 offen offset:{i*1024}")

    group(0)
    k(f"""
    v_and_b32 v2, 31, v1
    v_lshrrev_b32 v3, 5, v1
    v_lshlrev_b32 v4, 7, v2
    v_lshl_add_u32 v4, v3, 6, v4
    s_lshl_b32 s36, s29, 12
    s_add_u32 s36, s36, {ST}
    """)
    for i in range(4):
        k(f"buffer_load_dwordx4 v[{STT+4*i}:{STT+4*i+3}], v4, s[20:23], s36 offen offset:{16*i}")
    k(f"""
    v_min_u32 v5, 223, v0
    v_cmp_lt_u32 vcc, 111, v5
    v_mov_b32 v6, {1792-112}
    v_cndmask_b32 v6, 0, v6, vcc
    v_add_u32 v6, v6, v5
    v_lshlrev_b32 v6, 4, v6
    s_mul_i32 s36, s28, {112*16}
    s_add_u32 s36, s36, {CS}
    buffer_load_dwordx4 v[{CSR}:{CSR+3}], v6, s[20:23], s36 offen
    v_lshlrev_b32 v9, 2, v5
    """)
    for c in range(1, NST):
        group(c)
    k(f"""
    v_bfe_u32 v4, v1, 2, 2
    v_lshl_add_u32 v4, v3, 2, v4
    v_mul_u32_u24 v4, 224, v4
    v_and_b32 v5, 3, v1
    v_lshl_add_u32 v4, v5, 3, v4
    v_bfe_u32 v5, v1, 4, 1
    v_mul_u32_u24 v5, {UOFF}, v5
    v_add_u32 v{VWA}, v4, v5
    v_add_u32 v{VWA+1}, {2*STAGE}, v{VWA}
    v_add_u32 v{VWA+2}, {4*STAGE}, v{VWA}
    v_lshlrev_b32 v{VCSA}, 4, v3
    v_add_u32 v{VCSA}, {CSL}, v{VCSA}
    v_add_u32 v9, {CSL}, v9
    """)
    for i in range(112):
        k(f"v_mov_b32 v{ACC+i}, 0")

    def reads(n):
        c, s_ = n // 4, n % 4
        st = c % NST
        sset, off = st // 2, (st % 2) * STAGE
        b = FR + (n % 2) * 28
        for p in range(7):
            for ab in range(2):
                r = b + 4 * p + 2 * ab
                k(f"ds_read_b64_tr_b16 v[{r}:{r+1}], v{VWA+sset} offset:{off + s_*3584 + ab*1792 + p*32}")

    issued = NST

    def sync(c):
        nonlocal issued
        k(f"s_waitcnt vmcnt({11*(issued - 1 - c)})")
        k("s_barrier")
        while issued < 8 and issued <= c - 1 + NST:
            group(issued)
            issued += 1

    k(f"s_waitcnt vmcnt({11*4})")
    k(f"""
    v_add_f32 v{CSR}, v{CSR}, v{CSR+1}
    v_add_f32 v{CSR+2}, v{CSR+2}, v{CSR+3}
    v_add_f32 v{CSR}, v{CSR}, v{CSR+2}
    ds_write_b32 v9, v{CSR}
    s_barrier
    """)
    reads(0)
    for i in range(1, 8):
        k(f"v_add_f32 v{STT}, v{STT}, v{STT+2*i}")
        k(f"v_add_f32 v{STT+1}, v{STT+1}, v{STT+2*i+1}")
    k(f"""
    v_mov_b32 v{STT+2}, v{STT}
    v_mov_b32 v{STT+3}, v{STT+1}
    v_permlane32_swap_b32 v{STT}, v{STT+2}
    v_permlane32_swap_b32 v{STT+1}, v{STT+3}
    v_add_f32 v{STT}, v{STT}, v{STT+2}
    v_add_f32 v{STT+1}, v{STT+1}, v{STT+3}
    v_mul_f32 v{MEAN}, {f32(1/512)}, v{STT}
    v_mul_f32 v{C2}, {f32(1/512)}, v{STT+1}
    v_fma_f32 v{C2}, -v{MEAN}, v{MEAN}, v{C2}
    v_max_f32 v{C2}, 0, v{C2}
    v_add_f32 v{C2}, {f32(1e-5)}, v{C2}
    v_rsq_f32 v{C1}, v{C2}
    v_mul_f32 v{C1}, {f32(-LOG2E)}, v{C1}
    """)
    for n in range(32):
        k("s_waitcnt lgkmcnt(0)")
        if n + 1 < 32:
            if (n + 1) % 4 == 0:
                sync((n + 1) // 4)
            reads(n + 1)
        b = FR + (n % 2) * 28
        for p in range(7):
            A = f"v[{ACC+16*p}:{ACC+16*p+15}]"
            k(f"v_mfma_f32_32x32x16_bf16 {A}, v[{b+4*p}:{b+4*p+3}], a[{4*n}:{4*n+3}], {A}")
    k(f"""
    s_mul_i32 s36, s29, {112*1024}
    s_mul_i32 s37, s28, {7*1024}
    s_add_u32 s36, s36, s37
    s_add_u32 s36, s36, {AF}
    """)
    def csread(p):
        d = FR + (p % 2) * 16
        k(f"ds_read_b128 v[{d}:{d+3}], v{VCSA} offset:{p*64}")
        k(f"ds_read_b128 v[{d+4}:{d+7}], v{VCSA} offset:{p*64+32}")
        k(f"ds_read_b128 v[{d+8}:{d+11}], v{VCSA} offset:{448+p*64}")
        k(f"ds_read_b128 v[{d+12}:{d+15}], v{VCSA} offset:{448+p*64+32}")
    csread(0)
    for p in range(7):
        k("s_waitcnt lgkmcnt(0)")
        if p + 1 < 7:
            csread(p + 1)
        d = FR + (p % 2) * 16
        A = ACC + 16 * p
        for r in range(16):
            k(f"v_fma_f32 v{A+r}, -v{MEAN}, v{d+r}, v{A+r}")
        for r in range(8):
            k(f"v_mul_f32 v{T+r}, v{A+r}, v{C1}")
        for r in range(8):
            k(f"v_exp_f32 v{T+r}, v{T+r}")
        for r in range(8):
            k(f"v_mul_f32 v{A+r}, v{A+r}, v{A+8+r}")
        for r in range(8):
            k(f"v_fma_f32 v{T+r}, v{T+r}, v{C2}, v{C2}")
        for r in range(8):
            k(f"v_rcp_f32 v{T+r}, v{T+r}")
        for r in range(8):
            k(f"v_mul_f32 v{A+r}, v{A+r}, v{T+r}")
        for i in range(4):
            k(f"v_cvt_pk_bf16_f32 v{A+i}, v{A+2*i}, v{A+2*i+1}")
        if p % 4 == 0 and p:
            k(f"s_add_u32 s36, s36, 4096")
        k(f"buffer_store_dwordx4 v[{A}:{A+3}], v{VL16}, s[20:23], s36 offen offset:{(p%4)*1024}")
    k.label("L_k4_end")
    k("s_endpgm")
    return k, f"grid=(256,1,1) block=(256,1,1) lds={LDS}"


def gen_cs():
    k = Kern("cs_kernel")
    k("""
    s_load_dwordx4 s[4:7], s[0:1], 32
    s_load_dwordx2 s[8:9], s[0:1], 72
    s_cmp_ge_u32 s2, 28
    s_cbranch_scc1 L_cs_end
    v_and_b32 v1, 63, v0
    v_lshrrev_b32 v2, 6, v0
    """)
    k("v_readfirstlane_b32 s26, v2")
    k("s_waitcnt lgkmcnt(0)")
    k(f"""
    s_cmp_lt_u32 s2, 14
    s_cselect_b32 s16, s4, s6
    s_cselect_b32 s17, s5, s7
    s_cselect_b32 s27, 0, 14
    s_mov_b32 s18, {512*3584}
    s_mov_b32 s19, 0x20000
    s_sub_u32 s27, s2, s27
    s_lshl_b32 s27, s27, 8
    s_mul_i32 s28, s26, {128*3584}
    s_add_u32 s27, s27, s28
    v_lshlrev_b32 v3, 2, v1
    v_mov_b32 v4, 0
    v_mov_b32 v5, 0
    s_mov_b32 s29, 16
    """)
    srd(k, 20, 8, 9, WS_BYTES)
    k.label("L_cs_loop")
    for i in range(8):
        k(f"buffer_load_dword v{8+i}, v3, s[16:19], s27 offen")
        k(f"s_add_u32 s27, s27, 3584")
    k("s_waitcnt vmcnt(0)")
    for i in range(8):
        k(f"v_lshlrev_b32 v6, 16, v{8+i}")
        k(f"v_and_b32 v7, 0xffff0000, v{8+i}")
        k("v_add_f32 v4, v4, v6")
        k("v_add_f32 v5, v5, v7")
    k("""
    s_sub_u32 s29, s29, 1
    s_cmp_lg_u32 s29, 0
    s_cbranch_scc1 L_cs_loop
    """)
    k(f"""
    v_lshlrev_b32 v3, 5, v1
    s_lshl_b32 s27, s2, 11
    s_lshl_b32 s28, s26, 2
    s_add_u32 s27, s27, s28
    s_add_u32 s27, s27, {CS}
    buffer_store_dword v4, v3, s[20:23], s27 offen
    buffer_store_dword v5, v3, s[20:23], s27 offen offset:16
    """)
    k.label("L_cs_end")
    k("s_endpgm")
    return k, "grid=(28,1,1) block=(256,1,1) lds=0"
```

```python
import sys
sys.path.insert(0, "gen")
import k1_qkv, k2_attn, k35_gemm64, k4_gu

HDR = open("sequential_preLN__softmax_full_mha__swiglu_ffn__prompt.s.ref").read().split("; Override launch")[0]

def build(out):
    ks = [k1_qkv.gen(), k2_attn.gen(), k35_gemm64.gen("wo"), k4_gu.gen(), k35_gemm64.gen("down")]
    s = HDR
    for k, l in ks:
        s += f"; @launch kernel={k.name} {l}\n"
    s += '.amdgcn_target "amdgcn-amd-amdhsa--gfx950"\n'
    for k, l in ks:
        k.label(f"L_{k.name}_codeend")
        k("s_nop 0")
        s += k.full()
    open(out, "w").write(s)

if __name__ == "__main__":
    build(sys.argv[1] if len(sys.argv) > 1 else "sequential_preLN__softmax_full_mha__swiglu_ffn__prompt.s")
```

```python
from dsl import Kern

MB = 1 << 20
QF = 0 * MB
KF = 2 * MB
VF = 4 * MB
OF = 6 * MB
HF = 8 * MB
ST = 10 * MB
CS = 11 * MB
AF = 12 * MB
WGF = 20 * MB
WS_BYTES = 0x10000000

LOG2E = 1.4426950408889634


def f32(x):
    import struct
    return "0x%08x" % struct.unpack("<I", struct.pack("<f", x))[0]


def srd(k, d, lo, hi, nbytes):
    k(f"""
    s_mov_b32 s{d}, s{lo}
    s_mov_b32 s{d+1}, s{hi}
    s_mov_b32 s{d+2}, {nbytes:#x}
    s_mov_b32 s{d+3}, 0x20000
    """)


def code_prefetch(k, vtmp, vdst, sp, nthreads, nbytes):
    k(f"s_getpc_b64 s[{sp}:{sp+1}]")
    k.label(f"L_{k.name}_pc")
    k(f"v_lshlrev_b32 v{vtmp}, 6, v0")
    per = nthreads * 64
    n = (nbytes + per - 1) // per
    for i in range(n):
        if i:
            k(f"v_add_u32 v{vtmp}, {per}, v{vtmp}")
        k(f"v_min_u32 v3, L_{NEXT[k.name]}_codeend-L_{k.name}_pc, v{vtmp}")
        k(f"global_load_dword v{vdst}, v3, s[{sp}:{sp+1}]")
    return n


import os
STAMPS = os.environ.get("STAMPS") == "1"
STAMP_BASE = 64 * MB


def stamp(k, i):
    if not STAMPS:
        return
    k(f"s_memtime s[{60+2*i}:{61+2*i}]")


def stamp_rt(k, i):
    if not STAMPS:
        return
    k(f"s_memrealtime s[{60+2*i}:{61+2*i}]")


def stamp_flush(k, kidx, n, wave_sgpr=26):
    if not STAMPS:
        return
    k("s_waitcnt lgkmcnt(0)")
    k(f"""
    s_lshl_b32 s56, s2, 4
    s_add_u32 s56, s56, s{wave_sgpr}
    s_lshl_b32 s56, s56, 6
    s_add_u32 s56, s56, {STAMP_BASE + kidx*MB}
    v_mov_b32 v0, 0
    """)
    for i in range(n):
        k(f"v_mov_b32 v1, s{60+2*i}")
        k(f"buffer_store_dword v1, v0, s[20:23], s56 offen offset:{4*i}")

NEXT = {"qkv_kernel": "attn_kernel", "attn_kernel": "wo_kernel", "wo_kernel": "gu_kernel", "gu_kernel": "down_kernel", "down_kernel": "down_kernel"}
```

```python
from common import *
import os
ABL1 = os.environ.get('ABL1', 'plain')


def gen():
    k = Kern("qkv_kernel")
    NST = 4
    STAGE = 28672
    SCR = NST * STAGE
    LDS = SCR + 5120
    VXD = 10
    VWD = 14
    VXA = 20
    VWA = 28
    FR = 40
    ACC = 80
    CSA = 128
    SEL = 144
    T = 156
    SUM = 164
    PF = 168
    k("""
    s_load_dwordx4 s[4:7], s[0:1], 0
    s_load_dwordx2 s[8:9], s[0:1], 72
    s_cmp_ge_u32 s2, 256
    s_cbranch_scc1 L_k1_end
    """)
    stamp_rt(k, 0); stamp(k, 1)
    code_prefetch(k, 2, PF, 24, 512, 32768)
    k("""
    v_and_b32 v1, 63, v0
    v_lshrrev_b32 v2, 6, v0
    """)
    k("v_readfirstlane_b32 s25, v2")
    k("""
    s_lshr_b32 s27, s2, 1
    s_and_b32 s27, s27, 3
    s_lshl_b32 s27, s27, 2
    s_lshr_b32 s28, s2, 3
    s_and_b32 s28, s28, 3
    s_add_u32 s27, s27, s28
    s_and_b32 s28, s2, 1
    s_lshl_b32 s28, s28, 3
    s_lshr_b32 s29, s2, 5
    s_add_u32 s28, s28, s29
    s_and_b32 s26, s25, 3
    s_lshl_b32 s29, s27, 2
    s_add_u32 s29, s29, s26
    s_lshl_b32 s34, s26, 12
    v_and_b32 v2, 31, v1
    v_lshrrev_b32 v3, 5, v1
    s_cmp_lt_u32 s25, 4
    s_cbranch_scc1 L_k1_M
    """)
    k("""
    v_lshrrev_b32 v8, 3, v1
    v_and_b32 v9, 7, v1
    s_lshl_b32 s30, s29, 15
    """)
    for i in range(4):
        k(f"""
        v_add_u32 v4, {8*i}, v8
        v_lshrrev_b32 v5, 1, v4
        v_and_b32 v5, 7, v5
        v_xor_b32 v5, v5, v9
        v_lshlrev_b32 v5, 4, v5
        v_lshl_add_u32 v5, v4, 10, v5
        v_add_u32 v{VXD+i}, s30, v5
        """)
    k("""
    s_mul_i32 s31, s26, 192
    s_lshl_b32 s32, s28, 6
    s_mov_b32 s33, 43691
    """)
    for j in range(3):
        k(f"""
        v_add_u32 v4, s31, v1
        v_add_u32 v4, {64*j}, v4
        v_mul_lo_u32 v5, v4, s33
        v_lshrrev_b32 v5, 19, v5
        v_mul_u32_u24 v6, 12, v5
        v_sub_u32 v6, v4, v6
        v_lshrrev_b32 v7, 2, v6
        v_and_b32 v6, 3, v6
        v_mul_u32_u24 v5, 3072, v5
        v_lshl_add_u32 v5, v7, 10, v5
        v_lshl_add_u32 v5, v6, 4, v5
        v_add_u32 v{VWD+j}, s32, v5
        """)
    k("""
    s_mul_i32 s35, s26, 3072
    s_add_u32 s35, s35, 16384
    s_lshr_b32 s41, s2, 5
    s_lshr_b32 s42, s2, 2
    s_and_b32 s42, s42, 6
    s_add_u32 s41, s41, s42
    s_and_b32 s41, s41, %s
    s_waitcnt lgkmcnt(0)
    """ % os.environ.get("ROTMASK", "7"))
    srd(k, 12, 4, 5, 2 * MB)
    srd(k, 16, 6, 7, 512 * 3072)

    def group_ops(c):
        st = (c % NST) * STAGE
        ops = []
        for i in range(4):
            pre = f"s_add_u32 s36, s41, {c}\ns_and_b32 s36, s36, 7\ns_mul_i32 s37, s36, {64*3072}\ns_lshl_b32 s36, s36, 7\n" if i == 0 else ""
            ops.append(pre + f"s_add_u32 m0, s34, {st + i*1024}\nbuffer_load_dwordx4 v{VXD+i}, s[12:15], s36 offen lds")
        for j in range(3):
            pre = ""
            ops.append(pre + f"s_add_u32 m0, s35, {st + j*1024}\nbuffer_load_dwordx4 v{VWD+j}, s[16:19], s37 offen lds")
        return ops

    for c in range(2):
        for o in group_ops(c):
            k(o)
    k("""
    v_lshrrev_b32 v4, 1, v2
    v_and_b32 v4, 7, v4
    v_lshlrev_b32 v5, 7, v2
    v_add_u32 v5, s34, v5
    """)
    for p in range(4):
        k(f"""
        v_add_u32 v7, {2*p}, v3
        v_xor_b32 v7, v7, v4
        v_lshl_add_u32 v{VXA+p}, v7, 4, v5
        v_add_u32 v{VXA+4+p}, {2*STAGE}, v{VXA+p}
        """)
    for i in range(4):
        k(f"v_mov_b32 v{SUM+i}, 0")
    def stats(c, pend):
        fb = FR + 16 * (c % 2)
        for j in range(16):
            if pend and j % 2 == 0:
                k(pend.pop(0))
            lo, hi = T + 2 * (j % 4), T + 2 * (j % 4) + 1
            if ABL1 == "nostats":
                continue
            k(f"""
            v_lshlrev_b32 v{lo}, 16, v{fb+j}
            v_and_b32 v{hi}, s43, v{fb+j}
            """)
            if ABL1 == "pk":
                k(f"""
                v_pk_add_f32 v[{SUM}:{SUM+1}], v[{SUM}:{SUM+1}], v[{lo}:{hi}]
                v_pk_fma_f32 v[{SUM+2}:{SUM+3}], v[{lo}:{hi}], v[{lo}:{hi}], v[{SUM+2}:{SUM+3}]
                """)
            else:
                if ABL1 != "sqonly":
                    k(f"""
                    v_add_f32 v{SUM}, v{SUM}, v{lo}
                    v_add_f32 v{SUM+1}, v{SUM+1}, v{hi}
                    """)
                k(f"""
                v_fmac_f32 v{SUM+2}, v{lo}, v{lo}
                v_fmac_f32 v{SUM+3}, v{hi}, v{hi}
                """)

    k("s_mov_b32 s43, 0xffff0000")
    for c in range(8):
        k(f"s_waitcnt vmcnt({7 if c + 1 <= 7 else 0}) lgkmcnt(0)")
        k("s_barrier")
        st = c % NST
        fb = FR + 16 * (c % 2)
        for p in range(4):
            k(f"ds_read_b128 v[{fb+4*p}:{fb+4*p+3}], v{VXA + 4*(st//2) + p} offset:{(st%2)*STAGE}")
        pend = group_ops(c + 2) if c + 2 <= 7 else []
        if c:
            stats(c - 1, pend)
        for o in pend:
            k(o)
    k("s_waitcnt lgkmcnt(0)")
    stats(7, [])
    k(f"""
    v_add_f32 v164, v164, v165
    v_add_f32 v166, v166, v167
    v_mov_b32 v165, v164
    v_mov_b32 v167, v166
    v_permlane32_swap_b32 v164, v165
    v_permlane32_swap_b32 v166, v167
    v_add_f32 v164, v164, v165
    v_add_f32 v166, v166, v167
    v_mul_f32 v164, {f32(-1/512)}, v164
    v_mul_f32 v166, {f32(1/512)}, v166
    v_fma_f32 v166, -v164, v164, v166
    v_max_f32 v166, 0, v166
    v_add_f32 v166, {f32(1e-5)}, v166
    v_rsq_f32 v165, v166
    s_lshl_b32 s37, s26, 8
    v_lshlrev_b32 v4, 2, v2
    v_add_u32 v6, s37, v4
    v_add_u32 v6, {SCR+2048}, v6
    ds_write_b32 v6, v164
    ds_write_b32 v6, v165 offset:128
    s_waitcnt lgkmcnt(0)
    s_barrier
    s_endpgm
    """)
    k.label("L_k1_M")
    if ABL1 != "noprio": k("s_setprio 1")
    k("""
    v_lshrrev_b32 v4, 1, v2
    v_and_b32 v4, 7, v4
    v_lshlrev_b32 v5, 7, v2
    v_add_u32 v5, s34, v5
    v_bfe_u32 v6, v1, 2, 2
    v_lshl_add_u32 v6, v3, 3, v6
    v_mul_u32_u24 v6, 192, v6
    v_bfe_u32 v7, v1, 4, 1
    v_lshl_add_u32 v6, v7, 5, v6
    v_and_b32 v7, 3, v1
    v_lshl_add_u32 v6, v7, 3, v6
    v_add_u32 v6, 16384, v6
    """)
    for p in range(4):
        k(f"""
        s_add_u32 s36, s26, {p}
        s_and_b32 s36, s36, 3
        s_lshl_b32 s37, s36, 1
        s_mul_i32 s38, s36, 3072
        v_add_u32 v7, s37, v3
        v_xor_b32 v7, v7, v4
        v_lshl_add_u32 v{VXA+p}, v7, 4, v5
        v_add_u32 v{VWA+p}, s38, v6
        v_add_u32 v{VXA+4+p}, {2*STAGE}, v{VXA+p}
        v_add_u32 v{VWA+4+p}, {2*STAGE}, v{VWA+p}
        """)
    k("v_lshrrev_b32 v7, 3, v2")
    k(f"v_mov_b32 v8, 0x3f803f80")
    for t in range(3):
        k(f"v_cmp_eq_u32 vcc, {t}, v7")
        for i in range(4):
            k(f"v_cndmask_b32 v{SEL+4*t+i}, 0, v8, vcc")
    k("s_waitcnt lgkmcnt(0)")
    srd(k, 20, 8, 9, WS_BYTES)
    stamp(k, 2); stamp(k, 3)
    XB = FR
    WB = FR + 8

    def addr(n):
        c, p = n // 4, n % 4
        st = c % NST
        return 4 * (st // 2) + p, (st % 2) * STAGE

    def rdx(n):
        ai, off = addr(n)
        b = XB + (n % 2) * 4
        k(f"ds_read_b128 v[{b}:{b+3}], v{VXA+ai} offset:{off}")

    def rdw(n, t):
        ai, off = addr(n)
        for ab in range(2):
            r = WB + 4 * t + 2 * ab
            k(f"ds_read_b64_tr_b16 v[{r}:{r+1}], v{VWA+ai} offset:{off + ab*768 + t*64}")

    k("s_barrier")
    stamp(k, 4); k("s_waitcnt lgkmcnt(0)")
    rdx(0)
    for t in range(3):
        rdw(0, t)
    for n in range(32):
        last = n + 1 == 32
        if (n + 1) % 4 == 0 and not last:
            k("s_barrier")
        b = XB + (n % 2) * 4
        X = f"v[{b}:{b+3}]"
        W = [f"v[{WB+4*t}:{WB+4*t+3}]" for t in range(3)]
        A = [f"v[{ACC+16*t}:{ACC+16*t+15}]" for t in range(3)]
        Cc = [a if n else "0" for a in A]
        mf = [f"v_mfma_f32_32x32x16_bf16 {A[0]}, {W[0]}, {X}, {Cc[0]}",
              f"v_mfma_f32_32x32x16_bf16 {A[1]}, {W[1]}, {X}, {Cc[1]}",
              f"v_mfma_f32_32x32x16_bf16 {A[2]}, {X}, {W[2]}, {Cc[2]}"]
        if not last:
            rdx(n + 1)
        for t in range(3):
            k(f"s_waitcnt lgkmcnt({5 if not last else 2*(2-t)})")
            k(mf[t])
            if n % 4 == 0:
                cc = "0" if (n == 0 and t == 0) else f"v[{CSA}:{CSA+15}]"
                k(f"v_mfma_f32_32x32x16_bf16 v[{CSA}:{CSA+15}], v[{SEL+4*t}:{SEL+4*t+3}], {W[t]}, {cc}")
            if not last:
                rdw(n + 1, t)
        if n == 29:
            k(f"""
            s_mul_i32 s36, s26, 384
            v_lshlrev_b32 v4, 2, v2
            v_add_u32 v4, {SCR}, v4
            v_add_u32 v5, s36, v4
            """)
        if n == 30:
            pass
    stamp(k, 5); k("s_waitcnt lgkmcnt(0)")
    for t in range(3):
        k(f"ds_write_b32 v5, v{CSA+4*t} offset:{t*128}")
    k(f"""
    s_lshl_b32 s37, s26, 8
    s_add_u32 s37, s37, {SCR+2048}
    v_lshlrev_b32 v7, 2, v1
    v_add_u32 v7, {SCR}, v7
    v_lshlrev_b32 v8, 4, v3
    v_add_u32 v8, s37, v8
    v_lshlrev_b32 v9, 2, v2
    v_add_u32 v9, s37, v9
    s_waitcnt lgkmcnt(0)
    s_barrier
    """)
    for w in range(4):
        k(f"ds_read_b32 v{T+w}, v7 offset:{w*384}")
        k(f"ds_read_b32 v{T+4+w}, v4 offset:{w*384+256}")
    MR = FR
    for g in range(4):
        k(f"ds_read_b128 v[{MR+4*g}:{MR+4*g+3}], v8 offset:{g*32}")
    NM, RS, RQ, CV = 164, 166, 170, 172
    k("s_waitcnt lgkmcnt(4)")
    for g in range(4):
        k(f"ds_read_b128 v[{MR+16+4*g}:{MR+16+4*g+3}], v8 offset:{128+g*32}")
    k(f"ds_read_b32 v{NM}, v9")
    k(f"ds_read_b32 v{RS}, v9 offset:128")
    k(f"""
    v_add_f32 v{T}, v{T}, v{T+1}
    v_add_f32 v{T+2}, v{T+2}, v{T+3}
    v_add_f32 v{T+4}, v{T+4}, v{T+5}
    v_add_f32 v{T+6}, v{T+6}, v{T+7}
    v_add_f32 v{T}, v{T}, v{T+2}
    v_add_f32 v{CV}, v{T+4}, v{T+6}
    v_add_f32 v{CV+1}, v{T+4}, v{T+6}
    v_lshlrev_b32 v7, 2, v1
    v_add_u32 v7, s37, v7
    ds_write_b32 v7, v{T} offset:2048
    """)
    def pr(x): return f"v[{x}:{x+1}]"
    k("s_waitcnt lgkmcnt(0)")
    CQ = CSA
    for t in range(2):
        for g in range(4):
            k(f"ds_read_b128 v[{CQ+16*t+4*g}:{CQ+16*t+4*g+3}], v8 offset:{2048 + t*128 + g*32}")
    AV = ACC + 32
    for r in range(0, 16, 2):
        k(f"v_pk_fma_f32 {pr(AV+r)}, {pr(MR+r)}, {pr(CV)}, {pr(AV+r)}")
    for r in range(0, 16, 2):
        k(f"v_pk_mul_f32 {pr(AV+r)}, {pr(AV+r)}, {pr(MR+16+r)}")
    for i in range(8):
        k(f"v_cvt_pk_bf16_f32 v{AV+i}, v{AV+2*i}, v{AV+2*i+1}")
    k(f"""
    v_bfe_u32 v4, v1, 4, 1
    v_and_b32 v5, 15, v1
    v_lshlrev_b32 v5, 4, v5
    v_lshl_add_u32 v5, v3, 8, v5
    v_lshl_add_u32 v5, v4, 16, v5
    s_lshl_b32 s38, s28, 17
    s_lshl_b32 s39, s29, 10
    s_add_u32 s38, s38, s39
    s_add_u32 s39, s38, {VF}
    buffer_store_dwordx4 v[{AV}:{AV+3}], v5, s[20:23], s39 offen
    buffer_store_dwordx4 v[{AV+4}:{AV+7}], v5, s[20:23], s39 offen offset:512
    v_mov_b32 v{NM+1}, v{NM}
    v_mov_b32 v{RS+1}, v{RS}
    v_mul_f32 v{RQ}, {f32(0.25*LOG2E)}, v{RS}
    v_mul_f32 v{RQ+1}, {f32(0.25*LOG2E)}, v{RS}
    v_lshlrev_b32 v6, 4, v1
    s_waitcnt lgkmcnt(0)
    """)
    for t in (1, 0):
        A = ACC + 16 * t
        sc = RQ if t == 0 else RS
        for r in range(0, 16, 2):
            k(f"v_pk_fma_f32 {pr(A+r)}, {pr(NM)}, {pr(CQ+16*t+r)}, {pr(A+r)}")
        for r in range(0, 16, 2):
            k(f"v_pk_mul_f32 {pr(A+r)}, {pr(A+r)}, {pr(sc)}")
        for i in range(8):
            k(f"v_cvt_pk_bf16_f32 v{A+i}, v{A+2*i}, v{A+2*i+1}")
        base = QF if t == 0 else KF
        k(f"s_add_u32 s39, s38, {base}")
        k(f"s_add_u32 s40, s38, {base+65536}")
        k(f"buffer_store_dwordx4 v[{A}:{A+3}], v6, s[20:23], s39 offen")
        k(f"buffer_store_dwordx4 v[{A+4}:{A+7}], v6, s[20:23], s40 offen")
    stamp(k, 6); stamp_rt(k, 7); stamp_flush(k, 1, 8)
    k.label("L_k1_end")
    k("s_endpgm")
    return k, f"grid=(256,1,1) block=(512,1,1) lds={LDS}"
```

```python
from common import *
import os

ZROWS = os.environ.get("ZROWS", "1") == "1"
PRIO = os.environ.get("PRIO", "1") == "1"
ABL = os.environ.get("ABL", "")
WPF = os.environ.get("WPF", "1") == "1"
VBASE = 65536
VSTR = 1056 if ZROWS else 1040
WBASE = (VBASE + 66 * VSTR + 255) // 256 * 256
LDS = WBASE + 16384


def gen():
    k = Kern("attn_kernel")
    Q = 4
    KFR = 8
    VFR = 16
    S = 32
    C = 64
    O = 80
    P0 = 96
    P1 = 100
    AK, AV0, AV1 = 104, 105, 106
    TMP = 108
    PF = 116
    k("""
    s_load_dwordx2 s[8:9], s[0:1], 72
    s_load_dwordx4 s[4:7], s[0:1], 32
    s_load_dwordx2 s[10:11], s[0:1], 16
    s_load_dwordx2 s[12:13], s[0:1], 48
    s_cmp_ge_u32 s2, 256
    s_cbranch_scc1 L_k2_end
    """)
    stamp_rt(k, 0); stamp(k, 1)
    code_prefetch(k, 2, PF, 24, 512, 32768)
    k("""
    v_and_b32 v1, 63, v0
    v_lshrrev_b32 v2, 6, v0
    """)
    k("v_readfirstlane_b32 s26, v2")
    k("""
    s_and_b32 s27, s2, 31
    s_lshr_b32 s28, s2, 5
    s_lshl_b32 s28, s28, 3
    s_add_u32 s28, s28, s26
    v_lshlrev_b32 v2, 4, v1
    s_lshl_b32 s29, s27, 16
    s_lshl_b32 s30, s26, 10
    s_add_u32 s31, s29, s30
    """)
    k(f"""
    s_mul_i32 s32, s26, {VSTR}
    s_add_u32 s32, s32, {VBASE}
    s_lshl_b32 s33, s28, 10
    s_add_u32 s33, s33, s29
    s_waitcnt lgkmcnt(0)
    """)
    srd(k, 20, 8, 9, WS_BYTES)
    stamp(k, 2)


    def dma_tile(t):
        k(f"s_add_u32 s34, s31, {KF + t*1024}")
        k(f"s_add_u32 m0, s30, {t*1024}")
        k(f"buffer_load_dwordx4 v2, s[20:23], s34 offen lds")
        k(f"s_add_u32 s34, s31, {VF + t*1024}")
        k(f"s_add_u32 m0, s32, {t*VSTR}")
        k(f"buffer_load_dwordx4 v2, s[20:23], s34 offen lds")

    k("s_cmp_lt_u32 s26, 4")
    k("s_cbranch_scc0 L_k2_nodma")
    for t in range(0, 16, 4):
        dma_tile(t)
    k.label("L_k2_nodma")
    k(f"buffer_load_dwordx4 v[{Q}:{Q+3}], v2, s[20:23], s33 offen")
    k(f"""
    v_mov_b32 v{TMP}, 0x3f803f80
    v_mov_b32 v{TMP+1}, 0x3f803f80
    v_mov_b32 v{TMP+2}, 0x3f803f80
    v_mov_b32 v{TMP+3}, 0x3f803f80
    v_mul_u32_u24 v3, {VSTR}, v1
    v_add_u32 v3, {VBASE+1024}, v3
    """)
    for i in range(16):
        k(f"v_mov_b32 v{O+i}, 0")
    k(f"""
    s_cmp_lg_u32 s26, 7
    s_cbranch_scc1 L_k2_noones
    ds_write_b128 v3, v[{TMP}:{TMP+3}]
    """)
    if ZROWS:
        k(f"ds_write_b128 v3, v[{O}:{O+3}] offset:16")
    k.label("L_k2_noones")
    k(f"""
    v_mov_b32 v{AK}, v2
    v_and_b32 v3, 15, v1
    v_lshlrev_b32 v3, 4, v3
    v_lshrrev_b32 v{TMP+4}, 5, v1
    v_lshl_add_u32 v3, v{TMP+4}, 8, v3
    v_mov_b32 v{TMP+6}, 1024
    """)
    if ZROWS:
        k(f"""
        v_and_b32 v{TMP+5}, 11, v1
        v_cmp_eq_u32 vcc, 0, v{TMP+5}
        v_mov_b32 v{TMP+7}, 1040
        v_cndmask_b32 v{TMP+6}, v{TMP+7}, v{TMP+6}, vcc
        """)
    k(f"""
    v_and_b32 v{TMP+5}, 16, v1
    v_cmp_eq_u32 vcc, 0, v{TMP+5}
    v_subrev_u32 v{TMP+7}, 512, v{TMP+6}
    v_cndmask_b32 v{AV0}, v{TMP+6}, v3, vcc
    v_cndmask_b32 v{AV1}, v{TMP+7}, v3, vcc
    v_add_u32 v{AV0}, {VBASE}, v{AV0}
    v_add_u32 v{AV1}, {VBASE}, v{AV1}
    """)
    for i in range(4):
        k(f"v_mov_b32 v{P1+i}, 0")
        k(f"v_mov_b32 v{VFR+12+i}, 0")
    k("""
    s_cmp_lt_u32 s26, 4
    s_cselect_b32 s42, 99, 1
    s_cselect_b32 s41, 99, 0
    s_cselect_b32 s43, 1, 99
    s_cselect_b32 s44, 99, %s
    s_mov_b32 s35, 0
    """ % os.environ.get("PDROP", "5"))
    k("s_cmp_lt_u32 s26, 4")
    k("s_cbranch_scc0 L_k2_roleB")
    k("s_waitcnt vmcnt(7)")
    k("s_barrier")
    stamp(k, 3)
    if PRIO:
        k("s_setprio 1")
    for t in range(16, 32, 4):
        dma_tile(t)
    k("s_waitcnt vmcnt(8)")
    k("s_barrier")
    for t in range(32, 64, 4):
        dma_tile(t)
    k(f"""
    s_lshr_b32 s45, s2, 2
    s_cmp_lt_u32 s45, 28
    s_cselect_b32 s16, s4, s6
    s_cselect_b32 s17, s5, s7
    s_cselect_b32 s46, 0, 28
    s_mov_b32 s18, {512*3584}
    s_mov_b32 s19, 0x20000
    s_sub_u32 s46, s45, s46
    s_lshl_b32 s46, s46, 7
    s_and_b32 s47, s2, 3
    s_lshl_b32 s47, s47, 2
    s_add_u32 s47, s47, s26
    s_mul_i32 s48, s47, {32*3584}
    s_add_u32 s46, s46, s48
    s_cmp_lt_u32 s2, 224
    s_cselect_b32 s46, s46, 0x7ff00000
    s_cselect_b32 s43, s43, 99
    v_lshrrev_b32 v3, 3, v1
    v_bfe_u32 v{TMP}, v1, 2, 1
    v_bfe_u32 v{TMP+1}, v1, 4, 1
    v_xor_b32 v{TMP}, v{TMP}, v{TMP+1}
    v_and_b32 v{TMP+1}, 3, v1
    v_lshlrev_b32 v{TMP+1}, 4, v{TMP+1}
    v_lshl_add_u32 v{TMP+1}, v{TMP}, 6, v{TMP+1}
    v_mul_u32_u24 v3, 3584, v3
    v_add_u32 v3, v3, v{TMP+1}
    s_lshl_b32 s48, s26, 12
    s_add_u32 s48, s48, {WBASE}
    """)
    for i in range(4):
        k(f"s_add_u32 m0, s48, {i*1024}")
        k(f"buffer_load_dwordx4 v3, s[16:19], s46 offen lds")
        k(f"s_add_u32 s46, s46, {8*3584}")
    k("s_waitcnt vmcnt(4)")
    k("s_barrier")
    if WPF:
        k(f"""
        s_lshr_b32 s50, s2, 3
        s_lshl_b32 s50, s50, 2
        s_add_u32 s50, s50, s26
        s_and_b32 s51, s2, 1
        v_mov_b32 v{TMP+3}, 0x7ff00000
        s_movk_i32 s52, 4682
        v_mul_lo_u32 v{TMP}, v1, s52
        v_lshrrev_b32 v{TMP}, 16, v{TMP}
        v_mul_u32_u24 v{TMP+1}, 14, v{TMP}
        v_sub_u32 v{TMP+1}, v1, v{TMP+1}
        v_mul_u32_u24 v{TMP}, 3584, v{TMP}
        v_lshl_add_u32 v{TMP}, v{TMP+1}, 7, v{TMP}
        v_cmp_gt_u32 vcc, 56, v1
        v_cndmask_b32 v{TMP}, v{TMP+3}, v{TMP}, vcc
        s_mul_i32 s52, s50, {4*3584}
        s_mul_i32 s53, s51, 1792
        s_add_u32 s52, s52, s53
        s_mov_b32 s16, s4
        s_mov_b32 s17, s5
        buffer_load_dword v{PF}, v{TMP}, s[16:19], s52 offen
        s_mov_b32 s16, s6
        s_mov_b32 s17, s7
        buffer_load_dword v{PF}, v{TMP}, s[16:19], s52 offen
        v_lshrrev_b32 v{TMP}, 2, v1
        v_and_b32 v{TMP+1}, 3, v1
        v_lshlrev_b32 v{TMP}, 10, v{TMP}
        v_lshl_add_u32 v{TMP}, v{TMP+1}, 7, v{TMP}
        v_cndmask_b32 v{TMP+1}, v{TMP+3}, v{TMP}, vcc
        v_cmp_gt_u32 vcc, 16, v1
        v_cndmask_b32 v{TMP}, v{TMP+3}, v{TMP}, vcc
        s_lshl_b32 s53, s51, 9
        s_lshl_b32 s52, s50, 12
        s_add_u32 s52, s52, s53
        s_mov_b32 s16, s10
        s_mov_b32 s17, s11
        s_mov_b32 s18, {512*1024}
        buffer_load_dword v{PF}, v{TMP}, s[16:19], s52 offen
        s_mul_i32 s52, s50, {14*1024}
        s_add_u32 s52, s52, s53
        s_mov_b32 s16, s12
        s_mov_b32 s17, s13
        s_mov_b32 s18, {1792*1024}
        buffer_load_dword v{PF}, v{TMP+1}, s[16:19], s52 offen
        """)
    k("s_branch L_k2_go")
    k.label("L_k2_roleB")
    k("s_waitcnt vmcnt(0) lgkmcnt(0)")
    k("s_barrier")
    stamp(k, 3)
    if PRIO:
        k("s_setprio 2")
    k.label("L_k2_go")
    Qr = f"v[{Q}:{Q+3}]"

    def Kr(b): return f"v[{KFR+4*b}:{KFR+4*b+3}]"
    def Vr(b, j): return f"v[{VFR+8*b+4*j}:{VFR+8*b+4*j+3}]"
    def Sr(b): return f"v[{S+16*b}:{S+16*b+15}]"
    Cr = f"v[{C}:{C+15}]"
    Or = f"v[{O}:{O+15}]"
    def rdK(t, b): k(f"ds_read_b128 {Kr(b)}, v{AK} offset:{t*1024}")
    def rdV(t, b):
        k(f"ds_read_b128 {Vr(b,0)}, v{AV0} offset:{t*VSTR}")
        k(f"ds_read_b128 {Vr(b,1)}, v{AV1} offset:{t*VSTR+512}")
    def tilemax(s1):
        k(f"v_max3_f32 v{TMP}, v{s1}, v{s1+1}, v{s1+2}")
        k(f"v_max3_f32 v{TMP+1}, v{s1+3}, v{s1+4}, v{s1+5}")
        k(f"v_max3_f32 v{TMP+2}, v{s1+6}, v{s1+7}, v{s1+8}")
        k(f"v_max3_f32 v{TMP+3}, v{s1+9}, v{s1+10}, v{s1+11}")
        k(f"v_max3_f32 v{TMP}, v{TMP}, v{s1+12}, v{s1+13}")
        k(f"v_max3_f32 v{TMP+1}, v{TMP+1}, v{s1+14}, v{s1+15}")
        k(f"v_max3_f32 v{TMP}, v{TMP}, v{TMP+1}, v{TMP+2}")
        k(f"v_max_f32 v{TMP}, v{TMP}, v{TMP+3}")
        k(f"v_mov_b32 v{TMP+1}, v{TMP}")
        k(f"v_permlane32_swap_b32 v{TMP}, v{TMP+1}")
    if "zq" in ABL:
        for i in range(4): k(f"v_mov_b32 v{Q+i}, 0")
    rdK(0, 0)
    rdK(1, 1)
    rdV(0, 0)
    k("s_waitcnt lgkmcnt(3)")
    k(f"v_mfma_f32_32x32x16_bf16 {Sr(1)}, {Kr(0)}, {Qr}, 0")
    tilemax(S + 16)
    k(f"v_max_f32 v{TMP}, v{TMP}, v{TMP+1}")
    for i in range(16):
        k(f"v_sub_f32 v{C+i}, 0, v{TMP}")
    k(f"v_mfma_f32_32x32x16_bf16 {Sr(0)}, {Kr(0)}, {Qr}, {Cr}")
    k("s_nop 9")

    def E(b, a, n):
        for i in range(a, a + n):
            k(f"v_exp_f32 v{S+16*b+i}, v{S+16*b+i}")
    def CV(dst, b, i):
        k(f"v_cvt_pk_bf16_f32 v{dst}, v{S+16*b+2*i}, v{S+16*b+2*i+1}")

    def tile(t):
        b = t % 2
        nb = 1 - b
        k("s_waitcnt lgkmcnt(0)")
        k(f"v_mfma_f32_32x32x16_bf16 {Sr(nb)}, {Kr(nb)}, {Qr}, {Cr}")
        if "nods" not in ABL: rdK(t + 2, b)
        E(b, 0, 4)
        k(f"v_mfma_f32_32x32x16_bf16 {Or}, {Vr(nb,1)}, v[{P1}:{P1+3}], {Or}")
        if "nods" not in ABL: rdV(t + 1, nb)
        E(b, 4, 2)
        CV(P0, b, 0)
        E(b, 6, 2)
        CV(P0 + 1, b, 1)
        E(b, 8, 2)
        CV(P0 + 2, b, 2)
        E(b, 10, 2)
        CV(P0 + 3, b, 3)
        E(b, 12, 2)
        k(f"v_mfma_f32_32x32x16_bf16 {Or}, {Vr(b,0)}, v[{P0}:{P0+3}], {Or}")
        E(b, 14, 2)
        CV(P1, b, 4)
        CV(P1 + 1, b, 5)
        CV(P1 + 2, b, 6)
        CV(P1 + 3, b, 7)

    stamp(k, 4)
    k.raw(".p2align 6")
    k.label("L_k2_loop")
    for t in range(8):
        if t == 2:
            k("s_cmp_lg_u32 s35, s41")
            k("s_cbranch_scc1 L_k2_nobar0")
            k("s_barrier")
            k.label("L_k2_nobar0")
        if t == 6:
            k("s_cmp_lg_u32 s35, s42")
            k("s_cbranch_scc1 L_k2_nobar")
            k("s_barrier")
            k.label("L_k2_nobar")
        tile(t)
    k(f"v_add_u32 v{AK}, 8192, v{AK}")
    k(f"v_add_u32 v{AV0}, {8*VSTR}, v{AV0}")
    k(f"v_add_u32 v{AV1}, {8*VSTR}, v{AV1}")
    k("s_cmp_eq_u32 s35, s43")
    k("s_cbranch_scc1 L_k2_cs")
    k.label("L_k2_csret")
    if PRIO:
        k("s_cmp_lg_u32 s35, s44")
        k("s_cbranch_scc1 L_k2_noprio")
        k("s_setprio 0")
        k.label("L_k2_noprio")
    k("s_add_u32 s35, s35, 1")
    k("s_cmp_lg_u32 s35, 8")
    k("s_cbranch_scc1 L_k2_loop")
    k.check_backedge("L_k2_loop")
    k(f"v_mfma_f32_32x32x16_bf16 {Or}, {Vr(1,1)}, v[{P1}:{P1+3}], {Or}")
    k("s_waitcnt lgkmcnt(0)")
    stamp(k, 5)
    k(f"v_max3_f32 v{TMP}, abs(v{O}), abs(v{O+1}), abs(v{O+2})")
    k(f"v_max3_f32 v{TMP+1}, abs(v{O+3}), abs(v{O+4}), abs(v{O+5})")
    k(f"v_max3_f32 v{TMP}, v{TMP}, abs(v{O+6}), abs(v{O+7})")
    k(f"v_add_f32 v{TMP+2}, v{O}, v{O+1}")
    k(f"v_add_f32 v{TMP+3}, v{O+2}, v{O+3}")
    k(f"v_add_f32 v{TMP+4}, v{O+4}, v{O+5}")
    k(f"v_add_f32 v{TMP+5}, v{O+6}, v{O+7}")
    k(f"v_add_f32 v{TMP+2}, v{TMP+2}, v{TMP+3}")
    k(f"v_add_f32 v{TMP+4}, v{TMP+4}, v{TMP+5}")
    k(f"v_add_f32 v{TMP+2}, v{TMP+2}, v{TMP+4}")
    k(f"v_max_f32 v{TMP}, v{TMP}, v{TMP+1}")
    k(f"s_mov_b32 s36, {f32(2.0**100)}")
    k(f"s_mov_b32 s37, 0x7f000000")
    k(f"v_cmp_gt_f32 vcc, s36, v{O+8}")
    k(f"v_cmp_gt_f32 s[38:39], s37, v{TMP}")
    k(f"v_cmp_o_f32 s[50:51], v{TMP+2}, v{TMP+2}")
    k("s_and_b64 vcc, vcc, s[38:39]")
    k("s_and_b64 vcc, vcc, s[50:51]")
    k("s_cmp_eq_u64 vcc, exec")
    k("s_cbranch_scc0 L_k2_slow")
    k.label("L_k2_fin")
    k(f"v_rcp_f32 v{TMP}, v{O+8}")
    for i in range(8):
        k(f"v_mul_f32 v{O+i}, v{O+i}, v{TMP}")
    for i in range(4):
        k(f"v_cvt_pk_bf16_f32 v{O+i}, v{O+2*i}, v{O+2*i+1}")
    k(f"""
    s_lshl_b32 s36, s28, 15
    s_lshl_b32 s37, s27, 10
    s_add_u32 s36, s36, s37
    s_add_u32 s36, s36, {OF}
    buffer_store_dwordx4 v[{O}:{O+3}], v2, s[20:23], s36 offen
    """)
    stamp(k, 6); stamp_rt(k, 7); stamp_flush(k, 2, 8)
    k.label("L_k2_end")
    k("s_endpgm")
    k.label("L_k2_cs")
    CA = S + 16
    WF = 120
    SL = 136
    k(f"""
    v_bfe_u32 v{TMP}, v1, 2, 2
    v_lshrrev_b32 v{TMP+1}, 5, v1
    v_lshl_add_u32 v{TMP+1}, v{TMP+1}, 2, v{TMP}
    v_lshlrev_b32 v{TMP+1}, 7, v{TMP+1}
    v_lshrrev_b32 v{TMP}, 1, v{TMP}
    v_lshl_add_u32 v{TMP+1}, v{TMP}, 6, v{TMP+1}
    v_bfe_u32 v{TMP}, v1, 4, 1
    v_lshl_add_u32 v{TMP+1}, v{TMP}, 5, v{TMP+1}
    v_and_b32 v{TMP}, 3, v1
    v_lshl_add_u32 v{TMP+1}, v{TMP}, 3, v{TMP+1}
    v_add_u32 v{TMP+1}, s48, v{TMP+1}
    v_xor_b32 v{TMP+2}, 64, v{TMP+1}
    v_bfe_u32 v{TMP}, v1, 3, 2
    v_mov_b32 v{TMP+3}, 0x3f803f80
    v_cmp_eq_u32 vcc, 0, v{TMP}
    v_cmp_eq_u32 s[38:39], 1, v{TMP}
    s_waitcnt vmcnt(0) lgkmcnt(0)
    """)
    for s_ in range(2):
        for nt in range(2):
            for ab in range(2):
                r = WF + 8 * s_ + 4 * nt + 2 * ab
                k(f"ds_read_b64_tr_b16 v[{r}:{r+1}], v{TMP+1+nt} offset:{s_*2048 + ab*1024}")
    for i in range(4):
        k(f"v_cndmask_b32 v{SL+i}, 0, v{TMP+3}, vcc")
        k(f"v_cndmask_b32 v{SL+4+i}, 0, v{TMP+3}, s[38:39]")
    k("s_waitcnt lgkmcnt(0)")
    first = True
    for s_ in range(2):
        for nt in range(2):
            r = WF + 8 * s_ + 4 * nt
            cc = "0" if first else f"v[{CA}:{CA+15}]"
            first = False
            k(f"v_mfma_f32_32x32x16_bf16 v[{CA}:{CA+15}], v[{SL+4*nt}:{SL+4*nt+3}], v[{r}:{r+3}], {cc}")
    k(f"""
    v_cmp_gt_u32 vcc, 32, v1
    v_lshlrev_b32 v{TMP}, 4, v1
    s_lshl_b32 s36, s45, 10
    s_lshl_b32 s37, s26, 2
    s_add_u32 s36, s36, s37
    s_and_b32 s37, s2, 3
    s_mul_i32 s37, s37, {3584*16}
    s_add_u32 s36, s36, s37
    s_add_u32 s36, s36, {CS}
    v_cndmask_b32 v{TMP+1}, v{CA+4}, v{CA}, vcc
    buffer_store_dword v{TMP+1}, v{TMP}, s[20:23], s36 offen
    s_branch L_k2_csret
    """)
    k.label("L_k2_slow")
    M = TMP + 6
    k(f"v_subrev_u32 v{AK}, 65536, v{AK}")
    k(f"v_subrev_u32 v{AV0}, {64*VSTR}, v{AV0}")
    k(f"v_subrev_u32 v{AV1}, {64*VSTR}, v{AV1}")
    for i in range(16):
        k(f"v_mov_b32 v{O+i}, 0")
    k(f"v_mov_b32 v{M}, 0xff7fffff")
    k("s_mov_b32 s35, 64")
    k.label("L_k2_sloop")
    rdK(0, 0)
    rdV(0, 0)
    k("s_waitcnt lgkmcnt(0)")
    k(f"v_mfma_f32_32x32x16_bf16 {Sr(0)}, {Kr(0)}, {Qr}, 0")
    s0 = S
    tilemax(s0)
    k(f"v_max3_f32 v{TMP}, v{TMP}, v{TMP+1}, v{M}")
    k(f"v_sub_f32 v{TMP+1}, v{M}, v{TMP}")
    k(f"v_exp_f32 v{TMP+1}, v{TMP+1}")
    k(f"v_mov_b32 v{M}, v{TMP}")
    for i in range(16):
        k(f"v_mul_f32 v{O+i}, v{O+i}, v{TMP+1}")
    for i in range(16):
        k(f"v_sub_f32 v{s0+i}, v{s0+i}, v{M}")
    E(0, 0, 16)
    for i in range(4):
        CV(P0 + i, 0, i)
        CV(P1 + i, 0, 4 + i)
    k(f"v_mfma_f32_32x32x16_bf16 {Or}, {Vr(0,0)}, v[{P0}:{P0+3}], {Or}")
    k(f"v_mfma_f32_32x32x16_bf16 {Or}, {Vr(0,1)}, v[{P1}:{P1+3}], {Or}")
    k(f"v_add_u32 v{AK}, 1024, v{AK}")
    k(f"v_add_u32 v{AV0}, {VSTR}, v{AV0}")
    k(f"v_add_u32 v{AV1}, {VSTR}, v{AV1}")
    k("s_nop 15")
    k("s_sub_u32 s35, s35, 1")
    k("s_cmp_lg_u32 s35, 0")
    k("s_cbranch_scc1 L_k2_sloop")
    k.check_backedge("L_k2_sloop")
    k("s_nop 15")
    k("s_branch L_k2_fin")
    return k, f"grid=(256,1,1) block=(512,1,1) lds={LDS}"
```

```python
from common import *
import os


def gen(which):
    wo = which == "wo"
    name = "wo_kernel" if wo else "down_kernel"
    L = "k3" if wo else "k5"
    KS = 32 if wo else 112
    NCH = KS // 4
    NST = int(os.environ.get('NST64', '5'))
    STAGE = 16384
    BSRC = OF if wo else AF
    MT_STRIDE = KS * 1024
    k = Kern(name)
    VBD = 10
    VWD = 11
    VBA = 12
    VWA = 15
    RES = 20
    FR = 28
    ACC = 64
    T = 80
    PF = 96
    if wo:
        k("""
        s_load_dwordx2 s[4:5], s[0:1], 0
        s_load_dwordx2 s[6:7], s[0:1], 16
        s_load_dwordx2 s[8:9], s[0:1], 72
        """)
    else:
        k("""
        s_load_dwordx4 s[4:7], s[0:1], 48
        s_load_dwordx2 s[8:9], s[0:1], 72
        """)
    k(f"""
    s_cmp_ge_u32 s2, 256
    s_cbranch_scc1 L_{L}_end
    """)
    stamp_rt(k, 0); stamp(k, 1)
    code_prefetch(k, 2, PF, 24, 256, 16384)
    k("""
    v_and_b32 v1, 63, v0
    v_lshrrev_b32 v2, 6, v0
    """)
    k("v_readfirstlane_b32 s26, v2")
    k("""
    s_and_b32 s27, s2, 6
    s_lshl_b32 s27, s27, 2
    s_lshr_b32 s28, s2, 3
    s_and_b32 s28, s28, 7
    s_add_u32 s27, s27, s28
    s_and_b32 s28, s2, 1
    s_lshl_b32 s28, s28, 2
    s_lshr_b32 s29, s2, 6
    s_add_u32 s28, s28, s29
    s_and_b32 s29, s26, 1
    s_lshr_b32 s30, s26, 1
    """)
    k(f"""
    s_lshl_b32 s31, s27, 1
    s_add_u32 s31, s31, s30
    s_mul_i32 s32, s31, {MT_STRIDE}
    s_lshl_b32 s33, s29, 11
    s_add_u32 s32, s32, s33
    s_add_u32 s32, s32, {BSRC}
    v_lshlrev_b32 v{VBD}, 4, v1
    s_lshl_b32 s34, s26, 11
    """)
    k(f"""
    v_lshrrev_b32 v2, 3, v1
    v_bfe_u32 v3, v1, 2, 1
    v_bfe_u32 v4, v1, 4, 1
    v_xor_b32 v3, v3, v4
    v_and_b32 v4, 3, v1
    v_lshlrev_b32 v4, 4, v4
    v_lshl_add_u32 v4, v3, 6, v4
    v_lshl_add_u32 v4, v2, 10, v4
    s_lshl_b32 s35, s26, 14
    s_lshl_b32 s36, s28, 7
    s_add_u32 s35, s35, s36
    v_add_u32 v{VWD}, s35, v4
    s_waitcnt lgkmcnt(0)
    """)
    if wo:
        srd(k, 12, 4, 5, 2 * MB)
        srd(k, 16, 6, 7, 512 * 1024)
    else:
        srd(k, 12, 6, 7, 2 * MB)
        srd(k, 16, 4, 5, 1792 * 1024)
    srd(k, 20, 8, 9, WS_BYTES)
    stamp(k, 2)
    k(f"""
    v_and_b32 v2, 31, v1
    v_lshrrev_b32 v3, 5, v1
    s_lshl_b32 s37, s28, 1
    s_add_u32 s37, s37, s29
    """)
    if wo:
        pass
    else:
        k(f"""
        s_lshl_b32 s38, s31, 15
        s_lshl_b32 s39, s37, 11
        s_add_u32 s38, s38, s39
        s_add_u32 s38, s38, {HF}
        buffer_load_dwordx4 v[{RES}:{RES+3}], v{VBD}, s[20:23], s38 offen
        buffer_load_dwordx4 v[{RES+4}:{RES+7}], v{VBD}, s[20:23], s38 offen offset:1024
        """)

    def dma_chunk(c):
        st = (c % NST) * STAGE
        k(f"s_add_u32 s40, s32, {c*4096}")
        k(f"s_add_u32 m0, s34, {st}")
        k(f"buffer_load_dwordx4 v{VBD}, s[20:23], s40 offen lds")
        k(f"buffer_load_dwordx4 v{VBD}, s[20:23], s40 offen offset:1024 lds")
        k(f"s_mov_b32 s40, {c*65536}")
        k(f"s_add_u32 m0, s34, {st+8192}")
        k(f"buffer_load_dwordx4 v{VWD}, s[16:19], s40 offen lds")
        k(f"s_mov_b32 s40, {c*65536+8192}")
        k(f"s_add_u32 m0, s34, {st+8192+1024}")
        k(f"buffer_load_dwordx4 v{VWD}, s[16:19], s40 offen lds")

    npro = NST - 2
    XL = NST * STAGE
    for c in range(npro):
        dma_chunk(c)
        if wo and c == 0:
            k(f"""
            v_lshrrev_b32 v4, 3, v1
            v_and_b32 v5, 7, v1
            v_xor_b32 v5, v5, v4
            v_lshlrev_b32 v5, 4, v5
            v_lshl_add_u32 v4, v4, 10, v5
            s_lshl_b32 s38, s27, 16
            s_add_u32 s38, s38, s35
            s_add_u32 m0, s34, {XL}
            buffer_load_dwordx4 v4, s[12:15], s38 offen lds
            s_add_u32 s38, s38, 8192
            s_add_u32 m0, s34, {XL+1024}
            buffer_load_dwordx4 v4, s[12:15], s38 offen lds
            """)
    k(f"""
    s_lshl_b32 s40, s30, 12
    v_add_u32 v{VBA}, s40, v{VBD}
    v_bfe_u32 v4, v1, 2, 2
    v_lshl_add_u32 v5, v3, 2, v4
    v_lshlrev_b32 v5, 7, v5
    v_lshrrev_b32 v4, 1, v4
    v_xor_b32 v4, s29, v4
    v_lshl_add_u32 v5, v4, 6, v5
    v_bfe_u32 v4, v1, 4, 1
    v_lshl_add_u32 v5, v4, 5, v5
    v_and_b32 v4, 3, v1
    v_lshl_add_u32 v5, v4, 3, v5
    v_add_u32 v{VWA}, 8192, v5
    """)
    for s_ in (1, 2):
        k(f"v_add_u32 v{VBA+s_}, {s_*65536}, v{VBA}")
        k(f"v_add_u32 v{VWA+s_}, {s_*65536}, v{VWA}")
    PD = 2
    NB = PD + 1

    def reads(n):
        c, s_ = n // 4, n % 4
        st = (c % NST) * STAGE
        sset, off = st // 65536, st % 65536
        b = FR + (n % NB) * 8
        k(f"ds_read_b128 v[{b}:{b+3}], v{VBA+sset} offset:{off + s_*1024}")
        k(f"ds_read_b64_tr_b16 v[{b+4}:{b+5}], v{VWA+sset} offset:{off + s_*2048}")
        k(f"ds_read_b64_tr_b16 v[{b+6}:{b+7}], v{VWA+sset} offset:{off + s_*2048 + 1024}")

    issued = npro

    def sync(c):
        nonlocal issued
        k(f"s_waitcnt vmcnt({4*(issued - 1 - c) + (2 if wo and c == 0 else 0)})")
        k("s_barrier")
        while issued < NCH and issued <= c - 2 + NST:
            dma_chunk(issued)
            issued += 1

    stamp(k, 3)
    sync(0)
    stamp(k, 4); k("s_waitcnt lgkmcnt(0)")
    for n in range(PD):
        reads(n)
    for n in range(KS):
        if n + PD < KS:
            if (n + PD) % 4 == 0:
                sync((n + PD) // 4)
            reads(n + PD)
            k(f"s_waitcnt lgkmcnt({3*PD})")
        else:
            k(f"s_waitcnt lgkmcnt({3*(KS-1-n)})")
        b = FR + (n % NB) * 8
        k(f"v_mfma_f32_32x32x16_bf16 v[{ACC}:{ACC+15}], v[{b+4}:{b+7}], v[{b}:{b+3}], " + (f"v[{ACC}:{ACC+15}]" if n else "0"))
    if wo:
        k(f"""
        s_lshl_b32 s38, s30, 12
        s_lshl_b32 s39, s29, 2
        v_and_b32 v4, 7, v2
        v_xor_b32 v4, s39, v4
        v_lshlrev_b32 v5, 7, v2
        v_lshl_add_u32 v5, v3, 3, v5
        v_add_u32 v5, s38, v5
        v_add_u32 v5, {XL}, v5
        """)
        for g in range(4):
            k(f"v_xor_b32 v6, {g}, v4")
            k(f"v_lshl_add_u32 v6, v6, 4, v5")
            k(f"ds_read_b64 v[{RES+2*g}:{RES+2*g+1}], v6")
        k("s_waitcnt lgkmcnt(0)")
    stamp(k, 5)
    for i in range(8):
        k(f"v_lshlrev_b32 v{T+2*i}, 16, v{RES+i}")
        k(f"v_and_b32 v{T+2*i+1}, 0xffff0000, v{RES+i}")
    for r in range(16):
        k(f"v_add_f32 v{ACC+r}, v{ACC+r}, v{T+r}")
    if wo:
        k(f"v_add_f32 v{T}, v{ACC}, v{ACC+1}")
        k(f"v_mul_f32 v{T+1}, v{ACC}, v{ACC}")
        k(f"v_fmac_f32 v{T+1}, v{ACC+1}, v{ACC+1}")
        for r in range(2, 16):
            k(f"v_add_f32 v{T}, v{T}, v{ACC+r}")
            k(f"v_fmac_f32 v{T+1}, v{ACC+r}, v{ACC+r}")
        k(f"""
        v_mov_b32 v{T+2}, v{T}
        v_mov_b32 v{T+3}, v{T+1}
        v_permlane32_swap_b32 v{T}, v{T+2}
        v_permlane32_swap_b32 v{T+1}, v{T+3}
        v_add_f32 v{T}, v{T}, v{T+2}
        v_add_f32 v{T+1}, v{T+1}, v{T+3}
        """)
        for i in range(8):
            k(f"v_cvt_pk_bf16_f32 v{ACC+i}, v{ACC+2*i}, v{ACC+2*i+1}")
        k(f"""
        s_lshl_b32 s38, s31, 15
        s_lshl_b32 s39, s37, 11
        s_add_u32 s38, s38, s39
        s_add_u32 s38, s38, {HF}
        buffer_store_dwordx4 v[{ACC}:{ACC+3}], v{VBD}, s[20:23], s38 offen
        buffer_store_dwordx4 v[{ACC+4}:{ACC+7}], v{VBD}, s[20:23], s38 offen offset:1024
        v_lshlrev_b32 v4, 4, v2
        s_lshl_b32 s38, s31, 12
        s_lshr_b32 s39, s37, 1
        s_lshl_b32 s39, s39, 9
        s_add_u32 s38, s38, s39
        s_lshl_b32 s39, s29, 3
        s_add_u32 s38, s38, s39
        s_add_u32 s38, s38, {ST}
        buffer_store_dwordx2 v[{T}:{T+1}], v4, s[20:23], s38 offen
        """)
    else:
        for i in range(8):
            k(f"v_cvt_pk_bf16_f32 v{ACC+i}, v{ACC+2*i}, v{ACC+2*i+1}")
        k(f"""
        v_permlane32_swap_b32 v{ACC}, v{ACC+2}
        v_permlane32_swap_b32 v{ACC+1}, v{ACC+3}
        v_permlane32_swap_b32 v{ACC+4}, v{ACC+6}
        v_permlane32_swap_b32 v{ACC+5}, v{ACC+7}
        v_lshlrev_b32 v4, 10, v2
        v_lshl_add_u32 v4, v3, 4, v4
        s_lshl_b32 s38, s31, 15
        s_lshl_b32 s39, s37, 6
        s_add_u32 s38, s38, s39
        buffer_store_dwordx4 v[{ACC}:{ACC+3}], v4, s[12:15], s38 offen
        buffer_store_dwordx4 v[{ACC+4}:{ACC+7}], v4, s[12:15], s38 offen offset:32
        """)
    stamp(k, 6); stamp_rt(k, 7); stamp_flush(k, 3 if wo else 5, 8)
    k.label(f"L_{L}_end")
    k("s_endpgm")
    return k, f"grid=(256,1,1) block=(256,1,1) lds={NST*STAGE + (8192 if wo else 0)}"
```

```python
from common import *


def gen():
    k = Kern("gu_kernel")
    NST = 4
    UOFF = 14336 + 128
    STAGE = UOFF + 14336
    CSL = NST * STAGE
    LDS = CSL + 1024
    VWD = 10
    VWA = 17
    VL16 = 20
    VCSA = 21
    STT = 24
    FR = 40
    ACC = 96
    T = 208
    CSR = 240
    PF = 244
    MEAN, NMEAN, C1, C2 = 245, 246, 248, 250
    k("""
    s_load_dwordx4 s[4:7], s[0:1], 32
    s_load_dwordx2 s[8:9], s[0:1], 72
    s_cmp_ge_u32 s2, 256
    s_cbranch_scc1 L_k4_end
    """)
    stamp_rt(k, 0); stamp(k, 1)
    code_prefetch(k, 2, PF, 24, 256, 32768)
    k("""
    v_and_b32 v1, 63, v0
    v_lshrrev_b32 v2, 6, v0
    """)
    k("v_readfirstlane_b32 s26, v2")
    k("""
    s_lshr_b32 s27, s2, 1
    s_and_b32 s27, s27, 3
    s_lshl_b32 s27, s27, 2
    s_lshr_b32 s28, s2, 3
    s_and_b32 s28, s28, 3
    s_add_u32 s27, s27, s28
    s_and_b32 s28, s2, 1
    s_lshl_b32 s28, s28, 3
    s_lshr_b32 s29, s2, 5
    s_add_u32 s28, s28, s29
    s_lshl_b32 s29, s27, 2
    s_add_u32 s29, s29, s26
    """)
    k("""
    s_and_b32 s30, s26, 1
    s_mul_i32 s31, s30, 448
    s_mul_i32 s32, s28, 224
    s_movk_i32 s33, 4682
    """)
    for j in range(7):
        k(f"""
        v_add_u32 v4, s31, v1
        v_add_u32 v4, {64*j}, v4
        v_mul_lo_u32 v5, v4, s33
        v_lshrrev_b32 v5, 16, v5
        v_mul_u32_u24 v6, 14, v5
        v_sub_u32 v6, v4, v6
        v_mul_u32_u24 v5, 3584, v5
        v_lshl_add_u32 v5, v6, 4, v5
        v_add_u32 v{VWD+j}, s32, v5
        """)
    k(f"v_lshlrev_b32 v{VL16}, 4, v1")
    k("s_waitcnt lgkmcnt(0)")
    k(f"""
    s_cmp_lt_u32 s26, 2
    s_cselect_b32 s16, s4, s6
    s_cselect_b32 s17, s5, s7
    s_cselect_b32 s34, 0, {UOFF}
    s_mov_b32 s18, {512*3584}
    s_mov_b32 s19, 0x20000
    """)
    srd(k, 20, 8, 9, WS_BYTES)
    k(f"""
    s_mul_i32 s35, s30, 7168
    s_add_u32 s34, s34, s35
    s_lshl_b32 s38, s29, 15
    s_add_u32 s38, s38, {HF}
    """)

    def group_ops(c):
        st = (c % NST) * STAGE
        ops = []
        for j in range(7):
            pre = f"s_mov_b32 s36, {c*64*3584}\n" if j == 0 else ""
            ops.append(pre + f"s_add_u32 m0, s34, {st + j*1024}\nbuffer_load_dwordx4 v{VWD+j}, s[16:19], s36 offen lds")
        for i in range(4):
            n = 4 * c + i
            pre = f"s_add_u32 s39, s38, {c*4096}\n" if i == 0 else ""
            ops.append(pre + f"buffer_load_dwordx4 a[{4*n}:{4*n+3}], v{VL16}, s[20:23], s39 offen offset:{i*1024}")
        return ops

    def group(c):
        for o in group_ops(c):
            k(o)

    stamp(k, 2)
    group(0)
    k(f"""
    v_and_b32 v2, 31, v1
    v_lshrrev_b32 v3, 5, v1
    s_lshl_b32 s36, s29, 12
    s_add_u32 s36, s36, {ST}
    """)
    for i in range(4):
        k(f"buffer_load_dwordx4 v[{STT+4*i}:{STT+4*i+3}], v{VL16}, s[20:23], s36 offen offset:{1024*i}")
    k(f"""
    v_min_u32 v5, 223, v0
    v_cmp_lt_u32 vcc, 111, v5
    v_mov_b32 v6, {1792-112}
    v_cndmask_b32 v6, 0, v6, vcc
    v_add_u32 v6, v6, v5
    v_lshlrev_b32 v6, 4, v6
    s_mul_i32 s36, s28, {112*16}
    s_add_u32 s36, s36, {CS}
    buffer_load_dwordx4 v[{T}:{T+3}], v6, s[20:23], s36 offen
    s_add_u32 s36, s36, {3584*16}
    buffer_load_dwordx4 v[{T+4}:{T+7}], v6, s[20:23], s36 offen
    s_add_u32 s36, s36, {3584*16}
    buffer_load_dwordx4 v[{T+8}:{T+11}], v6, s[20:23], s36 offen
    s_add_u32 s36, s36, {3584*16}
    buffer_load_dwordx4 v[{T+12}:{T+15}], v6, s[20:23], s36 offen
    v_lshlrev_b32 v9, 2, v5
    """)
    group(1)
    k(f"""
    v_bfe_u32 v4, v1, 2, 2
    v_lshl_add_u32 v4, v3, 2, v4
    v_mul_u32_u24 v4, 224, v4
    v_and_b32 v5, 3, v1
    v_lshl_add_u32 v4, v5, 3, v4
    v_bfe_u32 v5, v1, 4, 1
    v_mul_u32_u24 v5, {UOFF}, v5
    v_add_u32 v{VWA}, v4, v5
    v_add_u32 v{VWA+1}, {2*STAGE}, v{VWA}
    v_add_u32 v{VWA+2}, {4*STAGE}, v{VWA}
    v_lshlrev_b32 v{VCSA}, 4, v3
    v_add_u32 v{VCSA}, {CSL}, v{VCSA}
    v_add_u32 v9, {CSL}, v9
    """)

    def rd(n, p):
        c, s_ = n // 4, n % 4
        st = c % NST
        sset, off = st // 2, (st % 2) * STAGE
        for ab in range(2):
            r = FR + 4 * p + 2 * ab
            k(f"ds_read_b64_tr_b16 v[{r}:{r+1}], v{VWA+sset} offset:{off + s_*3584 + ab*1792 + p*32}")

    def reads(n):
        for p in range(7):
            rd(n, p)

    stamp(k, 3)
    k(f"s_waitcnt vmcnt(11)")
    for st_ in (8, 4, 2, 1):
        for i in range(st_):
            k(f"v_add_f32 v{T+i}, v{T+i}, v{T+i+st_}")
    k(f"""
    ds_write_b32 v9, v{T}
    s_barrier
    """)
    stamp(k, 4); k("s_waitcnt lgkmcnt(0)")
    reads(0)
    for i in range(1, 8):
        k(f"v_add_f32 v{STT}, v{STT}, v{STT+2*i}")
        k(f"v_add_f32 v{STT+1}, v{STT+1}, v{STT+2*i+1}")
    k(f"""
    v_mov_b32 v{STT+2}, v{STT}
    v_mov_b32 v{STT+3}, v{STT+1}
    v_permlane32_swap_b32 v{STT}, v{STT+2}
    v_permlane32_swap_b32 v{STT+1}, v{STT+3}
    v_add_f32 v{STT}, v{STT}, v{STT+2}
    v_add_f32 v{STT+1}, v{STT+1}, v{STT+3}
    v_mul_f32 v{MEAN}, {f32(1/512)}, v{STT}
    v_mul_f32 v{C2}, {f32(1/512)}, v{STT+1}
    v_fma_f32 v{C2}, -v{MEAN}, v{MEAN}, v{C2}
    v_max_f32 v{C2}, 0, v{C2}
    v_add_f32 v{C2}, {f32(1e-5)}, v{C2}
    v_rsq_f32 v{C1}, v{C2}
    v_mul_f32 v{C1}, {f32(-LOG2E)}, v{C1}
    v_mov_b32 v{C1+1}, v{C1}
    v_mov_b32 v{C2+1}, v{C2}
    v_sub_f32 v{NMEAN}, 0, v{MEAN}
    v_sub_f32 v{NMEAN+1}, 0, v{MEAN}
    """)
    pend = group_ops(2)
    for n in range(32):
        if (n + 1) % 4 == 0 and n + 1 < 32:
            c1 = (n + 1) // 4
            for o in pend:
                k(o)
            k(f"s_waitcnt vmcnt({11 if c1 + 1 <= 7 else 0})")
            k("s_barrier")
            pend = group_ops(c1 + 2) if c1 + 2 <= 7 else []
        for p in range(7):
            A = f"v[{ACC+16*p}:{ACC+16*p+15}]"
            k(f"s_waitcnt lgkmcnt({12 if n + 1 < 32 else 12 - 2*p})")
            k(f"v_mfma_f32_32x32x16_bf16 {A}, v[{FR+4*p}:{FR+4*p+3}], a[{4*n}:{4*n+3}], " + (A if n else "0"))
            if n + 1 < 32:
                rd(n + 1, p)
            if p % 2 == 1 and pend:
                k(pend.pop(0))
    stamp(k, 5); k("s_waitcnt lgkmcnt(0)")
    k(f"""
    s_mul_i32 s36, s29, {112*1024}
    s_mul_i32 s37, s28, {7*1024}
    s_add_u32 s36, s36, s37
    s_add_u32 s36, s36, {AF}
    """)
    def csread(p):
        d = FR + (p % 2) * 16
        k(f"ds_read_b128 v[{d}:{d+3}], v{VCSA} offset:{p*64}")
        k(f"ds_read_b128 v[{d+4}:{d+7}], v{VCSA} offset:{p*64+32}")
        k(f"ds_read_b128 v[{d+8}:{d+11}], v{VCSA} offset:{448+p*64}")
        k(f"ds_read_b128 v[{d+12}:{d+15}], v{VCSA} offset:{448+p*64+32}")
    csread(0)
    for p in range(7):
        k("s_waitcnt lgkmcnt(0)")
        if p + 1 < 7:
            csread(p + 1)
        d = FR + (p % 2) * 16
        A = ACC + 16 * p
        def pr(x): return f"v[{x}:{x+1}]"
        for r in range(0, 16, 2):
            k(f"v_pk_fma_f32 {pr(A+r)}, {pr(NMEAN)}, {pr(d+r)}, {pr(A+r)}")
        for r in range(0, 8, 2):
            k(f"v_pk_mul_f32 {pr(T+r)}, {pr(A+r)}, {pr(C1)}")
        for r in range(8):
            k(f"v_exp_f32 v{T+r}, v{T+r}")
        for r in range(0, 8, 2):
            k(f"v_pk_mul_f32 {pr(A+r)}, {pr(A+r)}, {pr(A+8+r)}")
        for r in range(0, 8, 2):
            k(f"v_pk_fma_f32 {pr(T+r)}, {pr(T+r)}, {pr(C2)}, {pr(C2)}")
        for r in range(8):
            k(f"v_rcp_f32 v{T+r}, v{T+r}")
        for r in range(0, 8, 2):
            k(f"v_pk_mul_f32 {pr(A+r)}, {pr(A+r)}, {pr(T+r)}")
        for i in range(4):
            k(f"v_cvt_pk_bf16_f32 v{A+i}, v{A+2*i}, v{A+2*i+1}")
        if p % 4 == 0 and p:
            k(f"s_add_u32 s36, s36, 4096")
        k(f"buffer_store_dwordx4 v[{A}:{A+3}], v{VL16}, s[20:23], s36 offen offset:{(p%4)*1024}")
    stamp(k, 6); stamp_rt(k, 7); stamp_flush(k, 4, 8)
    k.label("L_k4_end")
    k("s_endpgm")
    return k, f"grid=(256,1,1) block=(256,1,1) lds={LDS}"


def gen_cs():
    k = Kern("cs_kernel")
    k("""
    s_load_dwordx4 s[4:7], s[0:1], 32
    s_load_dwordx2 s[8:9], s[0:1], 72
    s_cmp_ge_u32 s2, 28
    s_cbranch_scc1 L_cs_end
    v_and_b32 v1, 63, v0
    v_lshrrev_b32 v2, 6, v0
    """)
    k("v_readfirstlane_b32 s26, v2")
    k("s_waitcnt lgkmcnt(0)")
    k(f"""
    s_cmp_lt_u32 s2, 14
    s_cselect_b32 s16, s4, s6
    s_cselect_b32 s17, s5, s7
    s_cselect_b32 s27, 0, 14
    s_mov_b32 s18, {512*3584}
    s_mov_b32 s19, 0x20000
    s_sub_u32 s27, s2, s27
    s_lshl_b32 s27, s27, 8
    s_mul_i32 s28, s26, {128*3584}
    s_add_u32 s27, s27, s28
    v_lshlrev_b32 v3, 2, v1
    v_mov_b32 v4, 0
    v_mov_b32 v5, 0
    s_mov_b32 s29, 16
    """)
    srd(k, 20, 8, 9, WS_BYTES)
    k.label("L_cs_loop")
    for i in range(8):
        k(f"buffer_load_dword v{8+i}, v3, s[16:19], s27 offen")
        k(f"s_add_u32 s27, s27, 3584")
    k("s_waitcnt vmcnt(0)")
    for i in range(8):
        k(f"v_lshlrev_b32 v6, 16, v{8+i}")
        k(f"v_and_b32 v7, 0xffff0000, v{8+i}")
        k("v_add_f32 v4, v4, v6")
        k("v_add_f32 v5, v5, v7")
    k("""
    s_sub_u32 s29, s29, 1
    s_cmp_lg_u32 s29, 0
    s_cbranch_scc1 L_cs_loop
    """)
    k(f"""
    v_lshlrev_b32 v3, 5, v1
    s_lshl_b32 s27, s2, 11
    s_lshl_b32 s28, s26, 2
    s_add_u32 s27, s27, s28
    s_add_u32 s27, s27, {CS}
    buffer_store_dword v4, v3, s[20:23], s27 offen
    buffer_store_dword v5, v3, s[20:23], s27 offen offset:16
    """)
    k.label("L_cs_end")
    k("s_endpgm")
    return k, "grid=(28,1,1) block=(256,1,1) lds=0"
```

```python
from common import *
import os


def gen():
    k = Kern("qkv_kernel")
    NST = 4
    STAGE = 32768
    WOFF = 8192
    SCR = NST * STAGE
    LDS = SCR + 5120 + 4096
    VXD = 10
    VWD = 12
    VXA = 20
    VWA = 28
    FR = 40
    ACC = 80
    CSA = 128
    SEL = 144
    T = 156
    SUM = 164
    PF = 168
    ROT = os.environ.get("ROTMASK", "7")
    k("""
    s_load_dwordx4 s[4:7], s[0:1], 0
    s_load_dwordx2 s[8:9], s[0:1], 72
    s_cmp_ge_u32 s2, 256
    s_cbranch_scc1 L_k1_end
    """)
    stamp_rt(k, 0); stamp(k, 1)
    code_prefetch(k, 2, PF, 24, 512, 32768)
    k("""
    v_and_b32 v1, 63, v0
    v_lshrrev_b32 v2, 6, v0
    """)
    k("v_readfirstlane_b32 s25, v2")
    k("""
    s_and_b32 s27, s2, 6
    s_lshl_b32 s27, s27, 2
    s_lshr_b32 s28, s2, 3
    s_and_b32 s41, s28, 7
    s_add_u32 s27, s27, s41
    s_and_b32 s28, s2, 1
    s_lshl_b32 s28, s28, 2
    s_lshr_b32 s29, s2, 6
    s_add_u32 s28, s28, s29
    s_and_b32 s26, s25, 3
    s_cmp_lt_u32 s25, 4
    s_cbranch_scc1 L_k1_M
    """)
    k(f"""
    s_lshl_b32 s29, s29, 1
    s_add_u32 s41, s41, s29
    s_and_b32 s41, s41, {ROT}
    v_lshrrev_b32 v8, 3, v1
    v_and_b32 v9, 7, v1
    s_lshl_b32 s30, s27, 16
    s_lshl_b32 s31, s26, 14
    s_add_u32 s30, s30, s31
    v_lshrrev_b32 v5, 1, v8
    v_xor_b32 v5, v5, v9
    v_lshlrev_b32 v5, 4, v5
    v_lshl_add_u32 v5, v8, 10, v5
    v_add_u32 v{VXD}, s30, v5
    v_xor_b32 v5, 64, v5
    v_add_u32 v5, 8192, v5
    v_add_u32 v{VXD+1}, s30, v5
    s_lshl_b32 s34, s26, 11
    s_mul_i32 s31, s26, 384
    s_lshl_b32 s32, s28, 7
    s_mov_b32 s33, 43691
    s_mul_i32 s35, s26, 6144
    s_add_u32 s35, s35, {WOFF}
    s_waitcnt lgkmcnt(0)
    """)
    srd(k, 12, 4, 5, 2 * MB)
    srd(k, 16, 6, 7, 512 * 3072)

    def xops(c):
        st = (c % NST) * STAGE
        ops = []
        for i in range(2):
            pre = f"s_add_u32 s36, s41, {c}\ns_and_b32 s36, s36, 7\ns_mul_i32 s37, s36, {64*3072}\ns_lshl_b32 s36, s36, 7\n" if i == 0 else ""
            ops.append(pre + f"s_add_u32 m0, s34, {st + i*1024}\nbuffer_load_dwordx4 v{VXD+i}, s[12:15], s36 offen lds")
        return ops

    def wop(c, j):
        st = (c % NST) * STAGE
        return f"s_add_u32 m0, s35, {st + j*1024}\nbuffer_load_dwordx4 v{VWD+j}, s[16:19], s37 offen lds"

    def group_ops(c):
        return xops(c) + [wop(c, j) for j in range(6)]

    for o in xops(0):
        k(o)
    for j in range(6):
        k(f"""
        v_add_u32 v4, s31, v1
        v_add_u32 v4, {64*j}, v4
        v_mul_lo_u32 v5, v4, s33
        v_lshrrev_b32 v5, 20, v5
        v_mul_u32_u24 v6, 24, v5
        v_sub_u32 v6, v4, v6
        v_lshrrev_b32 v7, 3, v6
        v_and_b32 v6, 7, v6
        v_and_b32 v4, 2, v5
        v_lshlrev_b32 v4, 1, v4
        v_xor_b32 v6, v6, v4
        v_mul_u32_u24 v5, 3072, v5
        v_lshl_add_u32 v5, v7, 10, v5
        v_lshl_add_u32 v5, v6, 4, v5
        v_add_u32 v{VWD+j}, s32, v5
        """)
        k(wop(0, j))
    k("s_barrier")
    for o in group_ops(1):
        k(o)
    k(f"""
    v_and_b32 v2, 31, v1
    v_lshrrev_b32 v3, 5, v1
    v_lshrrev_b32 v4, 1, v2
    v_and_b32 v4, 7, v4
    v_lshlrev_b32 v5, 7, v2
    s_and_b32 s36, s26, 1
    s_lshl_b32 s36, s36, 12
    v_add_u32 v5, s36, v5
    s_lshr_b32 s38, s26, 1
    s_lshl_b32 s38, s38, 2
    v_add_u32 v6, s38, v3
    s_mov_b32 s43, 0xffff0000
    """)
    for p in range(2):
        k(f"""
        v_add_u32 v7, {2*p}, v6
        v_xor_b32 v7, v7, v4
        v_lshl_add_u32 v{VXA+p}, v7, 4, v5
        v_add_u32 v{VXA+4+p}, {2*STAGE}, v{VXA+p}
        """)
    for i in range(4):
        k(f"v_mov_b32 v{SUM+i}, 0")

    def stats(c, pend):
        fb = FR + 8 * (c % 2)
        for j in range(8):
            if pend:
                k(pend.pop(0))
            lo, hi = T + 2 * (j % 4), T + 2 * (j % 4) + 1
            k(f"""
            v_lshlrev_b32 v{lo}, 16, v{fb+j}
            v_and_b32 v{hi}, s43, v{fb+j}
            v_add_f32 v{SUM}, v{SUM}, v{lo}
            v_add_f32 v{SUM+1}, v{SUM+1}, v{hi}
            v_fmac_f32 v{SUM+2}, v{lo}, v{lo}
            v_fmac_f32 v{SUM+3}, v{hi}, v{hi}
            """)

    for c in range(8):
        k(f"s_waitcnt vmcnt({8 if c + 1 <= 7 else 0}) lgkmcnt(0)")
        k("s_barrier")
        st = c % NST
        fb = FR + 8 * (c % 2)
        for p in range(2):
            k(f"ds_read_b128 v[{fb+4*p}:{fb+4*p+3}], v{VXA + 4*(st//2) + p} offset:{(st%2)*STAGE}")
        pend = group_ops(c + 2) if c + 2 <= 7 else []
        if c:
            stats(c - 1, pend)
        for o in pend:
            k(o)
    k("s_waitcnt lgkmcnt(0)")
    stats(7, [])
    k(f"""
    v_add_f32 v164, v164, v165
    v_add_f32 v166, v166, v167
    v_mov_b32 v165, v164
    v_mov_b32 v167, v166
    v_permlane32_swap_b32 v164, v165
    v_permlane32_swap_b32 v166, v167
    v_add_f32 v164, v164, v165
    v_add_f32 v166, v166, v167
    s_lshl_b32 s37, s26, 8
    v_lshlrev_b32 v4, 2, v2
    v_add_u32 v6, s37, v4
    v_add_u32 v6, {SCR+2048}, v6
    ds_write_b32 v6, v164
    ds_write_b32 v6, v166 offset:128
    v_xor_b32 v7, 512, v6
    s_waitcnt lgkmcnt(0)
    s_barrier
    ds_read_b32 v165, v7
    ds_read_b32 v167, v7 offset:128
    v_and_b32 v6, 0xfffffdff, v6
    s_waitcnt lgkmcnt(0)
    v_add_f32 v164, v164, v165
    v_add_f32 v166, v166, v167
    v_mul_f32 v164, {f32(-1/512)}, v164
    v_mul_f32 v166, {f32(1/512)}, v166
    v_fma_f32 v166, -v164, v164, v166
    v_max_f32 v166, 0, v166
    v_add_f32 v166, {f32(1e-5)}, v166
    v_rsq_f32 v165, v166
    ds_write_b32 v6, v164 offset:1024
    ds_write_b32 v6, v165 offset:1152
    s_waitcnt lgkmcnt(0)
    s_barrier
    s_endpgm
    """)
    k.label("L_k1_M")
    k("s_setprio 1")
    k(f"""
    s_and_b32 s30, s26, 1
    s_lshr_b32 s31, s26, 1
    s_lshl_b32 s29, s27, 1
    s_add_u32 s29, s29, s30
    v_and_b32 v2, 31, v1
    v_lshrrev_b32 v3, 5, v1
    v_lshrrev_b32 v4, 1, v2
    v_and_b32 v4, 7, v4
    v_lshlrev_b32 v5, 7, v2
    s_lshl_b32 s34, s30, 12
    v_add_u32 v5, s34, v5
    v_bfe_u32 v6, v1, 2, 2
    v_lshrrev_b32 v7, 1, v6
    v_xor_b32 v7, s31, v7
    v_lshl_add_u32 v6, v3, 3, v6
    v_mul_u32_u24 v6, 384, v6
    v_lshl_add_u32 v6, v7, 6, v6
    v_bfe_u32 v7, v1, 4, 1
    v_lshl_add_u32 v6, v7, 5, v6
    v_and_b32 v7, 3, v1
    v_lshl_add_u32 v6, v7, 3, v6
    v_add_u32 v6, {WOFF}, v6
    s_barrier
    """)
    for p in range(4):
        k(f"""
        s_add_u32 s36, s30, {p}
        s_and_b32 s36, s36, 3
        s_lshl_b32 s37, s36, 1
        s_mul_i32 s38, s36, 6144
        v_add_u32 v7, s37, v3
        v_xor_b32 v7, v7, v4
        v_lshl_add_u32 v{VXA+p}, v7, 4, v5
        v_add_u32 v{VWA+p}, s38, v6
        v_add_u32 v{VXA+4+p}, {2*STAGE}, v{VXA+p}
        v_add_u32 v{VWA+4+p}, {2*STAGE}, v{VWA+p}
        """)
    k("""
    v_and_b32 v7, 15, v1
    v_bfe_u32 v8, v1, 4, 1
    v_sub_u32 v7, v7, v8
    v_mov_b32 v8, 0x3f803f80
    """)
    for t in range(3):
        k(f"v_cmp_eq_u32 vcc, {2*t}, v7")
        for i in range(4):
            k(f"v_cndmask_b32 v{SEL+4*t+i}, 0, v8, vcc")
    k("s_waitcnt lgkmcnt(0)")
    srd(k, 20, 8, 9, WS_BYTES)
    stamp(k, 2); stamp(k, 3)
    XB = FR
    WB = FR + 12

    def addr(n):
        c, p = n // 4, n % 4
        st = c % NST
        return 4 * (st // 2) + p, (st % 2) * STAGE

    def rdx(n):
        ai, off = addr(n)
        b = XB + (n % 3) * 4
        k(f"ds_read_b128 v[{b}:{b+3}], v{VXA+ai} offset:{off}")

    def rdw(n, t):
        ai, off = addr(n)
        for ab in range(2):
            r = WB + 12 * (n % 2) + 4 * t + 2 * ab
            k(f"ds_read_b64_tr_b16 v[{r}:{r+1}], v{VWA+ai} offset:{off + ab*1536 + t*128}")

    k("s_barrier")
    stamp(k, 4); k("s_waitcnt lgkmcnt(0)")
    for n in range(2):
        rdx(n)
        for t in range(3):
            rdw(n, t)
    for n in range(32):
        pf = n + 2 < 32
        if (n + 2) % 4 == 0 and pf:
            k("s_barrier")
        if n == 30:
            k("s_barrier")
        b = XB + (n % 3) * 4
        X = f"v[{b}:{b+3}]"
        W = [f"v[{WB+12*(n%2)+4*t}:{WB+12*(n%2)+4*t+3}]" for t in range(3)]
        A = [f"v[{ACC+16*t}:{ACC+16*t+15}]" for t in range(3)]
        Cc = [a if n else "0" for a in A]
        mf = [f"v_mfma_f32_32x32x16_bf16 {A[0]}, {W[0]}, {X}, {Cc[0]}",
              f"v_mfma_f32_32x32x16_bf16 {A[1]}, {W[1]}, {X}, {Cc[1]}",
              f"v_mfma_f32_32x32x16_bf16 {A[2]}, {X}, {W[2]}, {Cc[2]}"]
        if pf:
            rdx(n + 2)
        for t in range(3):
            if pf:
                cnt = 12
            elif n == 30:
                cnt = 2 * (2 - t) + 7
            else:
                cnt = 2 * (2 - t)
            k(f"s_waitcnt lgkmcnt({cnt})")
            k(mf[t])
            if n % 2 == 0:
                cc = "0" if (n == 0 and t == 0) else f"v[{CSA}:{CSA+3}]"
                k(f"v_mfma_f32_16x16x32_bf16 v[{CSA}:{CSA+3}], v[{SEL+4*t}:{SEL+4*t+3}], {W[t]}, {cc}")
            if pf:
                rdw(n + 2, t)
        if n == 29:
            k(f"""
            s_mul_i32 s36, s26, 384
            v_lshlrev_b32 v4, 2, v2
            v_add_u32 v4, {SCR}, v4
            v_and_b32 v5, 15, v1
            v_lshlrev_b32 v5, 2, v5
            v_lshrrev_b32 v7, 4, v1
            v_lshl_add_u32 v5, v7, 8, v5
            v_add_u32 v5, {SCR+5120}, v5
            s_lshl_b32 s36, s26, 10
            v_add_u32 v5, s36, v5
            v_add_u32 v4, 5120, v4
            s_lshl_b32 s36, s31, 11
            v_add_u32 v4, s36, v4
            v_lshlrev_b32 v7, 2, v1
            v_add_u32 v7, {SCR+5120}, v7
            v_add_u32 v7, s36, v7
            s_lshl_b32 s37, s30, 8
            s_add_u32 s37, s37, {SCR+3072}
            v_lshlrev_b32 v8, 4, v3
            v_add_u32 v10, s37, v8
            v_lshlrev_b32 v9, 2, v2
            v_add_u32 v9, s37, v9
            s_lshl_b32 s37, s26, 8
            s_add_u32 s37, s37, {SCR+4096}
            v_add_u32 v8, s37, v8
            v_lshlrev_b32 v11, 2, v1
            v_add_u32 v11, s37, v11
            """)
    stamp(k, 5); k("s_waitcnt lgkmcnt(0)")
    for r in range(4):
        k(f"ds_write_b32 v5, v{CSA+r} offset:{r*64}")
    k("""
    s_waitcnt lgkmcnt(0)
    s_barrier
    """)
    for w in range(2):
        k(f"ds_read_b32 v{T+w}, v7 offset:{w*1024}")
        k(f"ds_read_b32 v{T+2+w}, v4 offset:{w*1024+256}")
    MR = FR
    for g in range(4):
        k(f"ds_read_b128 v[{MR+4*g}:{MR+4*g+3}], v10 offset:{g*32}")
        k(f"ds_read_b128 v[{MR+16+4*g}:{MR+16+4*g+3}], v10 offset:{128+g*32}")
    NM, RS, RQ, CV = 164, 166, 170, 172
    k(f"ds_read_b32 v{NM}, v9")
    k(f"ds_read_b32 v{RS}, v9 offset:128")
    k("s_waitcnt lgkmcnt(10)")
    k(f"""
    v_add_f32 v{T}, v{T}, v{T+1}
    v_add_f32 v{CV}, v{T+2}, v{T+3}
    v_add_f32 v{CV+1}, v{T+2}, v{T+3}
    ds_write_b32 v11, v{T}
    """)
    def pr(x): return f"v[{x}:{x+1}]"
    k("s_waitcnt lgkmcnt(0)")
    CQ = CSA
    for t in range(2):
        for g in range(4):
            k(f"ds_read_b128 v[{CQ+16*t+4*g}:{CQ+16*t+4*g+3}], v8 offset:{t*128 + g*32}")
    AV = ACC + 32
    for r in range(0, 16, 2):
        k(f"v_pk_fma_f32 {pr(AV+r)}, {pr(MR+r)}, {pr(CV)}, {pr(AV+r)}")
    for r in range(0, 16, 2):
        k(f"v_pk_mul_f32 {pr(AV+r)}, {pr(AV+r)}, {pr(MR+16+r)}")
    for i in range(8):
        k(f"v_cvt_pk_bf16_f32 v{AV+i}, v{AV+2*i}, v{AV+2*i+1}")
    k(f"""
    v_bfe_u32 v4, v1, 4, 1
    v_and_b32 v5, 15, v1
    v_lshlrev_b32 v5, 4, v5
    v_lshl_add_u32 v5, v3, 8, v5
    v_lshl_add_u32 v5, v4, 16, v5
    s_lshl_b32 s38, s28, 18
    s_lshl_b32 s39, s31, 17
    s_add_u32 s38, s38, s39
    s_lshl_b32 s39, s29, 10
    s_add_u32 s38, s38, s39
    s_add_u32 s39, s38, {VF}
    buffer_store_dwordx4 v[{AV}:{AV+3}], v5, s[20:23], s39 offen
    buffer_store_dwordx4 v[{AV+4}:{AV+7}], v5, s[20:23], s39 offen offset:512
    v_mov_b32 v{NM+1}, v{NM}
    v_mov_b32 v{RS+1}, v{RS}
    v_mul_f32 v{RQ}, {f32(0.25*LOG2E)}, v{RS}
    v_mul_f32 v{RQ+1}, {f32(0.25*LOG2E)}, v{RS}
    v_lshlrev_b32 v6, 4, v1
    s_waitcnt lgkmcnt(0)
    """)
    for t in (1, 0):
        A = ACC + 16 * t
        sc = RQ if t == 0 else RS
        for r in range(0, 16, 2):
            k(f"v_pk_fma_f32 {pr(A+r)}, {pr(NM)}, {pr(CQ+16*t+r)}, {pr(A+r)}")
        for r in range(0, 16, 2):
            k(f"v_pk_mul_f32 {pr(A+r)}, {pr(A+r)}, {pr(sc)}")
        for i in range(8):
            k(f"v_cvt_pk_bf16_f32 v{A+i}, v{A+2*i}, v{A+2*i+1}")
        base = QF if t == 0 else KF
        k(f"s_add_u32 s39, s38, {base}")
        k(f"s_add_u32 s40, s38, {base+65536}")
        k(f"buffer_store_dwordx4 v[{A}:{A+3}], v6, s[20:23], s39 offen")
        k(f"buffer_store_dwordx4 v[{A+4}:{A+7}], v6, s[20:23], s40 offen")
    stamp(k, 6); stamp_rt(k, 7); stamp_flush(k, 1, 8)
    k.label("L_k1_end")
    k("s_endpgm")
    return k, f"grid=(256,1,1) block=(512,1,1) lds={LDS}"
```

```python
from common import *
import os

ZROWS = os.environ.get("ZROWS", "1") == "1"
PRIO = os.environ.get("PRIO", "1") == "1"
ABL = os.environ.get("ABL", "")
WPF = os.environ.get("WPF", "1") == "1"
VBASE = 65536
VSTR = 1056 if ZROWS else 1040
WBASE = (VBASE + 66 * VSTR + 255) // 256 * 256
LDS = WBASE + 16384


def gen():
    k = Kern("attn_kernel")
    Q = 4
    KFR = 8
    VFR = 16
    S = 32
    C = 64
    O = 80
    P0 = 96
    P1 = 100
    AK, AV0, AV1 = 104, 105, 106
    TMP = 108
    PF = 116
    k("""
    s_load_dwordx2 s[8:9], s[0:1], 72
    s_load_dwordx4 s[4:7], s[0:1], 32
    s_load_dwordx2 s[10:11], s[0:1], 16
    s_load_dwordx2 s[12:13], s[0:1], 48
    s_load_dwordx2 s[14:15], s[0:1], 0
    s_cmp_ge_u32 s2, 256
    s_cbranch_scc1 L_k2_end
    """)
    stamp_rt(k, 0); stamp(k, 1)
    code_prefetch(k, 2, PF, 24, 512, 32768)
    k("""
    v_and_b32 v1, 63, v0
    v_lshrrev_b32 v2, 6, v0
    """)
    k("v_readfirstlane_b32 s26, v2")
    k("""
    s_and_b32 s27, s2, 31
    s_lshr_b32 s28, s2, 5
    s_lshl_b32 s28, s28, 3
    s_add_u32 s28, s28, s26
    v_lshlrev_b32 v2, 4, v1
    s_lshl_b32 s29, s27, 16
    s_lshl_b32 s30, s26, 10
    s_add_u32 s31, s29, s30
    """)
    k(f"""
    s_mul_i32 s32, s26, {VSTR}
    s_add_u32 s32, s32, {VBASE}
    s_lshl_b32 s33, s28, 10
    s_add_u32 s33, s33, s29
    s_waitcnt lgkmcnt(0)
    """)
    srd(k, 20, 8, 9, WS_BYTES)
    stamp(k, 2)


    def dma_tile(t):
        k(f"s_add_u32 s34, s31, {KF + t*1024}")
        k(f"s_add_u32 m0, s30, {t*1024}")
        k(f"buffer_load_dwordx4 v2, s[20:23], s34 offen lds")
        k(f"s_add_u32 s34, s31, {VF + t*1024}")
        k(f"s_add_u32 m0, s32, {t*VSTR}")
        k(f"buffer_load_dwordx4 v2, s[20:23], s34 offen lds")

    k("s_cmp_lt_u32 s26, 4")
    k("s_cbranch_scc0 L_k2_nodma")
    for t in range(0, 16, 4):
        dma_tile(t)
    k.label("L_k2_nodma")
    k(f"buffer_load_dwordx4 v[{Q}:{Q+3}], v2, s[20:23], s33 offen")
    k(f"""
    v_mov_b32 v{TMP}, 0x3f803f80
    v_mov_b32 v{TMP+1}, 0x3f803f80
    v_mov_b32 v{TMP+2}, 0x3f803f80
    v_mov_b32 v{TMP+3}, 0x3f803f80
    v_mul_u32_u24 v3, {VSTR}, v1
    v_add_u32 v3, {VBASE+1024}, v3
    """)
    for i in range(16):
        k(f"v_mov_b32 v{O+i}, 0")
    k(f"""
    s_cmp_lg_u32 s26, 7
    s_cbranch_scc1 L_k2_noones
    ds_write_b128 v3, v[{TMP}:{TMP+3}]
    """)
    if ZROWS:
        k(f"ds_write_b128 v3, v[{O}:{O+3}] offset:16")
    k.label("L_k2_noones")
    k(f"""
    v_mov_b32 v{AK}, v2
    v_and_b32 v3, 15, v1
    v_lshlrev_b32 v3, 4, v3
    v_lshrrev_b32 v{TMP+4}, 5, v1
    v_lshl_add_u32 v3, v{TMP+4}, 8, v3
    v_mov_b32 v{TMP+6}, 1024
    """)
    if ZROWS:
        k(f"""
        v_and_b32 v{TMP+5}, 11, v1
        v_cmp_eq_u32 vcc, 0, v{TMP+5}
        v_mov_b32 v{TMP+7}, 1040
        v_cndmask_b32 v{TMP+6}, v{TMP+7}, v{TMP+6}, vcc
        """)
    k(f"""
    v_and_b32 v{TMP+5}, 16, v1
    v_cmp_eq_u32 vcc, 0, v{TMP+5}
    v_subrev_u32 v{TMP+7}, 512, v{TMP+6}
    v_cndmask_b32 v{AV0}, v{TMP+6}, v3, vcc
    v_cndmask_b32 v{AV1}, v{TMP+7}, v3, vcc
    v_add_u32 v{AV0}, {VBASE}, v{AV0}
    v_add_u32 v{AV1}, {VBASE}, v{AV1}
    """)
    for i in range(4):
        k(f"v_mov_b32 v{P1+i}, 0")
        k(f"v_mov_b32 v{VFR+12+i}, 0")
    k("""
    s_cmp_lt_u32 s26, 4
    s_cselect_b32 s42, 99, 1
    s_cselect_b32 s41, 99, 0
    s_cselect_b32 s40, 5, 99
    s_cselect_b32 s43, 1, 99
    s_cselect_b32 s44, 99, %s
    s_mov_b32 s35, 0
    """ % os.environ.get("PDROP", "5"))
    k("s_cmp_lt_u32 s26, 4")
    k("s_cbranch_scc0 L_k2_roleB")
    k("s_waitcnt vmcnt(7)")
    k("s_barrier")
    stamp(k, 3)
    if PRIO:
        k("s_setprio 1")
    for t in range(16, 32, 4):
        dma_tile(t)
    k("s_waitcnt vmcnt(8)")
    k("s_barrier")
    for t in range(32, 64, 4):
        dma_tile(t)
    k(f"""
    s_lshr_b32 s45, s2, 2
    s_cmp_lt_u32 s45, 28
    s_cselect_b32 s16, s4, s6
    s_cselect_b32 s17, s5, s7
    s_cselect_b32 s46, 0, 28
    s_mov_b32 s18, {512*3584}
    s_mov_b32 s19, 0x20000
    s_sub_u32 s46, s45, s46
    s_lshl_b32 s46, s46, 7
    s_and_b32 s47, s2, 3
    s_lshl_b32 s47, s47, 2
    s_add_u32 s47, s47, s26
    s_mul_i32 s48, s47, {32*3584}
    s_add_u32 s46, s46, s48
    s_cmp_lt_u32 s2, 224
    s_cselect_b32 s46, s46, 0x7ff00000
    s_cselect_b32 s43, s43, 99
    v_lshrrev_b32 v3, 3, v1
    v_bfe_u32 v{TMP}, v1, 2, 1
    v_bfe_u32 v{TMP+1}, v1, 4, 1
    v_xor_b32 v{TMP}, v{TMP}, v{TMP+1}
    v_and_b32 v{TMP+1}, 3, v1
    v_lshlrev_b32 v{TMP+1}, 4, v{TMP+1}
    v_lshl_add_u32 v{TMP+1}, v{TMP}, 6, v{TMP+1}
    v_mul_u32_u24 v3, 3584, v3
    v_add_u32 v3, v3, v{TMP+1}
    s_lshl_b32 s48, s26, 12
    s_add_u32 s48, s48, {WBASE}
    """)
    for i in range(4):
        k(f"s_add_u32 m0, s48, {i*1024}")
        k(f"buffer_load_dwordx4 v3, s[16:19], s46 offen lds")
        k(f"s_add_u32 s46, s46, {8*3584}")
    k("s_waitcnt vmcnt(4)")
    k("s_barrier")
    if WPF:
        k(f"""
        s_lshr_b32 s50, s2, 3
        s_lshl_b32 s50, s50, 2
        s_add_u32 s50, s50, s26
        v_min_u32 v{TMP}, 31, v1
        v_lshlrev_b32 v{TMP}, 7, v{TMP}
        s_lshl_b32 s52, s50, 12
        s_mov_b32 s16, s10
        s_mov_b32 s17, s11
        s_mov_b32 s18, {512*1024}
        buffer_load_dword v{PF}, v{TMP}, s[16:19], s52 offen
        v_min_u32 v{TMP}, 15, v1
        v_lshlrev_b32 v{TMP}, 7, v{TMP}
        s_and_b32 s51, s2, 7
        s_lshl_b32 s51, s51, 18
        s_lshl_b32 s52, s50, 11
        s_add_u32 s52, s52, s51
        s_mov_b32 s16, s14
        s_mov_b32 s17, s15
        s_mov_b32 s18, {2*MB}
        buffer_load_dword v{PF}, v{TMP}, s[16:19], s52 offen
        v_min_u32 v{TMP}, 13, v1
        v_lshlrev_b32 v{TMP}, 7, v{TMP}
        s_lshl_b32 s52, s2, 2
        s_add_u32 s52, s52, s26
        s_mul_i32 s52, s52, {14*128}
        s_mov_b32 s16, s12
        s_mov_b32 s17, s13
        s_mov_b32 s18, {1792*1024}
        buffer_load_dword v{PF}, v{TMP}, s[16:19], s52 offen
        """)
    k("s_branch L_k2_go")
    k.label("L_k2_roleB")
    k("s_waitcnt vmcnt(0) lgkmcnt(0)")
    k("s_barrier")
    stamp(k, 3)
    if PRIO:
        k("s_setprio 2")
    k.label("L_k2_go")
    Qr = f"v[{Q}:{Q+3}]"

    def Kr(b): return f"v[{KFR+4*b}:{KFR+4*b+3}]"
    def Vr(b, j): return f"v[{VFR+8*b+4*j}:{VFR+8*b+4*j+3}]"
    def Sr(b): return f"v[{S+16*b}:{S+16*b+15}]"
    Cr = f"v[{C}:{C+15}]"
    Or = f"v[{O}:{O+15}]"
    def rdK(t, b): k(f"ds_read_b128 {Kr(b)}, v{AK} offset:{t*1024}")
    def rdV(t, b):
        k(f"ds_read_b128 {Vr(b,0)}, v{AV0} offset:{t*VSTR}")
        k(f"ds_read_b128 {Vr(b,1)}, v{AV1} offset:{t*VSTR+512}")
    def tilemax(s1):
        k(f"v_max3_f32 v{TMP}, v{s1}, v{s1+1}, v{s1+2}")
        k(f"v_max3_f32 v{TMP+1}, v{s1+3}, v{s1+4}, v{s1+5}")
        k(f"v_max3_f32 v{TMP+2}, v{s1+6}, v{s1+7}, v{s1+8}")
        k(f"v_max3_f32 v{TMP+3}, v{s1+9}, v{s1+10}, v{s1+11}")
        k(f"v_max3_f32 v{TMP}, v{TMP}, v{s1+12}, v{s1+13}")
        k(f"v_max3_f32 v{TMP+1}, v{TMP+1}, v{s1+14}, v{s1+15}")
        k(f"v_max3_f32 v{TMP}, v{TMP}, v{TMP+1}, v{TMP+2}")
        k(f"v_max_f32 v{TMP}, v{TMP}, v{TMP+3}")
        k(f"v_mov_b32 v{TMP+1}, v{TMP}")
        k(f"v_permlane32_swap_b32 v{TMP}, v{TMP+1}")
    if "zq" in ABL:
        for i in range(4): k(f"v_mov_b32 v{Q+i}, 0")
    rdK(0, 0)
    rdK(1, 1)
    rdV(0, 0)
    k("s_waitcnt lgkmcnt(3)")
    k(f"v_mfma_f32_32x32x16_bf16 {Sr(1)}, {Kr(0)}, {Qr}, 0")
    tilemax(S + 16)
    k(f"v_max_f32 v{TMP}, v{TMP}, v{TMP+1}")
    for i in range(16):
        k(f"v_sub_f32 v{C+i}, 0, v{TMP}")
    k(f"v_mfma_f32_32x32x16_bf16 {Sr(0)}, {Kr(0)}, {Qr}, {Cr}")
    k("s_nop 9")

    def E(b, a, n):
        for i in range(a, a + n):
            k(f"v_exp_f32 v{S+16*b+i}, v{S+16*b+i}")
    def CV(dst, b, i):
        k(f"v_cvt_pk_bf16_f32 v{dst}, v{S+16*b+2*i}, v{S+16*b+2*i+1}")

    def tile(t):
        b = t % 2
        nb = 1 - b
        k("s_waitcnt lgkmcnt(0)")
        k(f"v_mfma_f32_32x32x16_bf16 {Sr(nb)}, {Kr(nb)}, {Qr}, {Cr}")
        if "nods" not in ABL: rdK(t + 2, b)
        E(b, 0, 4)
        k(f"v_mfma_f32_32x32x16_bf16 {Or}, {Vr(nb,1)}, v[{P1}:{P1+3}], {Or}")
        if "nods" not in ABL: rdV(t + 1, nb)
        E(b, 4, 2)
        CV(P0, b, 0)
        E(b, 6, 2)
        CV(P0 + 1, b, 1)
        E(b, 8, 2)
        CV(P0 + 2, b, 2)
        E(b, 10, 2)
        CV(P0 + 3, b, 3)
        E(b, 12, 2)
        k(f"v_mfma_f32_32x32x16_bf16 {Or}, {Vr(b,0)}, v[{P0}:{P0+3}], {Or}")
        E(b, 14, 2)
        CV(P1, b, 4)
        CV(P1 + 1, b, 5)
        CV(P1 + 2, b, 6)
        CV(P1 + 3, b, 7)

    stamp(k, 4)
    k.raw(".p2align 6")
    k.label("L_k2_loop")
    for t in range(8):
        if t == 2:
            k("s_cmp_lg_u32 s35, s41")
            k("s_cbranch_scc1 L_k2_nobar0")
            k("s_barrier")
            k.label("L_k2_nobar0")
        if t == 6:
            k("s_cmp_lg_u32 s35, s42")
            k("s_cbranch_scc1 L_k2_nobar")
            k("s_barrier")
            k.label("L_k2_nobar")
        tile(t)
    k(f"v_add_u32 v{AK}, 8192, v{AK}")
    k(f"v_add_u32 v{AV0}, {8*VSTR}, v{AV0}")
    k(f"v_add_u32 v{AV1}, {8*VSTR}, v{AV1}")
    k("s_cmp_eq_u32 s35, s43")
    k("s_cbranch_scc1 L_k2_cs")
    k.label("L_k2_csret")
    k("s_cmp_eq_u32 s35, s40")
    k("s_cbranch_scc1 L_k2_touch")
    k.label("L_k2_touchret")
    if PRIO:
        k("s_cmp_lg_u32 s35, s44")
        k("s_cbranch_scc1 L_k2_noprio")
        k("s_setprio 0")
        k.label("L_k2_noprio")
    k("s_add_u32 s35, s35, 1")
    k("s_cmp_lg_u32 s35, 8")
    k("s_cbranch_scc1 L_k2_loop")
    k.check_backedge("L_k2_loop")
    k(f"v_mfma_f32_32x32x16_bf16 {Or}, {Vr(1,1)}, v[{P1}:{P1+3}], {Or}")
    k("s_waitcnt lgkmcnt(0)")
    stamp(k, 5)
    k(f"v_max3_f32 v{TMP}, abs(v{O}), abs(v{O+1}), abs(v{O+2})")
    k(f"v_max3_f32 v{TMP+1}, abs(v{O+3}), abs(v{O+4}), abs(v{O+5})")
    k(f"v_max3_f32 v{TMP}, v{TMP}, abs(v{O+6}), abs(v{O+7})")
    k(f"v_add_f32 v{TMP+2}, v{O}, v{O+1}")
    k(f"v_add_f32 v{TMP+3}, v{O+2}, v{O+3}")
    k(f"v_add_f32 v{TMP+4}, v{O+4}, v{O+5}")
    k(f"v_add_f32 v{TMP+5}, v{O+6}, v{O+7}")
    k(f"v_add_f32 v{TMP+2}, v{TMP+2}, v{TMP+3}")
    k(f"v_add_f32 v{TMP+4}, v{TMP+4}, v{TMP+5}")
    k(f"v_add_f32 v{TMP+2}, v{TMP+2}, v{TMP+4}")
    k(f"v_max_f32 v{TMP}, v{TMP}, v{TMP+1}")
    k(f"s_mov_b32 s36, {f32(2.0**100)}")
    k(f"s_mov_b32 s37, 0x7f000000")
    k(f"v_cmp_gt_f32 vcc, s36, v{O+8}")
    k(f"v_cmp_gt_f32 s[38:39], s37, v{TMP}")
    k(f"v_cmp_o_f32 s[50:51], v{TMP+2}, v{TMP+2}")
    k("s_and_b64 vcc, vcc, s[38:39]")
    k("s_and_b64 vcc, vcc, s[50:51]")
    k("s_cmp_eq_u64 vcc, exec")
    k("s_cbranch_scc0 L_k2_slow")
    k.label("L_k2_fin")
    k(f"v_rcp_f32 v{TMP}, v{O+8}")
    for i in range(8):
        k(f"v_mul_f32 v{O+i}, v{O+i}, v{TMP}")
    for i in range(4):
        k(f"v_cvt_pk_bf16_f32 v{O+i}, v{O+2*i}, v{O+2*i+1}")
    k(f"""
    s_lshl_b32 s36, s28, 15
    s_lshl_b32 s37, s27, 10
    s_add_u32 s36, s36, s37
    s_add_u32 s36, s36, {OF}
    buffer_store_dwordx4 v[{O}:{O+3}], v2, s[20:23], s36 offen
    """)
    stamp(k, 6); stamp_rt(k, 7); stamp_flush(k, 2, 8)
    k.label("L_k2_end")
    k("s_endpgm")
    k.label("L_k2_cs")
    CA = S + 16
    WF = 120
    SL = 136
    k(f"""
    v_bfe_u32 v{TMP}, v1, 2, 2
    v_lshrrev_b32 v{TMP+1}, 5, v1
    v_lshl_add_u32 v{TMP+1}, v{TMP+1}, 2, v{TMP}
    v_lshlrev_b32 v{TMP+1}, 7, v{TMP+1}
    v_lshrrev_b32 v{TMP}, 1, v{TMP}
    v_lshl_add_u32 v{TMP+1}, v{TMP}, 6, v{TMP+1}
    v_bfe_u32 v{TMP}, v1, 4, 1
    v_lshl_add_u32 v{TMP+1}, v{TMP}, 5, v{TMP+1}
    v_and_b32 v{TMP}, 3, v1
    v_lshl_add_u32 v{TMP+1}, v{TMP}, 3, v{TMP+1}
    v_add_u32 v{TMP+1}, s48, v{TMP+1}
    v_xor_b32 v{TMP+2}, 64, v{TMP+1}
    v_bfe_u32 v{TMP}, v1, 3, 2
    v_mov_b32 v{TMP+3}, 0x3f803f80
    v_cmp_eq_u32 vcc, 0, v{TMP}
    v_cmp_eq_u32 s[38:39], 1, v{TMP}
    s_waitcnt vmcnt(0) lgkmcnt(0)
    """)
    for s_ in range(2):
        for nt in range(2):
            for ab in range(2):
                r = WF + 8 * s_ + 4 * nt + 2 * ab
                k(f"ds_read_b64_tr_b16 v[{r}:{r+1}], v{TMP+1+nt} offset:{s_*2048 + ab*1024}")
    for i in range(4):
        k(f"v_cndmask_b32 v{SL+i}, 0, v{TMP+3}, vcc")
        k(f"v_cndmask_b32 v{SL+4+i}, 0, v{TMP+3}, s[38:39]")
    k("s_waitcnt lgkmcnt(0)")
    first = True
    for s_ in range(2):
        for nt in range(2):
            r = WF + 8 * s_ + 4 * nt
            cc = "0" if first else f"v[{CA}:{CA+15}]"
            first = False
            k(f"v_mfma_f32_32x32x16_bf16 v[{CA}:{CA+15}], v[{SL+4*nt}:{SL+4*nt+3}], v[{r}:{r+3}], {cc}")
    k(f"""
    v_and_b32 v{TMP}, 47, v1
    v_lshlrev_b32 v{TMP}, 4, v{TMP}
    v_bfe_u32 v{TMP+1}, v1, 4, 1
    v_lshl_add_u32 v{TMP}, v{TMP+1}, 15, v{TMP}
    s_cmp_lt_u32 s45, 28
    s_cselect_b32 s36, 0, {256 - 28*4*32768 + (1<<32)}
    s_lshl_b32 s37, s45, 17
    s_add_u32 s36, s36, s37
    s_lshl_b32 s37, s47, 11
    s_add_u32 s36, s36, s37
    s_add_u32 s36, s36, {WGF}
    s_add_u32 s37, s36, 65536
    """)
    for s_ in range(2):
        for nt in range(2):
            r = WF + 8 * s_ + 4 * nt
            k(f"buffer_store_dwordx4 v[{r}:{r+3}], v{TMP}, s[20:23], s{36+nt} offen offset:{s_*1024} sc1")
    k(f"""
    v_cmp_gt_u32 vcc, 32, v1
    v_lshlrev_b32 v{TMP}, 4, v1
    s_lshl_b32 s36, s45, 10
    s_lshl_b32 s37, s26, 2
    s_add_u32 s36, s36, s37
    s_and_b32 s37, s2, 3
    s_mul_i32 s37, s37, {3584*16}
    s_add_u32 s36, s36, s37
    s_add_u32 s36, s36, {CS}
    v_cndmask_b32 v{TMP+1}, v{CA+4}, v{CA}, vcc
    buffer_store_dword v{TMP+1}, v{TMP}, s[20:23], s36 offen
    s_branch L_k2_csret
    """)
    k.label("L_k2_touch")
    k(f"""
    s_lshr_b32 s36, s2, 3
    s_lshl_b32 s36, s36, 2
    s_add_u32 s36, s36, s26
    s_mul_i32 s36, s36, {112*128}
    s_and_b32 s37, s2, 1
    s_mul_i32 s37, s37, {56*32768}
    s_add_u32 s36, s36, s37
    s_add_u32 s36, s36, {WGF}
    v_min_u32 v{TMP}, 55, v1
    v_lshlrev_b32 v{TMP}, 8, v{TMP}
    buffer_load_dword v{PF}, v{TMP}, s[20:23], s36 offen
    buffer_load_dword v{PF}, v{TMP}, s[20:23], s36 offen offset:128
    s_branch L_k2_touchret
    """)
    k.label("L_k2_slow")
    M = TMP + 6
    k(f"v_subrev_u32 v{AK}, 65536, v{AK}")
    k(f"v_subrev_u32 v{AV0}, {64*VSTR}, v{AV0}")
    k(f"v_subrev_u32 v{AV1}, {64*VSTR}, v{AV1}")
    for i in range(16):
        k(f"v_mov_b32 v{O+i}, 0")
    k(f"v_mov_b32 v{M}, 0xff7fffff")
    k("s_mov_b32 s35, 64")
    k.label("L_k2_sloop")
    rdK(0, 0)
    rdV(0, 0)
    k("s_waitcnt lgkmcnt(0)")
    k(f"v_mfma_f32_32x32x16_bf16 {Sr(0)}, {Kr(0)}, {Qr}, 0")
    s0 = S
    tilemax(s0)
    k(f"v_max3_f32 v{TMP}, v{TMP}, v{TMP+1}, v{M}")
    k(f"v_sub_f32 v{TMP+1}, v{M}, v{TMP}")
    k(f"v_exp_f32 v{TMP+1}, v{TMP+1}")
    k(f"v_mov_b32 v{M}, v{TMP}")
    for i in range(16):
        k(f"v_mul_f32 v{O+i}, v{O+i}, v{TMP+1}")
    for i in range(16):
        k(f"v_sub_f32 v{s0+i}, v{s0+i}, v{M}")
    E(0, 0, 16)
    for i in range(4):
        CV(P0 + i, 0, i)
        CV(P1 + i, 0, 4 + i)
    k(f"v_mfma_f32_32x32x16_bf16 {Or}, {Vr(0,0)}, v[{P0}:{P0+3}], {Or}")
    k(f"v_mfma_f32_32x32x16_bf16 {Or}, {Vr(0,1)}, v[{P1}:{P1+3}], {Or}")
    k(f"v_add_u32 v{AK}, 1024, v{AK}")
    k(f"v_add_u32 v{AV0}, {VSTR}, v{AV0}")
    k(f"v_add_u32 v{AV1}, {VSTR}, v{AV1}")
    k("s_nop 15")
    k("s_sub_u32 s35, s35, 1")
    k("s_cmp_lg_u32 s35, 0")
    k("s_cbranch_scc1 L_k2_sloop")
    k.check_backedge("L_k2_sloop")
    k("s_nop 15")
    k("s_branch L_k2_fin")
    return k, f"grid=(256,1,1) block=(512,1,1) lds={LDS}"
```

```python
from common import *
import os


def gen(which):
    wo = which == "wo"
    name = "wo_kernel" if wo else "down_kernel"
    L = "k3" if wo else "k5"
    KS = 32 if wo else 112
    NCH = KS // 4
    NST = int(os.environ.get('NST64', '7'))
    STAGE = 16384
    XL = NST * STAGE
    BSRC = OF if wo else AF
    MT_STRIDE = KS * 1024
    ROT = int(os.environ.get('ROT64', '0'))
    k = Kern(name)
    VBD = 10
    VWD = 11
    VBA = 12
    VWA = 15
    RES = 20
    FR = 28
    ACC = 64
    T = 80
    PF = 96
    if wo:
        k("""
        s_load_dwordx2 s[4:5], s[0:1], 0
        s_load_dwordx2 s[6:7], s[0:1], 16
        s_load_dwordx2 s[8:9], s[0:1], 72
        """)
    else:
        k("""
        s_load_dwordx4 s[4:7], s[0:1], 48
        s_load_dwordx2 s[8:9], s[0:1], 72
        """)
    k(f"""
    s_cmp_ge_u32 s2, 256
    s_cbranch_scc1 L_{L}_end
    """)
    stamp_rt(k, 0); stamp(k, 1)
    code_prefetch(k, 2, PF, 24, 512, 32768)
    k("""
    v_and_b32 v1, 63, v0
    v_lshrrev_b32 v2, 6, v0
    """)
    k("v_readfirstlane_b32 s25, v2")
    k(f"""
    s_and_b32 s27, s2, 7
    s_lshl_b32 s27, s27, 2
    s_lshr_b32 s28, s2, 3
    s_and_b32 s28, s28, 3
    s_add_u32 s27, s27, s28
    s_lshr_b32 s28, s2, 5
    s_lshr_b32 s44, s2, 6
    s_and_b32 s26, s25, 3
    s_and_b32 s29, s26, 1
    s_lshr_b32 s30, s26, 1
    s_lshl_b32 s31, s27, 1
    s_add_u32 s31, s31, s30
    v_lshlrev_b32 v{VBD}, 4, v1
    s_cmp_lt_u32 s25, 4
    s_cbranch_scc1 L_{L}_C
    """)
    k(f"""
    s_mul_i32 s44, s44, {ROT * NCH // 4}
    s_mul_i32 s32, s31, {MT_STRIDE}
    s_lshl_b32 s33, s29, 11
    s_add_u32 s32, s32, s33
    s_add_u32 s32, s32, {BSRC}
    s_lshl_b32 s34, s26, 11
    v_lshrrev_b32 v2, 3, v1
    v_bfe_u32 v3, v1, 2, 1
    v_bfe_u32 v4, v1, 4, 1
    v_xor_b32 v3, v3, v4
    v_and_b32 v4, 3, v1
    v_lshlrev_b32 v4, 4, v4
    v_lshl_add_u32 v4, v3, 6, v4
    v_lshl_add_u32 v4, v2, 10, v4
    s_lshl_b32 s35, s26, 14
    s_lshl_b32 s36, s28, 7
    s_add_u32 s35, s35, s36
    v_add_u32 v{VWD}, s35, v4
    v_add_u32 v{VWD+1}, 8192-1024, v{VWD}
    s_waitcnt lgkmcnt(0)
    """)
    if wo:
        srd(k, 12, 4, 5, 2 * MB)
        srd(k, 16, 6, 7, 512 * 1024)
    else:
        srd(k, 16, 4, 5, 1792 * 1024)
    srd(k, 20, 8, 9, WS_BYTES)

    def dma_chunk(c):
        st = (c % NST) * STAGE
        k(f"""
        s_lshl_b32 s40, s44, 12
        s_add_u32 s40, s40, s32
        s_add_u32 m0, s34, {st}
        s_lshl_b32 s41, s44, 16
        buffer_load_dwordx4 v{VBD}, s[20:23], s40 offen lds
        buffer_load_dwordx4 v{VBD}, s[20:23], s40 offen offset:1024 lds
        s_add_u32 m0, s34, {st+8192}
        s_add_u32 s44, s44, 1
        buffer_load_dwordx4 v{VWD}, s[16:19], s41 offen lds
        buffer_load_dwordx4 v{VWD+1}, s[16:19], s41 offen offset:1024 lds
        s_cmp_eq_u32 s44, {NCH}
        s_cselect_b32 s44, 0, s44
        """)

    npro = min(NST - 2, NCH)
    xtra = 0
    for c in range(npro):
        dma_chunk(c)
        if c < 2:
            k("s_barrier")
        if wo and c == 1:
            k(f"""
            v_and_b32 v5, 7, v1
            v_xor_b32 v5, v5, v2
            v_lshlrev_b32 v5, 4, v5
            v_lshl_add_u32 v4, v2, 10, v5
            s_lshl_b32 s38, s27, 16
            s_add_u32 s38, s38, s35
            s_add_u32 m0, s34, {XL}
            buffer_load_dwordx4 v4, s[12:15], s38 offen lds
            s_add_u32 s38, s38, 8192
            s_add_u32 m0, s34, {XL+1024}
            buffer_load_dwordx4 v4, s[12:15], s38 offen lds
            """)
        if c == 2 and npro > 3:
            k(f"s_waitcnt vmcnt({8 + (2 if wo else 0)})")
            k("s_barrier")
    issued = npro
    for c in range(NCH):
        if not (c == 0 and npro > 3):
            k(f"s_waitcnt vmcnt({4*(issued - 1 - c) + (2 if wo and c <= 1 else 0)})")
            k("s_barrier")
        while issued < NCH and issued <= c - 2 + NST:
            dma_chunk(issued)
            issued += 1
    k("s_endpgm")
    k.label(f"L_{L}_C")
    k(f"""
    v_and_b32 v2, 31, v1
    v_lshrrev_b32 v3, 5, v1
    s_lshl_b32 s37, s28, 1
    s_add_u32 s37, s37, s29
    s_lshl_b32 s40, s30, 12
    v_add_u32 v{VBA}, s40, v{VBD}
    v_bfe_u32 v4, v1, 2, 2
    v_lshl_add_u32 v5, v3, 2, v4
    v_lshlrev_b32 v5, 7, v5
    v_lshrrev_b32 v4, 1, v4
    v_xor_b32 v4, s29, v4
    v_lshl_add_u32 v5, v4, 6, v5
    v_bfe_u32 v4, v1, 4, 1
    v_lshl_add_u32 v5, v4, 5, v5
    v_and_b32 v4, 3, v1
    v_lshl_add_u32 v5, v4, 3, v5
    v_add_u32 v{VWA}, 8192, v5
    v_add_u32 v{VBA+1}, 65536, v{VBA}
    v_add_u32 v{VWA+1}, 65536, v{VWA}
    s_barrier
    s_barrier
    s_waitcnt lgkmcnt(0)
    """)
    if not wo:
        srd(k, 12, 6, 7, 2 * MB)
    srd(k, 20, 8, 9, WS_BYTES)
    stamp(k, 2)
    if not wo:
        k(f"""
        s_lshl_b32 s38, s31, 15
        s_lshl_b32 s39, s37, 11
        s_add_u32 s38, s38, s39
        s_add_u32 s38, s38, {HF}
        buffer_load_dwordx4 v[{RES}:{RES+3}], v{VBD}, s[20:23], s38 offen
        buffer_load_dwordx4 v[{RES+4}:{RES+7}], v{VBD}, s[20:23], s38 offen offset:1024
        """)
    PD = 2
    NB = PD + 1

    def reads(n):
        c, s_ = n // 4, n % 4
        st = (c % NST) * STAGE
        sset, off = st // 65536, st % 65536
        b = FR + (n % NB) * 8
        k(f"ds_read_b128 v[{b}:{b+3}], v{VBA+sset} offset:{off + s_*1024}")
        k(f"ds_read_b64_tr_b16 v[{b+4}:{b+5}], v{VWA+sset} offset:{off + s_*2048}")
        k(f"ds_read_b64_tr_b16 v[{b+6}:{b+7}], v{VWA+sset} offset:{off + s_*2048 + 1024}")

    stamp(k, 3)
    k("s_barrier")
    stamp(k, 4); k("s_waitcnt lgkmcnt(0)")
    for n in range(PD):
        reads(n)
    for n in range(KS):
        if n + PD < KS:
            if (n + PD) % 4 == 0:
                k("s_barrier")
            reads(n + PD)
            k(f"s_waitcnt lgkmcnt({3*PD})")
        else:
            k(f"s_waitcnt lgkmcnt({3*(KS-1-n)})")
        b = FR + (n % NB) * 8
        k(f"v_mfma_f32_32x32x16_bf16 v[{ACC}:{ACC+15}], v[{b+4}:{b+7}], v[{b}:{b+3}], " + (f"v[{ACC}:{ACC+15}]" if n else "0"))
        if wo and n == KS - 3:
            k(f"""
            s_lshl_b32 s38, s30, 12
            s_lshl_b32 s39, s29, 2
            v_and_b32 v4, 7, v2
            v_xor_b32 v4, s39, v4
            v_lshlrev_b32 v5, 7, v2
            v_lshl_add_u32 v5, v3, 3, v5
            v_add_u32 v5, s38, v5
            v_add_u32 v5, {XL}, v5
            """)
            for g in range(4):
                k(f"v_xor_b32 v{T+g}, {g}, v4")
                k(f"v_lshl_add_u32 v{T+g}, v{T+g}, 4, v5")
    if wo:
        for g in range(4):
            k(f"ds_read_b64 v[{RES+2*g}:{RES+2*g+1}], v{T+g}")
        k("s_waitcnt lgkmcnt(0)")
    else:
        k("s_waitcnt vmcnt(0)")
    stamp(k, 5)
    for i in range(8):
        k(f"v_lshlrev_b32 v{T+2*i}, 16, v{RES+i}")
        k(f"v_and_b32 v{T+2*i+1}, 0xffff0000, v{RES+i}")
    for r in range(0, 16, 2):
        k(f"v_pk_add_f32 v[{ACC+r}:{ACC+r+1}], v[{ACC+r}:{ACC+r+1}], v[{T+r}:{T+r+1}]")
    if wo:
        for i in range(8):
            k(f"v_cvt_pk_bf16_f32 v{RES+i}, v{ACC+2*i}, v{ACC+2*i+1}")
        k(f"""
        s_lshl_b32 s38, s31, 15
        s_lshl_b32 s39, s37, 11
        s_add_u32 s38, s38, s39
        s_add_u32 s38, s38, {HF}
        buffer_store_dwordx4 v[{RES}:{RES+3}], v{VBD}, s[20:23], s38 offen
        buffer_store_dwordx4 v[{RES+4}:{RES+7}], v{VBD}, s[20:23], s38 offen offset:1024
        """)
        k(f"v_pk_add_f32 v[{T}:{T+1}], v[{ACC}:{ACC+1}], v[{ACC+2}:{ACC+3}]")
        k(f"v_pk_mul_f32 v[{T+2}:{T+3}], v[{ACC}:{ACC+1}], v[{ACC}:{ACC+1}]")
        k(f"v_pk_fma_f32 v[{T+2}:{T+3}], v[{ACC+2}:{ACC+3}], v[{ACC+2}:{ACC+3}], v[{T+2}:{T+3}]")
        for r in range(4, 16, 2):
            k(f"v_pk_add_f32 v[{T}:{T+1}], v[{T}:{T+1}], v[{ACC+r}:{ACC+r+1}]")
            k(f"v_pk_fma_f32 v[{T+2}:{T+3}], v[{ACC+r}:{ACC+r+1}], v[{ACC+r}:{ACC+r+1}], v[{T+2}:{T+3}]")
        k(f"""
        v_add_f32 v{T}, v{T}, v{T+1}
        v_add_f32 v{T+1}, v{T+2}, v{T+3}
        v_mov_b32 v{T+2}, v{T}
        v_mov_b32 v{T+3}, v{T+1}
        v_permlane32_swap_b32 v{T}, v{T+2}
        v_permlane32_swap_b32 v{T+1}, v{T+3}
        v_add_f32 v{T}, v{T}, v{T+2}
        v_add_f32 v{T+1}, v{T+1}, v{T+3}
        v_lshlrev_b32 v4, 4, v2
        s_lshl_b32 s38, s31, 12
        s_lshr_b32 s39, s37, 1
        s_lshl_b32 s39, s39, 9
        s_add_u32 s38, s38, s39
        s_lshl_b32 s39, s29, 3
        s_add_u32 s38, s38, s39
        s_add_u32 s38, s38, {ST}
        buffer_store_dwordx2 v[{T}:{T+1}], v4, s[20:23], s38 offen
        """)
    else:
        for i in range(8):
            k(f"v_cvt_pk_bf16_f32 v{ACC+i}, v{ACC+2*i}, v{ACC+2*i+1}")
        k(f"""
        v_lshlrev_b32 v4, 10, v2
        v_lshl_add_u32 v4, v3, 4, v4
        v_permlane32_swap_b32 v{ACC}, v{ACC+2}
        v_permlane32_swap_b32 v{ACC+1}, v{ACC+3}
        v_permlane32_swap_b32 v{ACC+4}, v{ACC+6}
        v_permlane32_swap_b32 v{ACC+5}, v{ACC+7}
        s_lshl_b32 s38, s31, 15
        s_lshl_b32 s39, s37, 6
        s_add_u32 s38, s38, s39
        buffer_store_dwordx4 v[{ACC}:{ACC+3}], v4, s[12:15], s38 offen
        buffer_store_dwordx4 v[{ACC+4}:{ACC+7}], v4, s[12:15], s38 offen offset:32
        """)
    stamp(k, 6); stamp_rt(k, 7); stamp_flush(k, 3 if wo else 5, 8)
    k.label(f"L_{L}_end")
    k("s_endpgm")
    return k, f"grid=(256,1,1) block=(512,1,1) lds={NST*STAGE + (8192 if wo else 0)}"
```

```python
from common import *
import os


def gen():
    k = Kern("gu_kernel")
    NST = 3
    HOFF = 28672
    STAGE = HOFF + 16384
    CSL = NST * STAGE
    LDS = CSL + 1024
    VWD = 10
    VWA = 16
    VHA = 19
    VL16 = 22
    VCSA = 23
    STT = 24
    HB = 40
    FR = 48
    ACC = 64
    T = 128
    CSB = 144
    PF = 176
    MEAN, NMEAN, C1, C2 = 177, 178, 180, 182
    ROT = os.environ.get("ROT4", "0")
    k("""
    s_load_dwordx2 s[8:9], s[0:1], 72
    s_load_dwordx2 s[10:11], s[0:1], 48
    s_cmp_ge_u32 s2, 256
    s_cbranch_scc1 L_k4_end
    """)
    stamp_rt(k, 0); stamp(k, 1)
    code_prefetch(k, 2, PF, 24, 512, 32768)
    k("""
    v_and_b32 v1, 63, v0
    v_lshrrev_b32 v2, 6, v0
    """)
    k("v_readfirstlane_b32 s25, v2")
    k(f"""
    s_lshr_b32 s27, s2, 1
    s_and_b32 s27, s27, 3
    s_lshl_b32 s27, s27, 2
    s_lshr_b32 s28, s2, 3
    s_and_b32 s28, s28, 3
    s_add_u32 s27, s27, s28
    s_and_b32 s28, s2, 1
    s_lshl_b32 s28, s28, 3
    s_lshr_b32 s29, s2, 5
    s_add_u32 s28, s28, s29
    s_and_b32 s41, s29, {ROT}
    s_and_b32 s26, s25, 3
    s_lshl_b32 s29, s27, 2
    s_add_u32 s29, s29, s26
    v_lshlrev_b32 v{VL16}, 4, v1
    s_cmp_lt_u32 s25, 4
    s_cselect_b32 s31, 2, 5
    s_cselect_b32 s35, 20, 0
    s_mul_i32 s31, s31, s26
    s_add_u32 s31, s31, s35
    s_mul_i32 s32, s28, {7*32768}
    s_add_u32 s32, s32, {WGF}
    """)
    for j in range(5):
        k(f"""
        s_add_u32 s35, s31, {j}
        s_lshr_b32 s36, s35, 2
        s_lshl_b32 s36, s36, 15
        s_and_b32 s35, s35, 3
        s_lshl_b32 s35, s35, 10
        s_add_u32 s35, s35, s36
        v_add_u32 v{VWD+j}, s35, v{VL16}
        """)
    k("s_waitcnt lgkmcnt(0)")
    srd(k, 20, 8, 9, WS_BYTES)
    k(f"""
    s_lshl_b32 s34, s31, 10
    s_lshl_b32 s38, s29, 15
    s_add_u32 s38, s38, {HF}
    s_lshl_b32 s40, s26, 12
    s_add_u32 s40, s40, {HOFF}
    v_lshrrev_b32 v3, 5, v1
    """)
    stamp(k, 2)

    def body(cls):
        X = cls == "X"
        tiles = [0, 1, 2, 3] if X else [4, 5, 6]
        NT = len(tiles)
        NW = 2 if X else 5
        NOPS = 6 if X else 5

        def group_ops(c):
            st = (c % NST) * STAGE
            pre = f"s_add_u32 s36, s41, {c}\ns_and_b32 s36, s36, 7\n"
            ops = []
            if X:
                for i in range(4):
                    p2 = pre + "s_lshl_b32 s39, s36, 12\ns_add_u32 s39, s39, s38\n" + f"s_add_u32 m0, s40, {st}\n" if i == 0 else ""
                    ops.append(p2 + f"buffer_load_dwordx4 v{VL16}, s[20:23], s39 offen offset:{i*1024} lds")
                pre = ""
            for j in range(NW):
                p2 = pre + f"s_lshl_b32 s37, s36, 12\ns_add_u32 s37, s37, s32\n" if j == 0 else ""
                ops.append(p2 + f"s_add_u32 m0, s34, {st + j*1024}\nbuffer_load_dwordx4 v{VWD+j}, s[20:23], s37 offen lds")
            return ops

        for c in range(2):
            for o in group_ops(c):
                k(o)
            if c == 0:
                k("s_barrier")
        k(f"""
        v_mov_b32 v{VWA}, v{VL16}
        v_add_u32 v{VWA+1}, {STAGE}, v{VWA}
        v_add_u32 v{VWA+2}, {2*STAGE}, v{VWA}
        v_add_u32 v{VHA}, s40, v{VL16}
        v_add_u32 v{VHA+1}, {STAGE}, v{VHA}
        v_add_u32 v{VHA+2}, {2*STAGE}, v{VHA}
        v_lshlrev_b32 v{VCSA}, 4, v3
        v_add_u32 v{VCSA}, {CSL}, v{VCSA}
        """)

        def rdh(n):
            c, s_ = n // 4, n % 4
            b = HB + 4 * (n % 2)
            k(f"ds_read_b128 v[{b}:{b+3}], v{VHA + c % NST} offset:{s_*1024}")

        def rdw(n, i):
            c, s_ = n // 4, n % 4
            k(f"ds_read_b128 v[{FR+4*i}:{FR+4*i+3}], v{VWA + c % NST} offset:{tiles[i]*4096 + s_*1024}")

        if X:
            stamp(k, 3)
        k(f"s_waitcnt vmcnt({NOPS})")
        k("s_barrier")
        if X:
            stamp(k, 4); k("s_waitcnt lgkmcnt(0)")
        rdh(0)
        for i in range(NT):
            rdw(0, i)
        pend = group_ops(2)
        extra = 0
        for n in range(32):
            last = n == 31
            if (n + 1) % 4 == 0 and not last:
                c1 = (n + 1) // 4
                for o in pend:
                    k(o)
                k(f"s_waitcnt vmcnt({(NOPS if c1 + 1 <= 7 else 0) + extra}) lgkmcnt(0)")
                k("s_barrier")
                pend = group_ops(c1 + 2) if c1 + 2 <= 7 else []
                if c1 == 6:
                    ops = [f"s_lshl_b32 s36, s29, 12\ns_add_u32 s36, s36, {ST}\n" +
                           f"buffer_load_dwordx4 v[{STT}:{STT+3}], v{VL16}, s[20:23], s36 offen"]
                    for i in range(1, 4):
                        ops.append(f"buffer_load_dwordx4 v[{STT+4*i}:{STT+4*i+3}], v{VL16}, s[20:23], s36 offen offset:{1024*i}")
                    if X:
                        ops.append(f"""
                        v_min_u32 v5, 223, v0
                        v_cmp_lt_u32 vcc, 111, v5
                        v_mov_b32 v6, {1792-112}
                        v_cndmask_b32 v6, 0, v6, vcc
                        v_add_u32 v6, v6, v5
                        v_lshlrev_b32 v6, 4, v6
                        v_lshlrev_b32 v9, 2, v5
                        v_add_u32 v9, {CSL}, v9
                        s_mul_i32 s37, s28, {112*16}
                        s_add_u32 s37, s37, {CS}
                        buffer_load_dwordx4 v[{T}:{T+3}], v6, s[20:23], s37 offen""")
                        for q in range(1, 4):
                            ops.append(f"s_add_u32 s37, s37, {3584*16}\nbuffer_load_dwordx4 v[{T+4*q}:{T+4*q+3}], v6, s[20:23], s37 offen")
                    if not X and os.environ.get("DTOUCH", "1") == "1":
                        ops.append(f"""
                        s_mov_b32 s16, s10
                        s_mov_b32 s17, s11
                        s_mov_b32 s18, {1792*1024}
                        s_mov_b32 s19, 0x20000
                        v_min_u32 v5, 55, v1
                        v_lshlrev_b32 v6, 8, v5
                        s_lshr_b32 s37, s2, 3
                        s_lshl_b32 s37, s37, 2
                        s_add_u32 s37, s37, s26
                        s_mul_i32 s37, s37, {14*1024}
                        buffer_load_dword v{PF}, v6, s[16:19], s37 offen""")
                        ops.append(f"buffer_load_dword v{PF}, v6, s[16:19], s37 offen offset:128")
                    pend = ops
                    extra = len(ops)
            b = HB + 4 * (n % 2)
            if not last:
                rdh(n + 1)
            for i in range(NT):
                A = f"v[{ACC+16*i}:{ACC+16*i+15}]"
                if not ((n + 1) % 4 == 0 and not last):
                    k(f"s_waitcnt lgkmcnt({NT if not last else NT-1-i})")
                if os.environ.get("FAKE16") == "1":
                    for hh in range(2):
                        a4 = ACC + 16 * i + 8 * (n % 2) + 4 * hh
                        k(f"v_mfma_f32_16x16x32_bf16 v[{a4}:{a4+3}], v[{FR+4*i}:{FR+4*i+3}], v[{b}:{b+3}], " + (f"v[{a4}:{a4+3}]" if n > 1 else "0"))
                else:
                    k(f"v_mfma_f32_32x32x16_bf16 {A}, v[{FR+4*i}:{FR+4*i+3}], v[{b}:{b+3}], " + (A if n else "0"))
                if not last:
                    rdw(n + 1, i)
                if pend and (i % 2 == 0 or len(pend) > 6):
                    k(pend.pop(0))
            if n == 29:
                k(f"s_waitcnt vmcnt({0 if X else extra - 4})")
                if X:
                    for st_ in (8, 4, 2, 1):
                        for i in range(st_):
                            k(f"v_add_f32 v{T+i}, v{T+i}, v{T+i+st_}")
                for i in range(1, 8):
                    k(f"v_add_f32 v{STT}, v{STT}, v{STT+2*i}")
                    k(f"v_add_f32 v{STT+1}, v{STT+1}, v{STT+2*i+1}")
                k(f"""
                v_mov_b32 v{STT+2}, v{STT}
                v_mov_b32 v{STT+3}, v{STT+1}
                v_permlane32_swap_b32 v{STT}, v{STT+2}
                v_permlane32_swap_b32 v{STT+1}, v{STT+3}
                v_add_f32 v{STT}, v{STT}, v{STT+2}
                v_add_f32 v{STT+1}, v{STT+1}, v{STT+3}
                v_mul_f32 v{MEAN}, {f32(1/512)}, v{STT}
                v_mul_f32 v{C2}, {f32(1/512)}, v{STT+1}
                v_fma_f32 v{C2}, -v{MEAN}, v{MEAN}, v{C2}
                v_max_f32 v{C2}, 0, v{C2}
                v_add_f32 v{C2}, {f32(1e-5)}, v{C2}
                v_rsq_f32 v{C1}, v{C2}
                v_mul_f32 v{C1}, {f32(-LOG2E)}, v{C1}
                v_mov_b32 v{C1+1}, v{C1}
                v_mov_b32 v{C2+1}, v{C2}
                v_sub_f32 v{NMEAN}, 0, v{MEAN}
                v_sub_f32 v{NMEAN+1}, 0, v{MEAN}
                """)
        if X:
            stamp(k, 5)
            k(f"ds_write_b32 v9, v{T}")
        k("s_waitcnt lgkmcnt(0)")
        k("s_barrier")
        k(f"""
        s_mul_i32 s36, s29, {112*1024}
        s_mul_i32 s37, s28, {7*1024}
        s_add_u32 s36, s36, s37
        s_add_u32 s36, s36, {AF + tiles[0]*1024}
        """)

        def csread(i):
            p = tiles[i]
            d = CSB + (i % 2) * 16
            k(f"ds_read_b128 v[{d}:{d+3}], v{VCSA} offset:{p*64}")
            k(f"ds_read_b128 v[{d+4}:{d+7}], v{VCSA} offset:{p*64+32}")
            k(f"ds_read_b128 v[{d+8}:{d+11}], v{VCSA} offset:{448+p*64}")
            k(f"ds_read_b128 v[{d+12}:{d+15}], v{VCSA} offset:{448+p*64+32}")

        def pr(x): return f"v[{x}:{x+1}]"
        csread(0)
        for i in range(NT):
            k("s_waitcnt lgkmcnt(0)")
            if i + 1 < NT:
                csread(i + 1)
            d = CSB + (i % 2) * 16
            A = ACC + 16 * i
            for r in range(0, 16, 2):
                k(f"v_pk_fma_f32 {pr(A+r)}, {pr(NMEAN)}, {pr(d+r)}, {pr(A+r)}")
            for r in range(0, 8, 2):
                k(f"v_pk_mul_f32 {pr(T+r)}, {pr(A+r)}, {pr(C1)}")
            for r in range(8):
                k(f"v_exp_f32 v{T+r}, v{T+r}")
            for r in range(0, 8, 2):
                k(f"v_pk_mul_f32 {pr(A+r)}, {pr(A+r)}, {pr(A+8+r)}")
            for r in range(0, 8, 2):
                k(f"v_pk_fma_f32 {pr(T+r)}, {pr(T+r)}, {pr(C2)}, {pr(C2)}")
            for r in range(8):
                k(f"v_rcp_f32 v{T+r}, v{T+r}")
            for r in range(0, 8, 2):
                k(f"v_pk_mul_f32 {pr(A+r)}, {pr(A+r)}, {pr(T+r)}")
            for j in range(4):
                k(f"v_cvt_pk_bf16_f32 v{A+j}, v{A+2*j}, v{A+2*j+1}")
            k(f"buffer_store_dwordx4 v[{A}:{A+3}], v{VL16}, s[20:23], s36 offen offset:{i*1024}")

    k("s_cmp_lt_u32 s25, 4")
    k("s_cbranch_scc0 L_k4_Y")
    body("X")
    stamp(k, 6); stamp_rt(k, 7); stamp_flush(k, 4, 8)
    k.label("L_k4_end")
    k("s_endpgm")
    k.label("L_k4_Y")
    body("Y")
    k("s_endpgm")
    return k, f"grid=(256,1,1) block=(512,1,1) lds={LDS}"
```

```python
import sys
sys.path.insert(0, "gen")
import k1_qkv, k2_attn, k35_gemm64, k4_gu

HDR = open("sequential_preLN__softmax_full_mha__swiglu_ffn__prompt.s.ref").read().split("; Override launch")[0]

def build(out):
    ks = [k1_qkv.gen(), k2_attn.gen(), k35_gemm64.gen("wo"), k4_gu.gen(), k35_gemm64.gen("down")]
    s = HDR
    for k, l in ks:
        s += f"; @launch kernel={k.name} {l}\n"
    s += '.amdgcn_target "amdgcn-amd-amdhsa--gfx950"\n'
    for k, l in ks:
        k.label(f"L_{k.name}_codeend")
        k("s_nop 0")
        s += k.full()
    import os, re
    pol = os.environ.get("STPOL", "")
    if pol:
        s = re.sub(r"(buffer_store_dwordx[24] [^\n]*?)( sc1)?\n", lambda m: m.group(1) + " " + pol + "\n", s)
    open(out, "w").write(s)

if __name__ == "__main__":
    build(sys.argv[1] if len(sys.argv) > 1 else "sequential_preLN__softmax_full_mha__swiglu_ffn__prompt.s")
```

```python
from dsl import Kern

MB = 1 << 20
QF = 0 * MB
KF = 2 * MB
VF = 4 * MB
OF = 6 * MB
HF = 8 * MB
ST = 10 * MB
CS = 11 * MB
AF = 12 * MB
WGF = 20 * MB
CNT = 24 * MB
WS_BYTES = 0x10000000

LOG2E = 1.4426950408889634


def f32(x):
    import struct
    return "0x%08x" % struct.unpack("<I", struct.pack("<f", x))[0]


def srd(k, d, lo, hi, nbytes):
    k(f"""
    s_mov_b32 s{d}, s{lo}
    s_mov_b32 s{d+1}, s{hi}
    s_mov_b32 s{d+2}, {nbytes:#x}
    s_mov_b32 s{d+3}, 0x20000
    """)


def code_prefetch(k, vtmp, vdst, sp, nthreads, nbytes):
    k(f"s_getpc_b64 s[{sp}:{sp+1}]")
    k.label(f"L_{k.name}_pc")
    k(f"v_lshlrev_b32 v{vtmp}, 6, v0")
    per = nthreads * 64
    n = (nbytes + per - 1) // per
    for i in range(n):
        if i:
            k(f"v_add_u32 v{vtmp}, {per}, v{vtmp}")
        k(f"v_min_u32 v3, L_{NEXT[k.name]}_codeend-L_{k.name}_pc, v{vtmp}")
        k(f"global_load_dword v{vdst}, v3, s[{sp}:{sp+1}]")
    return n


import os
STAMPS = os.environ.get("STAMPS") == "1"
STAMP_BASE = 64 * MB


def stamp(k, i):
    if not STAMPS:
        return
    k(f"s_memtime s[{60+2*i}:{61+2*i}]")


def stamp_rt(k, i):
    if not STAMPS:
        return
    k(f"s_memrealtime s[{60+2*i}:{61+2*i}]")


def stamp_flush(k, kidx, n, wave_sgpr=26):
    if not STAMPS:
        return
    k("s_waitcnt lgkmcnt(0)")
    k(f"""
    s_lshl_b32 s53, s2, 4
    s_add_u32 s53, s53, s{wave_sgpr}
    s_lshl_b32 s53, s53, 6
    s_add_u32 s53, s53, {STAMP_BASE + kidx*MB}
    v_mov_b32 v0, 0
    """)
    for i in range(n):
        k(f"v_mov_b32 v1, s{60+2*i}")
        k(f"buffer_store_dword v1, v0, s[20:23], s53 offen offset:{4*i}")

MONO = "sequential_preLN__softmax_full_mha__swiglu_ffn__prompt_kernel"
NEXT = {MONO: MONO, "fused_kernel": "fused_kernel", "qkv_kernel": "attn_kernel", "attn_kernel": "wo_kernel", "wo_kernel": "gu_kernel", "gu_kernel": "down_kernel", "down_kernel": "down_kernel"}
```

```python
from common import *
import os

SPIN = 1 << int(os.environ.get('SPINB', '20'))
SPOLL = os.environ.get('SPOLL', '0') == '1'
SLEEP = os.environ.get('SLEEP', '')
LDP = os.environ.get('LDP', ' sc1')


def signal(k, cnt_sgpr, lbl):
    k(f"""
    s_barrier
    s_cmp_lg_u32 s25, 0
    s_cbranch_scc1 {lbl}
    v_mov_b32 v4, 0
    v_mov_b32 v5, 1
    s_mov_b64 exec, 1
    buffer_atomic_add v5, v4, s[20:23], s{cnt_sgpr} offen sc1
    s_mov_b64 exec, -1
    """)
    k.label(lbl)


def poll(k, vaddr, vexp, lbl, pending):
    k(f"s_mov_b32 s46, {CNT}")
    k("s_mov_b32 s47, 0")
    k.label(lbl)
    k(f"""
    buffer_load_dword v6, v{vaddr}, s[20:23], s46 offen sc1
    s_add_u32 s47, s47, 1
    {SLEEP}
    s_waitcnt vmcnt(0)
    v_cmp_gt_u32 vcc, v{vexp}, v6
    s_cmp_gt_u32 s47, {SPIN}
    s_cbranch_scc1 {lbl}_out
    s_cbranch_vccnz {lbl}
    """)
    k.label(f"{lbl}_out")


def spoll(k, soff, exp, lbl):
    k(f"s_add_u32 s46, s{soff}, {CNT}")
    k("s_mov_b32 s47, 0")
    k.label(lbl)
    k(f"""
    s_load_dword s49, s[8:9], s46 glc
    s_add_u32 s47, s47, 1
    s_waitcnt lgkmcnt(0)
    s_cmp_gt_u32 s47, {SPIN}
    s_cbranch_scc1 {lbl}_out
    s_cmp_lt_u32 s49, {exp}
    s_cbranch_scc1 {lbl}
    """)
    k.label(f"{lbl}_out")


def tail(k):
    HKEEP = 200
    VL16 = 208
    k.label("L_f_p3")
    k(f"""
    s_mov_b32 s25, s26
    s_and_b32 s26, s25, 3
    v_lshlrev_b32 v{VL16}, 4, v1
    s_and_b32 s27, s2, 7
    s_lshl_b32 s27, s27, 2
    s_lshr_b32 s28, s2, 3
    s_and_b32 s28, s28, 3
    s_add_u32 s27, s27, s28
    s_lshr_b32 s28, s2, 5
    s_and_b32 s29, s26, 1
    s_lshr_b32 s30, s26, 1
    s_lshl_b32 s31, s27, 1
    s_add_u32 s31, s31, s30
    s_lshr_b32 s45, s2, 5
    s_lshl_b32 s45, s45, 8
    s_add_u32 s45, s45, {CNT}
    s_setprio 0
    s_waitcnt vmcnt(0)
    """)
    signal(k, 45, "L_f_s2")
    k("s_cmp_lt_u32 s25, 4")
    k("s_cbranch_scc1 L_f_p3C")

    VWD = 11
    k(f"""
    s_lshl_b32 s34, s26, 11
    v_lshrrev_b32 v2, 3, v1
    v_bfe_u32 v3, v1, 2, 1
    v_bfe_u32 v4, v1, 4, 1
    v_xor_b32 v3, v3, v4
    v_and_b32 v4, 3, v1
    v_lshlrev_b32 v4, 4, v4
    v_lshl_add_u32 v4, v3, 6, v4
    v_lshl_add_u32 v4, v2, 10, v4
    s_lshl_b32 s35, s26, 14
    s_lshl_b32 s36, s28, 7
    s_add_u32 s35, s35, s36
    v_add_u32 v210, s35, v4
    v_add_u32 v211, 8192-1024, v210
    """)
    srd(k, 16, 10, 11, 512 * 1024)
    srd(k, 56, 14, 15, 2 * MB)
    for c in range(8):
        k(f"""
        s_mov_b32 s41, {c*65536}
        s_add_u32 m0, s34, {c*8192}
        buffer_load_dwordx4 v210, s[16:19], s41 offen lds
        buffer_load_dwordx4 v211, s[16:19], s41 offen offset:1024 lds
        """)
    XL = 131072
    k(f"""
    v_and_b32 v5, 7, v1
    v_xor_b32 v5, v5, v2
    v_lshlrev_b32 v5, 4, v5
    v_lshl_add_u32 v4, v2, 10, v5
    s_lshl_b32 s38, s27, 16
    s_add_u32 s38, s38, s35
    s_add_u32 m0, s34, {XL}
    buffer_load_dwordx4 v4, s[56:59], s38 offen lds
    s_add_u32 s38, s38, 8192
    s_add_u32 m0, s34, {XL+1024}
    buffer_load_dwordx4 v4, s[56:59], s38 offen lds
    s_lshl_b32 s32, s31, 15
    s_lshl_b32 s33, s29, 11
    s_add_u32 s32, s32, s33
    s_add_u32 s32, s32, {OF}
    """)
    k("s_barrier")
    for c in range(8):
        k(f"""
        s_add_u32 s40, s32, {c*4096}
        s_add_u32 m0, s34, {65536 + c*8192}
        buffer_load_dwordx4 v{VL16}, s[20:23], s40 offen{LDP} lds
        buffer_load_dwordx4 v{VL16}, s[20:23], s40 offen offset:1024{LDP} lds
        """)
    for c in range(8):
        k(f"s_waitcnt vmcnt({2*(7-c)})")
        k("s_barrier")
    p4_ids(k, VL16)
    k("s_mul_i32 s42, s26, 7")
    for j in range(7):
        k(f"""
        s_add_u32 s36, s42, {j}
        s_lshr_b32 s37, s36, 2
        s_lshl_b32 s37, s37, 15
        s_and_b32 s39, s36, 3
        s_lshl_b32 s39, s39, 10
        s_add_u32 s37, s37, s39
        v_add_u32 v{212+j}, s37, v{VL16}
        """)
    k("s_lshl_b32 s42, s42, 10")
    k("s_barrier")
    PRE = int(os.environ.get("PRE3", "4"))
    for c in range(3):
        k(f"s_add_u32 s37, s32, {c*4096}")
        for j in range(7):
            if c * 7 + j == PRE:
                k("s_barrier")
            k(f"""
            s_add_u32 m0, s42, {c*28672 + j*1024}
            buffer_load_dwordx4 v{212+j}, s[20:23], s37 offen{LDP} lds
            """)
    if PRE >= 21:
        k("s_barrier")
    k("s_barrier")
    p4_body(k, "Y", VL16)
    p5_loader(k, VL16)

    k.label("L_f_p3C")
    VBA, VWA = 12, 13
    RES, FR, ACC, T = 20, 96, 64, 80
    k(f"""
    v_and_b32 v2, 31, v1
    v_lshrrev_b32 v3, 5, v1
    s_lshl_b32 s37, s28, 1
    s_add_u32 s37, s37, s29
    s_lshl_b32 s40, s30, 12
    s_add_u32 s40, s40, 65536
    v_add_u32 v{VBA}, s40, v{VL16}
    v_bfe_u32 v4, v1, 2, 2
    v_lshl_add_u32 v5, v3, 2, v4
    v_lshlrev_b32 v5, 7, v5
    v_lshrrev_b32 v4, 1, v4
    v_xor_b32 v4, s29, v4
    v_lshl_add_u32 v5, v4, 6, v5
    v_bfe_u32 v4, v1, 4, 1
    v_lshl_add_u32 v5, v4, 5, v5
    v_and_b32 v4, 3, v1
    v_lshl_add_u32 v209, v4, 3, v5
    s_lshl_b32 s38, s30, 12
    s_lshl_b32 s39, s29, 2
    v_and_b32 v4, 7, v2
    v_xor_b32 v4, s39, v4
    v_lshlrev_b32 v5, 7, v2
    v_lshl_add_u32 v5, v3, 3, v5
    v_add_u32 v5, s38, v5
    v_add_u32 v5, {XL}, v5
    """)
    for g in range(4):
        k(f"v_xor_b32 v{T+g}, {g}, v4")
        k(f"v_lshl_add_u32 v{T+g}, v{T+g}, 4, v5")
    k(f"""
    s_cmp_lg_u32 s25, 1
    s_cbranch_scc1 L_f_w2
    v_cmp_gt_u32 vcc, 8, v1
    v_lshlrev_b32 v7, 8, v1
    v_add_u32 v7, {40*256}, v7
    s_and_b32 s36, s2, 7
    s_lshl_b32 s36, s36, 8
    v_mov_b32 v8, s36
    v_cndmask_b32 v7, v8, v7, vcc
    v_mov_b32 v8, 32
    v_mov_b32 v9, 128
    v_cndmask_b32 v8, v8, v9, vcc
    """)
    poll(k, 7, 8, "L_f_poll2", 0)
    k.label("L_f_w2")
    stamp(k, 13)
    k("s_barrier")
    stamp(k, 4)
    PD = int(os.environ.get('PD', '4')); NB = PD + 1

    def reads3(n):
        c, s_ = n // 4, n % 4
        b = FR + (n % NB) * 8
        k(f"ds_read_b128 v[{b}:{b+3}], v{VBA} offset:{c*8192 + s_*1024}")
        k(f"ds_read_b64_tr_b16 v[{b+4}:{b+5}], v209 offset:{n*2048}")
        k(f"ds_read_b64_tr_b16 v[{b+6}:{b+7}], v209 offset:{n*2048 + 1024}")

    k("s_barrier")
    k("s_waitcnt lgkmcnt(0)")
    for n in range(PD):
        reads3(n)
    for n in range(32):
        if n + PD < 32:
            if (n + PD) % 4 == 0:
                k("s_barrier")
            reads3(n + PD)
            k(f"s_waitcnt lgkmcnt({3*PD})")
        else:
            if n == 30:
                for g in range(4):
                    k(f"ds_read_b64 v[{RES+2*g}:{RES+2*g+1}], v{T+g}")
            k(f"s_waitcnt lgkmcnt({3*(31-n) + (4 if n >= 30 else 0)})")
        b = FR + (n % NB) * 8
        k(f"v_mfma_f32_32x32x16_bf16 v[{ACC}:{ACC+15}], v[{b+4}:{b+7}], v[{b}:{b+3}], " + (f"v[{ACC}:{ACC+15}]" if n else "0"))
    k("s_waitcnt lgkmcnt(0)")
    k("s_barrier")
    stamp(k, 5)
    for i in range(8):
        k(f"v_lshlrev_b32 v{T+2*i}, 16, v{RES+i}")
        k(f"v_and_b32 v{T+2*i+1}, 0xffff0000, v{RES+i}")
    for r in range(0, 16, 2):
        k(f"v_pk_add_f32 v[{ACC+r}:{ACC+r+1}], v[{ACC+r}:{ACC+r+1}], v[{T+r}:{T+r+1}]")
    for i in range(8):
        k(f"v_cvt_pk_bf16_f32 v{HKEEP+i}, v{ACC+2*i}, v{ACC+2*i+1}")
    k(f"""
    s_lshl_b32 s38, s31, 15
    s_lshl_b32 s39, s37, 11
    s_add_u32 s38, s38, s39
    s_add_u32 s38, s38, {HF}
    buffer_store_dwordx4 v[{HKEEP}:{HKEEP+3}], v{VL16}, s[20:23], s38 offen sc1
    buffer_store_dwordx4 v[{HKEEP+4}:{HKEEP+7}], v{VL16}, s[20:23], s38 offen offset:1024 sc1
    """)
    k(f"v_pk_add_f32 v[{T}:{T+1}], v[{ACC}:{ACC+1}], v[{ACC+2}:{ACC+3}]")
    k(f"v_pk_mul_f32 v[{T+2}:{T+3}], v[{ACC}:{ACC+1}], v[{ACC}:{ACC+1}]")
    k(f"v_pk_fma_f32 v[{T+2}:{T+3}], v[{ACC+2}:{ACC+3}], v[{ACC+2}:{ACC+3}], v[{T+2}:{T+3}]")
    for r in range(4, 16, 2):
        k(f"v_pk_add_f32 v[{T}:{T+1}], v[{T}:{T+1}], v[{ACC+r}:{ACC+r+1}]")
        k(f"v_pk_fma_f32 v[{T+2}:{T+3}], v[{ACC+r}:{ACC+r+1}], v[{ACC+r}:{ACC+r+1}], v[{T+2}:{T+3}]")
    k(f"""
    v_add_f32 v{T}, v{T}, v{T+1}
    v_add_f32 v{T+1}, v{T+2}, v{T+3}
    v_mov_b32 v{T+2}, v{T}
    v_mov_b32 v{T+3}, v{T+1}
    v_permlane32_swap_b32 v{T}, v{T+2}
    v_permlane32_swap_b32 v{T+1}, v{T+3}
    v_add_f32 v{T}, v{T}, v{T+2}
    v_add_f32 v{T+1}, v{T+1}, v{T+3}
    v_lshlrev_b32 v4, 3, v2
    s_lshl_b32 s38, s31, 12
    s_lshl_b32 s39, s37, 8
    s_add_u32 s38, s38, s39
    s_add_u32 s38, s38, {ST}
    s_mov_b64 exec, 0xffffffff
    buffer_store_dwordx2 v[{T}:{T+1}], v4, s[20:23], s38 offen sc1
    s_mov_b64 exec, -1
    s_lshr_b32 s45, s27, 1
    s_lshl_b32 s45, s45, 8
    s_add_u32 s45, s45, {CNT + 8*256}
    """)
    p4_ids(k, VL16)
    k("s_waitcnt vmcnt(0)")
    signal(k, 45, "L_f_s3")
    k(f"""
    s_cmp_lg_u32 s25, 1
    s_cbranch_scc1 L_f_w3
    s_lshl_b32 s36, s27, 8
    s_add_u32 s36, s36, {8*256}
    v_mov_b32 v7, s36
    v_mov_b32 v8, 16
    """)
    if SPOLL: spoll(k, 36, 16, "L_f_poll3")
    else: poll(k, 7, 8, "L_f_poll3", 0)
    k.label("L_f_w3")
    stamp(k, 14)
    k("s_barrier")
    stamp(k, 6)
    p4_body(k, "X", VL16)
    p5_compute(k, VL16, HKEEP)


HOFF4 = 3 * 28672
CSL4 = HOFF4 + 3 * 16384


def p4_ids(k, VL16):
    k(f"""
    s_lshr_b32 s27, s2, 1
    s_and_b32 s27, s27, 3
    s_lshl_b32 s27, s27, 2
    s_lshr_b32 s28, s2, 3
    s_and_b32 s28, s28, 3
    s_add_u32 s27, s27, s28
    s_and_b32 s28, s2, 1
    s_lshl_b32 s28, s28, 3
    s_lshr_b32 s29, s2, 5
    s_add_u32 s28, s28, s29
    s_lshl_b32 s29, s27, 2
    s_add_u32 s29, s29, s26
    s_cmp_lt_u32 s25, 4
    s_cselect_b32 s31, 2, 5
    s_cselect_b32 s35, 20, 0
    s_mul_i32 s31, s31, s26
    s_add_u32 s31, s31, s35
    s_mul_i32 s32, s28, {7*32768}
    s_add_u32 s32, s32, {WGF}
    s_lshl_b32 s34, s31, 10
    s_lshl_b32 s38, s29, 15
    s_add_u32 s38, s38, {HF}
    s_lshl_b32 s40, s26, 12
    s_add_u32 s40, s40, {HOFF4}
    """)


def p4_body(k, cls, VL16):
    X = cls == "X"
    tiles = [0, 1, 2, 3] if X else [4, 5, 6]
    NT = len(tiles)
    NW = 2 if X else 5
    VWD, VWA, VHA, VCSA = 10, 16, 19, 23
    STT, HB, FR, ACC, T, CSB = 24, 40, 48, 64, 128, 144
    PF = 176
    MEAN, NMEAN, C1, C2 = 177, 178, 180, 182

    def group_ops(c):
        ops = []
        if X:
            for i in range(4):
                p2 = f"s_add_u32 s39, s38, {c*4096}\ns_add_u32 m0, s40, {(c%3)*16384}\n" if i == 0 else ""
                ops.append(p2 + f"buffer_load_dwordx4 v{VL16}, s[20:23], s39 offen offset:{i*1024}{LDP} lds")
        if c >= 3:
            for j in range(NW):
                p2 = f"s_add_u32 s37, s32, {c*4096}\n" if j == 0 else ""
                ops.append(p2 + f"s_add_u32 m0, s34, {(c%3)*28672 + j*1024}\nbuffer_load_dwordx4 v{VWD+j}, s[20:23], s37 offen{LDP} lds")
        return ops

    for c in range(2):
        for o in group_ops(c):
            k(o)
    for j in range(NW):
        k(f"""
        s_add_u32 s35, s31, {j}
        s_lshr_b32 s36, s35, 2
        s_lshl_b32 s36, s36, 15
        s_and_b32 s35, s35, 3
        s_lshl_b32 s35, s35, 10
        s_add_u32 s35, s35, s36
        v_add_u32 v{VWD+j}, s35, v{VL16}
        """)
    k(f"""
    v_lshrrev_b32 v3, 5, v1
    v_mov_b32 v{VWA}, v{VL16}
    v_add_u32 v{VWA+1}, 28672, v{VWA}
    v_add_u32 v{VWA+2}, {2*28672}, v{VWA}
    v_add_u32 v{VHA}, s40, v{VL16}
    v_lshlrev_b32 v{VCSA}, 4, v3
    v_add_u32 v{VCSA}, {CSL4}, v{VCSA}
    """)

    def rdh(n):
        c, s_ = n // 4, n % 4
        b = HB + 4 * (n % 2)
        k(f"ds_read_b128 v[{b}:{b+3}], v{VHA} offset:{(c%3)*16384 + s_*1024}")

    def rdw(n, i):
        c, s_ = n // 4, n % 4
        k(f"ds_read_b128 v[{FR+4*i}:{FR+4*i+3}], v{VWA + c % 3} offset:{tiles[i]*4096 + s_*1024}")

    k(f"s_waitcnt vmcnt({4 if X else 14})")
    k("s_barrier")
    k("s_waitcnt lgkmcnt(0)")
    rdh(0)
    for i in range(NT):
        rdw(0, i)
    pend = group_ops(2)
    extra = 0
    for n in range(32):
        last = n == 31
        bar = (n + 1) % 4 == 0 and not last
        if bar:
            c1 = (n + 1) // 4
            for o in pend:
                k(o)
            nxt = len(group_ops(c1 + 1)) if c1 + 1 <= 7 else 0
            if not X and c1 == 1:
                nxt = 7
            k(f"s_waitcnt vmcnt({nxt + extra}) lgkmcnt(0)")
            k("s_barrier")
            pend = group_ops(c1 + 2) if c1 + 2 <= 7 else []
            if c1 == 6:
                ops = [f"s_lshl_b32 s36, s29, 12\ns_add_u32 s36, s36, {ST}\nv_lshlrev_b32 v8, 3, v1\n" +
                       f"buffer_load_dwordx2 v[{STT}:{STT+1}], v8, s[20:23], s36 offen sc1"]
                for i in range(1, 8):
                    ops.append(f"buffer_load_dwordx2 v[{STT+2*i}:{STT+2*i+1}], v8, s[20:23], s36 offen offset:{512*i} sc1")
                if X:
                    ops.append(f"""
                    v_min_u32 v5, 223, v0
                    v_cmp_lt_u32 vcc, 111, v5
                    v_mov_b32 v6, {1792-112}
                    v_cndmask_b32 v6, 0, v6, vcc
                    v_add_u32 v6, v6, v5
                    v_lshlrev_b32 v6, 4, v6
                    v_lshlrev_b32 v9, 2, v5
                    v_add_u32 v9, {CSL4}, v9
                    s_mul_i32 s37, s28, {112*16}
                    s_add_u32 s37, s37, {CS}
                    buffer_load_dwordx4 v[{T}:{T+3}], v6, s[20:23], s37 offen sc1""")
                    for q in range(1, 4):
                        ops.append(f"s_add_u32 s37, s37, {3584*16}\nbuffer_load_dwordx4 v[{T+4*q}:{T+4*q+3}], v6, s[20:23], s37 offen sc1")
                else:
                    ops.append(f"""
                    s_mov_b32 s16, s12
                    s_mov_b32 s17, s13
                    s_mov_b32 s18, {1792*1024}
                    s_mov_b32 s19, 0x20000
                    v_min_u32 v5, 55, v1
                    v_lshlrev_b32 v6, 8, v5
                    s_lshr_b32 s37, s2, 3
                    s_lshl_b32 s37, s37, 2
                    s_add_u32 s37, s37, s26
                    s_mul_i32 s37, s37, {14*1024}
                    buffer_load_dword v{PF}, v6, s[16:19], s37 offen""")
                    ops.append(f"buffer_load_dword v{PF}, v6, s[16:19], s37 offen offset:128")
                pend = ops
                extra = len(ops)
        b = HB + 4 * (n % 2)
        if not last:
            rdh(n + 1)
        for i in range(NT):
            A = f"v[{ACC+16*i}:{ACC+16*i+15}]"
            if not bar:
                k(f"s_waitcnt lgkmcnt({NT if not last else NT-1-i})")
            k(f"v_mfma_f32_32x32x16_bf16 {A}, v[{FR+4*i}:{FR+4*i+3}], v[{b}:{b+3}], " + (A if n else "0"))
            if not last:
                rdw(n + 1, i)
            if pend and (i % 2 == 0 or len(pend) > 6):
                k(pend.pop(0))
        if n == 29:
            k(f"s_waitcnt vmcnt({0 if X else extra - 8})")
            if X:
                for st_ in (8, 4, 2, 1):
                    for i in range(st_):
                        k(f"v_add_f32 v{T+i}, v{T+i}, v{T+i+st_}")
            for i in range(1, 8):
                k(f"v_add_f32 v{STT}, v{STT}, v{STT+2*i}")
                k(f"v_add_f32 v{STT+1}, v{STT+1}, v{STT+2*i+1}")
            k(f"""
            v_mov_b32 v{STT+2}, v{STT}
            v_mov_b32 v{STT+3}, v{STT+1}
            v_permlane32_swap_b32 v{STT}, v{STT+2}
            v_permlane32_swap_b32 v{STT+1}, v{STT+3}
            v_add_f32 v{STT}, v{STT}, v{STT+2}
            v_add_f32 v{STT+1}, v{STT+1}, v{STT+3}
            v_mul_f32 v{MEAN}, {f32(1/512)}, v{STT}
            v_mul_f32 v{C2}, {f32(1/512)}, v{STT+1}
            v_fma_f32 v{C2}, -v{MEAN}, v{MEAN}, v{C2}
            v_max_f32 v{C2}, 0, v{C2}
            v_add_f32 v{C2}, {f32(1e-5)}, v{C2}
            v_rsq_f32 v{C1}, v{C2}
            v_mul_f32 v{C1}, {f32(-LOG2E)}, v{C1}
            v_mov_b32 v{C1+1}, v{C1}
            v_mov_b32 v{C2+1}, v{C2}
            v_sub_f32 v{NMEAN}, 0, v{MEAN}
            v_sub_f32 v{NMEAN+1}, 0, v{MEAN}
            """)
    if X:
        stamp(k, 7)
        k(f"ds_write_b32 v9, v{T}")
    k("s_waitcnt lgkmcnt(0)")
    k("s_barrier")
    wq = []
    if not X:
        k(f"""
        s_lshr_b32 s43, s2, 5
        s_mul_i32 s43, s43, {7*ROT5}
        s_lshr_b32 s43, s43, 1
        s_mov_b32 s44, s43
        s_lshl_b32 s48, s26, 11
        """)
        if EARLYW:
            wq = list(range(NWS))

    def wpop(n=1):
        for _ in range(n):
            if wq:
                wdma(k, wq.pop(0))
    k(f"""
    s_mul_i32 s36, s29, {112*1024}
    s_mul_i32 s37, s28, {7*1024}
    s_add_u32 s36, s36, s37
    s_add_u32 s36, s36, {AF + tiles[0]*1024}
    """)

    def csread(i):
        p = tiles[i]
        d = CSB + (i % 2) * 16
        k(f"ds_read_b128 v[{d}:{d+3}], v{VCSA} offset:{p*64}")
        k(f"ds_read_b128 v[{d+4}:{d+7}], v{VCSA} offset:{p*64+32}")
        k(f"ds_read_b128 v[{d+8}:{d+11}], v{VCSA} offset:{448+p*64}")
        k(f"ds_read_b128 v[{d+12}:{d+15}], v{VCSA} offset:{448+p*64+32}")

    def pr(x): return f"v[{x}:{x+1}]"
    csread(0)
    for i in range(NT):
        k("s_waitcnt lgkmcnt(0)")
        if i + 1 < NT:
            csread(i + 1)
        d = CSB + (i % 2) * 16
        A = ACC + 16 * i
        wpop(2)
        for r in range(0, 16, 2):
            k(f"v_pk_fma_f32 {pr(A+r)}, {pr(NMEAN)}, {pr(d+r)}, {pr(A+r)}")
        for r in range(0, 8, 2):
            k(f"v_pk_mul_f32 {pr(T+r)}, {pr(A+r)}, {pr(C1)}")
        for r in range(8):
            k(f"v_exp_f32 v{T+r}, v{T+r}")
        wpop(2)
        for r in range(0, 8, 2):
            k(f"v_pk_mul_f32 {pr(A+r)}, {pr(A+r)}, {pr(A+8+r)}")
        for r in range(0, 8, 2):
            k(f"v_pk_fma_f32 {pr(T+r)}, {pr(T+r)}, {pr(C2)}, {pr(C2)}")
        for r in range(8):
            k(f"v_rcp_f32 v{T+r}, v{T+r}")
        for r in range(0, 8, 2):
            k(f"v_pk_mul_f32 {pr(A+r)}, {pr(A+r)}, {pr(T+r)}")
        if i == NT - 1:
            wpop(99)
        for j in range(4):
            k(f"v_cvt_pk_bf16_f32 v{A+j}, v{A+2*j}, v{A+2*j+1}")
        k(f"buffer_store_dwordx4 v[{A}:{A+3}], v{VL16}, s[20:23], s36 offen offset:{i*1024} sc1")
    k(f"""
    s_lshl_b32 s45, s27, 8
    s_add_u32 s45, s45, {CNT + 24*256}
    """)


NWS = int(os.environ.get('NWS', '12'))
NAS = 20 - NWS
ROT5 = int(os.environ.get('ROT5', '0'))
EARLYW = os.environ.get('EARLYW', '1') == '1'
AOFF = NWS * 8192


def p5_ids(k):
    k(f"""
    s_and_b32 s27, s2, 7
    s_lshl_b32 s27, s27, 2
    s_lshr_b32 s28, s2, 3
    s_and_b32 s28, s28, 3
    s_add_u32 s27, s27, s28
    s_lshr_b32 s28, s2, 5
    s_and_b32 s29, s26, 1
    s_lshr_b32 s30, s26, 1
    s_lshl_b32 s31, s27, 1
    s_add_u32 s31, s31, s30
    """)


def wdma(k, c):
    k(f"""
    s_lshl_b32 s41, s43, 16
    s_add_u32 m0, s48, {(c % NWS)*8192}
    s_add_u32 s43, s43, 1
    buffer_load_dwordx4 v210, s[16:19], s41 offen lds
    buffer_load_dwordx4 v211, s[16:19], s41 offen offset:1024 lds
    s_cmp_eq_u32 s43, 28
    s_cselect_b32 s43, 0, s43
    """)


def p5_loader(k, VL16):
    p5_ids(k)
    k(f"""
    s_lshl_b32 s34, s26, 11
    s_mul_i32 s32, s31, {112*1024}
    s_lshl_b32 s33, s29, 11
    s_add_u32 s32, s32, s33
    s_add_u32 s32, s32, {AF}
    """)

    def adma(c):
        k(f"""
        s_lshl_b32 s40, s44, 12
        s_add_u32 s40, s40, s32
        s_add_u32 m0, s34, {AOFF + (c % NAS)*8192}
        s_add_u32 s44, s44, 1
        buffer_load_dwordx4 v{VL16}, s[20:23], s40 offen{LDP} lds
        buffer_load_dwordx4 v{VL16}, s[20:23], s40 offen offset:1024{LDP} lds
        s_cmp_eq_u32 s44, 28
        s_cselect_b32 s44, 0, s44
        """)

    if EARLYW:
        k("s_waitcnt vmcnt(0)")
        k("s_barrier")
    else:
        for c in range(4):
            wdma(k, c)
        k("s_waitcnt vmcnt(8)")
        k("s_barrier")
        for c in range(4, NWS):
            wdma(k, c)
    k("s_barrier")
    order = []
    ia, iw = 0, NWS
    for c in range(NAS - 2):
        adma(c); order.append(("a", c)); ia += 1
    for c in range(28):
        need = max(i for i, g in enumerate(order) if g == ("a", c) or g == ("w", c))
        k(f"s_waitcnt vmcnt({2*(len(order) - 1 - need)})")
        k("s_barrier")
        if ia < 28 and ia <= c - 2 + NAS:
            adma(ia); order.append(("a", ia)); ia += 1
        if iw < 28 and iw <= c - 2 + NWS:
            wdma(k, iw); order.append(("w", iw)); iw += 1
    k("s_endpgm")


def p5_compute(k, VL16, HKEEP):
    VBA, VWA = 12, 13
    FR, ACC, T = 96, 64, 80
    p5s = 45
    k("s_waitcnt vmcnt(0)")
    stamp(k, 8)
    signal(k, 45, "L_f_s4")
    p5_ids(k)
    srd(k, 56, 54, 55, 2 * MB)
    k(f"""
    v_and_b32 v2, 31, v1
    v_lshrrev_b32 v3, 5, v1
    s_lshl_b32 s37, s28, 1
    s_add_u32 s37, s37, s29
    s_lshl_b32 s40, s30, 12
    s_add_u32 s40, s40, {AOFF}
    v_add_u32 v{VBA}, s40, v{VL16}
    v_add_u32 v{VWA}, 57344, v209
    """)
    for i in range(8):
        k(f"v_lshlrev_b32 v{T+2*i}, 16, v{HKEEP+i}")
        k(f"v_and_b32 v{T+2*i+1}, 0xffff0000, v{HKEEP+i}")
    k(f"""
    s_cmp_lg_u32 s25, 1
    s_cbranch_scc1 L_f_w4
    s_lshr_b32 s36, s27, 1
    s_lshl_b32 s36, s36, 8
    s_add_u32 s36, s36, {24*256}
    v_mov_b32 v7, s36
    v_mov_b32 v8, 16
    """)
    if SPOLL: spoll(k, 36, 16, "L_f_poll4")
    else: poll(k, 7, 8, "L_f_poll4", 0)
    k.label("L_f_w4")
    stamp(k, 15)
    k("s_barrier")
    stamp(k, 9)
    PD = int(os.environ.get('PD', '4')); NB = PD + 1

    def reads(n):
        c, s_ = n // 4, n % 4
        b = FR + (n % NB) * 8
        ws = c % NWS
        wr, woff = ("v209", ws * 8192) if ws < 7 else (f"v{VWA}", (ws - 7) * 8192)
        k(f"ds_read_b128 v[{b}:{b+3}], v{VBA} offset:{(c % NAS)*8192 + s_*1024}")
        k(f"ds_read_b64_tr_b16 v[{b+4}:{b+5}], {wr} offset:{woff + s_*2048}")
        k(f"ds_read_b64_tr_b16 v[{b+6}:{b+7}], {wr} offset:{woff + s_*2048 + 1024}")

    k("s_barrier")
    k("s_waitcnt lgkmcnt(0)")
    for n in range(PD):
        reads(n)
    KS = 112
    for n in range(KS):
        if n + PD < KS:
            if (n + PD) % 4 == 0:
                k("s_barrier")
            reads(n + PD)
            k(f"s_waitcnt lgkmcnt({3*PD})")
        else:
            k(f"s_waitcnt lgkmcnt({3*(KS-1-n)})")
        b = FR + (n % NB) * 8
        k(f"v_mfma_f32_32x32x16_bf16 v[{ACC}:{ACC+15}], v[{b+4}:{b+7}], v[{b}:{b+3}], " + (f"v[{ACC}:{ACC+15}]" if n else f"v[{T}:{T+15}]"))
    stamp(k, 10)
    for i in range(8):
        k(f"v_cvt_pk_bf16_f32 v{ACC+i}, v{ACC+2*i}, v{ACC+2*i+1}")
    k(f"""
    v_lshlrev_b32 v4, 10, v2
    v_lshl_add_u32 v4, v3, 4, v4
    v_permlane32_swap_b32 v{ACC}, v{ACC+2}
    v_permlane32_swap_b32 v{ACC+1}, v{ACC+3}
    v_permlane32_swap_b32 v{ACC+4}, v{ACC+6}
    v_permlane32_swap_b32 v{ACC+5}, v{ACC+7}
    s_lshl_b32 s38, s31, 15
    s_lshl_b32 s39, s37, 6
    s_add_u32 s38, s38, s39
    buffer_store_dwordx4 v[{ACC}:{ACC+3}], v4, s[56:59], s38 offen
    buffer_store_dwordx4 v[{ACC+4}:{ACC+7}], v4, s[56:59], s38 offen offset:32
    """)
    stamp(k, 11); stamp_rt(k, 12); stamp_flush(k, 2, 16)
    k("s_endpgm")
```

```python
from common import *
import os


def gen():
    k = Kern("qkv_kernel")
    NST = 4
    STAGE = 32768
    WOFF = 8192
    SCR = NST * STAGE
    LDS = SCR + 5120 + 4096
    VXD = 10
    VWD = 12
    VXA = 20
    VWA = 28
    FR = 40
    ACC = 80
    CSA = 128
    SEL = 144
    T = 156
    SUM = 164
    PF = 168
    ROT = os.environ.get("ROTMASK", "7")
    k("""
    s_load_dwordx4 s[4:7], s[0:1], 0
    s_load_dwordx2 s[8:9], s[0:1], 72
    s_cmp_ge_u32 s2, 256
    s_cbranch_scc1 L_k1_end
    """)
    stamp_rt(k, 0); stamp(k, 1)
    code_prefetch(k, 2, PF, 24, 512, 32768)
    k("""
    v_and_b32 v1, 63, v0
    v_lshrrev_b32 v2, 6, v0
    """)
    k("v_readfirstlane_b32 s25, v2")
    k("""
    s_and_b32 s27, s2, 6
    s_lshl_b32 s27, s27, 2
    s_lshr_b32 s28, s2, 3
    s_and_b32 s41, s28, 7
    s_add_u32 s27, s27, s41
    s_and_b32 s28, s2, 1
    s_lshl_b32 s28, s28, 2
    s_lshr_b32 s29, s2, 6
    s_add_u32 s28, s28, s29
    s_and_b32 s26, s25, 3
    s_cmp_lt_u32 s25, 4
    s_cbranch_scc1 L_k1_M
    """)
    k(f"""
    s_lshl_b32 s29, s29, 1
    s_add_u32 s41, s41, s29
    s_and_b32 s41, s41, {ROT}
    v_lshrrev_b32 v8, 3, v1
    v_and_b32 v9, 7, v1
    s_lshl_b32 s30, s27, 16
    s_lshl_b32 s31, s26, 14
    s_add_u32 s30, s30, s31
    v_lshrrev_b32 v5, 1, v8
    v_xor_b32 v5, v5, v9
    v_lshlrev_b32 v5, 4, v5
    v_lshl_add_u32 v5, v8, 10, v5
    v_add_u32 v{VXD}, s30, v5
    v_xor_b32 v5, 64, v5
    v_add_u32 v5, 8192, v5
    v_add_u32 v{VXD+1}, s30, v5
    s_lshl_b32 s34, s26, 11
    s_mul_i32 s31, s26, 384
    s_lshl_b32 s32, s28, 7
    s_mov_b32 s33, 43691
    s_mul_i32 s35, s26, 6144
    s_add_u32 s35, s35, {WOFF}
    s_waitcnt lgkmcnt(0)
    """)
    srd(k, 12, 4, 5, 2 * MB)
    srd(k, 16, 6, 7, 512 * 3072)

    def xops(c):
        st = (c % NST) * STAGE
        ops = []
        for i in range(2):
            pre = f"s_add_u32 s36, s41, {c}\ns_and_b32 s36, s36, 7\ns_mul_i32 s37, s36, {64*3072}\ns_lshl_b32 s36, s36, 7\n" if i == 0 else ""
            ops.append(pre + f"s_add_u32 m0, s34, {st + i*1024}\nbuffer_load_dwordx4 v{VXD+i}, s[12:15], s36 offen lds")
        return ops

    def wop(c, j):
        st = (c % NST) * STAGE
        return f"s_add_u32 m0, s35, {st + j*1024}\nbuffer_load_dwordx4 v{VWD+j}, s[16:19], s37 offen lds"

    def group_ops(c):
        return xops(c) + [wop(c, j) for j in range(6)]

    for o in xops(0):
        k(o)
    for j in range(6):
        k(f"""
        v_add_u32 v4, s31, v1
        v_add_u32 v4, {64*j}, v4
        v_mul_lo_u32 v5, v4, s33
        v_lshrrev_b32 v5, 20, v5
        v_mul_u32_u24 v6, 24, v5
        v_sub_u32 v6, v4, v6
        v_lshrrev_b32 v7, 3, v6
        v_and_b32 v6, 7, v6
        v_and_b32 v4, 2, v5
        v_lshlrev_b32 v4, 1, v4
        v_xor_b32 v6, v6, v4
        v_mul_u32_u24 v5, 3072, v5
        v_lshl_add_u32 v5, v7, 10, v5
        v_lshl_add_u32 v5, v6, 4, v5
        v_add_u32 v{VWD+j}, s32, v5
        """)
        k(wop(0, j))
    k("s_barrier")
    for o in group_ops(1):
        k(o)
    k(f"""
    v_and_b32 v2, 31, v1
    v_lshrrev_b32 v3, 5, v1
    v_lshrrev_b32 v4, 1, v2
    v_and_b32 v4, 7, v4
    v_lshlrev_b32 v5, 7, v2
    s_and_b32 s36, s26, 1
    s_lshl_b32 s36, s36, 12
    v_add_u32 v5, s36, v5
    s_lshr_b32 s38, s26, 1
    s_lshl_b32 s38, s38, 2
    v_add_u32 v6, s38, v3
    s_mov_b32 s43, 0xffff0000
    """)
    for p in range(2):
        k(f"""
        v_add_u32 v7, {2*p}, v6
        v_xor_b32 v7, v7, v4
        v_lshl_add_u32 v{VXA+p}, v7, 4, v5
        v_add_u32 v{VXA+4+p}, {2*STAGE}, v{VXA+p}
        """)
    for i in range(4):
        k(f"v_mov_b32 v{SUM+i}, 0")

    def stats(c, pend):
        fb = FR + 8 * (c % 2)
        for j in range(8):
            if pend:
                k(pend.pop(0))
            lo, hi = T + 2 * (j % 4), T + 2 * (j % 4) + 1
            k(f"""
            v_lshlrev_b32 v{lo}, 16, v{fb+j}
            v_and_b32 v{hi}, s43, v{fb+j}
            v_add_f32 v{SUM}, v{SUM}, v{lo}
            v_add_f32 v{SUM+1}, v{SUM+1}, v{hi}
            v_fmac_f32 v{SUM+2}, v{lo}, v{lo}
            v_fmac_f32 v{SUM+3}, v{hi}, v{hi}
            """)

    for c in range(8):
        k(f"s_waitcnt vmcnt({8 if c + 1 <= 7 else 0}) lgkmcnt(0)")
        k("s_barrier")
        st = c % NST
        fb = FR + 8 * (c % 2)
        for p in range(2):
            k(f"ds_read_b128 v[{fb+4*p}:{fb+4*p+3}], v{VXA + 4*(st//2) + p} offset:{(st%2)*STAGE}")
        pend = group_ops(c + 2) if c + 2 <= 7 else []
        if c:
            stats(c - 1, pend)
        for o in pend:
            k(o)
    k("s_waitcnt lgkmcnt(0)")
    stats(7, [])
    k(f"""
    v_add_f32 v164, v164, v165
    v_add_f32 v166, v166, v167
    v_mov_b32 v165, v164
    v_mov_b32 v167, v166
    v_permlane32_swap_b32 v164, v165
    v_permlane32_swap_b32 v166, v167
    v_add_f32 v164, v164, v165
    v_add_f32 v166, v166, v167
    s_lshl_b32 s37, s26, 8
    v_lshlrev_b32 v4, 2, v2
    v_add_u32 v6, s37, v4
    v_add_u32 v6, {SCR+2048}, v6
    ds_write_b32 v6, v164
    ds_write_b32 v6, v166 offset:128
    v_xor_b32 v7, 512, v6
    s_waitcnt lgkmcnt(0)
    s_barrier
    ds_read_b32 v165, v7
    ds_read_b32 v167, v7 offset:128
    v_and_b32 v6, 0xfffffdff, v6
    s_waitcnt lgkmcnt(0)
    v_add_f32 v164, v164, v165
    v_add_f32 v166, v166, v167
    v_mul_f32 v164, {f32(-1/512)}, v164
    v_mul_f32 v166, {f32(1/512)}, v166
    v_fma_f32 v166, -v164, v164, v166
    v_max_f32 v166, 0, v166
    v_add_f32 v166, {f32(1e-5)}, v166
    v_rsq_f32 v165, v166
    ds_write_b32 v6, v164 offset:1024
    ds_write_b32 v6, v165 offset:1152
    s_waitcnt lgkmcnt(0)
    s_barrier
    s_endpgm
    """)
    k.label("L_k1_M")
    k("s_setprio 1")
    k(f"""
    s_and_b32 s30, s26, 1
    s_lshr_b32 s31, s26, 1
    s_lshl_b32 s29, s27, 1
    s_add_u32 s29, s29, s30
    v_and_b32 v2, 31, v1
    v_lshrrev_b32 v3, 5, v1
    v_lshrrev_b32 v4, 1, v2
    v_and_b32 v4, 7, v4
    v_lshlrev_b32 v5, 7, v2
    s_lshl_b32 s34, s30, 12
    v_add_u32 v5, s34, v5
    v_bfe_u32 v6, v1, 2, 2
    v_lshrrev_b32 v7, 1, v6
    v_xor_b32 v7, s31, v7
    v_lshl_add_u32 v6, v3, 3, v6
    v_mul_u32_u24 v6, 384, v6
    v_lshl_add_u32 v6, v7, 6, v6
    v_bfe_u32 v7, v1, 4, 1
    v_lshl_add_u32 v6, v7, 5, v6
    v_and_b32 v7, 3, v1
    v_lshl_add_u32 v6, v7, 3, v6
    v_add_u32 v6, {WOFF}, v6
    s_barrier
    """)
    for p in range(4):
        k(f"""
        s_add_u32 s36, s30, {p}
        s_and_b32 s36, s36, 3
        s_lshl_b32 s37, s36, 1
        s_mul_i32 s38, s36, 6144
        v_add_u32 v7, s37, v3
        v_xor_b32 v7, v7, v4
        v_lshl_add_u32 v{VXA+p}, v7, 4, v5
        v_add_u32 v{VWA+p}, s38, v6
        v_add_u32 v{VXA+4+p}, {2*STAGE}, v{VXA+p}
        v_add_u32 v{VWA+4+p}, {2*STAGE}, v{VWA+p}
        """)
    k("""
    v_and_b32 v7, 15, v1
    v_bfe_u32 v8, v1, 4, 1
    v_sub_u32 v7, v7, v8
    v_mov_b32 v8, 0x3f803f80
    """)
    for t in range(3):
        k(f"v_cmp_eq_u32 vcc, {2*t}, v7")
        for i in range(4):
            k(f"v_cndmask_b32 v{SEL+4*t+i}, 0, v8, vcc")
    k("s_waitcnt lgkmcnt(0)")
    srd(k, 20, 8, 9, WS_BYTES)
    k(f"""
    s_add_u32 s36, s2, s25
    s_cmp_lg_u32 s36, 0
    s_cbranch_scc1 L_k1_nz
    v_lshlrev_b32 v7, 8, v1
    v_mov_b32 v8, 0
    s_mov_b32 s36, {CNT}
    buffer_store_dword v8, v7, s[20:23], s36 offen
    """)
    k.label("L_k1_nz")
    stamp(k, 2); stamp(k, 3)
    XB = FR
    WB = FR + 12

    def addr(n):
        c, p = n // 4, n % 4
        st = c % NST
        return 4 * (st // 2) + p, (st % 2) * STAGE

    def rdx(n):
        ai, off = addr(n)
        b = XB + (n % 3) * 4
        k(f"ds_read_b128 v[{b}:{b+3}], v{VXA+ai} offset:{off}")

    def rdw(n, t):
        ai, off = addr(n)
        for ab in range(2):
            r = WB + 12 * (n % 2) + 4 * t + 2 * ab
            k(f"ds_read_b64_tr_b16 v[{r}:{r+1}], v{VWA+ai} offset:{off + ab*1536 + t*128}")

    k("s_barrier")
    stamp(k, 4); k("s_waitcnt lgkmcnt(0)")
    for n in range(2):
        rdx(n)
        for t in range(3):
            rdw(n, t)
    for n in range(32):
        pf = n + 2 < 32
        if (n + 2) % 4 == 0 and pf:
            k("s_barrier")
        if n == 30:
            k("s_barrier")
        b = XB + (n % 3) * 4
        X = f"v[{b}:{b+3}]"
        W = [f"v[{WB+12*(n%2)+4*t}:{WB+12*(n%2)+4*t+3}]" for t in range(3)]
        A = [f"v[{ACC+16*t}:{ACC+16*t+15}]" for t in range(3)]
        Cc = [a if n else "0" for a in A]
        mf = [f"v_mfma_f32_32x32x16_bf16 {A[0]}, {W[0]}, {X}, {Cc[0]}",
              f"v_mfma_f32_32x32x16_bf16 {A[1]}, {W[1]}, {X}, {Cc[1]}",
              f"v_mfma_f32_32x32x16_bf16 {A[2]}, {X}, {W[2]}, {Cc[2]}"]
        if pf:
            rdx(n + 2)
        for t in range(3):
            if pf:
                cnt = 12
            elif n == 30:
                cnt = 2 * (2 - t) + 7
            else:
                cnt = 2 * (2 - t)
            k(f"s_waitcnt lgkmcnt({cnt})")
            k(mf[t])
            if n % 2 == 0:
                cc = "0" if (n == 0 and t == 0) else f"v[{CSA}:{CSA+3}]"
                k(f"v_mfma_f32_16x16x32_bf16 v[{CSA}:{CSA+3}], v[{SEL+4*t}:{SEL+4*t+3}], {W[t]}, {cc}")
            if pf:
                rdw(n + 2, t)
        if n == 29:
            k(f"""
            s_mul_i32 s36, s26, 384
            v_lshlrev_b32 v4, 2, v2
            v_add_u32 v4, {SCR}, v4
            v_and_b32 v5, 15, v1
            v_lshlrev_b32 v5, 2, v5
            v_lshrrev_b32 v7, 4, v1
            v_lshl_add_u32 v5, v7, 8, v5
            v_add_u32 v5, {SCR+5120}, v5
            s_lshl_b32 s36, s26, 10
            v_add_u32 v5, s36, v5
            v_add_u32 v4, 5120, v4
            s_lshl_b32 s36, s31, 11
            v_add_u32 v4, s36, v4
            v_lshlrev_b32 v7, 2, v1
            v_add_u32 v7, {SCR+5120}, v7
            v_add_u32 v7, s36, v7
            s_lshl_b32 s37, s30, 8
            s_add_u32 s37, s37, {SCR+3072}
            v_lshlrev_b32 v8, 4, v3
            v_add_u32 v10, s37, v8
            v_lshlrev_b32 v9, 2, v2
            v_add_u32 v9, s37, v9
            s_lshl_b32 s37, s26, 8
            s_add_u32 s37, s37, {SCR+4096}
            v_add_u32 v8, s37, v8
            v_lshlrev_b32 v11, 2, v1
            v_add_u32 v11, s37, v11
            """)
    stamp(k, 5); k("s_waitcnt lgkmcnt(0)")
    for r in range(4):
        k(f"ds_write_b32 v5, v{CSA+r} offset:{r*64}")
    k("""
    s_waitcnt lgkmcnt(0)
    s_barrier
    """)
    for w in range(2):
        k(f"ds_read_b32 v{T+w}, v7 offset:{w*1024}")
        k(f"ds_read_b32 v{T+2+w}, v4 offset:{w*1024+256}")
    MR = FR
    for g in range(4):
        k(f"ds_read_b128 v[{MR+4*g}:{MR+4*g+3}], v10 offset:{g*32}")
        k(f"ds_read_b128 v[{MR+16+4*g}:{MR+16+4*g+3}], v10 offset:{128+g*32}")
    NM, RS, RQ, CV = 164, 166, 170, 172
    k(f"ds_read_b32 v{NM}, v9")
    k(f"ds_read_b32 v{RS}, v9 offset:128")
    k("s_waitcnt lgkmcnt(10)")
    k(f"""
    v_add_f32 v{T}, v{T}, v{T+1}
    v_add_f32 v{CV}, v{T+2}, v{T+3}
    v_add_f32 v{CV+1}, v{T+2}, v{T+3}
    ds_write_b32 v11, v{T}
    """)
    def pr(x): return f"v[{x}:{x+1}]"
    k("s_waitcnt lgkmcnt(0)")
    CQ = CSA
    for t in range(2):
        for g in range(4):
            k(f"ds_read_b128 v[{CQ+16*t+4*g}:{CQ+16*t+4*g+3}], v8 offset:{t*128 + g*32}")
    AV = ACC + 32
    for r in range(0, 16, 2):
        k(f"v_pk_fma_f32 {pr(AV+r)}, {pr(MR+r)}, {pr(CV)}, {pr(AV+r)}")
    for r in range(0, 16, 2):
        k(f"v_pk_mul_f32 {pr(AV+r)}, {pr(AV+r)}, {pr(MR+16+r)}")
    for i in range(8):
        k(f"v_cvt_pk_bf16_f32 v{AV+i}, v{AV+2*i}, v{AV+2*i+1}")
    k(f"""
    v_bfe_u32 v4, v1, 4, 1
    v_and_b32 v5, 15, v1
    v_lshlrev_b32 v5, 4, v5
    v_lshl_add_u32 v5, v3, 8, v5
    v_lshl_add_u32 v5, v4, 16, v5
    s_lshl_b32 s38, s28, 18
    s_lshl_b32 s39, s31, 17
    s_add_u32 s38, s38, s39
    s_lshl_b32 s39, s29, 10
    s_add_u32 s38, s38, s39
    s_add_u32 s39, s38, {VF}
    buffer_store_dwordx4 v[{AV}:{AV+3}], v5, s[20:23], s39 offen
    buffer_store_dwordx4 v[{AV+4}:{AV+7}], v5, s[20:23], s39 offen offset:512
    v_mov_b32 v{NM+1}, v{NM}
    v_mov_b32 v{RS+1}, v{RS}
    v_mul_f32 v{RQ}, {f32(0.25*LOG2E)}, v{RS}
    v_mul_f32 v{RQ+1}, {f32(0.25*LOG2E)}, v{RS}
    v_lshlrev_b32 v6, 4, v1
    s_waitcnt lgkmcnt(0)
    """)
    for t in (1, 0):
        A = ACC + 16 * t
        sc = RQ if t == 0 else RS
        for r in range(0, 16, 2):
            k(f"v_pk_fma_f32 {pr(A+r)}, {pr(NM)}, {pr(CQ+16*t+r)}, {pr(A+r)}")
        for r in range(0, 16, 2):
            k(f"v_pk_mul_f32 {pr(A+r)}, {pr(A+r)}, {pr(sc)}")
        for i in range(8):
            k(f"v_cvt_pk_bf16_f32 v{A+i}, v{A+2*i}, v{A+2*i+1}")
        base = QF if t == 0 else KF
        k(f"s_add_u32 s39, s38, {base}")
        k(f"s_add_u32 s40, s38, {base+65536}")
        k(f"buffer_store_dwordx4 v[{A}:{A+3}], v6, s[20:23], s39 offen")
        k(f"buffer_store_dwordx4 v[{A+4}:{A+7}], v6, s[20:23], s40 offen")
    stamp(k, 6); stamp_rt(k, 7); stamp_flush(k, 1, 8)
    k.label("L_k1_end")
    k("s_endpgm")
    return k, f"grid=(256,1,1) block=(512,1,1) lds={LDS}"
```

```python
from common import *
import os

ZROWS = os.environ.get("ZROWS", "1") == "1"
PRIO = os.environ.get("PRIO", "1") == "1"
ABL = os.environ.get("ABL", "")
WPF = os.environ.get("WPF", "1") == "1"
VBASE = 65536
VSTR = 1056 if ZROWS else 1040
WBASE = (VBASE + 66 * VSTR + 255) // 256 * 256
LDS = WBASE + 16384


def gen(fused=False):
    k = Kern("fused_kernel" if fused else "attn_kernel")
    SC = " sc1" if fused else ""
    Q = 4
    KFR = 8
    VFR = 16
    S = 32
    C = 64
    O = 80
    P0 = 96
    P1 = 100
    AK, AV0, AV1 = 104, 105, 106
    TMP = 108
    PF = 116
    k("""
    s_load_dwordx2 s[8:9], s[0:1], 72
    s_load_dwordx4 s[4:7], s[0:1], 32
    s_load_dwordx2 s[10:11], s[0:1], 16
    s_load_dwordx2 s[12:13], s[0:1], 48
    s_load_dwordx2 s[14:15], s[0:1], 0
    s_load_dwordx2 s[54:55], s[0:1], 56
    s_cmp_ge_u32 s2, 256
    s_cbranch_scc1 L_k2_end
    """)
    stamp_rt(k, 0); stamp(k, 1)
    code_prefetch(k, 2, PF, 24, 512, 32768)
    k("""
    v_and_b32 v1, 63, v0
    v_lshrrev_b32 v2, 6, v0
    """)
    k("v_readfirstlane_b32 s26, v2")
    k("""
    s_and_b32 s27, s2, 31
    s_lshr_b32 s28, s2, 5
    s_lshl_b32 s28, s28, 3
    s_add_u32 s28, s28, s26
    v_lshlrev_b32 v2, 4, v1
    s_lshl_b32 s29, s27, 16
    s_lshl_b32 s30, s26, 10
    s_add_u32 s31, s29, s30
    """)
    k(f"""
    s_mul_i32 s32, s26, {VSTR}
    s_add_u32 s32, s32, {VBASE}
    s_lshl_b32 s33, s28, 10
    s_add_u32 s33, s33, s29
    s_waitcnt lgkmcnt(0)
    """)
    srd(k, 20, 8, 9, WS_BYTES)
    if not fused: stamp(k, 2)


    def dma_tile(t):
        k(f"s_add_u32 s34, s31, {KF + t*1024}")
        k(f"s_add_u32 m0, s30, {t*1024}")
        k(f"buffer_load_dwordx4 v2, s[20:23], s34 offen lds")
        k(f"s_add_u32 s34, s31, {VF + t*1024}")
        k(f"s_add_u32 m0, s32, {t*VSTR}")
        k(f"buffer_load_dwordx4 v2, s[20:23], s34 offen lds")

    k("s_cmp_lt_u32 s26, 4")
    k("s_cbranch_scc0 L_k2_nodma")
    for t in range(0, 16, 4):
        dma_tile(t)
    k.label("L_k2_nodma")
    k(f"buffer_load_dwordx4 v[{Q}:{Q+3}], v2, s[20:23], s33 offen")
    k(f"""
    v_mov_b32 v{TMP}, 0x3f803f80
    v_mov_b32 v{TMP+1}, 0x3f803f80
    v_mov_b32 v{TMP+2}, 0x3f803f80
    v_mov_b32 v{TMP+3}, 0x3f803f80
    v_mul_u32_u24 v3, {VSTR}, v1
    v_add_u32 v3, {VBASE+1024}, v3
    """)
    for i in range(16):
        k(f"v_mov_b32 v{O+i}, 0")
    k(f"""
    s_cmp_lg_u32 s26, 7
    s_cbranch_scc1 L_k2_noones
    ds_write_b128 v3, v[{TMP}:{TMP+3}]
    """)
    if ZROWS:
        k(f"ds_write_b128 v3, v[{O}:{O+3}] offset:16")
    k.label("L_k2_noones")
    k(f"""
    v_mov_b32 v{AK}, v2
    v_and_b32 v3, 15, v1
    v_lshlrev_b32 v3, 4, v3
    v_lshrrev_b32 v{TMP+4}, 5, v1
    v_lshl_add_u32 v3, v{TMP+4}, 8, v3
    v_mov_b32 v{TMP+6}, 1024
    """)
    if ZROWS:
        k(f"""
        v_and_b32 v{TMP+5}, 11, v1
        v_cmp_eq_u32 vcc, 0, v{TMP+5}
        v_mov_b32 v{TMP+7}, 1040
        v_cndmask_b32 v{TMP+6}, v{TMP+7}, v{TMP+6}, vcc
        """)
    k(f"""
    v_and_b32 v{TMP+5}, 16, v1
    v_cmp_eq_u32 vcc, 0, v{TMP+5}
    v_subrev_u32 v{TMP+7}, 512, v{TMP+6}
    v_cndmask_b32 v{AV0}, v{TMP+6}, v3, vcc
    v_cndmask_b32 v{AV1}, v{TMP+7}, v3, vcc
    v_add_u32 v{AV0}, {VBASE}, v{AV0}
    v_add_u32 v{AV1}, {VBASE}, v{AV1}
    """)
    for i in range(4):
        k(f"v_mov_b32 v{P1+i}, 0")
        k(f"v_mov_b32 v{VFR+12+i}, 0")
    k("""
    s_cmp_lt_u32 s26, 4
    s_cselect_b32 s42, 99, 1
    s_cselect_b32 s41, 99, 0
    s_cselect_b32 s40, 5, 99
    s_cselect_b32 s43, 1, 99
    s_cselect_b32 s44, 99, %s
    s_mov_b32 s35, 0
    """ % os.environ.get("PDROP", "5"))
    k("s_cmp_lt_u32 s26, 4")
    k("s_cbranch_scc0 L_k2_roleB")
    k("s_waitcnt vmcnt(7)")
    k("s_barrier")
    if not fused: stamp(k, 3)
    if PRIO:
        k("s_setprio 1")
    for t in range(16, 32, 4):
        dma_tile(t)
    k("s_waitcnt vmcnt(8)")
    k("s_barrier")
    for t in range(32, 64, 4):
        dma_tile(t)
    k(f"""
    s_lshr_b32 s45, s2, 2
    s_cmp_lt_u32 s45, 28
    s_cselect_b32 s16, s4, s6
    s_cselect_b32 s17, s5, s7
    s_cselect_b32 s46, 0, 28
    s_mov_b32 s18, {512*3584}
    s_mov_b32 s19, 0x20000
    s_sub_u32 s46, s45, s46
    s_lshl_b32 s46, s46, 7
    s_and_b32 s47, s2, 3
    s_lshl_b32 s47, s47, 2
    s_add_u32 s47, s47, s26
    s_mul_i32 s48, s47, {32*3584}
    s_add_u32 s46, s46, s48
    s_cmp_lt_u32 s2, 224
    s_cselect_b32 s46, s46, 0x7ff00000
    s_cselect_b32 s43, s43, 99
    v_lshrrev_b32 v3, 3, v1
    v_bfe_u32 v{TMP}, v1, 2, 1
    v_bfe_u32 v{TMP+1}, v1, 4, 1
    v_xor_b32 v{TMP}, v{TMP}, v{TMP+1}
    v_and_b32 v{TMP+1}, 3, v1
    v_lshlrev_b32 v{TMP+1}, 4, v{TMP+1}
    v_lshl_add_u32 v{TMP+1}, v{TMP}, 6, v{TMP+1}
    v_mul_u32_u24 v3, 3584, v3
    v_add_u32 v3, v3, v{TMP+1}
    s_lshl_b32 s48, s26, 12
    s_add_u32 s48, s48, {WBASE}
    """)
    for i in range(4):
        k(f"s_add_u32 m0, s48, {i*1024}")
        k(f"buffer_load_dwordx4 v3, s[16:19], s46 offen lds")
        k(f"s_add_u32 s46, s46, {8*3584}")
    k("s_waitcnt vmcnt(4)")
    k("s_barrier")
    if WPF:
        k(f"""
        s_lshr_b32 s50, s2, 3
        s_lshl_b32 s50, s50, 2
        s_add_u32 s50, s50, s26
        v_min_u32 v{TMP}, 31, v1
        v_lshlrev_b32 v{TMP}, 7, v{TMP}
        s_lshl_b32 s52, s50, 12
        s_mov_b32 s16, s10
        s_mov_b32 s17, s11
        s_mov_b32 s18, {512*1024}
        buffer_load_dword v{PF}, v{TMP}, s[16:19], s52 offen
        v_min_u32 v{TMP}, 15, v1
        v_lshlrev_b32 v{TMP}, 7, v{TMP}
        s_and_b32 s51, s2, 7
        s_lshl_b32 s51, s51, 18
        s_lshl_b32 s52, s50, 11
        s_add_u32 s52, s52, s51
        s_mov_b32 s16, s14
        s_mov_b32 s17, s15
        s_mov_b32 s18, {2*MB}
        buffer_load_dword v{PF}, v{TMP}, s[16:19], s52 offen
        v_min_u32 v{TMP}, 13, v1
        v_lshlrev_b32 v{TMP}, 7, v{TMP}
        s_lshl_b32 s52, s2, 2
        s_add_u32 s52, s52, s26
        s_mul_i32 s52, s52, {14*128}
        s_mov_b32 s16, s12
        s_mov_b32 s17, s13
        s_mov_b32 s18, {1792*1024}
        buffer_load_dword v{PF}, v{TMP}, s[16:19], s52 offen
        """)
    k("s_branch L_k2_go")
    k.label("L_k2_roleB")
    k("s_waitcnt vmcnt(0) lgkmcnt(0)")
    k("s_barrier")
    if not fused: stamp(k, 3)
    if PRIO:
        k("s_setprio 2")
    k.label("L_k2_go")
    Qr = f"v[{Q}:{Q+3}]"

    def Kr(b): return f"v[{KFR+4*b}:{KFR+4*b+3}]"
    def Vr(b, j): return f"v[{VFR+8*b+4*j}:{VFR+8*b+4*j+3}]"
    def Sr(b): return f"v[{S+16*b}:{S+16*b+15}]"
    Cr = f"v[{C}:{C+15}]"
    Or = f"v[{O}:{O+15}]"
    def rdK(t, b): k(f"ds_read_b128 {Kr(b)}, v{AK} offset:{t*1024}")
    def rdV(t, b):
        k(f"ds_read_b128 {Vr(b,0)}, v{AV0} offset:{t*VSTR}")
        k(f"ds_read_b128 {Vr(b,1)}, v{AV1} offset:{t*VSTR+512}")
    def tilemax(s1):
        k(f"v_max3_f32 v{TMP}, v{s1}, v{s1+1}, v{s1+2}")
        k(f"v_max3_f32 v{TMP+1}, v{s1+3}, v{s1+4}, v{s1+5}")
        k(f"v_max3_f32 v{TMP+2}, v{s1+6}, v{s1+7}, v{s1+8}")
        k(f"v_max3_f32 v{TMP+3}, v{s1+9}, v{s1+10}, v{s1+11}")
        k(f"v_max3_f32 v{TMP}, v{TMP}, v{s1+12}, v{s1+13}")
        k(f"v_max3_f32 v{TMP+1}, v{TMP+1}, v{s1+14}, v{s1+15}")
        k(f"v_max3_f32 v{TMP}, v{TMP}, v{TMP+1}, v{TMP+2}")
        k(f"v_max_f32 v{TMP}, v{TMP}, v{TMP+3}")
        k(f"v_mov_b32 v{TMP+1}, v{TMP}")
        k(f"v_permlane32_swap_b32 v{TMP}, v{TMP+1}")
    if "zq" in ABL:
        for i in range(4): k(f"v_mov_b32 v{Q+i}, 0")
    rdK(0, 0)
    rdK(1, 1)
    rdV(0, 0)
    k("s_waitcnt lgkmcnt(3)")
    k(f"v_mfma_f32_32x32x16_bf16 {Sr(1)}, {Kr(0)}, {Qr}, 0")
    tilemax(S + 16)
    k(f"v_max_f32 v{TMP}, v{TMP}, v{TMP+1}")
    for i in range(16):
        k(f"v_sub_f32 v{C+i}, 0, v{TMP}")
    k(f"v_mfma_f32_32x32x16_bf16 {Sr(0)}, {Kr(0)}, {Qr}, {Cr}")
    k("s_nop 9")

    def E(b, a, n):
        for i in range(a, a + n):
            k(f"v_exp_f32 v{S+16*b+i}, v{S+16*b+i}")
    def CV(dst, b, i):
        k(f"v_cvt_pk_bf16_f32 v{dst}, v{S+16*b+2*i}, v{S+16*b+2*i+1}")

    def tile(t):
        b = t % 2
        nb = 1 - b
        k("s_waitcnt lgkmcnt(0)")
        k(f"v_mfma_f32_32x32x16_bf16 {Sr(nb)}, {Kr(nb)}, {Qr}, {Cr}")
        if "nods" not in ABL: rdK(t + 2, b)
        E(b, 0, 4)
        k(f"v_mfma_f32_32x32x16_bf16 {Or}, {Vr(nb,1)}, v[{P1}:{P1+3}], {Or}")
        if "nods" not in ABL: rdV(t + 1, nb)
        E(b, 4, 2)
        CV(P0, b, 0)
        E(b, 6, 2)
        CV(P0 + 1, b, 1)
        E(b, 8, 2)
        CV(P0 + 2, b, 2)
        E(b, 10, 2)
        CV(P0 + 3, b, 3)
        E(b, 12, 2)
        k(f"v_mfma_f32_32x32x16_bf16 {Or}, {Vr(b,0)}, v[{P0}:{P0+3}], {Or}")
        E(b, 14, 2)
        CV(P1, b, 4)
        CV(P1 + 1, b, 5)
        CV(P1 + 2, b, 6)
        CV(P1 + 3, b, 7)

    stamp(k, 2 if fused else 4)
    k.raw(".p2align 6")
    k.label("L_k2_loop")
    for t in range(8):
        if t == 2:
            k("s_cmp_lg_u32 s35, s41")
            k("s_cbranch_scc1 L_k2_nobar0")
            k("s_barrier")
            k.label("L_k2_nobar0")
        if t == 6:
            k("s_cmp_lg_u32 s35, s42")
            k("s_cbranch_scc1 L_k2_nobar")
            k("s_barrier")
            k.label("L_k2_nobar")
        tile(t)
    k(f"v_add_u32 v{AK}, 8192, v{AK}")
    k(f"v_add_u32 v{AV0}, {8*VSTR}, v{AV0}")
    k(f"v_add_u32 v{AV1}, {8*VSTR}, v{AV1}")
    k("s_cmp_eq_u32 s35, s43")
    k("s_cbranch_scc1 L_k2_cs")
    k.label("L_k2_csret")
    k("s_cmp_eq_u32 s35, s40")
    k("s_cbranch_scc1 L_k2_touch")
    k.label("L_k2_touchret")
    if PRIO:
        k("s_cmp_lg_u32 s35, s44")
        k("s_cbranch_scc1 L_k2_noprio")
        k("s_setprio 0")
        k.label("L_k2_noprio")
    k("s_add_u32 s35, s35, 1")
    k("s_cmp_lg_u32 s35, 8")
    k("s_cbranch_scc1 L_k2_loop")
    k.check_backedge("L_k2_loop")
    k(f"v_mfma_f32_32x32x16_bf16 {Or}, {Vr(1,1)}, v[{P1}:{P1+3}], {Or}")
    k("s_waitcnt lgkmcnt(0)")
    stamp(k, 3 if fused else 5)
    k(f"v_max3_f32 v{TMP}, abs(v{O}), abs(v{O+1}), abs(v{O+2})")
    k(f"v_max3_f32 v{TMP+1}, abs(v{O+3}), abs(v{O+4}), abs(v{O+5})")
    k(f"v_max3_f32 v{TMP}, v{TMP}, abs(v{O+6}), abs(v{O+7})")
    k(f"v_add_f32 v{TMP+2}, v{O}, v{O+1}")
    k(f"v_add_f32 v{TMP+3}, v{O+2}, v{O+3}")
    k(f"v_add_f32 v{TMP+4}, v{O+4}, v{O+5}")
    k(f"v_add_f32 v{TMP+5}, v{O+6}, v{O+7}")
    k(f"v_add_f32 v{TMP+2}, v{TMP+2}, v{TMP+3}")
    k(f"v_add_f32 v{TMP+4}, v{TMP+4}, v{TMP+5}")
    k(f"v_add_f32 v{TMP+2}, v{TMP+2}, v{TMP+4}")
    k(f"v_max_f32 v{TMP}, v{TMP}, v{TMP+1}")
    k(f"s_mov_b32 s36, {f32(2.0**100)}")
    k(f"s_mov_b32 s37, 0x7f000000")
    k(f"v_cmp_gt_f32 vcc, s36, v{O+8}")
    k(f"v_cmp_gt_f32 s[38:39], s37, v{TMP}")
    k(f"v_cmp_o_f32 s[50:51], v{TMP+2}, v{TMP+2}")
    k("s_and_b64 vcc, vcc, s[38:39]")
    k("s_and_b64 vcc, vcc, s[50:51]")
    k("s_cmp_eq_u64 vcc, exec")
    k("s_cbranch_scc0 L_k2_slow")
    k.label("L_k2_fin")
    k(f"v_rcp_f32 v{TMP}, v{O+8}")
    for i in range(8):
        k(f"v_mul_f32 v{O+i}, v{O+i}, v{TMP}")
    for i in range(4):
        k(f"v_cvt_pk_bf16_f32 v{O+i}, v{O+2*i}, v{O+2*i+1}")
    k(f"""
    s_lshl_b32 s36, s28, 15
    s_lshl_b32 s37, s27, 10
    s_add_u32 s36, s36, s37
    s_add_u32 s36, s36, {OF}
    buffer_store_dwordx4 v[{O}:{O+3}], v2, s[20:23], s36 offen{SC}
    """)
    if fused:
        k("s_branch L_f_p3")
    else:
        stamp(k, 6); stamp_rt(k, 7); stamp_flush(k, 2, 8)
    k.label("L_k2_end")
    k("s_endpgm")
    k.label("L_k2_cs")
    CA = S + 16
    WF = 120
    SL = 136
    k(f"""
    v_bfe_u32 v{TMP}, v1, 2, 2
    v_lshrrev_b32 v{TMP+1}, 5, v1
    v_lshl_add_u32 v{TMP+1}, v{TMP+1}, 2, v{TMP}
    v_lshlrev_b32 v{TMP+1}, 7, v{TMP+1}
    v_lshrrev_b32 v{TMP}, 1, v{TMP}
    v_lshl_add_u32 v{TMP+1}, v{TMP}, 6, v{TMP+1}
    v_bfe_u32 v{TMP}, v1, 4, 1
    v_lshl_add_u32 v{TMP+1}, v{TMP}, 5, v{TMP+1}
    v_and_b32 v{TMP}, 3, v1
    v_lshl_add_u32 v{TMP+1}, v{TMP}, 3, v{TMP+1}
    v_add_u32 v{TMP+1}, s48, v{TMP+1}
    v_xor_b32 v{TMP+2}, 64, v{TMP+1}
    v_bfe_u32 v{TMP}, v1, 3, 2
    v_mov_b32 v{TMP+3}, 0x3f803f80
    v_cmp_eq_u32 vcc, 0, v{TMP}
    v_cmp_eq_u32 s[38:39], 1, v{TMP}
    s_waitcnt vmcnt(0) lgkmcnt(0)
    """)
    for s_ in range(2):
        for nt in range(2):
            for ab in range(2):
                r = WF + 8 * s_ + 4 * nt + 2 * ab
                k(f"ds_read_b64_tr_b16 v[{r}:{r+1}], v{TMP+1+nt} offset:{s_*2048 + ab*1024}")
    for i in range(4):
        k(f"v_cndmask_b32 v{SL+i}, 0, v{TMP+3}, vcc")
        k(f"v_cndmask_b32 v{SL+4+i}, 0, v{TMP+3}, s[38:39]")
    k("s_waitcnt lgkmcnt(0)")
    first = True
    for s_ in range(2):
        for nt in range(2):
            r = WF + 8 * s_ + 4 * nt
            cc = "0" if first else f"v[{CA}:{CA+15}]"
            first = False
            k(f"v_mfma_f32_32x32x16_bf16 v[{CA}:{CA+15}], v[{SL+4*nt}:{SL+4*nt+3}], v[{r}:{r+3}], {cc}")
    k(f"""
    v_and_b32 v{TMP}, 47, v1
    v_lshlrev_b32 v{TMP}, 4, v{TMP}
    v_bfe_u32 v{TMP+1}, v1, 4, 1
    v_lshl_add_u32 v{TMP}, v{TMP+1}, 15, v{TMP}
    s_cmp_lt_u32 s45, 28
    s_cselect_b32 s36, 0, {256 - 28*4*32768 + (1<<32)}
    s_lshl_b32 s37, s45, 17
    s_add_u32 s36, s36, s37
    s_lshl_b32 s37, s47, 11
    s_add_u32 s36, s36, s37
    s_add_u32 s36, s36, {WGF}
    s_add_u32 s37, s36, 65536
    """)
    for s_ in range(2):
        for nt in range(2):
            r = WF + 8 * s_ + 4 * nt
            k(f"buffer_store_dwordx4 v[{r}:{r+3}], v{TMP}, s[20:23], s{36+nt} offen offset:{s_*1024} sc1")
    k(f"""
    v_cmp_gt_u32 vcc, 32, v1
    v_lshlrev_b32 v{TMP}, 4, v1
    s_lshl_b32 s36, s45, 10
    s_lshl_b32 s37, s26, 2
    s_add_u32 s36, s36, s37
    s_and_b32 s37, s2, 3
    s_mul_i32 s37, s37, {3584*16}
    s_add_u32 s36, s36, s37
    s_add_u32 s36, s36, {CS}
    v_cndmask_b32 v{TMP+1}, v{CA+4}, v{CA}, vcc
    buffer_store_dword v{TMP+1}, v{TMP}, s[20:23], s36 offen sc1
    s_branch L_k2_csret
    """)
    k.label("L_k2_touch")
    if fused:
        k(f"""
        s_waitcnt vmcnt(0)
        s_lshr_b32 s36, s2, 5
        s_lshl_b32 s36, s36, 8
        s_add_u32 s36, s36, {CNT + 40*256}
        v_mov_b32 v{TMP}, 0
        v_mov_b32 v{TMP+1}, 1
        s_mov_b64 exec, 1
        buffer_atomic_add v{TMP+1}, v{TMP}, s[20:23], s36 offen sc1
        s_mov_b64 exec, -1
        """)
    k(f"""
    s_lshr_b32 s36, s2, 3
    s_lshl_b32 s36, s36, 2
    s_add_u32 s36, s36, s26
    s_mul_i32 s36, s36, {112*128}
    s_and_b32 s37, s2, 1
    s_mul_i32 s37, s37, {56*32768}
    s_add_u32 s36, s36, s37
    s_add_u32 s36, s36, {WGF}
    v_min_u32 v{TMP}, 55, v1
    v_lshlrev_b32 v{TMP}, 8, v{TMP}
    buffer_load_dword v{PF}, v{TMP}, s[20:23], s36 offen
    buffer_load_dword v{PF}, v{TMP}, s[20:23], s36 offen offset:128
    """)
    if os.environ.get("TLBW", "0") == "1":
        k(f"""
        v_min_u32 v{TMP}, 39, v1
        v_lshlrev_b32 v{TMP}, 19, v{TMP}
        s_mov_b32 s36, {OF}
        buffer_load_dword v{PF}, v{TMP}, s[20:23], s36 offen sc1
        s_mov_b32 s16, s54
        s_mov_b32 s17, s55
        s_mov_b32 s18, {2*MB}
        s_mov_b32 s19, 0x20000
        buffer_load_dword v{PF}, v{TMP}, s[16:19], 0 offen sc1
        """)
    k("s_branch L_k2_touchret")
    k.label("L_k2_slow")
    M = TMP + 6
    k(f"v_subrev_u32 v{AK}, 65536, v{AK}")
    k(f"v_subrev_u32 v{AV0}, {64*VSTR}, v{AV0}")
    k(f"v_subrev_u32 v{AV1}, {64*VSTR}, v{AV1}")
    for i in range(16):
        k(f"v_mov_b32 v{O+i}, 0")
    k(f"v_mov_b32 v{M}, 0xff7fffff")
    k("s_mov_b32 s35, 64")
    k.label("L_k2_sloop")
    rdK(0, 0)
    rdV(0, 0)
    k("s_waitcnt lgkmcnt(0)")
    k(f"v_mfma_f32_32x32x16_bf16 {Sr(0)}, {Kr(0)}, {Qr}, 0")
    s0 = S
    tilemax(s0)
    k(f"v_max3_f32 v{TMP}, v{TMP}, v{TMP+1}, v{M}")
    k(f"v_sub_f32 v{TMP+1}, v{M}, v{TMP}")
    k(f"v_exp_f32 v{TMP+1}, v{TMP+1}")
    k(f"v_mov_b32 v{M}, v{TMP}")
    for i in range(16):
        k(f"v_mul_f32 v{O+i}, v{O+i}, v{TMP+1}")
    for i in range(16):
        k(f"v_sub_f32 v{s0+i}, v{s0+i}, v{M}")
    E(0, 0, 16)
    for i in range(4):
        CV(P0 + i, 0, i)
        CV(P1 + i, 0, 4 + i)
    k(f"v_mfma_f32_32x32x16_bf16 {Or}, {Vr(0,0)}, v[{P0}:{P0+3}], {Or}")
    k(f"v_mfma_f32_32x32x16_bf16 {Or}, {Vr(0,1)}, v[{P1}:{P1+3}], {Or}")
    k(f"v_add_u32 v{AK}, 1024, v{AK}")
    k(f"v_add_u32 v{AV0}, {VSTR}, v{AV0}")
    k(f"v_add_u32 v{AV1}, {VSTR}, v{AV1}")
    k("s_nop 15")
    k("s_sub_u32 s35, s35, 1")
    k("s_cmp_lg_u32 s35, 0")
    k("s_cbranch_scc1 L_k2_sloop")
    k.check_backedge("L_k2_sloop")
    k("s_nop 15")
    k("s_branch L_k2_fin")
    if fused:
        import fused as F
        F.tail(k)
        return k, "grid=(256,1,1) block=(512,1,1) lds=163840"
    return k, f"grid=(256,1,1) block=(512,1,1) lds={LDS}"
```

```python
import sys
sys.path.insert(0, "gen")
import k1_qkv, k2_attn, k35_gemm64, k4_gu

HDR = open("sequential_preLN__softmax_full_mha__swiglu_ffn__prompt.s.ref").read().split("; Override launch")[0]

def build(out):
    import os, common
    if os.environ.get("FUSED", "1") == "1":
        common.NEXT["qkv_kernel"] = "fused_kernel"
        ks = [k1_qkv.gen(), k2_attn.gen(fused=True)]
    else:
        ks = [k1_qkv.gen(), k2_attn.gen(), k35_gemm64.gen("wo"), k4_gu.gen(), k35_gemm64.gen("down")]
    s = HDR
    for k, l in ks:
        s += f"; @launch kernel={k.name} {l}\n"
    s += '.amdgcn_target "amdgcn-amd-amdhsa--gfx950"\n'
    for k, l in ks:
        k.label(f"L_{k.name}_codeend")
        k("s_nop 0")
        s += k.full()
    import os, re
    pol = os.environ.get("STPOL", "")
    if pol:
        s = re.sub(r"(buffer_store_dwordx[24] [^\n]*?)( sc1)?\n", lambda m: m.group(1) + " " + pol + "\n", s)
    open(out, "w").write(s)

if __name__ == "__main__":
    build(sys.argv[1] if len(sys.argv) > 1 else "sequential_preLN__softmax_full_mha__swiglu_ffn__prompt.s")
```

```python
from common import *
import os

SPIN = 1 << int(os.environ.get('SPINB', '20'))
SPOLL = os.environ.get('SPOLL', '1') == '1'
SLEEP = os.environ.get('SLEEP', '')
LDP = os.environ.get('LDP', ' sc1')


def signal(k, cnt_sgpr, lbl):
    k(f"""
    s_barrier
    s_cmp_lg_u32 s25, 0
    s_cbranch_scc1 {lbl}
    v_mov_b32 v4, 0
    v_mov_b32 v5, 1
    s_mov_b64 exec, 1
    buffer_atomic_add v5, v4, s[20:23], s{cnt_sgpr} offen sc1
    s_mov_b64 exec, -1
    """)
    k.label(lbl)


def poll(k, vaddr, vexp, lbl, pending):
    k(f"s_mov_b32 s46, {CNT}")
    k("s_mov_b32 s47, 0")
    k.label(lbl)
    k(f"""
    buffer_load_dword v6, v{vaddr}, s[20:23], s46 offen sc1
    s_add_u32 s47, s47, 1
    {SLEEP}
    s_waitcnt vmcnt(0)
    v_cmp_gt_u32 vcc, v{vexp}, v6
    s_cmp_gt_u32 s47, {SPIN}
    s_cbranch_scc1 {lbl}_out
    s_cbranch_vccnz {lbl}
    """)
    k.label(f"{lbl}_out")


def spoll(k, soff, exp, lbl):
    k(f"s_add_u32 s46, s{soff}, {CNT}")
    k("s_mov_b32 s47, 0")
    k.label(lbl)
    k(f"""
    s_load_dword s49, s[8:9], s46 glc
    s_add_u32 s47, s47, 1
    s_waitcnt lgkmcnt(0)
    s_cmp_gt_u32 s47, {SPIN}
    s_cbranch_scc1 {lbl}_out
    s_cmp_lt_u32 s49, {exp}
    s_cbranch_scc1 {lbl}
    """)
    k.label(f"{lbl}_out")


def tail(k):
    HKEEP = 200
    VL16 = 208
    k.label("L_f_p3")
    k(f"""
    s_mov_b32 s25, s26
    s_and_b32 s26, s25, 3
    v_lshlrev_b32 v{VL16}, 4, v1
    s_and_b32 s27, s2, 7
    s_lshl_b32 s27, s27, 2
    s_lshr_b32 s28, s2, 3
    s_and_b32 s28, s28, 3
    s_add_u32 s27, s27, s28
    s_lshr_b32 s28, s2, 5
    s_and_b32 s29, s26, 1
    s_lshr_b32 s30, s26, 1
    s_lshl_b32 s31, s27, 1
    s_add_u32 s31, s31, s30
    s_lshr_b32 s45, s2, 5
    s_lshl_b32 s45, s45, 8
    s_add_u32 s45, s45, {CNT}
    s_setprio 0
    s_waitcnt vmcnt(0)
    """)
    signal(k, 45, "L_f_s2")
    k("s_cmp_lt_u32 s25, 4")
    k("s_cbranch_scc1 L_f_p3C")

    VWD = 11
    k(f"""
    s_lshl_b32 s34, s26, 11
    v_lshrrev_b32 v2, 3, v1
    v_bfe_u32 v3, v1, 2, 1
    v_bfe_u32 v4, v1, 4, 1
    v_xor_b32 v3, v3, v4
    v_and_b32 v4, 3, v1
    v_lshlrev_b32 v4, 4, v4
    v_lshl_add_u32 v4, v3, 6, v4
    v_lshl_add_u32 v4, v2, 10, v4
    s_lshl_b32 s35, s26, 14
    s_lshl_b32 s36, s28, 7
    s_add_u32 s35, s35, s36
    v_add_u32 v210, s35, v4
    v_add_u32 v211, 8192-1024, v210
    """)
    srd(k, 16, 10, 11, 512 * 1024)
    srd(k, 56, 14, 15, 2 * MB)
    for c in range(8):
        k(f"""
        s_mov_b32 s41, {c*65536}
        s_add_u32 m0, s34, {c*8192}
        buffer_load_dwordx4 v210, s[16:19], s41 offen lds
        buffer_load_dwordx4 v211, s[16:19], s41 offen offset:1024 lds
        """)
    XL = 131072
    k(f"""
    v_and_b32 v5, 7, v1
    v_xor_b32 v5, v5, v2
    v_lshlrev_b32 v5, 4, v5
    v_lshl_add_u32 v4, v2, 10, v5
    s_lshl_b32 s38, s27, 16
    s_add_u32 s38, s38, s35
    s_add_u32 m0, s34, {XL}
    buffer_load_dwordx4 v4, s[56:59], s38 offen lds
    s_add_u32 s38, s38, 8192
    s_add_u32 m0, s34, {XL+1024}
    buffer_load_dwordx4 v4, s[56:59], s38 offen lds
    s_lshl_b32 s32, s31, 15
    s_lshl_b32 s33, s29, 11
    s_add_u32 s32, s32, s33
    s_add_u32 s32, s32, {OF}
    """)
    k("s_barrier")
    for c in range(8):
        k(f"""
        s_add_u32 s40, s32, {c*4096}
        s_add_u32 m0, s34, {65536 + c*8192}
        buffer_load_dwordx4 v{VL16}, s[20:23], s40 offen{LDP} lds
        buffer_load_dwordx4 v{VL16}, s[20:23], s40 offen offset:1024{LDP} lds
        """)
    for c in range(8):
        k(f"s_waitcnt vmcnt({2*(7-c)})")
        k("s_barrier")
    p4_ids(k, VL16)
    k("s_mul_i32 s42, s26, 7")
    for j in range(7):
        k(f"""
        s_add_u32 s36, s42, {j}
        s_lshr_b32 s37, s36, 2
        s_lshl_b32 s37, s37, 15
        s_and_b32 s39, s36, 3
        s_lshl_b32 s39, s39, 10
        s_add_u32 s37, s37, s39
        v_add_u32 v{212+j}, s37, v{VL16}
        """)
    k("s_lshl_b32 s42, s42, 10")
    k("s_barrier")
    PRE = int(os.environ.get("PRE3", "4"))
    for c in range(3):
        k(f"s_add_u32 s37, s32, {c*4096}")
        for j in range(7):
            if c * 7 + j == PRE:
                k("s_barrier")
            k(f"""
            s_add_u32 m0, s42, {c*28672 + j*1024}
            buffer_load_dwordx4 v{212+j}, s[20:23], s37 offen{LDP} lds
            """)
    if PRE >= 21:
        k("s_barrier")
    k("s_barrier")
    p4_body(k, "Y", VL16)
    p5_loader(k, VL16)

    k.label("L_f_p3C")
    VBA, VWA = 12, 13
    RES, FR, ACC, T = 20, 96, 64, 80
    k(f"""
    v_and_b32 v2, 31, v1
    v_lshrrev_b32 v3, 5, v1
    s_lshl_b32 s37, s28, 1
    s_add_u32 s37, s37, s29
    s_lshl_b32 s40, s30, 12
    s_add_u32 s40, s40, 65536
    v_add_u32 v{VBA}, s40, v{VL16}
    v_bfe_u32 v4, v1, 2, 2
    v_lshl_add_u32 v5, v3, 2, v4
    v_lshlrev_b32 v5, 7, v5
    v_lshrrev_b32 v4, 1, v4
    v_xor_b32 v4, s29, v4
    v_lshl_add_u32 v5, v4, 6, v5
    v_bfe_u32 v4, v1, 4, 1
    v_lshl_add_u32 v5, v4, 5, v5
    v_and_b32 v4, 3, v1
    v_lshl_add_u32 v209, v4, 3, v5
    s_lshl_b32 s38, s30, 12
    s_lshl_b32 s39, s29, 2
    v_and_b32 v4, 7, v2
    v_xor_b32 v4, s39, v4
    v_lshlrev_b32 v5, 7, v2
    v_lshl_add_u32 v5, v3, 3, v5
    v_add_u32 v5, s38, v5
    v_add_u32 v5, {XL}, v5
    """)
    for g in range(4):
        k(f"v_xor_b32 v{T+g}, {g}, v4")
        k(f"v_lshl_add_u32 v{T+g}, v{T+g}, 4, v5")
    k(f"""
    s_cmp_lg_u32 s25, 1
    s_cbranch_scc1 L_f_w2
    v_cmp_gt_u32 vcc, 8, v1
    v_lshlrev_b32 v7, 8, v1
    v_add_u32 v7, {40*256}, v7
    s_and_b32 s36, s2, 7
    s_lshl_b32 s36, s36, 8
    v_mov_b32 v8, s36
    v_cndmask_b32 v7, v8, v7, vcc
    v_mov_b32 v8, 32
    v_mov_b32 v9, 128
    v_cndmask_b32 v8, v8, v9, vcc
    """)
    poll(k, 7, 8, "L_f_poll2", 0)
    k.label("L_f_w2")
    k("s_barrier")
    stamp(k, 4)
    PD = int(os.environ.get('PD', '4')); NB = PD + 1

    def reads3(n):
        c, s_ = n // 4, n % 4
        b = FR + (n % NB) * 8
        k(f"ds_read_b128 v[{b}:{b+3}], v{VBA} offset:{c*8192 + s_*1024}")
        k(f"ds_read_b64_tr_b16 v[{b+4}:{b+5}], v209 offset:{n*2048}")
        k(f"ds_read_b64_tr_b16 v[{b+6}:{b+7}], v209 offset:{n*2048 + 1024}")

    k("s_barrier")
    k("s_waitcnt lgkmcnt(0)")
    for n in range(PD):
        reads3(n)
    for n in range(32):
        if n + PD < 32:
            if (n + PD) % 4 == 0:
                k("s_barrier")
            reads3(n + PD)
            k(f"s_waitcnt lgkmcnt({3*PD})")
        else:
            if n == 30:
                for g in range(4):
                    k(f"ds_read_b64 v[{RES+2*g}:{RES+2*g+1}], v{T+g}")
            k(f"s_waitcnt lgkmcnt({3*(31-n) + (4 if n >= 30 else 0)})")
        b = FR + (n % NB) * 8
        k(f"v_mfma_f32_32x32x16_bf16 v[{ACC}:{ACC+15}], v[{b+4}:{b+7}], v[{b}:{b+3}], " + (f"v[{ACC}:{ACC+15}]" if n else "0"))
    k("s_waitcnt lgkmcnt(0)")
    k("s_barrier")
    stamp(k, 5)
    for i in range(8):
        k(f"v_lshlrev_b32 v{T+2*i}, 16, v{RES+i}")
        k(f"v_and_b32 v{T+2*i+1}, 0xffff0000, v{RES+i}")
    for r in range(0, 16, 2):
        k(f"v_pk_add_f32 v[{ACC+r}:{ACC+r+1}], v[{ACC+r}:{ACC+r+1}], v[{T+r}:{T+r+1}]")
    for i in range(8):
        k(f"v_cvt_pk_bf16_f32 v{HKEEP+i}, v{ACC+2*i}, v{ACC+2*i+1}")
    k(f"""
    s_lshl_b32 s38, s31, 15
    s_lshl_b32 s39, s37, 11
    s_add_u32 s38, s38, s39
    s_add_u32 s38, s38, {HF}
    buffer_store_dwordx4 v[{HKEEP}:{HKEEP+3}], v{VL16}, s[20:23], s38 offen sc1
    buffer_store_dwordx4 v[{HKEEP+4}:{HKEEP+7}], v{VL16}, s[20:23], s38 offen offset:1024 sc1
    """)
    k(f"v_pk_add_f32 v[{T}:{T+1}], v[{ACC}:{ACC+1}], v[{ACC+2}:{ACC+3}]")
    k(f"v_pk_mul_f32 v[{T+2}:{T+3}], v[{ACC}:{ACC+1}], v[{ACC}:{ACC+1}]")
    k(f"v_pk_fma_f32 v[{T+2}:{T+3}], v[{ACC+2}:{ACC+3}], v[{ACC+2}:{ACC+3}], v[{T+2}:{T+3}]")
    for r in range(4, 16, 2):
        k(f"v_pk_add_f32 v[{T}:{T+1}], v[{T}:{T+1}], v[{ACC+r}:{ACC+r+1}]")
        k(f"v_pk_fma_f32 v[{T+2}:{T+3}], v[{ACC+r}:{ACC+r+1}], v[{ACC+r}:{ACC+r+1}], v[{T+2}:{T+3}]")
    k(f"""
    v_add_f32 v{T}, v{T}, v{T+1}
    v_add_f32 v{T+1}, v{T+2}, v{T+3}
    v_mov_b32 v{T+2}, v{T}
    v_mov_b32 v{T+3}, v{T+1}
    v_permlane32_swap_b32 v{T}, v{T+2}
    v_permlane32_swap_b32 v{T+1}, v{T+3}
    v_add_f32 v{T}, v{T}, v{T+2}
    v_add_f32 v{T+1}, v{T+1}, v{T+3}
    v_lshlrev_b32 v4, 3, v2
    s_lshl_b32 s38, s31, 12
    s_lshl_b32 s39, s37, 8
    s_add_u32 s38, s38, s39
    s_add_u32 s38, s38, {ST}
    s_mov_b64 exec, 0xffffffff
    buffer_store_dwordx2 v[{T}:{T+1}], v4, s[20:23], s38 offen sc1
    s_mov_b64 exec, -1
    s_lshr_b32 s45, s27, 1
    s_lshl_b32 s45, s45, 8
    s_add_u32 s45, s45, {CNT + 8*256}
    """)
    p4_ids(k, VL16)
    k("s_waitcnt vmcnt(0)")
    signal(k, 45, "L_f_s3")
    k(f"""
    s_cmp_lg_u32 s25, 1
    s_cbranch_scc1 L_f_w3
    s_lshl_b32 s36, s27, 8
    s_add_u32 s36, s36, {8*256}
    v_mov_b32 v7, s36
    v_mov_b32 v8, 16
    """)
    if SPOLL: spoll(k, 36, 16, "L_f_poll3")
    else: poll(k, 7, 8, "L_f_poll3", 0)
    k.label("L_f_w3")
    k("s_barrier")
    stamp(k, 6)
    p4_body(k, "X", VL16)
    p5_compute(k, VL16, HKEEP)


HOFF4 = 3 * 28672
CSL4 = HOFF4 + 3 * 16384


def p4_ids(k, VL16):
    k(f"""
    s_lshr_b32 s27, s2, 1
    s_and_b32 s27, s27, 3
    s_lshl_b32 s27, s27, 2
    s_lshr_b32 s28, s2, 3
    s_and_b32 s28, s28, 3
    s_add_u32 s27, s27, s28
    s_and_b32 s28, s2, 1
    s_lshl_b32 s28, s28, 3
    s_lshr_b32 s29, s2, 5
    s_add_u32 s28, s28, s29
    s_lshl_b32 s29, s27, 2
    s_add_u32 s29, s29, s26
    s_cmp_lt_u32 s25, 4
    s_cselect_b32 s31, 2, 5
    s_cselect_b32 s35, 20, 0
    s_mul_i32 s31, s31, s26
    s_add_u32 s31, s31, s35
    s_mul_i32 s32, s28, {7*32768}
    s_add_u32 s32, s32, {WGF}
    s_lshl_b32 s34, s31, 10
    s_lshl_b32 s38, s29, 15
    s_add_u32 s38, s38, {HF}
    s_lshl_b32 s40, s26, 12
    s_add_u32 s40, s40, {HOFF4}
    """)


def p4_body(k, cls, VL16):
    X = cls == "X"
    tiles = [0, 1, 2, 3] if X else [4, 5, 6]
    NT = len(tiles)
    NW = 2 if X else 5
    VWD, VWA, VHA, VCSA = 10, 16, 19, 23
    STT, HB, FR, ACC, T, CSB = 24, 40, 48, 64, 128, 144
    PF = 176
    MEAN, NMEAN, C1, C2 = 177, 178, 180, 182

    def group_ops(c):
        ops = []
        if X:
            for i in range(4):
                p2 = f"s_add_u32 s39, s38, {c*4096}\ns_add_u32 m0, s40, {(c%3)*16384}\n" if i == 0 else ""
                ops.append(p2 + f"buffer_load_dwordx4 v{VL16}, s[20:23], s39 offen offset:{i*1024}{LDP} lds")
        if c >= 3:
            for j in range(NW):
                p2 = f"s_add_u32 s37, s32, {c*4096}\n" if j == 0 else ""
                ops.append(p2 + f"s_add_u32 m0, s34, {(c%3)*28672 + j*1024}\nbuffer_load_dwordx4 v{VWD+j}, s[20:23], s37 offen{LDP} lds")
        return ops

    for c in range(2):
        for o in group_ops(c):
            k(o)
    for j in range(NW):
        k(f"""
        s_add_u32 s35, s31, {j}
        s_lshr_b32 s36, s35, 2
        s_lshl_b32 s36, s36, 15
        s_and_b32 s35, s35, 3
        s_lshl_b32 s35, s35, 10
        s_add_u32 s35, s35, s36
        v_add_u32 v{VWD+j}, s35, v{VL16}
        """)
    k(f"""
    v_lshrrev_b32 v3, 5, v1
    v_mov_b32 v{VWA}, v{VL16}
    v_add_u32 v{VWA+1}, 28672, v{VWA}
    v_add_u32 v{VWA+2}, {2*28672}, v{VWA}
    v_add_u32 v{VHA}, s40, v{VL16}
    v_lshlrev_b32 v{VCSA}, 4, v3
    v_add_u32 v{VCSA}, {CSL4}, v{VCSA}
    """)

    def rdh(n):
        c, s_ = n // 4, n % 4
        b = HB + 4 * (n % 2)
        k(f"ds_read_b128 v[{b}:{b+3}], v{VHA} offset:{(c%3)*16384 + s_*1024}")

    def rdw(n, i):
        c, s_ = n // 4, n % 4
        k(f"ds_read_b128 v[{FR+4*i}:{FR+4*i+3}], v{VWA + c % 3} offset:{tiles[i]*4096 + s_*1024}")

    k(f"s_waitcnt vmcnt({4 if X else 14})")
    k("s_barrier")
    k("s_waitcnt lgkmcnt(0)")
    rdh(0)
    for i in range(NT):
        rdw(0, i)
    pend = group_ops(2)
    extra = 0
    for n in range(32):
        last = n == 31
        bar = (n + 1) % 4 == 0 and not last
        if bar:
            c1 = (n + 1) // 4
            for o in pend:
                k(o)
            nxt = len(group_ops(c1 + 1)) if c1 + 1 <= 7 else 0
            if not X and c1 == 1:
                nxt = 7
            k(f"s_waitcnt vmcnt({nxt + extra}) lgkmcnt(0)")
            k("s_barrier")
            pend = group_ops(c1 + 2) if c1 + 2 <= 7 else []
            if c1 == 6:
                ops = [f"s_lshl_b32 s36, s29, 12\ns_add_u32 s36, s36, {ST}\nv_lshlrev_b32 v8, 3, v1\n" +
                       f"buffer_load_dwordx2 v[{STT}:{STT+1}], v8, s[20:23], s36 offen sc1"]
                for i in range(1, 8):
                    ops.append(f"buffer_load_dwordx2 v[{STT+2*i}:{STT+2*i+1}], v8, s[20:23], s36 offen offset:{512*i} sc1")
                if X:
                    ops.append(f"""
                    v_min_u32 v5, 223, v0
                    v_cmp_lt_u32 vcc, 111, v5
                    v_mov_b32 v6, {1792-112}
                    v_cndmask_b32 v6, 0, v6, vcc
                    v_add_u32 v6, v6, v5
                    v_lshlrev_b32 v6, 4, v6
                    v_lshlrev_b32 v9, 2, v5
                    v_add_u32 v9, {CSL4}, v9
                    s_mul_i32 s37, s28, {112*16}
                    s_add_u32 s37, s37, {CS}
                    buffer_load_dwordx4 v[{T}:{T+3}], v6, s[20:23], s37 offen sc1""")
                    for q in range(1, 4):
                        ops.append(f"s_add_u32 s37, s37, {3584*16}\nbuffer_load_dwordx4 v[{T+4*q}:{T+4*q+3}], v6, s[20:23], s37 offen sc1")
                else:
                    ops.append(f"""
                    s_mov_b32 s16, s12
                    s_mov_b32 s17, s13
                    s_mov_b32 s18, {1792*1024}
                    s_mov_b32 s19, 0x20000
                    v_min_u32 v5, 55, v1
                    v_lshlrev_b32 v6, 8, v5
                    s_lshr_b32 s37, s2, 3
                    s_lshl_b32 s37, s37, 2
                    s_add_u32 s37, s37, s26
                    s_mul_i32 s37, s37, {14*1024}
                    buffer_load_dword v{PF}, v6, s[16:19], s37 offen""")
                    ops.append(f"buffer_load_dword v{PF}, v6, s[16:19], s37 offen offset:128")
                pend = ops
                extra = len(ops)
        b = HB + 4 * (n % 2)
        if not last:
            rdh(n + 1)
        for i in range(NT):
            A = f"v[{ACC+16*i}:{ACC+16*i+15}]"
            if not bar:
                k(f"s_waitcnt lgkmcnt({NT if not last else NT-1-i})")
            k(f"v_mfma_f32_32x32x16_bf16 {A}, v[{FR+4*i}:{FR+4*i+3}], v[{b}:{b+3}], " + (A if n else "0"))
            if not last:
                rdw(n + 1, i)
            if pend and (i % 2 == 0 or len(pend) > 6):
                k(pend.pop(0))
        if n == 29:
            k(f"s_waitcnt vmcnt({0 if X else extra - 8})")
            if X:
                for st_ in (8, 4, 2, 1):
                    for i in range(st_):
                        k(f"v_add_f32 v{T+i}, v{T+i}, v{T+i+st_}")
            for i in range(1, 8):
                k(f"v_add_f32 v{STT}, v{STT}, v{STT+2*i}")
                k(f"v_add_f32 v{STT+1}, v{STT+1}, v{STT+2*i+1}")
            k(f"""
            v_mov_b32 v{STT+2}, v{STT}
            v_mov_b32 v{STT+3}, v{STT+1}
            v_permlane32_swap_b32 v{STT}, v{STT+2}
            v_permlane32_swap_b32 v{STT+1}, v{STT+3}
            v_add_f32 v{STT}, v{STT}, v{STT+2}
            v_add_f32 v{STT+1}, v{STT+1}, v{STT+3}
            v_mul_f32 v{MEAN}, {f32(1/512)}, v{STT}
            v_mul_f32 v{C2}, {f32(1/512)}, v{STT+1}
            v_fma_f32 v{C2}, -v{MEAN}, v{MEAN}, v{C2}
            v_max_f32 v{C2}, 0, v{C2}
            v_add_f32 v{C2}, {f32(1e-5)}, v{C2}
            v_rsq_f32 v{C1}, v{C2}
            v_mul_f32 v{C1}, {f32(-LOG2E)}, v{C1}
            v_mov_b32 v{C1+1}, v{C1}
            v_mov_b32 v{C2+1}, v{C2}
            v_sub_f32 v{NMEAN}, 0, v{MEAN}
            v_sub_f32 v{NMEAN+1}, 0, v{MEAN}
            """)
    if X:
        stamp(k, 7)
        k(f"ds_write_b32 v9, v{T}")
    k("s_waitcnt lgkmcnt(0)")
    k("s_barrier")
    wq = []
    if not X:
        k(f"""
        s_lshr_b32 s43, s2, 5
        s_mul_i32 s43, s43, {7*ROT5}
        s_lshr_b32 s43, s43, 1
        s_mov_b32 s44, s43
        s_lshl_b32 s48, s26, 11
        """)
        if EARLYW:
            wq = list(range(NWS))

    def wpop(n=1):
        for _ in range(n):
            if wq:
                wdma(k, wq.pop(0))
    k(f"""
    s_mul_i32 s36, s29, {112*1024}
    s_mul_i32 s37, s28, {7*1024}
    s_add_u32 s36, s36, s37
    s_add_u32 s36, s36, {AF + tiles[0]*1024}
    """)

    def csread(i):
        p = tiles[i]
        d = CSB + (i % 2) * 16
        k(f"ds_read_b128 v[{d}:{d+3}], v{VCSA} offset:{p*64}")
        k(f"ds_read_b128 v[{d+4}:{d+7}], v{VCSA} offset:{p*64+32}")
        k(f"ds_read_b128 v[{d+8}:{d+11}], v{VCSA} offset:{448+p*64}")
        k(f"ds_read_b128 v[{d+12}:{d+15}], v{VCSA} offset:{448+p*64+32}")

    def pr(x): return f"v[{x}:{x+1}]"
    csread(0)
    for i in range(NT):
        k("s_waitcnt lgkmcnt(0)")
        if i + 1 < NT:
            csread(i + 1)
        d = CSB + (i % 2) * 16
        A = ACC + 16 * i
        wpop(2)
        for r in range(0, 16, 2):
            k(f"v_pk_fma_f32 {pr(A+r)}, {pr(NMEAN)}, {pr(d+r)}, {pr(A+r)}")
        for r in range(0, 8, 2):
            k(f"v_pk_mul_f32 {pr(T+r)}, {pr(A+r)}, {pr(C1)}")
        for r in range(8):
            k(f"v_exp_f32 v{T+r}, v{T+r}")
        wpop(2)
        for r in range(0, 8, 2):
            k(f"v_pk_mul_f32 {pr(A+r)}, {pr(A+r)}, {pr(A+8+r)}")
        for r in range(0, 8, 2):
            k(f"v_pk_fma_f32 {pr(T+r)}, {pr(T+r)}, {pr(C2)}, {pr(C2)}")
        for r in range(8):
            k(f"v_rcp_f32 v{T+r}, v{T+r}")
        for r in range(0, 8, 2):
            k(f"v_pk_mul_f32 {pr(A+r)}, {pr(A+r)}, {pr(T+r)}")
        if i == NT - 1:
            wpop(99)
        for j in range(4):
            k(f"v_cvt_pk_bf16_f32 v{A+j}, v{A+2*j}, v{A+2*j+1}")
        k(f"buffer_store_dwordx4 v[{A}:{A+3}], v{VL16}, s[20:23], s36 offen offset:{i*1024} sc1")
    k(f"""
    s_lshl_b32 s45, s27, 8
    s_add_u32 s45, s45, {CNT + 24*256}
    """)


NWS = int(os.environ.get('NWS', '12'))
NAS = 20 - NWS
ROT5 = int(os.environ.get('ROT5', '0'))
EARLYW = os.environ.get('EARLYW', '0') == '1'
AOFF = NWS * 8192


def p5_ids(k):
    k(f"""
    s_and_b32 s27, s2, 7
    s_lshl_b32 s27, s27, 2
    s_lshr_b32 s28, s2, 3
    s_and_b32 s28, s28, 3
    s_add_u32 s27, s27, s28
    s_lshr_b32 s28, s2, 5
    s_and_b32 s29, s26, 1
    s_lshr_b32 s30, s26, 1
    s_lshl_b32 s31, s27, 1
    s_add_u32 s31, s31, s30
    """)


def wdma(k, c):
    k(f"""
    s_lshl_b32 s41, s43, 16
    s_add_u32 m0, s48, {(c % NWS)*8192}
    s_add_u32 s43, s43, 1
    buffer_load_dwordx4 v210, s[16:19], s41 offen lds
    buffer_load_dwordx4 v211, s[16:19], s41 offen offset:1024 lds
    s_cmp_eq_u32 s43, 28
    s_cselect_b32 s43, 0, s43
    """)


def p5_loader(k, VL16):
    p5_ids(k)
    k(f"""
    s_lshl_b32 s34, s26, 11
    s_mul_i32 s32, s31, {112*1024}
    s_lshl_b32 s33, s29, 11
    s_add_u32 s32, s32, s33
    s_add_u32 s32, s32, {AF}
    """)

    def adma(c):
        k(f"""
        s_lshl_b32 s40, s44, 12
        s_add_u32 s40, s40, s32
        s_add_u32 m0, s34, {AOFF + (c % NAS)*8192}
        s_add_u32 s44, s44, 1
        buffer_load_dwordx4 v{VL16}, s[20:23], s40 offen{LDP} lds
        buffer_load_dwordx4 v{VL16}, s[20:23], s40 offen offset:1024{LDP} lds
        s_cmp_eq_u32 s44, 28
        s_cselect_b32 s44, 0, s44
        """)

    if EARLYW:
        k("s_waitcnt vmcnt(0)")
        k("s_barrier")
    else:
        for c in range(4):
            wdma(k, c)
        k("s_waitcnt vmcnt(8)")
        k("s_barrier")
        for c in range(4, NWS):
            wdma(k, c)
    k("s_barrier")
    order = []
    ia, iw = 0, NWS
    for c in range(NAS - 2):
        adma(c); order.append(("a", c)); ia += 1
    for c in range(28):
        need = max(i for i, g in enumerate(order) if g == ("a", c) or g == ("w", c))
        k(f"s_waitcnt vmcnt({2*(len(order) - 1 - need)})")
        k("s_barrier")
        if ia < 28 and ia <= c - 2 + NAS:
            adma(ia); order.append(("a", ia)); ia += 1
        if iw < 28 and iw <= c - 2 + NWS:
            wdma(k, iw); order.append(("w", iw)); iw += 1
    k("s_endpgm")


def p5_compute(k, VL16, HKEEP):
    VBA, VWA = 12, 13
    FR, ACC, T = 96, 64, 80
    p5s = 45
    k("s_waitcnt vmcnt(0)")
    stamp(k, 8)
    signal(k, 45, "L_f_s4")
    p5_ids(k)
    srd(k, 56, 54, 55, 2 * MB)
    k(f"""
    v_and_b32 v2, 31, v1
    v_lshrrev_b32 v3, 5, v1
    s_lshl_b32 s37, s28, 1
    s_add_u32 s37, s37, s29
    s_lshl_b32 s40, s30, 12
    s_add_u32 s40, s40, {AOFF}
    v_add_u32 v{VBA}, s40, v{VL16}
    v_add_u32 v{VWA}, 57344, v209
    """)
    for i in range(8):
        k(f"v_lshlrev_b32 v{T+2*i}, 16, v{HKEEP+i}")
        k(f"v_and_b32 v{T+2*i+1}, 0xffff0000, v{HKEEP+i}")
    k(f"""
    s_cmp_lg_u32 s25, 1
    s_cbranch_scc1 L_f_w4
    s_lshr_b32 s36, s27, 1
    s_lshl_b32 s36, s36, 8
    s_add_u32 s36, s36, {24*256}
    v_mov_b32 v7, s36
    v_mov_b32 v8, 16
    """)
    if SPOLL: spoll(k, 36, 16, "L_f_poll4")
    else: poll(k, 7, 8, "L_f_poll4", 0)
    k.label("L_f_w4")
    k("s_barrier")
    stamp(k, 9)
    PD = int(os.environ.get('PD', '4')); NB = PD + 1

    def reads(n):
        c, s_ = n // 4, n % 4
        b = FR + (n % NB) * 8
        ws = c % NWS
        wr, woff = ("v209", ws * 8192) if ws < 7 else (f"v{VWA}", (ws - 7) * 8192)
        k(f"ds_read_b128 v[{b}:{b+3}], v{VBA} offset:{(c % NAS)*8192 + s_*1024}")
        k(f"ds_read_b64_tr_b16 v[{b+4}:{b+5}], {wr} offset:{woff + s_*2048}")
        k(f"ds_read_b64_tr_b16 v[{b+6}:{b+7}], {wr} offset:{woff + s_*2048 + 1024}")

    k("s_barrier")
    k("s_waitcnt lgkmcnt(0)")
    for n in range(PD):
        reads(n)
    KS = 112
    for n in range(KS):
        if n + PD < KS:
            if (n + PD) % 4 == 0:
                k("s_barrier")
            reads(n + PD)
            k(f"s_waitcnt lgkmcnt({3*PD})")
        else:
            k(f"s_waitcnt lgkmcnt({3*(KS-1-n)})")
        b = FR + (n % NB) * 8
        k(f"v_mfma_f32_32x32x16_bf16 v[{ACC}:{ACC+15}], v[{b+4}:{b+7}], v[{b}:{b+3}], " + (f"v[{ACC}:{ACC+15}]" if n else f"v[{T}:{T+15}]"))
    stamp(k, 10)
    for i in range(8):
        k(f"v_cvt_pk_bf16_f32 v{ACC+i}, v{ACC+2*i}, v{ACC+2*i+1}")
    k(f"""
    v_lshlrev_b32 v4, 10, v2
    v_lshl_add_u32 v4, v3, 4, v4
    v_permlane32_swap_b32 v{ACC}, v{ACC+2}
    v_permlane32_swap_b32 v{ACC+1}, v{ACC+3}
    v_permlane32_swap_b32 v{ACC+4}, v{ACC+6}
    v_permlane32_swap_b32 v{ACC+5}, v{ACC+7}
    s_lshl_b32 s38, s31, 15
    s_lshl_b32 s39, s37, 6
    s_add_u32 s38, s38, s39
    buffer_store_dwordx4 v[{ACC}:{ACC+3}], v4, s[56:59], s38 offen
    buffer_store_dwordx4 v[{ACC+4}:{ACC+7}], v4, s[56:59], s38 offen offset:32
    """)
    stamp(k, 11); stamp_rt(k, 12); stamp_flush(k, 2, 16)
    k("s_endpgm")
```

```python
from common import *
import os


def ticket(k, PF, SCR):
    FAKE = os.environ.get("FAKEXCC", "7")
    k(f"""
    s_getreg_b32 s30, hwreg(HW_REG_XCC_ID)
    s_getreg_b32 s31, hwreg(HW_REG_HW_ID)
    s_and_b32 s30, s30, {FAKE}
    s_lshr_b32 s32, s31, 13
    s_and_b32 s32, s32, 3
    s_lshl_b32 s32, s32, 3
    s_lshr_b32 s31, s31, 8
    s_and_b32 s31, s31, 7
    s_add_u32 s31, s31, s32
    s_lshl_b32 s31, s31, 3
    s_add_u32 s31, s31, s25
    v_min_u32 v4, 15, v1
    v_lshlrev_b32 v4, 7, v4
    v_min_u32 v5, 23, v1
    v_lshrrev_b32 v6, 2, v5
    v_and_b32 v5, 3, v5
    v_lshlrev_b32 v6, 10, v6
    v_lshl_add_u32 v5, v5, 7, v6
    s_lshr_b32 s32, s30, 1
    s_lshl_b32 s32, s32, 19
    s_lshl_b32 s33, s31, 11
    s_add_u32 s32, s32, s33
    s_mul_i32 s33, s31, 6144
    s_and_b32 s34, s30, 1
    s_lshl_b32 s34, s34, 9
    s_add_u32 s33, s33, s34
    s_waitcnt lgkmcnt(0)
    s_mov_b32 s56, s52
    s_mov_b32 s57, s53
    s_mov_b32 s58, 256
    s_mov_b32 s59, 0x20000
    """)
    srd(k, 12, 4, 5, 2 * MB)
    srd(k, 16, 6, 7, 512 * 3072)
    srd(k, 20, 8, 9, WS_BYTES)
    k(f"""
    s_cmp_lg_u32 s25, 4
    s_cbranch_scc1 L_t_notk
    s_lshl_b32 s34, s30, 5
    v_mov_b32 v7, 0
    v_mov_b32 v8, 1
    s_mov_b64 exec, 1
    buffer_atomic_add v8, v7, s[56:59], s34 offen sc0 sc1
    s_mov_b64 exec, -1
    """)
    k.label("L_t_notk")
    if os.environ.get("TOUCH1", "1") == "1":
        k(f"""
        buffer_load_dword v{PF}, v4, s[12:15], s32 offen
        buffer_load_dword v{PF}, v5, s[16:19], s33 offen
        """)
        NT = 2
    else:
        NT = 0
    k(f"""
    s_add_u32 s36, s2, s25
    s_cmp_lg_u32 s36, 0
    s_cbranch_scc1 L_t_nz
    v_lshlrev_b32 v7, 8, v1
    v_mov_b32 v8, 0
    s_mov_b32 s36, {CNT}
    buffer_store_dword v8, v7, s[20:23], s36 offen sc1
    v_mov_b32 v9, 1
    s_waitcnt vmcnt(0)
    s_mov_b64 exec, 1
    buffer_store_dword v9, v8, s[56:59], 0 offen offset:16 sc1
    s_mov_b64 exec, -1
    """)
    k.label("L_t_nz")
    k(f"""
    v_mov_b32 v9, {SCR}
    s_cmp_lg_u32 s25, 4
    s_cbranch_scc1 L_t_wait
    s_waitcnt vmcnt({NT})
    v_readfirstlane_b32 s35, v8
    s_cmp_lt_u32 s35, 32
    s_cbranch_scc0 L_t_over
    """)
    k.label("L_t_have")
    k("""
    s_lshl_b32 s35, s35, 3
    s_add_u32 s35, s35, s30
    v_mov_b32 v8, s35
    ds_write_b32 v9, v8
    s_waitcnt lgkmcnt(0)
    """)
    k.label("L_t_wait")
    k("""
    s_barrier
    ds_read_b32 v8, v9
    s_waitcnt lgkmcnt(0)
    v_readfirstlane_b32 s2, v8
    s_and_b32 s2, s2, 255
    """)


def ticket_overflow(k):
    import fused as F
    k.label("L_t_over")
    k("""
    v_and_b32 v7, 7, v1
    v_lshlrev_b32 v7, 5, v7
    s_mov_b32 s47, 0
    """)
    k.label("L_t_opoll")
    k("""
    buffer_load_dword v6, v7, s[56:59], 0 offen sc1
    s_add_u32 s47, s47, 1
    s_waitcnt vmcnt(0)
    s_mov_b32 s36, 0
    """)
    for x in range(8):
        k(f"v_readlane_b32 s{60+x}, v6, {x}")
        k(f"s_add_u32 s36, s36, s{60+x}")
    k(f"""
    s_cmp_gt_u32 s47, {F.SPIN}
    s_cbranch_scc1 L_t_ogo
    s_cmp_lt_u32 s36, 256
    s_cbranch_scc1 L_t_opoll
    """)
    k.label("L_t_ogo")
    k("s_sub_u32 s35, s35, 32")
    for x in range(7):
        k(f"""
        s_max_u32 s36, s{60+x}, 32
        s_sub_u32 s36, s36, 32
        s_cmp_lt_u32 {x}, s30
        s_cselect_b32 s36, s36, 0
        s_add_u32 s35, s35, s36
        """)
    for y in range(8):
        k(f"""
        s_min_u32 s36, s{60+y}, 32
        s_sub_u32 s37, 32, s36
        s_cmp_lt_u32 s35, s37
        s_cbranch_scc0 L_t_n{y}
        s_add_u32 s35, s35, s36
        s_mov_b32 s30, {y}
        s_branch L_t_have
        """)
        k.label(f"L_t_n{y}")
        k("s_sub_u32 s35, s35, s37")
    k("s_mov_b32 s35, 0")
    k("s_branch L_t_have")


def gen(mono=False):
    k = Kern(MONO if mono else "qkv_kernel")
    SC = " sc1" if mono else ""
    NST = 4
    STAGE = 32768
    WOFF = 8192
    SCR = NST * STAGE
    LDS = SCR + 5120 + 4096
    VXD = 10
    VWD = 12
    VXA = 20
    VWA = 28
    FR = 40
    ACC = 80
    CSA = 128
    SEL = 144
    T = 156
    SUM = 164
    PF = 168
    ROT = os.environ.get("ROTMASK", "7")
    k("""
    s_load_dwordx4 s[4:7], s[0:1], 0
    s_load_dwordx4 s[52:55], s[0:1], 64
    s_load_dwordx2 s[8:9], s[0:1], 72
    s_cmp_ge_u32 s2, 256
    s_cbranch_scc1 L_k1_end
    """)
    stamp_rt(k, 0); stamp(k, 1)
    code_prefetch(k, 2, PF, 24, 512, 65536 if mono else 32768)
    k("""
    v_and_b32 v1, 63, v0
    v_lshrrev_b32 v2, 6, v0
    """)
    k("v_readfirstlane_b32 s25, v2")
    if mono:
        ticket(k, PF, SCR)
    k("""
    s_and_b32 s27, s2, 6
    s_lshl_b32 s27, s27, 2
    s_lshr_b32 s28, s2, 3
    s_and_b32 s41, s28, 7
    s_add_u32 s27, s27, s41
    s_and_b32 s28, s2, 1
    s_lshl_b32 s28, s28, 2
    s_lshr_b32 s29, s2, 6
    s_add_u32 s28, s28, s29
    s_and_b32 s26, s25, 3
    s_cmp_lt_u32 s25, 4
    s_cbranch_scc1 L_k1_M
    """)
    k(f"""
    s_lshl_b32 s29, s29, 1
    s_add_u32 s41, s41, s29
    s_and_b32 s41, s41, {ROT}
    v_lshrrev_b32 v8, 3, v1
    v_and_b32 v9, 7, v1
    s_lshl_b32 s30, s27, 16
    s_lshl_b32 s31, s26, 14
    s_add_u32 s30, s30, s31
    v_lshrrev_b32 v5, 1, v8
    v_xor_b32 v5, v5, v9
    v_lshlrev_b32 v5, 4, v5
    v_lshl_add_u32 v5, v8, 10, v5
    v_add_u32 v{VXD}, s30, v5
    v_xor_b32 v5, 64, v5
    v_add_u32 v5, 8192, v5
    v_add_u32 v{VXD+1}, s30, v5
    s_lshl_b32 s34, s26, 11
    s_mul_i32 s31, s26, 384
    s_lshl_b32 s32, s28, 7
    s_mov_b32 s33, 43691
    s_mul_i32 s35, s26, 6144
    s_add_u32 s35, s35, {WOFF}
    s_waitcnt lgkmcnt(0)
    """)
    srd(k, 12, 4, 5, 2 * MB)
    srd(k, 16, 6, 7, 512 * 3072)

    def xops(c):
        st = (c % NST) * STAGE
        ops = []
        for i in range(2):
            pre = f"s_add_u32 s36, s41, {c}\ns_and_b32 s36, s36, 7\ns_mul_i32 s37, s36, {64*3072}\ns_lshl_b32 s36, s36, 7\n" if i == 0 else ""
            ops.append(pre + f"s_add_u32 m0, s34, {st + i*1024}\nbuffer_load_dwordx4 v{VXD+i}, s[12:15], s36 offen lds")
        return ops

    def wop(c, j):
        st = (c % NST) * STAGE
        return f"s_add_u32 m0, s35, {st + j*1024}\nbuffer_load_dwordx4 v{VWD+j}, s[16:19], s37 offen lds"

    def group_ops(c):
        return xops(c) + [wop(c, j) for j in range(6)]

    for o in xops(0):
        k(o)
    for j in range(6):
        k(f"""
        v_add_u32 v4, s31, v1
        v_add_u32 v4, {64*j}, v4
        v_mul_lo_u32 v5, v4, s33
        v_lshrrev_b32 v5, 20, v5
        v_mul_u32_u24 v6, 24, v5
        v_sub_u32 v6, v4, v6
        v_lshrrev_b32 v7, 3, v6
        v_and_b32 v6, 7, v6
        v_and_b32 v4, 2, v5
        v_lshlrev_b32 v4, 1, v4
        v_xor_b32 v6, v6, v4
        v_mul_u32_u24 v5, 3072, v5
        v_lshl_add_u32 v5, v7, 10, v5
        v_lshl_add_u32 v5, v6, 4, v5
        v_add_u32 v{VWD+j}, s32, v5
        """)
        k(wop(0, j))
    k("s_barrier")
    for o in group_ops(1):
        k(o)
    k(f"""
    v_and_b32 v2, 31, v1
    v_lshrrev_b32 v3, 5, v1
    v_lshrrev_b32 v4, 1, v2
    v_and_b32 v4, 7, v4
    v_lshlrev_b32 v5, 7, v2
    s_and_b32 s36, s26, 1
    s_lshl_b32 s36, s36, 12
    v_add_u32 v5, s36, v5
    s_lshr_b32 s38, s26, 1
    s_lshl_b32 s38, s38, 2
    v_add_u32 v6, s38, v3
    s_mov_b32 s43, 0xffff0000
    """)
    for p in range(2):
        k(f"""
        v_add_u32 v7, {2*p}, v6
        v_xor_b32 v7, v7, v4
        v_lshl_add_u32 v{VXA+p}, v7, 4, v5
        v_add_u32 v{VXA+4+p}, {2*STAGE}, v{VXA+p}
        """)
    for i in range(4):
        k(f"v_mov_b32 v{SUM+i}, 0")

    def stats(c, pend):
        fb = FR + 8 * (c % 2)
        for j in range(8):
            if pend:
                k(pend.pop(0))
            lo, hi = T + 2 * (j % 4), T + 2 * (j % 4) + 1
            k(f"""
            v_lshlrev_b32 v{lo}, 16, v{fb+j}
            v_and_b32 v{hi}, s43, v{fb+j}
            v_add_f32 v{SUM}, v{SUM}, v{lo}
            v_add_f32 v{SUM+1}, v{SUM+1}, v{hi}
            v_fmac_f32 v{SUM+2}, v{lo}, v{lo}
            v_fmac_f32 v{SUM+3}, v{hi}, v{hi}
            """)

    for c in range(8):
        k(f"s_waitcnt vmcnt({8 if c + 1 <= 7 else 0}) lgkmcnt(0)")
        k("s_barrier")
        st = c % NST
        fb = FR + 8 * (c % 2)
        for p in range(2):
            k(f"ds_read_b128 v[{fb+4*p}:{fb+4*p+3}], v{VXA + 4*(st//2) + p} offset:{(st%2)*STAGE}")
        pend = group_ops(c + 2) if c + 2 <= 7 else []
        if c:
            stats(c - 1, pend)
        for o in pend:
            k(o)
    k("s_waitcnt lgkmcnt(0)")
    stats(7, [])
    k(f"""
    v_add_f32 v164, v164, v165
    v_add_f32 v166, v166, v167
    v_mov_b32 v165, v164
    v_mov_b32 v167, v166
    v_permlane32_swap_b32 v164, v165
    v_permlane32_swap_b32 v166, v167
    v_add_f32 v164, v164, v165
    v_add_f32 v166, v166, v167
    s_lshl_b32 s37, s26, 8
    v_lshlrev_b32 v4, 2, v2
    v_add_u32 v6, s37, v4
    v_add_u32 v6, {SCR+2048}, v6
    ds_write_b32 v6, v164
    ds_write_b32 v6, v166 offset:128
    v_xor_b32 v7, 512, v6
    s_waitcnt lgkmcnt(0)
    s_barrier
    ds_read_b32 v165, v7
    ds_read_b32 v167, v7 offset:128
    v_and_b32 v6, 0xfffffdff, v6
    s_waitcnt lgkmcnt(0)
    v_add_f32 v164, v164, v165
    v_add_f32 v166, v166, v167
    v_mul_f32 v164, {f32(-1/512)}, v164
    v_mul_f32 v166, {f32(1/512)}, v166
    v_fma_f32 v166, -v164, v164, v166
    v_max_f32 v166, 0, v166
    v_add_f32 v166, {f32(1e-5)}, v166
    v_rsq_f32 v165, v166
    ds_write_b32 v6, v164 offset:1024
    ds_write_b32 v6, v165 offset:1152
    s_waitcnt lgkmcnt(0)
    s_barrier
    """)
    k("s_branch L_m_p2" if mono else "s_endpgm")
    k.label("L_k1_M")
    k("s_setprio 1")
    k(f"""
    s_and_b32 s30, s26, 1
    s_lshr_b32 s31, s26, 1
    s_lshl_b32 s29, s27, 1
    s_add_u32 s29, s29, s30
    v_and_b32 v2, 31, v1
    v_lshrrev_b32 v3, 5, v1
    v_lshrrev_b32 v4, 1, v2
    v_and_b32 v4, 7, v4
    v_lshlrev_b32 v5, 7, v2
    s_lshl_b32 s34, s30, 12
    v_add_u32 v5, s34, v5
    v_bfe_u32 v6, v1, 2, 2
    v_lshrrev_b32 v7, 1, v6
    v_xor_b32 v7, s31, v7
    v_lshl_add_u32 v6, v3, 3, v6
    v_mul_u32_u24 v6, 384, v6
    v_lshl_add_u32 v6, v7, 6, v6
    v_bfe_u32 v7, v1, 4, 1
    v_lshl_add_u32 v6, v7, 5, v6
    v_and_b32 v7, 3, v1
    v_lshl_add_u32 v6, v7, 3, v6
    v_add_u32 v6, {WOFF}, v6
    s_barrier
    """)
    for p in range(4):
        k(f"""
        s_add_u32 s36, s30, {p}
        s_and_b32 s36, s36, 3
        s_lshl_b32 s37, s36, 1
        s_mul_i32 s38, s36, 6144
        v_add_u32 v7, s37, v3
        v_xor_b32 v7, v7, v4
        v_lshl_add_u32 v{VXA+p}, v7, 4, v5
        v_add_u32 v{VWA+p}, s38, v6
        v_add_u32 v{VXA+4+p}, {2*STAGE}, v{VXA+p}
        v_add_u32 v{VWA+4+p}, {2*STAGE}, v{VWA+p}
        """)
    k("""
    v_and_b32 v7, 15, v1
    v_bfe_u32 v8, v1, 4, 1
    v_sub_u32 v7, v7, v8
    v_mov_b32 v8, 0x3f803f80
    """)
    for t in range(3):
        k(f"v_cmp_eq_u32 vcc, {2*t}, v7")
        for i in range(4):
            k(f"v_cndmask_b32 v{SEL+4*t+i}, 0, v8, vcc")
    k("s_waitcnt lgkmcnt(0)")
    srd(k, 20, 8, 9, WS_BYTES)
    if not mono:
        k(f"""
        s_add_u32 s36, s2, s25
        s_cmp_lg_u32 s36, 0
        s_cbranch_scc1 L_k1_nz
        v_lshlrev_b32 v7, 8, v1
        v_mov_b32 v8, 0
        s_mov_b32 s36, {CNT}
        buffer_store_dword v8, v7, s[20:23], s36 offen
        """)
        k.label("L_k1_nz")
    if not mono:
        stamp(k, 2); stamp(k, 3)
    XB = FR
    WB = FR + 12

    def addr(n):
        c, p = n // 4, n % 4
        st = c % NST
        return 4 * (st // 2) + p, (st % 2) * STAGE

    def rdx(n):
        ai, off = addr(n)
        b = XB + (n % 3) * 4
        k(f"ds_read_b128 v[{b}:{b+3}], v{VXA+ai} offset:{off}")

    def rdw(n, t):
        ai, off = addr(n)
        for ab in range(2):
            r = WB + 12 * (n % 2) + 4 * t + 2 * ab
            k(f"ds_read_b64_tr_b16 v[{r}:{r+1}], v{VWA+ai} offset:{off + ab*1536 + t*128}")

    k("s_barrier")
    if not mono: stamp(k, 4); k("s_waitcnt lgkmcnt(0)")
    for n in range(2):
        rdx(n)
        for t in range(3):
            rdw(n, t)
    for n in range(32):
        pf = n + 2 < 32
        if (n + 2) % 4 == 0 and pf:
            k("s_barrier")
        if n == 30:
            k("s_barrier")
        b = XB + (n % 3) * 4
        X = f"v[{b}:{b+3}]"
        W = [f"v[{WB+12*(n%2)+4*t}:{WB+12*(n%2)+4*t+3}]" for t in range(3)]
        A = [f"v[{ACC+16*t}:{ACC+16*t+15}]" for t in range(3)]
        Cc = [a if n else "0" for a in A]
        mf = [f"v_mfma_f32_32x32x16_bf16 {A[0]}, {W[0]}, {X}, {Cc[0]}",
              f"v_mfma_f32_32x32x16_bf16 {A[1]}, {W[1]}, {X}, {Cc[1]}",
              f"v_mfma_f32_32x32x16_bf16 {A[2]}, {X}, {W[2]}, {Cc[2]}"]
        if pf:
            rdx(n + 2)
        for t in range(3):
            if pf:
                cnt = 12
            elif n == 30:
                cnt = 2 * (2 - t) + 7
            else:
                cnt = 2 * (2 - t)
            k(f"s_waitcnt lgkmcnt({cnt})")
            k(mf[t])
            if n % 2 == 0:
                cc = "0" if (n == 0 and t == 0) else f"v[{CSA}:{CSA+3}]"
                k(f"v_mfma_f32_16x16x32_bf16 v[{CSA}:{CSA+3}], v[{SEL+4*t}:{SEL+4*t+3}], {W[t]}, {cc}")
            if pf:
                rdw(n + 2, t)
        if n == 29:
            k(f"""
            s_mul_i32 s36, s26, 384
            v_lshlrev_b32 v4, 2, v2
            v_add_u32 v4, {SCR}, v4
            v_and_b32 v5, 15, v1
            v_lshlrev_b32 v5, 2, v5
            v_lshrrev_b32 v7, 4, v1
            v_lshl_add_u32 v5, v7, 8, v5
            v_add_u32 v5, {SCR+5120}, v5
            s_lshl_b32 s36, s26, 10
            v_add_u32 v5, s36, v5
            v_add_u32 v4, 5120, v4
            s_lshl_b32 s36, s31, 11
            v_add_u32 v4, s36, v4
            v_lshlrev_b32 v7, 2, v1
            v_add_u32 v7, {SCR+5120}, v7
            v_add_u32 v7, s36, v7
            s_lshl_b32 s37, s30, 8
            s_add_u32 s37, s37, {SCR+3072}
            v_lshlrev_b32 v8, 4, v3
            v_add_u32 v10, s37, v8
            v_lshlrev_b32 v9, 2, v2
            v_add_u32 v9, s37, v9
            s_lshl_b32 s37, s26, 8
            s_add_u32 s37, s37, {SCR+4096}
            v_add_u32 v8, s37, v8
            v_lshlrev_b32 v11, 2, v1
            v_add_u32 v11, s37, v11
            """)
    if not mono: stamp(k, 5); k("s_waitcnt lgkmcnt(0)")
    for r in range(4):
        k(f"ds_write_b32 v5, v{CSA+r} offset:{r*64}")
    k("""
    s_waitcnt lgkmcnt(0)
    s_barrier
    """)
    for w in range(2):
        k(f"ds_read_b32 v{T+w}, v7 offset:{w*1024}")
        k(f"ds_read_b32 v{T+2+w}, v4 offset:{w*1024+256}")
    MR = FR
    for g in range(4):
        k(f"ds_read_b128 v[{MR+4*g}:{MR+4*g+3}], v10 offset:{g*32}")
        k(f"ds_read_b128 v[{MR+16+4*g}:{MR+16+4*g+3}], v10 offset:{128+g*32}")
    NM, RS, RQ, CV = 164, 166, 170, 172
    k(f"ds_read_b32 v{NM}, v9")
    k(f"ds_read_b32 v{RS}, v9 offset:128")
    k("s_waitcnt lgkmcnt(10)")
    k(f"""
    v_add_f32 v{T}, v{T}, v{T+1}
    v_add_f32 v{CV}, v{T+2}, v{T+3}
    v_add_f32 v{CV+1}, v{T+2}, v{T+3}
    ds_write_b32 v11, v{T}
    """)
    def pr(x): return f"v[{x}:{x+1}]"
    k("s_waitcnt lgkmcnt(0)")
    CQ = CSA
    for t in range(2):
        for g in range(4):
            k(f"ds_read_b128 v[{CQ+16*t+4*g}:{CQ+16*t+4*g+3}], v8 offset:{t*128 + g*32}")
    AV = ACC + 32
    for r in range(0, 16, 2):
        k(f"v_pk_fma_f32 {pr(AV+r)}, {pr(MR+r)}, {pr(CV)}, {pr(AV+r)}")
    for r in range(0, 16, 2):
        k(f"v_pk_mul_f32 {pr(AV+r)}, {pr(AV+r)}, {pr(MR+16+r)}")
    for i in range(8):
        k(f"v_cvt_pk_bf16_f32 v{AV+i}, v{AV+2*i}, v{AV+2*i+1}")
    k(f"""
    v_bfe_u32 v4, v1, 4, 1
    v_and_b32 v5, 15, v1
    v_lshlrev_b32 v5, 4, v5
    v_lshl_add_u32 v5, v3, 8, v5
    v_lshl_add_u32 v5, v4, 16, v5
    s_lshl_b32 s38, s28, 18
    s_lshl_b32 s39, s31, 17
    s_add_u32 s38, s38, s39
    s_lshl_b32 s39, s29, 10
    s_add_u32 s38, s38, s39
    s_add_u32 s39, s38, {VF}
    buffer_store_dwordx4 v[{AV}:{AV+3}], v5, s[20:23], s39 offen{SC}
    buffer_store_dwordx4 v[{AV+4}:{AV+7}], v5, s[20:23], s39 offen offset:512{SC}
    v_mov_b32 v{NM+1}, v{NM}
    v_mov_b32 v{RS+1}, v{RS}
    v_mul_f32 v{RQ}, {f32(0.25*LOG2E)}, v{RS}
    v_mul_f32 v{RQ+1}, {f32(0.25*LOG2E)}, v{RS}
    v_lshlrev_b32 v6, 4, v1
    s_waitcnt lgkmcnt(0)
    """)
    for t in (1, 0):
        A = ACC + 16 * t
        sc = RQ if t == 0 else RS
        for r in range(0, 16, 2):
            k(f"v_pk_fma_f32 {pr(A+r)}, {pr(NM)}, {pr(CQ+16*t+r)}, {pr(A+r)}")
        for r in range(0, 16, 2):
            k(f"v_pk_mul_f32 {pr(A+r)}, {pr(A+r)}, {pr(sc)}")
        for i in range(8):
            k(f"v_cvt_pk_bf16_f32 v{A+i}, v{A+2*i}, v{A+2*i+1}")
        base = QF if t == 0 else KF
        k(f"s_add_u32 s39, s38, {base}")
        k(f"s_add_u32 s40, s38, {base+65536}")
        k(f"buffer_store_dwordx4 v[{A}:{A+3}], v6, s[20:23], s39 offen{SC}")
        k(f"buffer_store_dwordx4 v[{A+4}:{A+7}], v6, s[20:23], s40 offen{SC}")
    if mono:
        import k2_attn
        stamp(k, 13)
        r = k2_attn.gen(fused=True, k=k)
        ticket_overflow(k)
        return r
    stamp(k, 6); stamp_rt(k, 7); stamp_flush(k, 1, 8)
    k.label("L_k1_end")
    k("s_endpgm")
    return k, f"grid=(256,1,1) block=(512,1,1) lds={LDS}"
```

```python
from common import *
import os

ZROWS = os.environ.get("ZROWS", "1") == "1"
PRIO = os.environ.get("PRIO", "1") == "1"
ABL = os.environ.get("ABL", "")
WPF = os.environ.get("WPF", "1") == "1"
VBASE = 65536
VSTR = 1056 if ZROWS else 1040
WBASE = (VBASE + 66 * VSTR + 255) // 256 * 256
LDS = WBASE + 16384


def gen(fused=False, k=None):
    mono = k is not None
    if not mono:
        k = Kern("fused_kernel" if fused else "attn_kernel")
    LP = " sc1" if mono else ""
    SC = " sc1" if fused else ""
    Q = 4
    KFR = 8
    VFR = 16
    S = 32
    C = 64
    O = 80
    P0 = 96
    P1 = 100
    AK, AV0, AV1 = 104, 105, 106
    TMP = 108
    PF = 116
    if mono:
        import fused as F
        k.label("L_m_p2")
        k(f"""
        s_lshl_b32 s45, s28, 8
        s_add_u32 s45, s45, {CNT + 48*256}
        s_load_dwordx4 s[4:7], s[0:1], 32
        s_load_dwordx2 s[10:11], s[0:1], 16
        s_load_dwordx2 s[12:13], s[0:1], 48
        s_load_dwordx2 s[14:15], s[0:1], 0
        s_load_dwordx2 s[54:55], s[0:1], 56
        s_setprio 0
        s_mov_b32 s26, s25
        """)
        srd(k, 20, 8, 9, WS_BYTES)
        k("""
        s_cmp_lg_u32 s25, 5
        s_cbranch_scc1 L_m_init_out
        s_mov_b32 s56, s52
        s_mov_b32 s57, s53
        s_mov_b32 s58, 256
        s_mov_b32 s59, 0x20000
        v_mov_b32 v7, 0
        s_mov_b32 s47, 0
        """)
        k.label("L_m_init")
        k(f"""
        buffer_load_dword v6, v7, s[56:59], 0 offen offset:16 sc1
        s_add_u32 s47, s47, 1
        s_waitcnt vmcnt(0)
        v_cmp_gt_u32 vcc, 1, v6
        s_cmp_gt_u32 s47, {F.SPIN}
        s_cbranch_scc1 L_m_init_out
        s_cbranch_vccnz L_m_init
        """)
        k.label("L_m_init_out")
        k("s_waitcnt vmcnt(0)")
        F.signal(k, 45, "L_m_s1")
    else:
        k("""
        s_load_dwordx2 s[8:9], s[0:1], 72
        s_load_dwordx4 s[4:7], s[0:1], 32
        s_load_dwordx2 s[10:11], s[0:1], 16
        s_load_dwordx2 s[12:13], s[0:1], 48
        s_load_dwordx2 s[14:15], s[0:1], 0
        s_load_dwordx2 s[54:55], s[0:1], 56
        s_cmp_ge_u32 s2, 256
        s_cbranch_scc1 L_k2_end
        """)
        stamp_rt(k, 0); stamp(k, 1)
        code_prefetch(k, 2, PF, 24, 512, 32768)
        k("""
        v_and_b32 v1, 63, v0
        v_lshrrev_b32 v2, 6, v0
        """)
        k("v_readfirstlane_b32 s26, v2")
    k("""
    s_and_b32 s27, s2, 31
    s_lshr_b32 s28, s2, 5
    s_lshl_b32 s28, s28, 3
    s_add_u32 s28, s28, s26
    v_lshlrev_b32 v2, 4, v1
    s_lshl_b32 s29, s27, 16
    s_lshl_b32 s30, s26, 10
    s_add_u32 s31, s29, s30
    """)
    k(f"""
    s_mul_i32 s32, s26, {VSTR}
    s_add_u32 s32, s32, {VBASE}
    s_lshl_b32 s33, s28, 10
    s_add_u32 s33, s33, s29
    s_waitcnt lgkmcnt(0)
    """)
    srd(k, 20, 8, 9, WS_BYTES)
    if not fused: stamp(k, 2)


    def dma_tile(t):
        k(f"s_add_u32 s34, s31, {KF + t*1024}")
        k(f"s_add_u32 m0, s30, {t*1024}")
        k(f"buffer_load_dwordx4 v2, s[20:23], s34 offen{LP} lds")
        k(f"s_add_u32 s34, s31, {VF + t*1024}")
        k(f"s_add_u32 m0, s32, {t*VSTR}")
        k(f"buffer_load_dwordx4 v2, s[20:23], s34 offen{LP} lds")

    def first_loads():
        k("s_cmp_lt_u32 s26, 4")
        k("s_cbranch_scc0 L_k2_nodma")
        for t in range(0, 16, 4):
            dma_tile(t)
        k.label("L_k2_nodma")
        k(f"buffer_load_dwordx4 v[{Q}:{Q+3}], v2, s[20:23], s33 offen{LP}")

    if not mono:
        first_loads()
    k(f"""
    v_mov_b32 v{TMP}, 0x3f803f80
    v_mov_b32 v{TMP+1}, 0x3f803f80
    v_mov_b32 v{TMP+2}, 0x3f803f80
    v_mov_b32 v{TMP+3}, 0x3f803f80
    v_mul_u32_u24 v3, {VSTR}, v1
    v_add_u32 v3, {VBASE+1024}, v3
    """)
    for i in range(16):
        k(f"v_mov_b32 v{O+i}, 0")
    k(f"""
    s_cmp_lg_u32 s26, 7
    s_cbranch_scc1 L_k2_noones
    ds_write_b128 v3, v[{TMP}:{TMP+3}]
    """)
    if ZROWS:
        k(f"ds_write_b128 v3, v[{O}:{O+3}] offset:16")
    k.label("L_k2_noones")
    k(f"""
    v_mov_b32 v{AK}, v2
    v_and_b32 v3, 15, v1
    v_lshlrev_b32 v3, 4, v3
    v_lshrrev_b32 v{TMP+4}, 5, v1
    v_lshl_add_u32 v3, v{TMP+4}, 8, v3
    v_mov_b32 v{TMP+6}, 1024
    """)
    if ZROWS:
        k(f"""
        v_and_b32 v{TMP+5}, 11, v1
        v_cmp_eq_u32 vcc, 0, v{TMP+5}
        v_mov_b32 v{TMP+7}, 1040
        v_cndmask_b32 v{TMP+6}, v{TMP+7}, v{TMP+6}, vcc
        """)
    k(f"""
    v_and_b32 v{TMP+5}, 16, v1
    v_cmp_eq_u32 vcc, 0, v{TMP+5}
    v_subrev_u32 v{TMP+7}, 512, v{TMP+6}
    v_cndmask_b32 v{AV0}, v{TMP+6}, v3, vcc
    v_cndmask_b32 v{AV1}, v{TMP+7}, v3, vcc
    v_add_u32 v{AV0}, {VBASE}, v{AV0}
    v_add_u32 v{AV1}, {VBASE}, v{AV1}
    """)
    for i in range(4):
        k(f"v_mov_b32 v{P1+i}, 0")
        k(f"v_mov_b32 v{VFR+12+i}, 0")
    k("""
    s_cmp_lt_u32 s26, 4
    s_cselect_b32 s42, 99, 1
    s_cselect_b32 s41, 99, 0
    s_cselect_b32 s40, 5, 99
    s_cselect_b32 s43, 1, 99
    s_cselect_b32 s44, 99, %s
    s_mov_b32 s35, 0
    """ % os.environ.get("PDROP", "5"))
    if mono:
        k(f"""
        s_cmp_lg_u32 s26, 5
        s_cbranch_scc1 L_m_w1
        s_lshr_b32 s36, s27, 2
        s_lshl_b32 s36, s36, 8
        s_add_u32 s36, s36, {48*256}
        """)
        if os.environ.get("SPOLL0", "0") == "1":
            F.spoll(k, 36, 32, "L_m_poll1")
        else:
            k("v_mov_b32 v7, s36")
            k("v_mov_b32 v8, 32")
            F.poll(k, 7, 8, "L_m_poll1", 0)
        k.label("L_m_w1")
        k("s_barrier")
        stamp(k, 14); k("s_waitcnt lgkmcnt(0)")
        first_loads()
    k("s_cmp_lt_u32 s26, 4")
    k("s_cbranch_scc0 L_k2_roleB")
    k("s_waitcnt vmcnt(7)")
    k("s_barrier")
    if not fused: stamp(k, 3)
    if PRIO:
        k("s_setprio 1")
    for t in range(16, 32, 4):
        dma_tile(t)
    k("s_waitcnt vmcnt(8)")
    k("s_barrier")
    for t in range(32, 64, 4):
        dma_tile(t)
    k(f"""
    s_lshr_b32 s45, s2, 2
    s_cmp_lt_u32 s45, 28
    s_cselect_b32 s16, s4, s6
    s_cselect_b32 s17, s5, s7
    s_cselect_b32 s46, 0, 28
    s_mov_b32 s18, {512*3584}
    s_mov_b32 s19, 0x20000
    s_sub_u32 s46, s45, s46
    s_lshl_b32 s46, s46, 7
    s_and_b32 s47, s2, 3
    s_lshl_b32 s47, s47, 2
    s_add_u32 s47, s47, s26
    s_mul_i32 s48, s47, {32*3584}
    s_add_u32 s46, s46, s48
    s_cmp_lt_u32 s2, 224
    s_cselect_b32 s46, s46, 0x7ff00000
    s_cselect_b32 s43, s43, 99
    v_lshrrev_b32 v3, 3, v1
    v_bfe_u32 v{TMP}, v1, 2, 1
    v_bfe_u32 v{TMP+1}, v1, 4, 1
    v_xor_b32 v{TMP}, v{TMP}, v{TMP+1}
    v_and_b32 v{TMP+1}, 3, v1
    v_lshlrev_b32 v{TMP+1}, 4, v{TMP+1}
    v_lshl_add_u32 v{TMP+1}, v{TMP}, 6, v{TMP+1}
    v_mul_u32_u24 v3, 3584, v3
    v_add_u32 v3, v3, v{TMP+1}
    s_lshl_b32 s48, s26, 12
    s_add_u32 s48, s48, {WBASE}
    """)
    for i in range(4):
        k(f"s_add_u32 m0, s48, {i*1024}")
        k(f"buffer_load_dwordx4 v3, s[16:19], s46 offen lds")
        k(f"s_add_u32 s46, s46, {8*3584}")
    k("s_waitcnt vmcnt(4)")
    k("s_barrier")
    if WPF:
        k(f"""
        s_lshr_b32 s50, s2, 3
        s_lshl_b32 s50, s50, 2
        s_add_u32 s50, s50, s26
        v_min_u32 v{TMP}, 31, v1
        v_lshlrev_b32 v{TMP}, 7, v{TMP}
        s_lshl_b32 s52, s50, 12
        s_mov_b32 s16, s10
        s_mov_b32 s17, s11
        s_mov_b32 s18, {512*1024}
        buffer_load_dword v{PF}, v{TMP}, s[16:19], s52 offen
        v_min_u32 v{TMP}, 15, v1
        v_lshlrev_b32 v{TMP}, 7, v{TMP}
        s_and_b32 s51, s2, 7
        s_lshl_b32 s51, s51, 18
        s_lshl_b32 s52, s50, 11
        s_add_u32 s52, s52, s51
        s_mov_b32 s16, s14
        s_mov_b32 s17, s15
        s_mov_b32 s18, {2*MB}
        buffer_load_dword v{PF}, v{TMP}, s[16:19], s52 offen
        v_min_u32 v{TMP}, 13, v1
        v_lshlrev_b32 v{TMP}, 7, v{TMP}
        s_lshl_b32 s52, s2, 2
        s_add_u32 s52, s52, s26
        s_mul_i32 s52, s52, {14*128}
        s_mov_b32 s16, s12
        s_mov_b32 s17, s13
        s_mov_b32 s18, {1792*1024}
        buffer_load_dword v{PF}, v{TMP}, s[16:19], s52 offen
        """)
    k("s_branch L_k2_go")
    k.label("L_k2_roleB")
    k("s_waitcnt vmcnt(0) lgkmcnt(0)")
    k("s_barrier")
    if not fused: stamp(k, 3)
    if PRIO:
        k("s_setprio 2")
    k.label("L_k2_go")
    Qr = f"v[{Q}:{Q+3}]"

    def Kr(b): return f"v[{KFR+4*b}:{KFR+4*b+3}]"
    def Vr(b, j): return f"v[{VFR+8*b+4*j}:{VFR+8*b+4*j+3}]"
    def Sr(b): return f"v[{S+16*b}:{S+16*b+15}]"
    Cr = f"v[{C}:{C+15}]"
    Or = f"v[{O}:{O+15}]"
    def rdK(t, b): k(f"ds_read_b128 {Kr(b)}, v{AK} offset:{t*1024}")
    def rdV(t, b):
        k(f"ds_read_b128 {Vr(b,0)}, v{AV0} offset:{t*VSTR}")
        k(f"ds_read_b128 {Vr(b,1)}, v{AV1} offset:{t*VSTR+512}")
    def tilemax(s1):
        k(f"v_max3_f32 v{TMP}, v{s1}, v{s1+1}, v{s1+2}")
        k(f"v_max3_f32 v{TMP+1}, v{s1+3}, v{s1+4}, v{s1+5}")
        k(f"v_max3_f32 v{TMP+2}, v{s1+6}, v{s1+7}, v{s1+8}")
        k(f"v_max3_f32 v{TMP+3}, v{s1+9}, v{s1+10}, v{s1+11}")
        k(f"v_max3_f32 v{TMP}, v{TMP}, v{s1+12}, v{s1+13}")
        k(f"v_max3_f32 v{TMP+1}, v{TMP+1}, v{s1+14}, v{s1+15}")
        k(f"v_max3_f32 v{TMP}, v{TMP}, v{TMP+1}, v{TMP+2}")
        k(f"v_max_f32 v{TMP}, v{TMP}, v{TMP+3}")
        k(f"v_mov_b32 v{TMP+1}, v{TMP}")
        k(f"v_permlane32_swap_b32 v{TMP}, v{TMP+1}")
    if "zq" in ABL:
        for i in range(4): k(f"v_mov_b32 v{Q+i}, 0")
    rdK(0, 0)
    rdK(1, 1)
    rdV(0, 0)
    k("s_waitcnt lgkmcnt(3)")
    k(f"v_mfma_f32_32x32x16_bf16 {Sr(1)}, {Kr(0)}, {Qr}, 0")
    tilemax(S + 16)
    k(f"v_max_f32 v{TMP}, v{TMP}, v{TMP+1}")
    for i in range(16):
        k(f"v_sub_f32 v{C+i}, 0, v{TMP}")
    k(f"v_mfma_f32_32x32x16_bf16 {Sr(0)}, {Kr(0)}, {Qr}, {Cr}")
    k("s_nop 9")

    def E(b, a, n):
        for i in range(a, a + n):
            k(f"v_exp_f32 v{S+16*b+i}, v{S+16*b+i}")
    def CV(dst, b, i):
        k(f"v_cvt_pk_bf16_f32 v{dst}, v{S+16*b+2*i}, v{S+16*b+2*i+1}")

    def tile(t):
        b = t % 2
        nb = 1 - b
        k("s_waitcnt lgkmcnt(0)")
        k(f"v_mfma_f32_32x32x16_bf16 {Sr(nb)}, {Kr(nb)}, {Qr}, {Cr}")
        if "nods" not in ABL: rdK(t + 2, b)
        E(b, 0, 4)
        k(f"v_mfma_f32_32x32x16_bf16 {Or}, {Vr(nb,1)}, v[{P1}:{P1+3}], {Or}")
        if "nods" not in ABL: rdV(t + 1, nb)
        E(b, 4, 2)
        CV(P0, b, 0)
        E(b, 6, 2)
        CV(P0 + 1, b, 1)
        E(b, 8, 2)
        CV(P0 + 2, b, 2)
        E(b, 10, 2)
        CV(P0 + 3, b, 3)
        E(b, 12, 2)
        k(f"v_mfma_f32_32x32x16_bf16 {Or}, {Vr(b,0)}, v[{P0}:{P0+3}], {Or}")
        E(b, 14, 2)
        CV(P1, b, 4)
        CV(P1 + 1, b, 5)
        CV(P1 + 2, b, 6)
        CV(P1 + 3, b, 7)

    stamp(k, 2 if fused else 4)
    k.raw(".p2align 6")
    k.label("L_k2_loop")
    for t in range(8):
        if t == 2:
            k("s_cmp_lg_u32 s35, s41")
            k("s_cbranch_scc1 L_k2_nobar0")
            k("s_barrier")
            k.label("L_k2_nobar0")
        if t == 6:
            k("s_cmp_lg_u32 s35, s42")
            k("s_cbranch_scc1 L_k2_nobar")
            k("s_barrier")
            k.label("L_k2_nobar")
        tile(t)
    k(f"v_add_u32 v{AK}, 8192, v{AK}")
    k(f"v_add_u32 v{AV0}, {8*VSTR}, v{AV0}")
    k(f"v_add_u32 v{AV1}, {8*VSTR}, v{AV1}")
    k("s_cmp_eq_u32 s35, s43")
    k("s_cbranch_scc1 L_k2_cs")
    k.label("L_k2_csret")
    k("s_cmp_eq_u32 s35, s40")
    k("s_cbranch_scc1 L_k2_touch")
    k.label("L_k2_touchret")
    if PRIO:
        k("s_cmp_lg_u32 s35, s44")
        k("s_cbranch_scc1 L_k2_noprio")
        k("s_setprio 0")
        k.label("L_k2_noprio")
    k("s_add_u32 s35, s35, 1")
    k("s_cmp_lg_u32 s35, 8")
    k("s_cbranch_scc1 L_k2_loop")
    k.check_backedge("L_k2_loop")
    k(f"v_mfma_f32_32x32x16_bf16 {Or}, {Vr(1,1)}, v[{P1}:{P1+3}], {Or}")
    k("s_waitcnt lgkmcnt(0)")
    stamp(k, 3 if fused else 5)
    k(f"v_max3_f32 v{TMP}, abs(v{O}), abs(v{O+1}), abs(v{O+2})")
    k(f"v_max3_f32 v{TMP+1}, abs(v{O+3}), abs(v{O+4}), abs(v{O+5})")
    k(f"v_max3_f32 v{TMP}, v{TMP}, abs(v{O+6}), abs(v{O+7})")
    k(f"v_add_f32 v{TMP+2}, v{O}, v{O+1}")
    k(f"v_add_f32 v{TMP+3}, v{O+2}, v{O+3}")
    k(f"v_add_f32 v{TMP+4}, v{O+4}, v{O+5}")
    k(f"v_add_f32 v{TMP+5}, v{O+6}, v{O+7}")
    k(f"v_add_f32 v{TMP+2}, v{TMP+2}, v{TMP+3}")
    k(f"v_add_f32 v{TMP+4}, v{TMP+4}, v{TMP+5}")
    k(f"v_add_f32 v{TMP+2}, v{TMP+2}, v{TMP+4}")
    k(f"v_max_f32 v{TMP}, v{TMP}, v{TMP+1}")
    k(f"s_mov_b32 s36, {f32(2.0**100)}")
    k(f"s_mov_b32 s37, 0x7f000000")
    k(f"v_cmp_gt_f32 vcc, s36, v{O+8}")
    k(f"v_cmp_gt_f32 s[38:39], s37, v{TMP}")
    k(f"v_cmp_o_f32 s[50:51], v{TMP+2}, v{TMP+2}")
    k("s_and_b64 vcc, vcc, s[38:39]")
    k("s_and_b64 vcc, vcc, s[50:51]")
    k("s_cmp_eq_u64 vcc, exec")
    k("s_cbranch_scc0 L_k2_slow")
    k.label("L_k2_fin")
    k(f"v_rcp_f32 v{TMP}, v{O+8}")
    for i in range(8):
        k(f"v_mul_f32 v{O+i}, v{O+i}, v{TMP}")
    for i in range(4):
        k(f"v_cvt_pk_bf16_f32 v{O+i}, v{O+2*i}, v{O+2*i+1}")
    k(f"""
    s_lshl_b32 s36, s28, 15
    s_lshl_b32 s37, s27, 10
    s_add_u32 s36, s36, s37
    s_add_u32 s36, s36, {OF}
    buffer_store_dwordx4 v[{O}:{O+3}], v2, s[20:23], s36 offen{SC}
    """)
    if fused:
        k("s_branch L_f_p3")
    else:
        stamp(k, 6); stamp_rt(k, 7); stamp_flush(k, 2, 8)
    k.label("L_k2_end")
    if mono:
        k.label("L_k1_end")
    k("s_endpgm")
    k.label("L_k2_cs")
    CA = S + 16
    WF = 120
    SL = 136
    k(f"""
    v_bfe_u32 v{TMP}, v1, 2, 2
    v_lshrrev_b32 v{TMP+1}, 5, v1
    v_lshl_add_u32 v{TMP+1}, v{TMP+1}, 2, v{TMP}
    v_lshlrev_b32 v{TMP+1}, 7, v{TMP+1}
    v_lshrrev_b32 v{TMP}, 1, v{TMP}
    v_lshl_add_u32 v{TMP+1}, v{TMP}, 6, v{TMP+1}
    v_bfe_u32 v{TMP}, v1, 4, 1
    v_lshl_add_u32 v{TMP+1}, v{TMP}, 5, v{TMP+1}
    v_and_b32 v{TMP}, 3, v1
    v_lshl_add_u32 v{TMP+1}, v{TMP}, 3, v{TMP+1}
    v_add_u32 v{TMP+1}, s48, v{TMP+1}
    v_xor_b32 v{TMP+2}, 64, v{TMP+1}
    v_bfe_u32 v{TMP}, v1, 3, 2
    v_mov_b32 v{TMP+3}, 0x3f803f80
    v_cmp_eq_u32 vcc, 0, v{TMP}
    v_cmp_eq_u32 s[38:39], 1, v{TMP}
    s_waitcnt vmcnt(0) lgkmcnt(0)
    """)
    for s_ in range(2):
        for nt in range(2):
            for ab in range(2):
                r = WF + 8 * s_ + 4 * nt + 2 * ab
                k(f"ds_read_b64_tr_b16 v[{r}:{r+1}], v{TMP+1+nt} offset:{s_*2048 + ab*1024}")
    for i in range(4):
        k(f"v_cndmask_b32 v{SL+i}, 0, v{TMP+3}, vcc")
        k(f"v_cndmask_b32 v{SL+4+i}, 0, v{TMP+3}, s[38:39]")
    k("s_waitcnt lgkmcnt(0)")
    first = True
    for s_ in range(2):
        for nt in range(2):
            r = WF + 8 * s_ + 4 * nt
            cc = "0" if first else f"v[{CA}:{CA+15}]"
            first = False
            k(f"v_mfma_f32_32x32x16_bf16 v[{CA}:{CA+15}], v[{SL+4*nt}:{SL+4*nt+3}], v[{r}:{r+3}], {cc}")
    k(f"""
    v_and_b32 v{TMP}, 47, v1
    v_lshlrev_b32 v{TMP}, 4, v{TMP}
    v_bfe_u32 v{TMP+1}, v1, 4, 1
    v_lshl_add_u32 v{TMP}, v{TMP+1}, 15, v{TMP}
    s_cmp_lt_u32 s45, 28
    s_cselect_b32 s36, 0, {256 - 28*4*32768 + (1<<32)}
    s_lshl_b32 s37, s45, 17
    s_add_u32 s36, s36, s37
    s_lshl_b32 s37, s47, 11
    s_add_u32 s36, s36, s37
    s_add_u32 s36, s36, {WGF}
    s_add_u32 s37, s36, 65536
    """)
    for s_ in range(2):
        for nt in range(2):
            r = WF + 8 * s_ + 4 * nt
            k(f"buffer_store_dwordx4 v[{r}:{r+3}], v{TMP}, s[20:23], s{36+nt} offen offset:{s_*1024} sc1")
    k(f"""
    v_cmp_gt_u32 vcc, 32, v1
    v_lshlrev_b32 v{TMP}, 4, v1
    s_lshl_b32 s36, s45, 10
    s_lshl_b32 s37, s26, 2
    s_add_u32 s36, s36, s37
    s_and_b32 s37, s2, 3
    s_mul_i32 s37, s37, {3584*16}
    s_add_u32 s36, s36, s37
    s_add_u32 s36, s36, {CS}
    v_cndmask_b32 v{TMP+1}, v{CA+4}, v{CA}, vcc
    buffer_store_dword v{TMP+1}, v{TMP}, s[20:23], s36 offen sc1
    s_branch L_k2_csret
    """)
    k.label("L_k2_touch")
    if fused:
        k(f"""
        s_waitcnt vmcnt(0)
        s_lshr_b32 s36, s2, 5
        s_lshl_b32 s36, s36, 8
        s_add_u32 s36, s36, {CNT + 40*256}
        v_mov_b32 v{TMP}, 0
        v_mov_b32 v{TMP+1}, 1
        s_mov_b64 exec, 1
        buffer_atomic_add v{TMP+1}, v{TMP}, s[20:23], s36 offen sc1
        s_mov_b64 exec, -1
        """)
    k(f"""
    s_lshr_b32 s36, s2, 3
    s_lshl_b32 s36, s36, 2
    s_add_u32 s36, s36, s26
    s_mul_i32 s36, s36, {112*128}
    s_and_b32 s37, s2, 1
    s_mul_i32 s37, s37, {56*32768}
    s_add_u32 s36, s36, s37
    s_add_u32 s36, s36, {WGF}
    v_min_u32 v{TMP}, 55, v1
    v_lshlrev_b32 v{TMP}, 8, v{TMP}
    buffer_load_dword v{PF}, v{TMP}, s[20:23], s36 offen
    buffer_load_dword v{PF}, v{TMP}, s[20:23], s36 offen offset:128
    """)
    if os.environ.get("TLBW", "0") == "1":
        k(f"""
        v_min_u32 v{TMP}, 39, v1
        v_lshlrev_b32 v{TMP}, 19, v{TMP}
        s_mov_b32 s36, {OF}
        buffer_load_dword v{PF}, v{TMP}, s[20:23], s36 offen sc1
        s_mov_b32 s16, s54
        s_mov_b32 s17, s55
        s_mov_b32 s18, {2*MB}
        s_mov_b32 s19, 0x20000
        buffer_load_dword v{PF}, v{TMP}, s[16:19], 0 offen sc1
        """)
    k("s_branch L_k2_touchret")
    k.label("L_k2_slow")
    M = TMP + 6
    k(f"v_subrev_u32 v{AK}, 65536, v{AK}")
    k(f"v_subrev_u32 v{AV0}, {64*VSTR}, v{AV0}")
    k(f"v_subrev_u32 v{AV1}, {64*VSTR}, v{AV1}")
    for i in range(16):
        k(f"v_mov_b32 v{O+i}, 0")
    k(f"v_mov_b32 v{M}, 0xff7fffff")
    k("s_mov_b32 s35, 64")
    k.label("L_k2_sloop")
    rdK(0, 0)
    rdV(0, 0)
    k("s_waitcnt lgkmcnt(0)")
    k(f"v_mfma_f32_32x32x16_bf16 {Sr(0)}, {Kr(0)}, {Qr}, 0")
    s0 = S
    tilemax(s0)
    k(f"v_max3_f32 v{TMP}, v{TMP}, v{TMP+1}, v{M}")
    k(f"v_sub_f32 v{TMP+1}, v{M}, v{TMP}")
    k(f"v_exp_f32 v{TMP+1}, v{TMP+1}")
    k(f"v_mov_b32 v{M}, v{TMP}")
    for i in range(16):
        k(f"v_mul_f32 v{O+i}, v{O+i}, v{TMP+1}")
    for i in range(16):
        k(f"v_sub_f32 v{s0+i}, v{s0+i}, v{M}")
    E(0, 0, 16)
    for i in range(4):
        CV(P0 + i, 0, i)
        CV(P1 + i, 0, 4 + i)
    k(f"v_mfma_f32_32x32x16_bf16 {Or}, {Vr(0,0)}, v[{P0}:{P0+3}], {Or}")
    k(f"v_mfma_f32_32x32x16_bf16 {Or}, {Vr(0,1)}, v[{P1}:{P1+3}], {Or}")
    k(f"v_add_u32 v{AK}, 1024, v{AK}")
    k(f"v_add_u32 v{AV0}, {VSTR}, v{AV0}")
    k(f"v_add_u32 v{AV1}, {VSTR}, v{AV1}")
    k("s_nop 15")
    k("s_sub_u32 s35, s35, 1")
    k("s_cmp_lg_u32 s35, 0")
    k("s_cbranch_scc1 L_k2_sloop")
    k.check_backedge("L_k2_sloop")
    k("s_nop 15")
    k("s_branch L_k2_fin")
    if fused:
        import fused as F
        F.tail(k)
        return k, "grid=(256,1,1) block=(512,1,1) lds=163840"
    return k, f"grid=(256,1,1) block=(512,1,1) lds={LDS}"
```

```python
import sys
sys.path.insert(0, "gen")
import k1_qkv, k2_attn, k35_gemm64, k4_gu

HDR = open("sequential_preLN__softmax_full_mha__swiglu_ffn__prompt.s.ref").read().split("; Override launch")[0]

def build(out):
    import os, common
    mode = os.environ.get("FUSED", "2")
    if mode == "2":
        ks = [k1_qkv.gen(mono=True)]
    elif mode == "1":
        common.NEXT["qkv_kernel"] = "fused_kernel"
        ks = [k1_qkv.gen(), k2_attn.gen(fused=True)]
    else:
        ks = [k1_qkv.gen(), k2_attn.gen(), k35_gemm64.gen("wo"), k4_gu.gen(), k35_gemm64.gen("down")]
    s = HDR
    for k, l in ks:
        s += f"; @launch kernel={k.name} {l}\n" if len(ks) > 1 or os.environ.get("STAMPS") == "1" else f"; @launch {l}\n"
    s += '.amdgcn_target "amdgcn-amd-amdhsa--gfx950"\n'
    for k, l in ks:
        k.label(f"L_{k.name}_codeend")
        k("s_nop 0")
        s += k.full()
    import os, re
    pol = os.environ.get("STPOL", "")
    if pol:
        s = re.sub(r"(buffer_store_dwordx[24] [^\n]*?)( sc1)?\n", lambda m: m.group(1) + " " + pol + "\n", s)
    open(out, "w").write(s)

if __name__ == "__main__":
    build(sys.argv[1] if len(sys.argv) > 1 else "sequential_preLN__softmax_full_mha__swiglu_ffn__prompt.s")
```

```python
from common import *
import os


def ticket(k, PF, SCR):
    FAKE = os.environ.get("FAKEXCC", "7")
    k(f"""
    s_getreg_b32 s30, hwreg(HW_REG_XCC_ID)
    s_getreg_b32 s31, hwreg(HW_REG_HW_ID)
    s_and_b32 s30, s30, {FAKE}
    s_lshr_b32 s32, s31, 13
    s_and_b32 s32, s32, 3
    s_lshl_b32 s32, s32, 3
    s_lshr_b32 s31, s31, 8
    s_and_b32 s31, s31, 7
    s_add_u32 s31, s31, s32
    s_lshl_b32 s31, s31, 3
    s_add_u32 s31, s31, s25
    v_min_u32 v4, 15, v1
    v_lshlrev_b32 v4, 7, v4
    v_min_u32 v5, 23, v1
    v_lshrrev_b32 v6, 2, v5
    v_and_b32 v5, 3, v5
    v_lshlrev_b32 v6, 10, v6
    v_lshl_add_u32 v5, v5, 7, v6
    s_lshr_b32 s32, s30, 1
    s_lshl_b32 s32, s32, 19
    s_lshl_b32 s33, s31, 11
    s_add_u32 s32, s32, s33
    s_mul_i32 s33, s31, 6144
    s_and_b32 s34, s30, 1
    s_lshl_b32 s34, s34, 9
    s_add_u32 s33, s33, s34
    s_waitcnt lgkmcnt(0)
    s_mov_b32 s56, s52
    s_mov_b32 s57, s53
    s_mov_b32 s58, 256
    s_mov_b32 s59, 0x20000
    """)
    srd(k, 12, 4, 5, 2 * MB)
    srd(k, 16, 6, 7, 512 * 3072)
    srd(k, 20, 8, 9, WS_BYTES)
    if os.environ.get("TICKET", "1") == "1":
      k(f"""
    s_cmp_lg_u32 s25, 4
    s_cbranch_scc1 L_t_notk
    s_lshl_b32 s34, s30, 5
    v_mov_b32 v7, 0
    v_mov_b32 v8, 1
    s_mov_b64 exec, 1
    buffer_atomic_add v8, v7, s[56:59], s34 offen sc0 sc1
    s_mov_b64 exec, -1
    """)
    k.label("L_t_notk")
    if os.environ.get("TOUCH1", "1") == "1":
        k(f"""
        buffer_load_dword v{PF}, v4, s[12:15], s32 offen
        buffer_load_dword v{PF}, v5, s[16:19], s33 offen
        """)
        NT = 2
    else:
        NT = 0
    k(f"""
    s_add_u32 s36, s2, s25
    s_cmp_lg_u32 s36, 0
    s_cbranch_scc1 L_t_nz
    v_lshlrev_b32 v7, 8, v1
    v_mov_b32 v8, 0
    s_mov_b32 s36, {CNT}
    buffer_store_dword v8, v7, s[20:23], s36 offen sc1
    v_mov_b32 v9, 1
    s_waitcnt vmcnt(0)
    s_mov_b64 exec, 1
    buffer_store_dword v9, v8, s[56:59], 0 offen offset:16 sc1
    s_mov_b64 exec, -1
    """)
    k.label("L_t_nz")
    if os.environ.get("TICKET", "1") == "0":
        k.label("L_t_have")
        return
    k(f"""
    v_mov_b32 v9, {SCR}
    s_cmp_lg_u32 s25, 4
    s_cbranch_scc1 L_t_wait
    s_waitcnt vmcnt({NT})
    v_readfirstlane_b32 s35, v8
    s_cmp_lt_u32 s35, 32
    s_cbranch_scc0 L_t_over
    """)
    k.label("L_t_have")
    k("""
    s_lshl_b32 s35, s35, 3
    s_add_u32 s35, s35, s30
    v_mov_b32 v8, s35
    ds_write_b32 v9, v8
    s_waitcnt lgkmcnt(0)
    """)
    k.label("L_t_wait")
    k("""
    s_barrier
    ds_read_b32 v8, v9
    s_waitcnt lgkmcnt(0)
    v_readfirstlane_b32 s2, v8
    s_and_b32 s2, s2, 255
    """)


def ticket_overflow(k):
    import fused as F
    k.label("L_t_over")
    k("""
    v_and_b32 v7, 7, v1
    v_lshlrev_b32 v7, 5, v7
    s_mov_b32 s47, 0
    """)
    k.label("L_t_opoll")
    k("""
    buffer_load_dword v6, v7, s[56:59], 0 offen sc1
    s_add_u32 s47, s47, 1
    s_waitcnt vmcnt(0)
    s_mov_b32 s36, 0
    """)
    for x in range(8):
        k(f"v_readlane_b32 s{60+x}, v6, {x}")
        k(f"s_add_u32 s36, s36, s{60+x}")
    k(f"""
    s_cmp_gt_u32 s47, {F.SPIN}
    s_cbranch_scc1 L_t_ogo
    s_cmp_lt_u32 s36, 256
    s_cbranch_scc1 L_t_opoll
    """)
    k.label("L_t_ogo")
    k("s_sub_u32 s35, s35, 32")
    for x in range(7):
        k(f"""
        s_max_u32 s36, s{60+x}, 32
        s_sub_u32 s36, s36, 32
        s_cmp_lt_u32 {x}, s30
        s_cselect_b32 s36, s36, 0
        s_add_u32 s35, s35, s36
        """)
    for y in range(8):
        k(f"""
        s_min_u32 s36, s{60+y}, 32
        s_sub_u32 s37, 32, s36
        s_cmp_lt_u32 s35, s37
        s_cbranch_scc0 L_t_n{y}
        s_add_u32 s35, s35, s36
        s_mov_b32 s30, {y}
        s_branch L_t_have
        """)
        k.label(f"L_t_n{y}")
        k("s_sub_u32 s35, s35, s37")
    k("s_mov_b32 s35, 0")
    k("s_branch L_t_have")


def gen(mono=False):
    k = Kern(MONO if mono else "qkv_kernel")
    SC = " sc1" if mono else ""
    NST = 4
    STAGE = 32768
    WOFF = 8192
    SCR = NST * STAGE
    LDS = SCR + 5120 + 4096
    VXD = 10
    VWD = 12
    VXA = 20
    VWA = 28
    FR = 40
    ACC = 80
    CSA = 128
    SEL = 144
    T = 156
    SUM = 164
    PF = 168
    ROT = os.environ.get("ROTMASK", "7")
    k("""
    s_load_dwordx4 s[4:7], s[0:1], 0
    s_load_dwordx4 s[52:55], s[0:1], 64
    s_load_dwordx2 s[8:9], s[0:1], 72
    s_cmp_ge_u32 s2, 256
    s_cbranch_scc1 L_k1_end
    """)
    stamp_rt(k, 0); stamp(k, 1)
    code_prefetch(k, 2, PF, 24, 512, 65536 if mono else 32768)
    k("""
    v_and_b32 v1, 63, v0
    v_lshrrev_b32 v2, 6, v0
    """)
    k("v_readfirstlane_b32 s25, v2")
    if mono:
        ticket(k, PF, SCR)
        if os.environ.get("STLB", "0") == "1":
            k(f"""
            s_cmp_lg_u32 s25, 1
            s_cbranch_scc1 L_t_notlb
            s_load_dwordx4 s[60:63], s[0:1], 32
            s_load_dwordx4 s[64:67], s[0:1], 48
            s_load_dwordx2 s[68:69], s[0:1], 16
            v_min_u32 v4, 25, v1
            v_lshlrev_b32 v4, 20, v4
            buffer_load_dword v{PF}, v4, s[20:23], 0 offen sc1
            v_min_u32 v4, 1, v1
            v_lshlrev_b32 v4, 20, v4
            s_waitcnt lgkmcnt(0)
            """)
            for lo, nb in ((60, 512*3584), (62, 512*3584), (64, 1792*1024), (66, 2*MB), (68, 512*1024)):
                srd(k, 56, lo, lo + 1, nb)
                k(f"buffer_load_dword v{PF}, v4, s[56:59], 0 offen sc1")
            k.label("L_t_notlb")
    k("""
    s_and_b32 s27, s2, 6
    s_lshl_b32 s27, s27, 2
    s_lshr_b32 s28, s2, 3
    s_and_b32 s41, s28, 7
    s_add_u32 s27, s27, s41
    s_and_b32 s28, s2, 1
    s_lshl_b32 s28, s28, 2
    s_lshr_b32 s29, s2, 6
    s_add_u32 s28, s28, s29
    s_and_b32 s26, s25, 3
    s_cmp_lt_u32 s25, 4
    s_cbranch_scc1 L_k1_M
    """)
    k(f"""
    s_lshl_b32 s29, s29, 1
    s_add_u32 s41, s41, s29
    s_and_b32 s41, s41, {ROT}
    v_lshrrev_b32 v8, 3, v1
    v_and_b32 v9, 7, v1
    s_lshl_b32 s30, s27, 16
    s_lshl_b32 s31, s26, 14
    s_add_u32 s30, s30, s31
    v_lshrrev_b32 v5, 1, v8
    v_xor_b32 v5, v5, v9
    v_lshlrev_b32 v5, 4, v5
    v_lshl_add_u32 v5, v8, 10, v5
    v_add_u32 v{VXD}, s30, v5
    v_xor_b32 v5, 64, v5
    v_add_u32 v5, 8192, v5
    v_add_u32 v{VXD+1}, s30, v5
    s_lshl_b32 s34, s26, 11
    s_mul_i32 s31, s26, 384
    s_lshl_b32 s32, s28, 7
    s_mov_b32 s33, 43691
    s_mul_i32 s35, s26, 6144
    s_add_u32 s35, s35, {WOFF}
    s_waitcnt lgkmcnt(0)
    """)
    srd(k, 12, 4, 5, 2 * MB)
    srd(k, 16, 6, 7, 512 * 3072)

    def xops(c):
        st = (c % NST) * STAGE
        ops = []
        for i in range(2):
            pre = f"s_add_u32 s36, s41, {c}\ns_and_b32 s36, s36, 7\ns_mul_i32 s37, s36, {64*3072}\ns_lshl_b32 s36, s36, 7\n" if i == 0 else ""
            ops.append(pre + f"s_add_u32 m0, s34, {st + i*1024}\nbuffer_load_dwordx4 v{VXD+i}, s[12:15], s36 offen lds")
        return ops

    def wop(c, j):
        st = (c % NST) * STAGE
        return f"s_add_u32 m0, s35, {st + j*1024}\nbuffer_load_dwordx4 v{VWD+j}, s[16:19], s37 offen lds"

    def group_ops(c):
        return xops(c) + [wop(c, j) for j in range(6)]

    for o in xops(0):
        k(o)
    for j in range(6):
        k(f"""
        v_add_u32 v4, s31, v1
        v_add_u32 v4, {64*j}, v4
        v_mul_lo_u32 v5, v4, s33
        v_lshrrev_b32 v5, 20, v5
        v_mul_u32_u24 v6, 24, v5
        v_sub_u32 v6, v4, v6
        v_lshrrev_b32 v7, 3, v6
        v_and_b32 v6, 7, v6
        v_and_b32 v4, 2, v5
        v_lshlrev_b32 v4, 1, v4
        v_xor_b32 v6, v6, v4
        v_mul_u32_u24 v5, 3072, v5
        v_lshl_add_u32 v5, v7, 10, v5
        v_lshl_add_u32 v5, v6, 4, v5
        v_add_u32 v{VWD+j}, s32, v5
        """)
        k(wop(0, j))
    k("s_barrier")
    for o in group_ops(1):
        k(o)
    k(f"""
    v_and_b32 v2, 31, v1
    v_lshrrev_b32 v3, 5, v1
    v_lshrrev_b32 v4, 1, v2
    v_and_b32 v4, 7, v4
    v_lshlrev_b32 v5, 7, v2
    s_and_b32 s36, s26, 1
    s_lshl_b32 s36, s36, 12
    v_add_u32 v5, s36, v5
    s_lshr_b32 s38, s26, 1
    s_lshl_b32 s38, s38, 2
    v_add_u32 v6, s38, v3
    s_mov_b32 s43, 0xffff0000
    """)
    for p in range(2):
        k(f"""
        v_add_u32 v7, {2*p}, v6
        v_xor_b32 v7, v7, v4
        v_lshl_add_u32 v{VXA+p}, v7, 4, v5
        v_add_u32 v{VXA+4+p}, {2*STAGE}, v{VXA+p}
        """)
    for i in range(4):
        k(f"v_mov_b32 v{SUM+i}, 0")

    def stats(c, pend):
        fb = FR + 8 * (c % 2)
        for j in range(8):
            if pend:
                k(pend.pop(0))
            lo, hi = T + 2 * (j % 4), T + 2 * (j % 4) + 1
            k(f"""
            v_lshlrev_b32 v{lo}, 16, v{fb+j}
            v_and_b32 v{hi}, s43, v{fb+j}
            v_add_f32 v{SUM}, v{SUM}, v{lo}
            v_add_f32 v{SUM+1}, v{SUM+1}, v{hi}
            v_fmac_f32 v{SUM+2}, v{lo}, v{lo}
            v_fmac_f32 v{SUM+3}, v{hi}, v{hi}
            """)

    for c in range(8):
        k(f"s_waitcnt vmcnt({8 if c + 1 <= 7 else 0}) lgkmcnt(0)")
        k("s_barrier")
        st = c % NST
        fb = FR + 8 * (c % 2)
        for p in range(2):
            k(f"ds_read_b128 v[{fb+4*p}:{fb+4*p+3}], v{VXA + 4*(st//2) + p} offset:{(st%2)*STAGE}")
        pend = group_ops(c + 2) if c + 2 <= 7 else []
        if c:
            stats(c - 1, pend)
        for o in pend:
            k(o)
    k("s_waitcnt lgkmcnt(0)")
    stats(7, [])
    k(f"""
    v_add_f32 v164, v164, v165
    v_add_f32 v166, v166, v167
    v_mov_b32 v165, v164
    v_mov_b32 v167, v166
    v_permlane32_swap_b32 v164, v165
    v_permlane32_swap_b32 v166, v167
    v_add_f32 v164, v164, v165
    v_add_f32 v166, v166, v167
    s_lshl_b32 s37, s26, 8
    v_lshlrev_b32 v4, 2, v2
    v_add_u32 v6, s37, v4
    v_add_u32 v6, {SCR+2048}, v6
    ds_write_b32 v6, v164
    ds_write_b32 v6, v166 offset:128
    v_xor_b32 v7, 512, v6
    s_waitcnt lgkmcnt(0)
    s_barrier
    ds_read_b32 v165, v7
    ds_read_b32 v167, v7 offset:128
    v_and_b32 v6, 0xfffffdff, v6
    s_waitcnt lgkmcnt(0)
    v_add_f32 v164, v164, v165
    v_add_f32 v166, v166, v167
    v_mul_f32 v164, {f32(-1/512)}, v164
    v_mul_f32 v166, {f32(1/512)}, v166
    v_fma_f32 v166, -v164, v164, v166
    v_max_f32 v166, 0, v166
    v_add_f32 v166, {f32(1e-5)}, v166
    v_rsq_f32 v165, v166
    ds_write_b32 v6, v164 offset:1024
    ds_write_b32 v6, v165 offset:1152
    s_waitcnt lgkmcnt(0)
    s_barrier
    """)
    k("s_branch L_m_p2" if mono else "s_endpgm")
    k.label("L_k1_M")
    k("s_setprio 1")
    k(f"""
    s_and_b32 s30, s26, 1
    s_lshr_b32 s31, s26, 1
    s_lshl_b32 s29, s27, 1
    s_add_u32 s29, s29, s30
    v_and_b32 v2, 31, v1
    v_lshrrev_b32 v3, 5, v1
    v_lshrrev_b32 v4, 1, v2
    v_and_b32 v4, 7, v4
    v_lshlrev_b32 v5, 7, v2
    s_lshl_b32 s34, s30, 12
    v_add_u32 v5, s34, v5
    v_bfe_u32 v6, v1, 2, 2
    v_lshrrev_b32 v7, 1, v6
    v_xor_b32 v7, s31, v7
    v_lshl_add_u32 v6, v3, 3, v6
    v_mul_u32_u24 v6, 384, v6
    v_lshl_add_u32 v6, v7, 6, v6
    v_bfe_u32 v7, v1, 4, 1
    v_lshl_add_u32 v6, v7, 5, v6
    v_and_b32 v7, 3, v1
    v_lshl_add_u32 v6, v7, 3, v6
    v_add_u32 v6, {WOFF}, v6
    s_barrier
    """)
    for p in range(4):
        k(f"""
        s_add_u32 s36, s30, {p}
        s_and_b32 s36, s36, 3
        s_lshl_b32 s37, s36, 1
        s_mul_i32 s38, s36, 6144
        v_add_u32 v7, s37, v3
        v_xor_b32 v7, v7, v4
        v_lshl_add_u32 v{VXA+p}, v7, 4, v5
        v_add_u32 v{VWA+p}, s38, v6
        v_add_u32 v{VXA+4+p}, {2*STAGE}, v{VXA+p}
        v_add_u32 v{VWA+4+p}, {2*STAGE}, v{VWA+p}
        """)
    k("""
    v_and_b32 v7, 15, v1
    v_bfe_u32 v8, v1, 4, 1
    v_sub_u32 v7, v7, v8
    v_mov_b32 v8, 0x3f803f80
    """)
    for t in range(3):
        k(f"v_cmp_eq_u32 vcc, {2*t}, v7")
        for i in range(4):
            k(f"v_cndmask_b32 v{SEL+4*t+i}, 0, v8, vcc")
    k("s_waitcnt lgkmcnt(0)")
    srd(k, 20, 8, 9, WS_BYTES)
    if not mono:
        k(f"""
        s_add_u32 s36, s2, s25
        s_cmp_lg_u32 s36, 0
        s_cbranch_scc1 L_k1_nz
        v_lshlrev_b32 v7, 8, v1
        v_mov_b32 v8, 0
        s_mov_b32 s36, {CNT}
        buffer_store_dword v8, v7, s[20:23], s36 offen
        """)
        k.label("L_k1_nz")
    if not mono:
        stamp(k, 2); stamp(k, 3)
    XB = FR
    WB = FR + 12

    def addr(n):
        c, p = n // 4, n % 4
        st = c % NST
        return 4 * (st // 2) + p, (st % 2) * STAGE

    def rdx(n):
        ai, off = addr(n)
        b = XB + (n % 3) * 4
        k(f"ds_read_b128 v[{b}:{b+3}], v{VXA+ai} offset:{off}")

    def rdw(n, t):
        ai, off = addr(n)
        for ab in range(2):
            r = WB + 12 * (n % 2) + 4 * t + 2 * ab
            k(f"ds_read_b64_tr_b16 v[{r}:{r+1}], v{VWA+ai} offset:{off + ab*1536 + t*128}")

    k("s_barrier")
    if not mono: stamp(k, 4); k("s_waitcnt lgkmcnt(0)")
    for n in range(2):
        rdx(n)
        for t in range(3):
            rdw(n, t)
    for n in range(32):
        pf = n + 2 < 32
        if (n + 2) % 4 == 0 and pf:
            k("s_barrier")
        if n == 30:
            k("s_barrier")
        b = XB + (n % 3) * 4
        X = f"v[{b}:{b+3}]"
        W = [f"v[{WB+12*(n%2)+4*t}:{WB+12*(n%2)+4*t+3}]" for t in range(3)]
        A = [f"v[{ACC+16*t}:{ACC+16*t+15}]" for t in range(3)]
        Cc = [a if n else "0" for a in A]
        mf = [f"v_mfma_f32_32x32x16_bf16 {A[0]}, {W[0]}, {X}, {Cc[0]}",
              f"v_mfma_f32_32x32x16_bf16 {A[1]}, {W[1]}, {X}, {Cc[1]}",
              f"v_mfma_f32_32x32x16_bf16 {A[2]}, {X}, {W[2]}, {Cc[2]}"]
        if pf:
            rdx(n + 2)
        for t in range(3):
            if pf:
                cnt = 12
            elif n == 30:
                cnt = 2 * (2 - t) + 7
            else:
                cnt = 2 * (2 - t)
            k(f"s_waitcnt lgkmcnt({cnt})")
            k(mf[t])
            if n % 2 == 0:
                cc = "0" if (n == 0 and t == 0) else f"v[{CSA}:{CSA+3}]"
                k(f"v_mfma_f32_16x16x32_bf16 v[{CSA}:{CSA+3}], v[{SEL+4*t}:{SEL+4*t+3}], {W[t]}, {cc}")
            if pf:
                rdw(n + 2, t)
        if n == 29:
            k(f"""
            s_mul_i32 s36, s26, 384
            v_lshlrev_b32 v4, 2, v2
            v_add_u32 v4, {SCR}, v4
            v_and_b32 v5, 15, v1
            v_lshlrev_b32 v5, 2, v5
            v_lshrrev_b32 v7, 4, v1
            v_lshl_add_u32 v5, v7, 8, v5
            v_add_u32 v5, {SCR+5120}, v5
            s_lshl_b32 s36, s26, 10
            v_add_u32 v5, s36, v5
            v_add_u32 v4, 5120, v4
            s_lshl_b32 s36, s31, 11
            v_add_u32 v4, s36, v4
            v_lshlrev_b32 v7, 2, v1
            v_add_u32 v7, {SCR+5120}, v7
            v_add_u32 v7, s36, v7
            s_lshl_b32 s37, s30, 8
            s_add_u32 s37, s37, {SCR+3072}
            v_lshlrev_b32 v8, 4, v3
            v_add_u32 v10, s37, v8
            v_lshlrev_b32 v9, 2, v2
            v_add_u32 v9, s37, v9
            s_lshl_b32 s37, s26, 8
            s_add_u32 s37, s37, {SCR+4096}
            v_add_u32 v8, s37, v8
            v_lshlrev_b32 v11, 2, v1
            v_add_u32 v11, s37, v11
            """)
    if not mono: stamp(k, 5); k("s_waitcnt lgkmcnt(0)")
    for r in range(4):
        k(f"ds_write_b32 v5, v{CSA+r} offset:{r*64}")
    k("""
    s_waitcnt lgkmcnt(0)
    s_barrier
    """)
    for w in range(2):
        k(f"ds_read_b32 v{T+w}, v7 offset:{w*1024}")
        k(f"ds_read_b32 v{T+2+w}, v4 offset:{w*1024+256}")
    MR = FR
    for g in range(4):
        k(f"ds_read_b128 v[{MR+4*g}:{MR+4*g+3}], v10 offset:{g*32}")
        k(f"ds_read_b128 v[{MR+16+4*g}:{MR+16+4*g+3}], v10 offset:{128+g*32}")
    NM, RS, RQ, CV = 164, 166, 170, 172
    k(f"ds_read_b32 v{NM}, v9")
    k(f"ds_read_b32 v{RS}, v9 offset:128")
    k("s_waitcnt lgkmcnt(10)")
    k(f"""
    v_add_f32 v{T}, v{T}, v{T+1}
    v_add_f32 v{CV}, v{T+2}, v{T+3}
    v_add_f32 v{CV+1}, v{T+2}, v{T+3}
    ds_write_b32 v11, v{T}
    """)
    def pr(x): return f"v[{x}:{x+1}]"
    k("s_waitcnt lgkmcnt(0)")
    CQ = CSA
    for t in range(2):
        for g in range(4):
            k(f"ds_read_b128 v[{CQ+16*t+4*g}:{CQ+16*t+4*g+3}], v8 offset:{t*128 + g*32}")
    AV = ACC + 32
    for r in range(0, 16, 2):
        k(f"v_pk_fma_f32 {pr(AV+r)}, {pr(MR+r)}, {pr(CV)}, {pr(AV+r)}")
    for r in range(0, 16, 2):
        k(f"v_pk_mul_f32 {pr(AV+r)}, {pr(AV+r)}, {pr(MR+16+r)}")
    for i in range(8):
        k(f"v_cvt_pk_bf16_f32 v{AV+i}, v{AV+2*i}, v{AV+2*i+1}")
    k(f"""
    v_bfe_u32 v4, v1, 4, 1
    v_and_b32 v5, 15, v1
    v_lshlrev_b32 v5, 4, v5
    v_lshl_add_u32 v5, v3, 8, v5
    v_lshl_add_u32 v5, v4, 16, v5
    s_lshl_b32 s38, s28, 18
    s_lshl_b32 s39, s31, 17
    s_add_u32 s38, s38, s39
    s_lshl_b32 s39, s29, 10
    s_add_u32 s38, s38, s39
    s_add_u32 s39, s38, {VF}
    buffer_store_dwordx4 v[{AV}:{AV+3}], v5, s[20:23], s39 offen{SC}
    buffer_store_dwordx4 v[{AV+4}:{AV+7}], v5, s[20:23], s39 offen offset:512{SC}
    v_mov_b32 v{NM+1}, v{NM}
    v_mov_b32 v{RS+1}, v{RS}
    v_mul_f32 v{RQ}, {f32(0.25*LOG2E)}, v{RS}
    v_mul_f32 v{RQ+1}, {f32(0.25*LOG2E)}, v{RS}
    v_lshlrev_b32 v6, 4, v1
    s_waitcnt lgkmcnt(0)
    """)
    for t in (1, 0):
        A = ACC + 16 * t
        sc = RQ if t == 0 else RS
        for r in range(0, 16, 2):
            k(f"v_pk_fma_f32 {pr(A+r)}, {pr(NM)}, {pr(CQ+16*t+r)}, {pr(A+r)}")
        for r in range(0, 16, 2):
            k(f"v_pk_mul_f32 {pr(A+r)}, {pr(A+r)}, {pr(sc)}")
        for i in range(8):
            k(f"v_cvt_pk_bf16_f32 v{A+i}, v{A+2*i}, v{A+2*i+1}")
        base = QF if t == 0 else KF
        k(f"s_add_u32 s39, s38, {base}")
        k(f"s_add_u32 s40, s38, {base+65536}")
        k(f"buffer_store_dwordx4 v[{A}:{A+3}], v6, s[20:23], s39 offen{SC}")
        k(f"buffer_store_dwordx4 v[{A+4}:{A+7}], v6, s[20:23], s40 offen{SC}")
    if mono:
        import k2_attn
        stamp(k, 13)
        r = k2_attn.gen(fused=True, k=k)
        if os.environ.get("TICKET", "1") == "1": ticket_overflow(k)
        return r
    stamp(k, 6); stamp_rt(k, 7); stamp_flush(k, 1, 8)
    k.label("L_k1_end")
    k("s_endpgm")
    return k, f"grid=(256,1,1) block=(512,1,1) lds={LDS}"
```

```python
from dsl import Kern

MB = 1 << 20
QF = 0 * MB
KF = 2 * MB
VF = 4 * MB
OF = 6 * MB
HF = 8 * MB
ST = 10 * MB
CS = 11 * MB
AF = 12 * MB
WGF = 20 * MB
CNT = 24 * MB
WS_BYTES = 0x10000000

LOG2E = 1.4426950408889634


def f32(x):
    import struct
    return "0x%08x" % struct.unpack("<I", struct.pack("<f", x))[0]


def srd(k, d, lo, hi, nbytes):
    k(f"""
    s_mov_b32 s{d}, s{lo}
    s_mov_b32 s{d+1}, s{hi}
    s_mov_b32 s{d+2}, {nbytes:#x}
    s_mov_b32 s{d+3}, 0x20000
    """)


def code_prefetch(k, vtmp, vdst, sp, nthreads, nbytes):
    k(f"s_getpc_b64 s[{sp}:{sp+1}]")
    k.label(f"L_{k.name}_pc")
    k(f"v_lshlrev_b32 v{vtmp}, 6, v0")
    per = nthreads * 64
    n = (nbytes + per - 1) // per
    for i in range(n):
        if i:
            k(f"v_add_u32 v{vtmp}, {per}, v{vtmp}")
        k(f"v_min_u32 v3, L_{NEXT[k.name]}_codeend-L_{k.name}_pc, v{vtmp}")
        k(f"global_load_dword v{vdst}, v3, s[{sp}:{sp+1}]")
    return n


import os
STAMPS = os.environ.get("STAMPS") == "1"
STAMP_BASE = 64 * MB


def stamp(k, i):
    if not STAMPS:
        return
    k(f"s_memtime s[{60+2*i}:{61+2*i}]")


def stamp_rt(k, i):
    if not STAMPS:
        return
    k(f"s_memrealtime s[{60+2*i}:{61+2*i}]")


def stamp_flush(k, kidx, n, wave_sgpr=26):
    if not STAMPS:
        return
    k("s_waitcnt lgkmcnt(0)")
    k(f"""
    s_lshl_b32 s53, s2, 4
    s_add_u32 s53, s53, s{wave_sgpr}
    s_lshl_b32 s53, s53, 6
    s_add_u32 s53, s53, {STAMP_BASE + kidx*MB}
    v_mov_b32 v0, 0
    """)
    for i in range(n):
        k(f"v_mov_b32 v1, s{60+2*i}")
        k(f"buffer_store_dword v1, v0, s[20:23], s53 offen offset:{4*i}")

MONO = "sequential_preLN__softmax_full_mha__swiglu_ffn__prompt_kernel"
NEXT = {MONO: MONO, "fused_kernel": "fused_kernel", "qkv_kernel": "attn_kernel", "attn_kernel": "wo_kernel", "wo_kernel": "gu_kernel", "gu_kernel": "down_kernel", "down_kernel": "down_kernel"}


SMODE = 24
_stn = [0]


def mstore(k, instrs):
    if isinstance(instrs, str):
        instrs = [instrs]
    n = _stn[0]
    _stn[0] += 1
    k(f"s_cmp_eq_u32 s{SMODE}, 0")
    k(f"s_cbranch_scc1 L_ms{n}_g")
    for i in instrs:
        k(i)
    k(f"s_branch L_ms{n}_e")
    k.label(f"L_ms{n}_g")
    for i in instrs:
        k(i + " sc1")
    k.label(f"L_ms{n}_e")
```

```python
from common import *
import os

SPIN = 1 << int(os.environ.get('SPINB', '20'))
SPOLL = os.environ.get('SPOLL', '1') == '1'
SLEEP = os.environ.get('SLEEP', '')
LDP = os.environ.get('LDP', ' sc1')


def signal(k, cnt_sgpr, lbl):
    k(f"""
    s_barrier
    s_cmp_lg_u32 s25, 0
    s_cbranch_scc1 {lbl}
    v_mov_b32 v4, 0
    v_mov_b32 v5, 1
    s_mov_b64 exec, 1
    buffer_atomic_add v5, v4, s[20:23], s{cnt_sgpr} offen sc1
    s_mov_b64 exec, -1
    """)
    k.label(lbl)


def fsignal(k, off_sgpr, lbl, local=True):
    k(f"""
    s_barrier
    s_cmp_lg_u32 s25, 0
    s_cbranch_scc1 {lbl}
    v_mov_b32 v4, 0
    v_mov_b32 v5, 1
    s_mov_b64 exec, 1
    """)
    st = f"buffer_store_dword v5, v4, s[20:23], s{off_sgpr} offen"
    if local:
        mstore(k, st)
    else:
        k(st + " sc1")
    k("s_mov_b64 exec, -1")
    k.label(lbl)


def fpoll(k, grp_sgpr, G, lbl):
    k(f"""
    v_and_b32 v7, {G-1}, v1
    v_lshlrev_b32 v7, 2, v7
    v_add_u32 v7, s{grp_sgpr}, v7
    v_mov_b32 v8, 1
    """)
    poll(k, 7, 8, lbl, 0)


def poll(k, vaddr, vexp, lbl, pending):
    k(f"s_mov_b32 s46, {CNT}")
    k("s_mov_b32 s47, 0")
    k.label(lbl)
    k(f"""
    buffer_load_dword v6, v{vaddr}, s[20:23], s46 offen sc1
    s_add_u32 s47, s47, 1
    {SLEEP}
    s_waitcnt vmcnt(0)
    v_cmp_gt_u32 vcc, v{vexp}, v6
    s_cmp_gt_u32 s47, {SPIN}
    s_cbranch_scc1 {lbl}_out
    s_cbranch_vccnz {lbl}
    """)
    k.label(f"{lbl}_out")


def spoll(k, soff, exp, lbl):
    k(f"s_add_u32 s46, s{soff}, {CNT}")
    k("s_mov_b32 s47, 0")
    k.label(lbl)
    k(f"""
    s_load_dword s49, s[8:9], s46 glc
    s_add_u32 s47, s47, 1
    s_waitcnt lgkmcnt(0)
    s_cmp_gt_u32 s47, {SPIN}
    s_cbranch_scc1 {lbl}_out
    s_cmp_lt_u32 s49, {exp}
    s_cbranch_scc1 {lbl}
    """)
    k.label(f"{lbl}_out")


def tail(k):
    HKEEP = 200
    VL16 = 208
    k.label("L_f_p3")
    k(f"""
    s_mov_b32 s25, s26
    s_and_b32 s26, s25, 3
    v_lshlrev_b32 v{VL16}, 4, v1
    s_and_b32 s27, s2, 7
    s_lshl_b32 s27, s27, 2
    s_lshr_b32 s28, s2, 3
    s_and_b32 s28, s28, 3
    s_add_u32 s27, s27, s28
    s_lshr_b32 s28, s2, 5
    s_and_b32 s29, s26, 1
    s_lshr_b32 s30, s26, 1
    s_lshl_b32 s31, s27, 1
    s_add_u32 s31, s31, s30
    s_lshr_b32 s45, s2, 5
    s_lshl_b32 s45, s45, 8
    s_add_u32 s45, s45, {CNT}
    s_setprio 0
    s_waitcnt vmcnt(0)
    """)
    signal(k, 45, "L_f_s2")
    k("s_cmp_lt_u32 s25, 4")
    k("s_cbranch_scc1 L_f_p3C")

    VWD = 11
    k(f"""
    s_lshl_b32 s34, s26, 11
    v_lshrrev_b32 v2, 3, v1
    v_bfe_u32 v3, v1, 2, 1
    v_bfe_u32 v4, v1, 4, 1
    v_xor_b32 v3, v3, v4
    v_and_b32 v4, 3, v1
    v_lshlrev_b32 v4, 4, v4
    v_lshl_add_u32 v4, v3, 6, v4
    v_lshl_add_u32 v4, v2, 10, v4
    s_lshl_b32 s35, s26, 14
    s_lshl_b32 s36, s28, 7
    s_add_u32 s35, s35, s36
    v_add_u32 v210, s35, v4
    v_add_u32 v211, 8192-1024, v210
    """)
    srd(k, 16, 10, 11, 512 * 1024)
    srd(k, 56, 14, 15, 2 * MB)
    for c in range(8):
        k(f"""
        s_mov_b32 s41, {c*65536}
        s_add_u32 m0, s34, {c*8192}
        buffer_load_dwordx4 v210, s[16:19], s41 offen lds
        buffer_load_dwordx4 v211, s[16:19], s41 offen offset:1024 lds
        """)
    XL = 131072
    k(f"""
    v_and_b32 v5, 7, v1
    v_xor_b32 v5, v5, v2
    v_lshlrev_b32 v5, 4, v5
    v_lshl_add_u32 v4, v2, 10, v5
    s_lshl_b32 s38, s27, 16
    s_add_u32 s38, s38, s35
    s_add_u32 m0, s34, {XL}
    buffer_load_dwordx4 v4, s[56:59], s38 offen lds
    s_add_u32 s38, s38, 8192
    s_add_u32 m0, s34, {XL+1024}
    buffer_load_dwordx4 v4, s[56:59], s38 offen lds
    s_lshl_b32 s32, s31, 15
    s_lshl_b32 s33, s29, 11
    s_add_u32 s32, s32, s33
    s_add_u32 s32, s32, {OF}
    """)
    k("s_barrier")
    for c in range(8):
        k(f"""
        s_add_u32 s40, s32, {c*4096}
        s_add_u32 m0, s34, {65536 + c*8192}
        buffer_load_dwordx4 v{VL16}, s[20:23], s40 offen{LDP} lds
        buffer_load_dwordx4 v{VL16}, s[20:23], s40 offen offset:1024{LDP} lds
        """)
    for c in range(8):
        k(f"s_waitcnt vmcnt({2*(7-c)})")
        k("s_barrier")
    p4_ids(k, VL16)
    k("s_mul_i32 s42, s26, 7")
    for j in range(7):
        k(f"""
        s_add_u32 s36, s42, {j}
        s_lshr_b32 s37, s36, 2
        s_lshl_b32 s37, s37, 15
        s_and_b32 s39, s36, 3
        s_lshl_b32 s39, s39, 10
        s_add_u32 s37, s37, s39
        v_add_u32 v{212+j}, s37, v{VL16}
        """)
    k("s_lshl_b32 s42, s42, 10")
    k("s_barrier")
    PRE = int(os.environ.get("PRE3", "4"))
    for c in range(3):
        k(f"s_add_u32 s37, s32, {c*4096}")
        for j in range(7):
            if c * 7 + j == PRE:
                k("s_barrier")
            k(f"""
            s_add_u32 m0, s42, {c*28672 + j*1024}
            buffer_load_dwordx4 v{212+j}, s[20:23], s37 offen sc1 lds
            """)
    if PRE >= 21:
        k("s_barrier")
    k("s_barrier")
    p4_body(k, "Y", VL16)
    p5_loader(k, VL16)

    k.label("L_f_p3C")
    VBA, VWA = 12, 13
    RES, FR, ACC, T = 20, 96, 64, 80
    k(f"""
    v_and_b32 v2, 31, v1
    v_lshrrev_b32 v3, 5, v1
    s_lshl_b32 s37, s28, 1
    s_add_u32 s37, s37, s29
    s_lshl_b32 s40, s30, 12
    s_add_u32 s40, s40, 65536
    v_add_u32 v{VBA}, s40, v{VL16}
    v_bfe_u32 v4, v1, 2, 2
    v_lshl_add_u32 v5, v3, 2, v4
    v_lshlrev_b32 v5, 7, v5
    v_lshrrev_b32 v4, 1, v4
    v_xor_b32 v4, s29, v4
    v_lshl_add_u32 v5, v4, 6, v5
    v_bfe_u32 v4, v1, 4, 1
    v_lshl_add_u32 v5, v4, 5, v5
    v_and_b32 v4, 3, v1
    v_lshl_add_u32 v209, v4, 3, v5
    s_lshl_b32 s38, s30, 12
    s_lshl_b32 s39, s29, 2
    v_and_b32 v4, 7, v2
    v_xor_b32 v4, s39, v4
    v_lshlrev_b32 v5, 7, v2
    v_lshl_add_u32 v5, v3, 3, v5
    v_add_u32 v5, s38, v5
    v_add_u32 v5, {XL}, v5
    """)
    for g in range(4):
        k(f"v_xor_b32 v{T+g}, {g}, v4")
        k(f"v_lshl_add_u32 v{T+g}, v{T+g}, 4, v5")
    k(f"""
    s_cmp_lg_u32 s25, 1
    s_cbranch_scc1 L_f_w2
    v_cmp_gt_u32 vcc, 8, v1
    v_lshlrev_b32 v7, 8, v1
    v_add_u32 v7, {40*256}, v7
    s_and_b32 s36, s2, 7
    s_lshl_b32 s36, s36, 8
    v_mov_b32 v8, s36
    v_cndmask_b32 v7, v8, v7, vcc
    v_mov_b32 v8, 32
    v_mov_b32 v9, 128
    v_cndmask_b32 v8, v8, v9, vcc
    """)
    poll(k, 7, 8, "L_f_poll2", 0)
    k.label("L_f_w2")
    k("s_barrier")
    stamp(k, 4)
    PD = int(os.environ.get('PD', '4')); NB = PD + 1

    def reads3(n):
        c, s_ = n // 4, n % 4
        b = FR + (n % NB) * 8
        k(f"ds_read_b128 v[{b}:{b+3}], v{VBA} offset:{c*8192 + s_*1024}")
        k(f"ds_read_b64_tr_b16 v[{b+4}:{b+5}], v209 offset:{n*2048}")
        k(f"ds_read_b64_tr_b16 v[{b+6}:{b+7}], v209 offset:{n*2048 + 1024}")

    k("s_barrier")
    k("s_waitcnt lgkmcnt(0)")
    for n in range(PD):
        reads3(n)
    for n in range(32):
        if n + PD < 32:
            if (n + PD) % 4 == 0:
                k("s_barrier")
            reads3(n + PD)
            k(f"s_waitcnt lgkmcnt({3*PD})")
        else:
            if n == 30:
                for g in range(4):
                    k(f"ds_read_b64 v[{RES+2*g}:{RES+2*g+1}], v{T+g}")
            k(f"s_waitcnt lgkmcnt({3*(31-n) + (4 if n >= 30 else 0)})")
        b = FR + (n % NB) * 8
        k(f"v_mfma_f32_32x32x16_bf16 v[{ACC}:{ACC+15}], v[{b+4}:{b+7}], v[{b}:{b+3}], " + (f"v[{ACC}:{ACC+15}]" if n else "0"))
    k("s_waitcnt lgkmcnt(0)")
    k("s_barrier")
    stamp(k, 5)
    for i in range(8):
        k(f"v_lshlrev_b32 v{T+2*i}, 16, v{RES+i}")
        k(f"v_and_b32 v{T+2*i+1}, 0xffff0000, v{RES+i}")
    for r in range(0, 16, 2):
        k(f"v_pk_add_f32 v[{ACC+r}:{ACC+r+1}], v[{ACC+r}:{ACC+r+1}], v[{T+r}:{T+r+1}]")
    for i in range(8):
        k(f"v_cvt_pk_bf16_f32 v{HKEEP+i}, v{ACC+2*i}, v{ACC+2*i+1}")
    k(f"""
    s_lshl_b32 s38, s31, 15
    s_lshl_b32 s39, s37, 11
    s_add_u32 s38, s38, s39
    s_add_u32 s38, s38, {HF}
    """)
    mstore(k, [f"buffer_store_dwordx4 v[{HKEEP}:{HKEEP+3}], v{VL16}, s[20:23], s38 offen",
               f"buffer_store_dwordx4 v[{HKEEP+4}:{HKEEP+7}], v{VL16}, s[20:23], s38 offen offset:1024"])
    k(f"v_pk_add_f32 v[{T}:{T+1}], v[{ACC}:{ACC+1}], v[{ACC+2}:{ACC+3}]")
    k(f"v_pk_mul_f32 v[{T+2}:{T+3}], v[{ACC}:{ACC+1}], v[{ACC}:{ACC+1}]")
    k(f"v_pk_fma_f32 v[{T+2}:{T+3}], v[{ACC+2}:{ACC+3}], v[{ACC+2}:{ACC+3}], v[{T+2}:{T+3}]")
    for r in range(4, 16, 2):
        k(f"v_pk_add_f32 v[{T}:{T+1}], v[{T}:{T+1}], v[{ACC+r}:{ACC+r+1}]")
        k(f"v_pk_fma_f32 v[{T+2}:{T+3}], v[{ACC+r}:{ACC+r+1}], v[{ACC+r}:{ACC+r+1}], v[{T+2}:{T+3}]")
    k(f"""
    v_add_f32 v{T}, v{T}, v{T+1}
    v_add_f32 v{T+1}, v{T+2}, v{T+3}
    v_mov_b32 v{T+2}, v{T}
    v_mov_b32 v{T+3}, v{T+1}
    v_permlane32_swap_b32 v{T}, v{T+2}
    v_permlane32_swap_b32 v{T+1}, v{T+3}
    v_add_f32 v{T}, v{T}, v{T+2}
    v_add_f32 v{T+1}, v{T+1}, v{T+3}
    v_lshlrev_b32 v4, 3, v2
    s_lshl_b32 s38, s31, 12
    s_lshl_b32 s39, s37, 8
    s_add_u32 s38, s38, s39
    s_add_u32 s38, s38, {ST}
    s_mov_b64 exec, 0xffffffff
    """)
    mstore(k, f"buffer_store_dwordx2 v[{T}:{T+1}], v4, s[20:23], s38 offen")
    k(f"""
    s_mov_b64 exec, -1
    s_lshr_b32 s45, s27, 1
    s_lshl_b32 s45, s45, 8
    s_and_b32 s39, s27, 1
    s_lshl_b32 s39, s39, 3
    s_add_u32 s39, s39, s28
    s_lshl_b32 s39, s39, 2
    s_add_u32 s45, s45, s39
    s_add_u32 s45, s45, {CNT + 8*256}
    """)
    p4_ids(k, VL16)
    k("s_waitcnt vmcnt(0)")
    fsignal(k, 45, "L_f_s3")
    k(f"""
    s_cmp_lg_u32 s25, 1
    s_cbranch_scc1 L_f_w3
    s_lshl_b32 s36, s27, 8
    s_add_u32 s36, s36, {8*256}
    """)
    fpoll(k, 36, 16, "L_f_poll3")
    k.label("L_f_w3")
    k("s_barrier")
    stamp(k, 6)
    p4_body(k, "X", VL16)
    p5_compute(k, VL16, HKEEP)


HOFF4 = 3 * 28672
PT4 = int(os.environ.get('PT4', '3'))
CSL4 = HOFF4 + 3 * 16384


def p4_ids(k, VL16):
    k(f"""
    s_and_b32 s27, s2, 7
    s_lshl_b32 s27, s27, 1
    s_lshr_b32 s28, s2, 3
    s_and_b32 s28, s28, 1
    s_add_u32 s27, s27, s28
    s_lshr_b32 s28, s2, 4
    s_lshl_b32 s29, s27, 2
    s_add_u32 s29, s29, s26
    s_cmp_lt_u32 s25, 4
    s_cselect_b32 s31, 2, 5
    s_cselect_b32 s35, 20, 0
    s_mul_i32 s31, s31, s26
    s_add_u32 s31, s31, s35
    s_mul_i32 s32, s28, {7*32768}
    s_add_u32 s32, s32, {WGF}
    s_lshl_b32 s34, s31, 10
    s_lshl_b32 s38, s29, 15
    s_add_u32 s38, s38, {HF}
    s_lshl_b32 s40, s26, 12
    s_add_u32 s40, s40, {HOFF4}
    """)


def p4_body(k, cls, VL16):
    X = cls == "X"
    tiles = [0, 1, 2, 3] if X else [4, 5, 6]
    NT = len(tiles)
    NW = 2 if X else 5
    VWD, VWA, VHA, VCSA = 10, 16, 19, 23
    STT, HB, FR, ACC, T, CSB = 24, 40, 48, 64, 128, 144
    PF = 176
    MEAN, NMEAN, C1, C2 = 177, 178, 180, 182

    def group_ops(c):
        ops = []
        if X:
            for i in range(4):
                p2 = f"s_add_u32 s39, s38, {c*4096}\ns_add_u32 m0, s40, {(c%3)*16384}\n" if i == 0 else ""
                ops.append(p2 + f"buffer_load_dwordx4 v{VL16}, s[20:23], s39 offen offset:{i*1024}{LDP} lds")
        if c >= 3:
            for j in range(NW):
                p2 = f"s_add_u32 s37, s32, {c*4096}\n" if j == 0 else ""
                ops.append(p2 + f"s_add_u32 m0, s34, {(c%3)*28672 + j*1024}\nbuffer_load_dwordx4 v{VWD+j}, s[20:23], s37 offen sc1 lds")
        return ops

    for c in range(2):
        for o in group_ops(c):
            k(o)
    for j in range(NW):
        k(f"""
        s_add_u32 s35, s31, {j}
        s_lshr_b32 s36, s35, 2
        s_lshl_b32 s36, s36, 15
        s_and_b32 s35, s35, 3
        s_lshl_b32 s35, s35, 10
        s_add_u32 s35, s35, s36
        v_add_u32 v{VWD+j}, s35, v{VL16}
        """)
    k(f"""
    v_lshrrev_b32 v3, 5, v1
    v_mov_b32 v{VWA}, v{VL16}
    v_add_u32 v{VWA+1}, 28672, v{VWA}
    v_add_u32 v{VWA+2}, {2*28672}, v{VWA}
    v_add_u32 v{VHA}, s40, v{VL16}
    v_lshlrev_b32 v{VCSA}, 4, v3
    v_add_u32 v{VCSA}, {CSL4}, v{VCSA}
    """)

    def rdh(n):
        c, s_ = n // 4, n % 4
        b = HB + 4 * (n % 2)
        k(f"ds_read_b128 v[{b}:{b+3}], v{VHA} offset:{(c%3)*16384 + s_*1024}")

    def rdw(n, i):
        c, s_ = n // 4, n % 4
        k(f"ds_read_b128 v[{FR+4*i}:{FR+4*i+3}], v{VWA + c % 3} offset:{tiles[i]*4096 + s_*1024}")

    k(f"s_waitcnt vmcnt({4 if X else 14})")
    k("s_barrier")
    k("s_waitcnt lgkmcnt(0)")
    rdh(0)
    for i in range(NT):
        rdw(0, i)
    pend = group_ops(2)
    extra = 0
    for n in range(32):
        last = n == 31
        bar = (n + 1) % 4 == 0 and not last
        if bar:
            c1 = (n + 1) // 4
            for o in pend:
                k(o)
            nxt = len(group_ops(c1 + 1)) if c1 + 1 <= 7 else 0
            if not X and c1 == 1:
                nxt = 7
            k(f"s_waitcnt vmcnt({nxt + extra}) lgkmcnt(0)")
            k("s_barrier")
            pend = group_ops(c1 + 2) if c1 + 2 <= 7 else []
            if c1 == 6:
                ops = [f"s_lshl_b32 s36, s29, 12\ns_add_u32 s36, s36, {ST}\nv_lshlrev_b32 v8, 3, v1\n" +
                       f"buffer_load_dwordx2 v[{STT}:{STT+1}], v8, s[20:23], s36 offen sc1"]
                for i in range(1, 8):
                    ops.append(f"buffer_load_dwordx2 v[{STT+2*i}:{STT+2*i+1}], v8, s[20:23], s36 offen offset:{512*i} sc1")
                if X:
                    ops.append(f"""
                    v_min_u32 v5, 223, v0
                    v_cmp_lt_u32 vcc, 111, v5
                    v_mov_b32 v6, {1792-112}
                    v_cndmask_b32 v6, 0, v6, vcc
                    v_add_u32 v6, v6, v5
                    v_lshlrev_b32 v6, 4, v6
                    v_lshlrev_b32 v9, 2, v5
                    v_add_u32 v9, {CSL4}, v9
                    s_mul_i32 s37, s28, {112*16}
                    s_add_u32 s37, s37, {CS}
                    buffer_load_dwordx4 v[{T}:{T+3}], v6, s[20:23], s37 offen sc1""")
                    for q in range(1, 4):
                        ops.append(f"s_add_u32 s37, s37, {3584*16}\nbuffer_load_dwordx4 v[{T+4*q}:{T+4*q+3}], v6, s[20:23], s37 offen sc1")
                else:
                    ops.append(f"""
                    s_mov_b32 s16, s12
                    s_mov_b32 s17, s13
                    s_mov_b32 s18, {1792*1024}
                    s_mov_b32 s19, 0x20000
                    v_min_u32 v5, 55, v1
                    v_lshlrev_b32 v6, 8, v5
                    s_lshr_b32 s37, s2, 3
                    s_lshl_b32 s37, s37, 2
                    s_add_u32 s37, s37, s26
                    s_mul_i32 s37, s37, {14*1024}
                    buffer_load_dword v{PF}, v6, s[16:19], s37 offen""")
                    ops.append(f"buffer_load_dword v{PF}, v6, s[16:19], s37 offen offset:128")
                pend = ops
                extra = len(ops)
        b = HB + 4 * (n % 2)
        if not last:
            rdh(n + 1)
        for i in range(NT):
            A = f"v[{ACC+16*i}:{ACC+16*i+15}]"
            if not bar:
                k(f"s_waitcnt lgkmcnt({NT if not last else NT-1-i})")
            k(f"v_mfma_f32_32x32x16_bf16 {A}, v[{FR+4*i}:{FR+4*i+3}], v[{b}:{b+3}], " + (A if n else "0"))
            if not last:
                rdw(n + 1, i)
            if pend and (i % 2 == 0 or len(pend) > 6):
                k(pend.pop(0))
        if n == 29:
            k(f"s_waitcnt vmcnt({0 if X else extra - 8})")
            if X:
                for st_ in (8, 4, 2, 1):
                    for i in range(st_):
                        k(f"v_add_f32 v{T+i}, v{T+i}, v{T+i+st_}")
            for i in range(1, 8):
                k(f"v_add_f32 v{STT}, v{STT}, v{STT+2*i}")
                k(f"v_add_f32 v{STT+1}, v{STT+1}, v{STT+2*i+1}")
            k(f"""
            v_mov_b32 v{STT+2}, v{STT}
            v_mov_b32 v{STT+3}, v{STT+1}
            v_permlane32_swap_b32 v{STT}, v{STT+2}
            v_permlane32_swap_b32 v{STT+1}, v{STT+3}
            v_add_f32 v{STT}, v{STT}, v{STT+2}
            v_add_f32 v{STT+1}, v{STT+1}, v{STT+3}
            v_mul_f32 v{MEAN}, {f32(1/512)}, v{STT}
            v_mul_f32 v{C2}, {f32(1/512)}, v{STT+1}
            v_fma_f32 v{C2}, -v{MEAN}, v{MEAN}, v{C2}
            v_max_f32 v{C2}, 0, v{C2}
            v_add_f32 v{C2}, {f32(1e-5)}, v{C2}
            v_rsq_f32 v{C1}, v{C2}
            v_mul_f32 v{C1}, {f32(-LOG2E)}, v{C1}
            v_mov_b32 v{C1+1}, v{C1}
            v_mov_b32 v{C2+1}, v{C2}
            v_sub_f32 v{NMEAN}, 0, v{MEAN}
            v_sub_f32 v{NMEAN+1}, 0, v{MEAN}
            """)
    if X:
        stamp(k, 7)
        k(f"ds_write_b32 v9, v{T}")
    k("s_waitcnt lgkmcnt(0)")
    k("s_barrier")
    wq = []
    if not X:
        k(f"""
        s_lshr_b32 s43, s2, 5
        s_mul_i32 s43, s43, {7*ROT5}
        s_lshr_b32 s43, s43, 1
        s_mov_b32 s44, s43
        s_lshl_b32 s48, s26, 11
        """)
        if EARLYW:
            wq = list(range(NWS))

    def wpop(n=1):
        for _ in range(n):
            if wq:
                wdma(k, wq.pop(0))
    k(f"""
    s_mul_i32 s36, s29, {112*1024}
    s_mul_i32 s37, s28, {7*1024}
    s_add_u32 s36, s36, s37
    s_add_u32 s36, s36, {AF + tiles[0]*1024}
    """)

    def csread(i):
        p = tiles[i]
        d = CSB + (i % 2) * 16
        k(f"ds_read_b128 v[{d}:{d+3}], v{VCSA} offset:{p*64}")
        k(f"ds_read_b128 v[{d+4}:{d+7}], v{VCSA} offset:{p*64+32}")
        k(f"ds_read_b128 v[{d+8}:{d+11}], v{VCSA} offset:{448+p*64}")
        k(f"ds_read_b128 v[{d+12}:{d+15}], v{VCSA} offset:{448+p*64+32}")

    def pr(x): return f"v[{x}:{x+1}]"
    csread(0)
    for i in range(NT):
        k("s_waitcnt lgkmcnt(0)")
        if i + 1 < NT:
            csread(i + 1)
        d = CSB + (i % 2) * 16
        A = ACC + 16 * i
        wpop(2)
        for r in range(0, 16, 2):
            k(f"v_pk_fma_f32 {pr(A+r)}, {pr(NMEAN)}, {pr(d+r)}, {pr(A+r)}")
        for r in range(0, 8, 2):
            k(f"v_pk_mul_f32 {pr(T+r)}, {pr(A+r)}, {pr(C1)}")
        for r in range(8):
            k(f"v_exp_f32 v{T+r}, v{T+r}")
        wpop(2)
        for r in range(0, 8, 2):
            k(f"v_pk_mul_f32 {pr(A+r)}, {pr(A+r)}, {pr(A+8+r)}")
        for r in range(0, 8, 2):
            k(f"v_pk_fma_f32 {pr(T+r)}, {pr(T+r)}, {pr(C2)}, {pr(C2)}")
        for r in range(8):
            k(f"v_rcp_f32 v{T+r}, v{T+r}")
        for r in range(0, 8, 2):
            k(f"v_pk_mul_f32 {pr(A+r)}, {pr(A+r)}, {pr(T+r)}")
        if i == NT - 1:
            wpop(99)
        for j in range(4):
            k(f"v_cvt_pk_bf16_f32 v{A+j}, v{A+2*j}, v{A+2*j+1}")
        mstore(k, f"buffer_store_dwordx4 v[{A}:{A+3}], v{VL16}, s[20:23], s36 offen offset:{i*1024}")
    k(f"""
    s_lshl_b32 s45, s27, 8
    s_lshl_b32 s39, s28, 2
    s_add_u32 s45, s45, s39
    s_add_u32 s45, s45, {CNT + 24*256}
    """)


NWS = int(os.environ.get('NWS', '12'))
NAS = 20 - NWS
ROT5 = int(os.environ.get('ROT5', '0'))
EARLYW = os.environ.get('EARLYW', '0') == '1'
AOFF = NWS * 8192


def p5_ids(k):
    k(f"""
    s_and_b32 s27, s2, 7
    s_lshl_b32 s27, s27, 2
    s_lshr_b32 s28, s2, 3
    s_and_b32 s28, s28, 3
    s_add_u32 s27, s27, s28
    s_lshr_b32 s28, s2, 5
    s_and_b32 s29, s26, 1
    s_lshr_b32 s30, s26, 1
    s_lshl_b32 s31, s27, 1
    s_add_u32 s31, s31, s30
    """)


def wdma(k, c):
    k(f"""
    s_lshl_b32 s41, s43, 16
    s_add_u32 m0, s48, {(c % NWS)*8192}
    s_add_u32 s43, s43, 1
    buffer_load_dwordx4 v210, s[16:19], s41 offen lds
    buffer_load_dwordx4 v211, s[16:19], s41 offen offset:1024 lds
    s_cmp_eq_u32 s43, 28
    s_cselect_b32 s43, 0, s43
    """)


def p5_loader(k, VL16):
    p5_ids(k)
    k(f"""
    s_lshl_b32 s34, s26, 11
    s_mul_i32 s32, s31, {112*1024}
    s_lshl_b32 s33, s29, 11
    s_add_u32 s32, s32, s33
    s_add_u32 s32, s32, {AF}
    """)

    def adma(c):
        k(f"""
        s_lshl_b32 s40, s44, 12
        s_add_u32 s40, s40, s32
        s_add_u32 m0, s34, {AOFF + (c % NAS)*8192}
        s_add_u32 s44, s44, 1
        buffer_load_dwordx4 v{VL16}, s[20:23], s40 offen{LDP} lds
        buffer_load_dwordx4 v{VL16}, s[20:23], s40 offen offset:1024{LDP} lds
        s_cmp_eq_u32 s44, 28
        s_cselect_b32 s44, 0, s44
        """)

    if EARLYW:
        k("s_waitcnt vmcnt(0)")
        k("s_barrier")
    else:
        for c in range(4):
            wdma(k, c)
        k("s_waitcnt vmcnt(8)")
        k("s_barrier")
        for c in range(4, NWS):
            wdma(k, c)
    k("s_barrier")
    order = []
    ia, iw = 0, NWS
    for c in range(NAS - 2):
        adma(c); order.append(("a", c)); ia += 1
    for c in range(28):
        need = max(i for i, g in enumerate(order) if g == ("a", c) or g == ("w", c))
        k(f"s_waitcnt vmcnt({2*(len(order) - 1 - need)})")
        k("s_barrier")
        if ia < 28 and ia <= c - 2 + NAS:
            adma(ia); order.append(("a", ia)); ia += 1
        if iw < 28 and iw <= c - 2 + NWS:
            wdma(k, iw); order.append(("w", iw)); iw += 1
    k("s_endpgm")


def p5_compute(k, VL16, HKEEP):
    VBA, VWA = 12, 13
    FR, ACC, T = 96, 64, 80
    p5s = 45
    k("s_waitcnt vmcnt(0)")
    stamp(k, 8)
    fsignal(k, 45, "L_f_s4")
    p5_ids(k)
    srd(k, 56, 54, 55, 2 * MB)
    k(f"""
    v_and_b32 v2, 31, v1
    v_lshrrev_b32 v3, 5, v1
    s_lshl_b32 s37, s28, 1
    s_add_u32 s37, s37, s29
    s_lshl_b32 s40, s30, 12
    s_add_u32 s40, s40, {AOFF}
    v_add_u32 v{VBA}, s40, v{VL16}
    v_add_u32 v{VWA}, 57344, v209
    """)
    for i in range(8):
        k(f"v_lshlrev_b32 v{T+2*i}, 16, v{HKEEP+i}")
        k(f"v_and_b32 v{T+2*i+1}, 0xffff0000, v{HKEEP+i}")
    k(f"""
    s_cmp_lg_u32 s25, 1
    s_cbranch_scc1 L_f_w4
    s_lshr_b32 s36, s27, 1
    s_lshl_b32 s36, s36, 8
    s_add_u32 s36, s36, {24*256}
    """)
    fpoll(k, 36, 16, "L_f_poll4")
    k.label("L_f_w4")
    k("s_barrier")
    stamp(k, 9)
    PD = int(os.environ.get('PD', '4')); NB = PD + 1

    def reads(n):
        c, s_ = n // 4, n % 4
        b = FR + (n % NB) * 8
        ws = c % NWS
        if os.environ.get("ABL5") == "nords":
            return
        wr, woff = ("v209", ws * 8192) if ws < 7 else (f"v{VWA}", (ws - 7) * 8192)
        k(f"ds_read_b128 v[{b}:{b+3}], v{VBA} offset:{(c % NAS)*8192 + s_*1024}")
        k(f"ds_read_b64_tr_b16 v[{b+4}:{b+5}], {wr} offset:{woff + s_*2048}")
        k(f"ds_read_b64_tr_b16 v[{b+6}:{b+7}], {wr} offset:{woff + s_*2048 + 1024}")

    k("s_barrier")
    k("s_waitcnt lgkmcnt(0)")
    for n in range(PD):
        reads(n)
    KS = 112
    for n in range(KS):
        if n + PD < KS:
            if (n + PD) % 4 == 0:
                k("s_barrier")
            reads(n + PD)
            k(f"s_waitcnt lgkmcnt({3*PD})")
        else:
            k(f"s_waitcnt lgkmcnt({3*(KS-1-n)})")
        b = FR + (n % NB) * 8
        k(f"v_mfma_f32_32x32x16_bf16 v[{ACC}:{ACC+15}], v[{b+4}:{b+7}], v[{b}:{b+3}], " + (f"v[{ACC}:{ACC+15}]" if n else f"v[{T}:{T+15}]"))
    stamp(k, 10)
    for i in range(8):
        k(f"v_cvt_pk_bf16_f32 v{ACC+i}, v{ACC+2*i}, v{ACC+2*i+1}")
    k(f"""
    v_lshlrev_b32 v4, 10, v2
    v_lshl_add_u32 v4, v3, 4, v4
    v_permlane32_swap_b32 v{ACC}, v{ACC+2}
    v_permlane32_swap_b32 v{ACC+1}, v{ACC+3}
    v_permlane32_swap_b32 v{ACC+4}, v{ACC+6}
    v_permlane32_swap_b32 v{ACC+5}, v{ACC+7}
    s_lshl_b32 s38, s31, 15
    s_lshl_b32 s39, s37, 6
    s_add_u32 s38, s38, s39
    buffer_store_dwordx4 v[{ACC}:{ACC+3}], v4, s[56:59], s38 offen
    buffer_store_dwordx4 v[{ACC+4}:{ACC+7}], v4, s[56:59], s38 offen offset:32
    """)
    stamp(k, 11); stamp_rt(k, 12); stamp_flush(k, 2, 16)
    k("s_endpgm")
```

```python
from common import *
import os


LOC0 = os.environ.get("LOC0", "0") == "1"


def census(k, PF):
    FAKE = os.environ.get("FAKEXCC", "")
    k(f"""
    s_getreg_b32 s30, hwreg(HW_REG_XCC_ID)
    s_and_b32 s30, s30, 7
    {FAKE}
    s_mul_i32 s31, s30, s30
    s_lshl_b32 s31, s31, 16
    s_lshl_b32 s30, s30, 8
    s_add_u32 s30, s30, s31
    s_add_u32 s51, s30, 1
    s_waitcnt lgkmcnt(0)
    s_mov_b32 s56, s52
    s_mov_b32 s57, s53
    s_mov_b32 s58, 256
    s_mov_b32 s59, 0x20000
    """)
    srd(k, 20, 8, 9, WS_BYTES)
    k(f"""
    s_cmp_lg_u32 s25, 1
    s_cbranch_scc1 L_t_notk
    s_and_b32 s34, s2, 7
    s_lshl_b32 s34, s34, 5
    v_mov_b32 v7, 0
    v_mov_b32 v8, s51
    s_mov_b64 exec, 1
    buffer_atomic_add v8, v7, s[56:59], s34 offen sc1
    s_mov_b64 exec, -1
    """)
    k.label("L_t_notk")
    k(f"""
    s_add_u32 s36, s2, s25
    s_cmp_lg_u32 s36, 0
    s_cbranch_scc1 L_t_nz
    v_lshrrev_b32 v7, 3, v1
    v_and_b32 v9, 7, v1
    v_lshlrev_b32 v7, 8, v7
    v_lshl_add_u32 v7, v9, 4, v7
    v_mov_b32 v8, 0
    v_mov_b32 v9, 0
    v_mov_b32 v10, 0
    v_mov_b32 v11, 0
    """)
    for i in range(8):
        k(f"s_mov_b32 s36, {CNT + i*2048}")
        k("buffer_store_dwordx4 v[8:11], v7, s[20:23], s36 offen sc1")
    k("""
    v_mov_b32 v12, 1
    s_waitcnt vmcnt(0)
    s_mov_b64 exec, 1
    buffer_store_dword v12, v8, s[56:59], 0 offen offset:16 sc1
    s_mov_b64 exec, -1
    """)
    k.label("L_t_nz")


def gen(mono=False):
    k = Kern(MONO if mono else "qkv_kernel")
    SC = " sc1" if mono else ""
    NST = 4
    STAGE = 32768
    WOFF = 8192
    SCR = NST * STAGE
    LDS = SCR + 5120 + 4096
    VXD = 10
    VWD = 12
    VXA = 20
    VWA = 28
    FR = 40
    ACC = 80
    CSA = 128
    SEL = 144
    T = 156
    SUM = 164
    PF = 168
    ROT = os.environ.get("ROTMASK", "7")
    k("""
    s_load_dwordx4 s[4:7], s[0:1], 0
    s_load_dwordx4 s[52:55], s[0:1], 64
    s_load_dwordx2 s[8:9], s[0:1], 72
    s_cmp_ge_u32 s2, 256
    s_cbranch_scc1 L_k1_end
    """)
    stamp_rt(k, 0); stamp(k, 1)
    if os.environ.get('DBGSPAN') == '1': k('s_memrealtime s[92:93]\ns_memtime s[96:97]')
    code_prefetch(k, 2, PF, 46, 512, 65536 if mono else 32768)
    k("""
    v_and_b32 v1, 63, v0
    v_lshrrev_b32 v2, 6, v0
    """)
    k("v_readfirstlane_b32 s25, v2")
    if mono:
        census(k, PF)
    if mono and LOC0:
        k("""
        s_lshr_b32 s27, s2, 3
        s_and_b32 s28, s2, 7
        s_and_b32 s41, s27, 7
        s_mov_b32 s29, 0
        """)
    else:
        k("""
        s_and_b32 s27, s2, 6
        s_lshl_b32 s27, s27, 2
        s_lshr_b32 s28, s2, 3
        s_and_b32 s41, s28, 7
        s_add_u32 s27, s27, s41
        s_and_b32 s28, s2, 1
        s_lshl_b32 s28, s28, 2
        s_lshr_b32 s29, s2, 6
        s_add_u32 s28, s28, s29
        """)
    k("""
    s_and_b32 s26, s25, 3
    s_cmp_lt_u32 s25, 4
    s_cbranch_scc1 L_k1_M
    """)
    k(f"""
    s_lshl_b32 s29, s29, 1
    s_add_u32 s41, s41, s29
    s_and_b32 s41, s41, {ROT}
    v_lshrrev_b32 v8, 3, v1
    v_and_b32 v9, 7, v1
    s_lshl_b32 s30, s27, 16
    s_lshl_b32 s31, s26, 14
    s_add_u32 s30, s30, s31
    v_lshrrev_b32 v5, 1, v8
    v_xor_b32 v5, v5, v9
    v_lshlrev_b32 v5, 4, v5
    v_lshl_add_u32 v5, v8, 10, v5
    v_add_u32 v{VXD}, s30, v5
    v_xor_b32 v5, 64, v5
    v_add_u32 v5, 8192, v5
    v_add_u32 v{VXD+1}, s30, v5
    s_lshl_b32 s34, s26, 11
    s_mul_i32 s31, s26, 384
    s_lshl_b32 s32, s28, 7
    s_mov_b32 s33, 43691
    s_mul_i32 s35, s26, 6144
    s_add_u32 s35, s35, {WOFF}
    s_waitcnt lgkmcnt(0)
    """)
    srd(k, 12, 4, 5, 2 * MB)
    srd(k, 16, 6, 7, 512 * 3072)

    def xops(c):
        st = (c % NST) * STAGE
        ops = []
        for i in range(2):
            pre = f"s_add_u32 s36, s41, {c}\ns_and_b32 s36, s36, 7\ns_mul_i32 s37, s36, {64*3072}\ns_lshl_b32 s36, s36, 7\n" if i == 0 else ""
            ops.append(pre + f"s_add_u32 m0, s34, {st + i*1024}\nbuffer_load_dwordx4 v{VXD+i}, s[12:15], s36 offen lds")
        return ops

    def wop(c, j):
        st = (c % NST) * STAGE
        return f"s_add_u32 m0, s35, {st + j*1024}\nbuffer_load_dwordx4 v{VWD+j}, s[16:19], s37 offen lds"

    def group_ops(c):
        return xops(c) + [wop(c, j) for j in range(6)]

    for o in xops(0):
        k(o)
    for j in range(6):
        k(f"""
        v_add_u32 v4, s31, v1
        v_add_u32 v4, {64*j}, v4
        v_mul_lo_u32 v5, v4, s33
        v_lshrrev_b32 v5, 20, v5
        v_mul_u32_u24 v6, 24, v5
        v_sub_u32 v6, v4, v6
        v_lshrrev_b32 v7, 3, v6
        v_and_b32 v6, 7, v6
        v_and_b32 v4, 2, v5
        v_lshlrev_b32 v4, 1, v4
        v_xor_b32 v6, v6, v4
        v_mul_u32_u24 v5, 3072, v5
        v_lshl_add_u32 v5, v7, 10, v5
        v_lshl_add_u32 v5, v6, 4, v5
        v_add_u32 v{VWD+j}, s32, v5
        """)
        k(wop(0, j))
    k("s_barrier")
    for o in group_ops(1):
        k(o)
    k(f"""
    v_and_b32 v2, 31, v1
    v_lshrrev_b32 v3, 5, v1
    v_lshrrev_b32 v4, 1, v2
    v_and_b32 v4, 7, v4
    v_lshlrev_b32 v5, 7, v2
    s_and_b32 s36, s26, 1
    s_lshl_b32 s36, s36, 12
    v_add_u32 v5, s36, v5
    s_lshr_b32 s38, s26, 1
    s_lshl_b32 s38, s38, 2
    v_add_u32 v6, s38, v3
    s_mov_b32 s43, 0xffff0000
    """)
    for p in range(2):
        k(f"""
        v_add_u32 v7, {2*p}, v6
        v_xor_b32 v7, v7, v4
        v_lshl_add_u32 v{VXA+p}, v7, 4, v5
        v_add_u32 v{VXA+4+p}, {2*STAGE}, v{VXA+p}
        """)
    for i in range(4):
        k(f"v_mov_b32 v{SUM+i}, 0")

    def stats(c, pend):
        fb = FR + 8 * (c % 2)
        for j in range(8):
            if pend:
                k(pend.pop(0))
            lo, hi = T + 2 * (j % 4), T + 2 * (j % 4) + 1
            k(f"""
            v_lshlrev_b32 v{lo}, 16, v{fb+j}
            v_and_b32 v{hi}, s43, v{fb+j}
            v_add_f32 v{SUM}, v{SUM}, v{lo}
            v_add_f32 v{SUM+1}, v{SUM+1}, v{hi}
            v_fmac_f32 v{SUM+2}, v{lo}, v{lo}
            v_fmac_f32 v{SUM+3}, v{hi}, v{hi}
            """)

    for c in range(8):
        k(f"s_waitcnt vmcnt({(8 if c + 1 <= 7 else 0) + (1 if mono and c == 6 else 0)}) lgkmcnt(0)")
        k("s_barrier")
        st = c % NST
        fb = FR + 8 * (c % 2)
        for p in range(2):
            k(f"ds_read_b128 v[{fb+4*p}:{fb+4*p+3}], v{VXA + 4*(st//2) + p} offset:{(st%2)*STAGE}")
        pend = group_ops(c + 2) if c + 2 <= 7 else []
        if c:
            stats(c - 1, pend)
        for o in pend:
            k(o)
        if mono and c == 5:
            k("""
            s_and_b32 s36, s2, 7
            s_lshl_b32 s36, s36, 5
            v_mov_b32 v170, s36
            v_cmp_eq_u32 vcc, 1, v1
            v_mov_b32 v171, 16
            v_cndmask_b32 v170, v170, v171, vcc
            buffer_load_dword v171, v170, s[56:59], 0 offen sc1
            """)
    k("s_waitcnt lgkmcnt(0)")
    stats(7, [])
    if mono:
        import fused as F
        k("s_mov_b32 s47, 0")
        k.label("L_t_chk")
        k(f"""
        v_readlane_b32 s36, v171, 0
        v_readlane_b32 s37, v171, 1
        s_and_b32 s38, s36, 255
        s_cmp_gt_u32 s47, {F.SPIN}
        s_cbranch_scc1 L_t_ok
        s_cmp_lt_u32 s38, 32
        s_cbranch_scc1 L_t_again
        s_cmp_ge_u32 s37, 1
        s_cbranch_scc1 L_t_ok
        """)
        k.label("L_t_again")
        k("""
        buffer_load_dword v171, v170, s[56:59], 0 offen sc1
        s_add_u32 s47, s47, 1
        s_waitcnt vmcnt(0)
        s_branch L_t_chk
        """)
        k.label("L_t_ok")
        k(f"""
        s_lshl_b32 s38, s51, 5
        s_cmp_eq_u32 s36, s38
        s_cselect_b32 s{SMODE}, {os.environ.get("FORCEMODE", "1")}, 0
        v_mov_b32 v170, {SCR + 1536}
        v_mov_b32 v171, s{SMODE}
        ds_write_b32 v170, v171
        """)
    k(f"""
    v_add_f32 v164, v164, v165
    v_add_f32 v166, v166, v167
    v_mov_b32 v165, v164
    v_mov_b32 v167, v166
    v_permlane32_swap_b32 v164, v165
    v_permlane32_swap_b32 v166, v167
    v_add_f32 v164, v164, v165
    v_add_f32 v166, v166, v167
    s_lshl_b32 s37, s26, 8
    v_lshlrev_b32 v4, 2, v2
    v_add_u32 v6, s37, v4
    v_add_u32 v6, {SCR+2048}, v6
    ds_write_b32 v6, v164
    ds_write_b32 v6, v166 offset:128
    v_xor_b32 v7, 512, v6
    s_waitcnt lgkmcnt(0)
    s_barrier
    ds_read_b32 v165, v7
    ds_read_b32 v167, v7 offset:128
    v_and_b32 v6, 0xfffffdff, v6
    s_waitcnt lgkmcnt(0)
    v_add_f32 v164, v164, v165
    v_add_f32 v166, v166, v167
    v_mul_f32 v164, {f32(-1/512)}, v164
    v_mul_f32 v166, {f32(1/512)}, v166
    v_fma_f32 v166, -v164, v164, v166
    v_max_f32 v166, 0, v166
    v_add_f32 v166, {f32(1e-5)}, v166
    v_rsq_f32 v165, v166
    ds_write_b32 v6, v164 offset:1024
    ds_write_b32 v6, v165 offset:1152
    s_waitcnt lgkmcnt(0)
    s_barrier
    """)
    k("s_branch L_m_p2" if mono else "s_endpgm")
    k.label("L_k1_M")
    k("s_setprio 1")
    k(f"""
    s_and_b32 s30, s26, 1
    s_lshr_b32 s31, s26, 1
    s_lshl_b32 s29, s27, 1
    s_add_u32 s29, s29, s30
    v_and_b32 v2, 31, v1
    v_lshrrev_b32 v3, 5, v1
    v_lshrrev_b32 v4, 1, v2
    v_and_b32 v4, 7, v4
    v_lshlrev_b32 v5, 7, v2
    s_lshl_b32 s34, s30, 12
    v_add_u32 v5, s34, v5
    v_bfe_u32 v6, v1, 2, 2
    v_lshrrev_b32 v7, 1, v6
    v_xor_b32 v7, s31, v7
    v_lshl_add_u32 v6, v3, 3, v6
    v_mul_u32_u24 v6, 384, v6
    v_lshl_add_u32 v6, v7, 6, v6
    v_bfe_u32 v7, v1, 4, 1
    v_lshl_add_u32 v6, v7, 5, v6
    v_and_b32 v7, 3, v1
    v_lshl_add_u32 v6, v7, 3, v6
    v_add_u32 v6, {WOFF}, v6
    s_barrier
    """)
    for p in range(4):
        k(f"""
        s_add_u32 s36, s30, {p}
        s_and_b32 s36, s36, 3
        s_lshl_b32 s37, s36, 1
        s_mul_i32 s38, s36, 6144
        v_add_u32 v7, s37, v3
        v_xor_b32 v7, v7, v4
        v_lshl_add_u32 v{VXA+p}, v7, 4, v5
        v_add_u32 v{VWA+p}, s38, v6
        v_add_u32 v{VXA+4+p}, {2*STAGE}, v{VXA+p}
        v_add_u32 v{VWA+4+p}, {2*STAGE}, v{VWA+p}
        """)
    k("""
    v_and_b32 v7, 15, v1
    v_bfe_u32 v8, v1, 4, 1
    v_sub_u32 v7, v7, v8
    v_mov_b32 v8, 0x3f803f80
    """)
    for t in range(3):
        k(f"v_cmp_eq_u32 vcc, {2*t}, v7")
        for i in range(4):
            k(f"v_cndmask_b32 v{SEL+4*t+i}, 0, v8, vcc")
    k("s_waitcnt lgkmcnt(0)")
    srd(k, 20, 8, 9, WS_BYTES)
    if not mono:
        k(f"""
        s_add_u32 s36, s2, s25
        s_cmp_lg_u32 s36, 0
        s_cbranch_scc1 L_k1_nz
        v_lshlrev_b32 v7, 8, v1
        v_mov_b32 v8, 0
        s_mov_b32 s36, {CNT}
        buffer_store_dword v8, v7, s[20:23], s36 offen
        """)
        k.label("L_k1_nz")
    if not mono:
        stamp(k, 2); stamp(k, 3)
    XB = FR
    WB = FR + 12

    def addr(n):
        c, p = n // 4, n % 4
        st = c % NST
        return 4 * (st // 2) + p, (st % 2) * STAGE

    def rdx(n):
        ai, off = addr(n)
        b = XB + (n % 3) * 4
        k(f"ds_read_b128 v[{b}:{b+3}], v{VXA+ai} offset:{off}")

    def rdw(n, t):
        ai, off = addr(n)
        for ab in range(2):
            r = WB + 12 * (n % 2) + 4 * t + 2 * ab
            k(f"ds_read_b64_tr_b16 v[{r}:{r+1}], v{VWA+ai} offset:{off + ab*1536 + t*128}")

    k("s_barrier")
    if not mono: stamp(k, 4); k("s_waitcnt lgkmcnt(0)")
    for n in range(2):
        rdx(n)
        for t in range(3):
            rdw(n, t)
    for n in range(32):
        pf = n + 2 < 32
        if (n + 2) % 4 == 0 and pf:
            k("s_barrier")
        if n == 30:
            k("s_barrier")
        b = XB + (n % 3) * 4
        X = f"v[{b}:{b+3}]"
        W = [f"v[{WB+12*(n%2)+4*t}:{WB+12*(n%2)+4*t+3}]" for t in range(3)]
        A = [f"v[{ACC+16*t}:{ACC+16*t+15}]" for t in range(3)]
        Cc = [a if n else "0" for a in A]
        mf = [f"v_mfma_f32_32x32x16_bf16 {A[0]}, {W[0]}, {X}, {Cc[0]}",
              f"v_mfma_f32_32x32x16_bf16 {A[1]}, {W[1]}, {X}, {Cc[1]}",
              f"v_mfma_f32_32x32x16_bf16 {A[2]}, {X}, {W[2]}, {Cc[2]}"]
        if pf:
            rdx(n + 2)
        for t in range(3):
            if pf:
                cnt = 12
            elif n == 30:
                cnt = 2 * (2 - t) + 7
            else:
                cnt = 2 * (2 - t)
            k(f"s_waitcnt lgkmcnt({cnt})")
            k(mf[t])
            if n % 2 == 0:
                cc = "0" if (n == 0 and t == 0) else f"v[{CSA}:{CSA+3}]"
                k(f"v_mfma_f32_16x16x32_bf16 v[{CSA}:{CSA+3}], v[{SEL+4*t}:{SEL+4*t+3}], {W[t]}, {cc}")
            if pf:
                rdw(n + 2, t)
        if mono and LOC0 and n == int(os.environ.get("PT1", "8")):
            k(f"""
            v_min_u32 v13, 47, v1
            v_lshrrev_b32 v14, 4, v13
            v_lshlrev_b32 v14, 21, v14
            v_bfe_u32 v15, v13, 3, 1
            v_lshl_add_u32 v14, v15, 16, v14
            v_and_b32 v13, 7, v13
            v_lshl_add_u32 v14, v13, 7, v14
            s_lshl_b32 s38, s28, 18
            s_lshl_b32 s39, s31, 17
            s_add_u32 s38, s38, s39
            s_lshl_b32 s39, s29, 10
            s_add_u32 s38, s38, s39
            buffer_load_dword v{PF}, v14, s[20:23], s38 offen
            """)
        if n == 29:
            k(f"""
            s_mul_i32 s36, s26, 384
            v_lshlrev_b32 v4, 2, v2
            v_add_u32 v4, {SCR}, v4
            v_and_b32 v5, 15, v1
            v_lshlrev_b32 v5, 2, v5
            v_lshrrev_b32 v7, 4, v1
            v_lshl_add_u32 v5, v7, 8, v5
            v_add_u32 v5, {SCR+5120}, v5
            s_lshl_b32 s36, s26, 10
            v_add_u32 v5, s36, v5
            v_add_u32 v4, 5120, v4
            s_lshl_b32 s36, s31, 11
            v_add_u32 v4, s36, v4
            v_lshlrev_b32 v7, 2, v1
            v_add_u32 v7, {SCR+5120}, v7
            v_add_u32 v7, s36, v7
            s_lshl_b32 s37, s30, 8
            s_add_u32 s37, s37, {SCR+3072}
            v_lshlrev_b32 v8, 4, v3
            v_add_u32 v10, s37, v8
            v_lshlrev_b32 v9, 2, v2
            v_add_u32 v9, s37, v9
            s_lshl_b32 s37, s26, 8
            s_add_u32 s37, s37, {SCR+4096}
            v_add_u32 v8, s37, v8
            v_lshlrev_b32 v11, 2, v1
            v_add_u32 v11, s37, v11
            """)
    if not mono: stamp(k, 5); k("s_waitcnt lgkmcnt(0)")
    for r in range(4):
        k(f"ds_write_b32 v5, v{CSA+r} offset:{r*64}")
    k("""
    s_waitcnt lgkmcnt(0)
    s_barrier
    """)
    if mono:
        k(f"v_mov_b32 v12, {SCR + 1536}")
        k("ds_read_b32 v12, v12")
    for w in range(2):
        k(f"ds_read_b32 v{T+w}, v7 offset:{w*1024}")
        k(f"ds_read_b32 v{T+2+w}, v4 offset:{w*1024+256}")
    MR = FR
    for g in range(4):
        k(f"ds_read_b128 v[{MR+4*g}:{MR+4*g+3}], v10 offset:{g*32}")
        k(f"ds_read_b128 v[{MR+16+4*g}:{MR+16+4*g+3}], v10 offset:{128+g*32}")
    NM, RS, RQ, CV = 164, 166, 170, 172
    k(f"ds_read_b32 v{NM}, v9")
    k(f"ds_read_b32 v{RS}, v9 offset:128")
    k("s_waitcnt lgkmcnt(10)")
    if mono:
        k(f"v_readfirstlane_b32 s{SMODE}, v12")
    k(f"""
    v_add_f32 v{T}, v{T}, v{T+1}
    v_add_f32 v{CV}, v{T+2}, v{T+3}
    v_add_f32 v{CV+1}, v{T+2}, v{T+3}
    ds_write_b32 v11, v{T}
    """)
    def pr(x): return f"v[{x}:{x+1}]"
    k("s_waitcnt lgkmcnt(0)")
    CQ = CSA
    for t in range(2):
        for g in range(4):
            k(f"ds_read_b128 v[{CQ+16*t+4*g}:{CQ+16*t+4*g+3}], v8 offset:{t*128 + g*32}")
    AV = ACC + 32
    for r in range(0, 16, 2):
        k(f"v_pk_fma_f32 {pr(AV+r)}, {pr(MR+r)}, {pr(CV)}, {pr(AV+r)}")
    for r in range(0, 16, 2):
        k(f"v_pk_mul_f32 {pr(AV+r)}, {pr(AV+r)}, {pr(MR+16+r)}")
    for i in range(8):
        k(f"v_cvt_pk_bf16_f32 v{AV+i}, v{AV+2*i}, v{AV+2*i+1}")
    k(f"""
    v_bfe_u32 v4, v1, 4, 1
    v_and_b32 v5, 15, v1
    v_lshlrev_b32 v5, 4, v5
    v_lshl_add_u32 v5, v3, 8, v5
    v_lshl_add_u32 v5, v4, 16, v5
    s_lshl_b32 s38, s28, 18
    s_lshl_b32 s39, s31, 17
    s_add_u32 s38, s38, s39
    s_lshl_b32 s39, s29, 10
    s_add_u32 s38, s38, s39
    s_add_u32 s39, s38, {VF}
    """)
    def st2(a_, b_):
        if mono and LOC0:
            mstore(k, [a_, b_])
        else:
            k(a_ + SC); k(b_ + SC)
    st2(f"buffer_store_dwordx4 v[{AV}:{AV+3}], v5, s[20:23], s39 offen", f"buffer_store_dwordx4 v[{AV+4}:{AV+7}], v5, s[20:23], s39 offen offset:512")
    k(f"""
    v_mov_b32 v{NM+1}, v{NM}
    v_mov_b32 v{RS+1}, v{RS}
    v_mul_f32 v{RQ}, {f32(0.25*LOG2E)}, v{RS}
    v_mul_f32 v{RQ+1}, {f32(0.25*LOG2E)}, v{RS}
    v_lshlrev_b32 v6, 4, v1
    s_waitcnt lgkmcnt(0)
    """)
    for t in (1, 0):
        A = ACC + 16 * t
        sc = RQ if t == 0 else RS
        for r in range(0, 16, 2):
            k(f"v_pk_fma_f32 {pr(A+r)}, {pr(NM)}, {pr(CQ+16*t+r)}, {pr(A+r)}")
        for r in range(0, 16, 2):
            k(f"v_pk_mul_f32 {pr(A+r)}, {pr(A+r)}, {pr(sc)}")
        for i in range(8):
            k(f"v_cvt_pk_bf16_f32 v{A+i}, v{A+2*i}, v{A+2*i+1}")
        base = QF if t == 0 else KF
        k(f"s_add_u32 s39, s38, {base}")
        k(f"s_add_u32 s40, s38, {base+65536}")
        st2(f"buffer_store_dwordx4 v[{A}:{A+3}], v6, s[20:23], s39 offen", f"buffer_store_dwordx4 v[{A+4}:{A+7}], v6, s[20:23], s40 offen")
    if mono:
        import k2_attn
        stamp(k, 13)
        r = k2_attn.gen(fused=True, k=k)
        return r
    stamp(k, 6); stamp_rt(k, 7); stamp_flush(k, 1, 8)
    k.label("L_k1_end")
    k("s_endpgm")
    return k, f"grid=(256,1,1) block=(512,1,1) lds={LDS}"
```

```python
from common import *
import os

ZROWS = os.environ.get("ZROWS", "1") == "1"
PRIO = os.environ.get("PRIO", "1") == "1"
ABL = os.environ.get("ABL", "")
WPF = os.environ.get("WPF", "1") == "1"
LOC0 = os.environ.get("LOC0", "0") == "1"
WT = int(os.environ.get("WT", "2"))
VBASE = 65536
VSTR = 1056 if ZROWS else 1040
WBASE = (VBASE + 66 * VSTR + 255) // 256 * 256
LDS = WBASE + 16384


def gen(fused=False, k=None):
    mono = k is not None
    if not mono:
        k = Kern("fused_kernel" if fused else "attn_kernel")
    LP = os.environ.get("LDP", " sc1") if mono else ""
    SC = " sc1" if fused else ""
    Q = 4
    KFR = 8
    VFR = 16
    S = 32
    C = 64
    O = 80
    P0 = 96
    P1 = 100
    AK, AV0, AV1 = 104, 105, 106
    TMP = 108
    PF = 116
    if mono:
        import fused as F
        k.label("L_m_p2")
        k(f"""
        s_lshl_b32 s45, s28, 8
        s_lshl_b32 s46, s27, 2
        s_add_u32 s45, s45, s46
        s_add_u32 s45, s45, {CNT + 48*256}
        s_load_dwordx4 s[4:7], s[0:1], 32
        s_load_dwordx2 s[10:11], s[0:1], 16
        s_load_dwordx2 s[12:13], s[0:1], 48
        s_load_dwordx2 s[14:15], s[0:1], 0
        s_load_dwordx2 s[54:55], s[0:1], 56
        s_setprio 0
        s_mov_b32 s26, s25
        """)
        srd(k, 20, 8, 9, WS_BYTES)
        k("s_waitcnt vmcnt(0)")
        F.fsignal(k, 45, "L_m_s1", local=LOC0)
    else:
        k("""
        s_load_dwordx2 s[8:9], s[0:1], 72
        s_load_dwordx4 s[4:7], s[0:1], 32
        s_load_dwordx2 s[10:11], s[0:1], 16
        s_load_dwordx2 s[12:13], s[0:1], 48
        s_load_dwordx2 s[14:15], s[0:1], 0
        s_load_dwordx2 s[54:55], s[0:1], 56
        s_cmp_ge_u32 s2, 256
        s_cbranch_scc1 L_k2_end
        """)
        stamp_rt(k, 0); stamp(k, 1)
        code_prefetch(k, 2, PF, 24, 512, 32768)
        k("""
        v_and_b32 v1, 63, v0
        v_lshrrev_b32 v2, 6, v0
        """)
        k("v_readfirstlane_b32 s26, v2")
    if mono and LOC0:
        k("""
        s_and_b32 s27, s2, 7
        s_lshl_b32 s27, s27, 2
        s_lshr_b32 s28, s2, 3
        s_and_b32 s28, s28, 3
        s_add_u32 s27, s27, s28
        """)
    else:
        k("s_and_b32 s27, s2, 31")
    k("""
    s_lshr_b32 s28, s2, 5
    s_lshl_b32 s28, s28, 3
    s_add_u32 s28, s28, s26
    v_lshlrev_b32 v2, 4, v1
    s_lshl_b32 s29, s27, 16
    s_lshl_b32 s30, s26, 10
    s_add_u32 s31, s29, s30
    """)
    k(f"""
    s_mul_i32 s32, s26, {VSTR}
    s_add_u32 s32, s32, {VBASE}
    s_lshl_b32 s33, s28, 10
    s_add_u32 s33, s33, s29
    s_waitcnt lgkmcnt(0)
    """)
    srd(k, 20, 8, 9, WS_BYTES)
    if not fused: stamp(k, 2)


    def dma_tile(t):
        k(f"s_add_u32 s34, s31, {KF + t*1024}")
        k(f"s_add_u32 m0, s30, {t*1024}")
        k(f"buffer_load_dwordx4 v2, s[20:23], s34 offen{LP} lds")
        k(f"s_add_u32 s34, s31, {VF + t*1024}")
        k(f"s_add_u32 m0, s32, {t*VSTR}")
        k(f"buffer_load_dwordx4 v2, s[20:23], s34 offen{LP} lds")

    def first_loads():
        k("s_cmp_lt_u32 s26, 4")
        k("s_cbranch_scc0 L_k2_nodma")
        for t in range(0, 16, 4):
            dma_tile(t)
        k.label("L_k2_nodma")
        k(f"buffer_load_dwordx4 v[{Q}:{Q+3}], v2, s[20:23], s33 offen{LP}")

    if not mono:
        first_loads()
    k(f"""
    v_mov_b32 v{TMP}, 0x3f803f80
    v_mov_b32 v{TMP+1}, 0x3f803f80
    v_mov_b32 v{TMP+2}, 0x3f803f80
    v_mov_b32 v{TMP+3}, 0x3f803f80
    v_mul_u32_u24 v3, {VSTR}, v1
    v_add_u32 v3, {VBASE+1024}, v3
    """)
    for i in range(16):
        k(f"v_mov_b32 v{O+i}, 0")
    k(f"""
    s_cmp_lg_u32 s26, 7
    s_cbranch_scc1 L_k2_noones
    ds_write_b128 v3, v[{TMP}:{TMP+3}]
    """)
    if ZROWS:
        k(f"ds_write_b128 v3, v[{O}:{O+3}] offset:16")
    k.label("L_k2_noones")
    k(f"""
    v_mov_b32 v{AK}, v2
    v_and_b32 v3, 15, v1
    v_lshlrev_b32 v3, 4, v3
    v_lshrrev_b32 v{TMP+4}, 5, v1
    v_lshl_add_u32 v3, v{TMP+4}, 8, v3
    v_mov_b32 v{TMP+6}, 1024
    """)
    if ZROWS:
        k(f"""
        v_and_b32 v{TMP+5}, 11, v1
        v_cmp_eq_u32 vcc, 0, v{TMP+5}
        v_mov_b32 v{TMP+7}, 1040
        v_cndmask_b32 v{TMP+6}, v{TMP+7}, v{TMP+6}, vcc
        """)
    k(f"""
    v_and_b32 v{TMP+5}, 16, v1
    v_cmp_eq_u32 vcc, 0, v{TMP+5}
    v_subrev_u32 v{TMP+7}, 512, v{TMP+6}
    v_cndmask_b32 v{AV0}, v{TMP+6}, v3, vcc
    v_cndmask_b32 v{AV1}, v{TMP+7}, v3, vcc
    v_add_u32 v{AV0}, {VBASE}, v{AV0}
    v_add_u32 v{AV1}, {VBASE}, v{AV1}
    """)
    for i in range(4):
        k(f"v_mov_b32 v{P1+i}, 0")
        k(f"v_mov_b32 v{VFR+12+i}, 0")
    k("""
    s_cmp_lt_u32 s26, 4
    s_cselect_b32 s42, 99, 1
    s_cselect_b32 s41, 99, 0
    s_cselect_b32 s40, TITER, 99
    s_cselect_b32 s43, 1, 99
    s_cselect_b32 s44, 99, %s
    s_mov_b32 s35, 0
    """.replace("TITER", os.environ.get("TITER", "4")) % os.environ.get("PDROP", "5"))
    if mono:
        k(f"""
        s_cmp_lg_u32 s26, 5
        s_cbranch_scc1 L_m_w1
        s_lshr_b32 s36, s27, 2
        s_lshl_b32 s36, s36, 8
        s_add_u32 s36, s36, {48*256}
        """)
        F.fpoll(k, 36, 32, "L_m_poll1")
        k.label("L_m_w1")
        k("s_barrier")
        stamp(k, 14); k("s_waitcnt lgkmcnt(0)")
        first_loads()
    k("s_cmp_lt_u32 s26, 4")
    k("s_cbranch_scc0 L_k2_roleB")
    k("s_waitcnt vmcnt(7)")
    k("s_barrier")
    if not fused: stamp(k, 3)
    if PRIO:
        k("s_setprio 1")
    for t in range(16, 32, 4):
        dma_tile(t)
    k("s_waitcnt vmcnt(8)")
    k("s_barrier")
    for t in range(32, 64, 4):
        dma_tile(t)
    k(f"""
    s_lshr_b32 s45, s2, 2
    s_cmp_lt_u32 s45, 28
    s_cselect_b32 s16, s4, s6
    s_cselect_b32 s17, s5, s7
    s_cselect_b32 s46, 0, 28
    s_mov_b32 s18, {512*3584}
    s_mov_b32 s19, 0x20000
    s_sub_u32 s46, s45, s46
    s_lshl_b32 s46, s46, 7
    s_and_b32 s47, s2, 3
    s_lshl_b32 s47, s47, 2
    s_add_u32 s47, s47, s26
    s_mul_i32 s48, s47, {32*3584}
    s_add_u32 s46, s46, s48
    s_cmp_lt_u32 s2, 224
    s_cselect_b32 s46, s46, 0x7ff00000
    s_cselect_b32 s43, s43, 99
    v_lshrrev_b32 v3, 3, v1
    v_bfe_u32 v{TMP}, v1, 2, 1
    v_bfe_u32 v{TMP+1}, v1, 4, 1
    v_xor_b32 v{TMP}, v{TMP}, v{TMP+1}
    v_and_b32 v{TMP+1}, 3, v1
    v_lshlrev_b32 v{TMP+1}, 4, v{TMP+1}
    v_lshl_add_u32 v{TMP+1}, v{TMP}, 6, v{TMP+1}
    v_mul_u32_u24 v3, 3584, v3
    v_add_u32 v3, v3, v{TMP+1}
    s_lshl_b32 s48, s26, 12
    s_add_u32 s48, s48, {WBASE}
    """)
    for i in range(4):
        k(f"s_add_u32 m0, s48, {i*1024}")
        k(f"buffer_load_dwordx4 v3, s[16:19], s46 offen lds")
        k(f"s_add_u32 s46, s46, {8*3584}")
    k("s_waitcnt vmcnt(4)")
    k("s_barrier")
    if WPF:
        k(f"""
        s_lshr_b32 s50, s2, 3
        s_lshl_b32 s50, s50, 2
        s_add_u32 s50, s50, s26
        v_min_u32 v{TMP}, 31, v1
        v_lshlrev_b32 v{TMP}, 7, v{TMP}
        s_lshl_b32 s52, s50, 12
        s_mov_b32 s16, s10
        s_mov_b32 s17, s11
        s_mov_b32 s18, {512*1024}
        buffer_load_dword v{PF}, v{TMP}, s[16:19], s52 offen
        v_min_u32 v{TMP}, 15, v1
        v_lshlrev_b32 v{TMP}, 7, v{TMP}
        s_and_b32 s51, s2, 7
        s_lshl_b32 s51, s51, 18
        s_lshl_b32 s52, s50, 11
        s_add_u32 s52, s52, s51
        s_mov_b32 s16, s14
        s_mov_b32 s17, s15
        s_mov_b32 s18, {2*MB}
        buffer_load_dword v{PF}, v{TMP}, s[16:19], s52 offen
        v_min_u32 v{TMP}, 13, v1
        v_lshlrev_b32 v{TMP}, 7, v{TMP}
        s_lshl_b32 s52, s2, 2
        s_add_u32 s52, s52, s26
        s_mul_i32 s52, s52, {14*128}
        s_mov_b32 s16, s12
        s_mov_b32 s17, s13
        s_mov_b32 s18, {1792*1024}
        buffer_load_dword v{PF}, v{TMP}, s[16:19], s52 offen
        """)
    k("s_branch L_k2_go")
    k.label("L_k2_roleB")
    k("s_waitcnt vmcnt(0) lgkmcnt(0)")
    k("s_barrier")
    if not fused: stamp(k, 3)
    if PRIO:
        k("s_setprio 2")
    k.label("L_k2_go")
    Qr = f"v[{Q}:{Q+3}]"

    def Kr(b): return f"v[{KFR+4*b}:{KFR+4*b+3}]"
    def Vr(b, j): return f"v[{VFR+8*b+4*j}:{VFR+8*b+4*j+3}]"
    def Sr(b): return f"v[{S+16*b}:{S+16*b+15}]"
    Cr = f"v[{C}:{C+15}]"
    Or = f"v[{O}:{O+15}]"
    def rdK(t, b): k(f"ds_read_b128 {Kr(b)}, v{AK} offset:{t*1024}")
    def rdV(t, b):
        k(f"ds_read_b128 {Vr(b,0)}, v{AV0} offset:{t*VSTR}")
        k(f"ds_read_b128 {Vr(b,1)}, v{AV1} offset:{t*VSTR+512}")
    def tilemax(s1):
        k(f"v_max3_f32 v{TMP}, v{s1}, v{s1+1}, v{s1+2}")
        k(f"v_max3_f32 v{TMP+1}, v{s1+3}, v{s1+4}, v{s1+5}")
        k(f"v_max3_f32 v{TMP+2}, v{s1+6}, v{s1+7}, v{s1+8}")
        k(f"v_max3_f32 v{TMP+3}, v{s1+9}, v{s1+10}, v{s1+11}")
        k(f"v_max3_f32 v{TMP}, v{TMP}, v{s1+12}, v{s1+13}")
        k(f"v_max3_f32 v{TMP+1}, v{TMP+1}, v{s1+14}, v{s1+15}")
        k(f"v_max3_f32 v{TMP}, v{TMP}, v{TMP+1}, v{TMP+2}")
        k(f"v_max_f32 v{TMP}, v{TMP}, v{TMP+3}")
        k(f"v_mov_b32 v{TMP+1}, v{TMP}")
        k(f"v_permlane32_swap_b32 v{TMP}, v{TMP+1}")
    if "zq" in ABL:
        for i in range(4): k(f"v_mov_b32 v{Q+i}, 0")
    rdK(0, 0)
    rdK(1, 1)
    rdV(0, 0)
    k("s_waitcnt lgkmcnt(3)")
    k(f"v_mfma_f32_32x32x16_bf16 {Sr(1)}, {Kr(0)}, {Qr}, 0")
    tilemax(S + 16)
    k(f"v_max_f32 v{TMP}, v{TMP}, v{TMP+1}")
    for i in range(16):
        k(f"v_sub_f32 v{C+i}, 0, v{TMP}")
    k(f"v_mfma_f32_32x32x16_bf16 {Sr(0)}, {Kr(0)}, {Qr}, {Cr}")
    k("s_nop 9")

    def E(b, a, n):
        for i in range(a, a + n):
            k(f"v_exp_f32 v{S+16*b+i}, v{S+16*b+i}")
    def CV(dst, b, i):
        k(f"v_cvt_pk_bf16_f32 v{dst}, v{S+16*b+2*i}, v{S+16*b+2*i+1}")

    def tile(t):
        b = t % 2
        nb = 1 - b
        k("s_waitcnt lgkmcnt(0)")
        k(f"v_mfma_f32_32x32x16_bf16 {Sr(nb)}, {Kr(nb)}, {Qr}, {Cr}")
        if "nods" not in ABL: rdK(t + 2, b)
        E(b, 0, 4)
        k(f"v_mfma_f32_32x32x16_bf16 {Or}, {Vr(nb,1)}, v[{P1}:{P1+3}], {Or}")
        if "nods" not in ABL: rdV(t + 1, nb)
        E(b, 4, 2)
        CV(P0, b, 0)
        E(b, 6, 2)
        CV(P0 + 1, b, 1)
        E(b, 8, 2)
        CV(P0 + 2, b, 2)
        E(b, 10, 2)
        CV(P0 + 3, b, 3)
        E(b, 12, 2)
        k(f"v_mfma_f32_32x32x16_bf16 {Or}, {Vr(b,0)}, v[{P0}:{P0+3}], {Or}")
        E(b, 14, 2)
        CV(P1, b, 4)
        CV(P1 + 1, b, 5)
        CV(P1 + 2, b, 6)
        CV(P1 + 3, b, 7)

    stamp(k, 2 if fused else 4)
    k.raw(".p2align 6")
    k.label("L_k2_loop")
    for t in range(8):
        if t == 2:
            k("s_cmp_lg_u32 s35, s41")
            k("s_cbranch_scc1 L_k2_nobar0")
            k("s_barrier")
            k.label("L_k2_nobar0")
        if t == 6:
            k("s_cmp_lg_u32 s35, s42")
            k("s_cbranch_scc1 L_k2_nobar")
            k("s_barrier")
            k.label("L_k2_nobar")
        tile(t)
    k(f"v_add_u32 v{AK}, 8192, v{AK}")
    k(f"v_add_u32 v{AV0}, {8*VSTR}, v{AV0}")
    k(f"v_add_u32 v{AV1}, {8*VSTR}, v{AV1}")
    k("s_cmp_eq_u32 s35, s43")
    k("s_cbranch_scc1 L_k2_cs")
    k.label("L_k2_csret")
    k("s_cmp_eq_u32 s35, s40")
    k("s_cbranch_scc1 L_k2_touch")
    k.label("L_k2_touchret")
    if PRIO:
        k("s_cmp_lg_u32 s35, s44")
        k("s_cbranch_scc1 L_k2_noprio")
        k("s_setprio 0")
        k.label("L_k2_noprio")
    k("s_add_u32 s35, s35, 1")
    k("s_cmp_lg_u32 s35, 8")
    k("s_cbranch_scc1 L_k2_loop")
    k.check_backedge("L_k2_loop")
    k(f"v_mfma_f32_32x32x16_bf16 {Or}, {Vr(1,1)}, v[{P1}:{P1+3}], {Or}")
    k("s_waitcnt lgkmcnt(0)")
    stamp(k, 3 if fused else 5)
    k(f"v_max3_f32 v{TMP}, abs(v{O}), abs(v{O+1}), abs(v{O+2})")
    k(f"v_max3_f32 v{TMP+1}, abs(v{O+3}), abs(v{O+4}), abs(v{O+5})")
    k(f"v_max3_f32 v{TMP}, v{TMP}, abs(v{O+6}), abs(v{O+7})")
    k(f"v_add_f32 v{TMP+2}, v{O}, v{O+1}")
    k(f"v_add_f32 v{TMP+3}, v{O+2}, v{O+3}")
    k(f"v_add_f32 v{TMP+4}, v{O+4}, v{O+5}")
    k(f"v_add_f32 v{TMP+5}, v{O+6}, v{O+7}")
    k(f"v_add_f32 v{TMP+2}, v{TMP+2}, v{TMP+3}")
    k(f"v_add_f32 v{TMP+4}, v{TMP+4}, v{TMP+5}")
    k(f"v_add_f32 v{TMP+2}, v{TMP+2}, v{TMP+4}")
    k(f"v_max_f32 v{TMP}, v{TMP}, v{TMP+1}")
    k(f"s_mov_b32 s36, {f32(2.0**100)}")
    k(f"s_mov_b32 s37, 0x7f000000")
    k(f"v_cmp_gt_f32 vcc, s36, v{O+8}")
    k(f"v_cmp_gt_f32 s[38:39], s37, v{TMP}")
    k(f"v_cmp_o_f32 s[50:51], v{TMP+2}, v{TMP+2}")
    k("s_and_b64 vcc, vcc, s[38:39]")
    k("s_and_b64 vcc, vcc, s[50:51]")
    k("s_cmp_eq_u64 vcc, exec")
    k("s_cbranch_scc0 L_k2_slow")
    k.label("L_k2_fin")
    k(f"v_rcp_f32 v{TMP}, v{O+8}")
    for i in range(8):
        k(f"v_mul_f32 v{O+i}, v{O+i}, v{TMP}")
    for i in range(4):
        k(f"v_cvt_pk_bf16_f32 v{O+i}, v{O+2*i}, v{O+2*i+1}")
    k(f"""
    s_lshl_b32 s36, s28, 15
    s_lshl_b32 s37, s27, 10
    s_add_u32 s36, s36, s37
    s_add_u32 s36, s36, {OF}
    buffer_store_dwordx4 v[{O}:{O+3}], v2, s[20:23], s36 offen{SC}
    """)
    if fused:
        k("s_branch L_f_p3")
    else:
        stamp(k, 6); stamp_rt(k, 7); stamp_flush(k, 2, 8)
    k.label("L_k2_end")
    if mono:
        k.label("L_k1_end")
    k("s_endpgm")
    k.label("L_k2_cs")
    CA = S + 16
    WF = 120
    SL = 136
    k(f"""
    v_bfe_u32 v{TMP}, v1, 2, 2
    v_lshrrev_b32 v{TMP+1}, 5, v1
    v_lshl_add_u32 v{TMP+1}, v{TMP+1}, 2, v{TMP}
    v_lshlrev_b32 v{TMP+1}, 7, v{TMP+1}
    v_lshrrev_b32 v{TMP}, 1, v{TMP}
    v_lshl_add_u32 v{TMP+1}, v{TMP}, 6, v{TMP+1}
    v_bfe_u32 v{TMP}, v1, 4, 1
    v_lshl_add_u32 v{TMP+1}, v{TMP}, 5, v{TMP+1}
    v_and_b32 v{TMP}, 3, v1
    v_lshl_add_u32 v{TMP+1}, v{TMP}, 3, v{TMP+1}
    v_add_u32 v{TMP+1}, s48, v{TMP+1}
    v_xor_b32 v{TMP+2}, 64, v{TMP+1}
    v_bfe_u32 v{TMP}, v1, 3, 2
    v_mov_b32 v{TMP+3}, 0x3f803f80
    v_cmp_eq_u32 vcc, 0, v{TMP}
    v_cmp_eq_u32 s[38:39], 1, v{TMP}
    s_waitcnt vmcnt(0) lgkmcnt(0)
    """)
    for s_ in range(2):
        for nt in range(2):
            for ab in range(2):
                r = WF + 8 * s_ + 4 * nt + 2 * ab
                k(f"ds_read_b64_tr_b16 v[{r}:{r+1}], v{TMP+1+nt} offset:{s_*2048 + ab*1024}")
    for i in range(4):
        k(f"v_cndmask_b32 v{SL+i}, 0, v{TMP+3}, vcc")
        k(f"v_cndmask_b32 v{SL+4+i}, 0, v{TMP+3}, s[38:39]")
    k("s_waitcnt lgkmcnt(0)")
    first = True
    for s_ in range(2):
        for nt in range(2):
            r = WF + 8 * s_ + 4 * nt
            cc = "0" if first else f"v[{CA}:{CA+15}]"
            first = False
            k(f"v_mfma_f32_32x32x16_bf16 v[{CA}:{CA+15}], v[{SL+4*nt}:{SL+4*nt+3}], v[{r}:{r+3}], {cc}")
    k(f"""
    v_and_b32 v{TMP}, 47, v1
    v_lshlrev_b32 v{TMP}, 4, v{TMP}
    v_bfe_u32 v{TMP+1}, v1, 4, 1
    v_lshl_add_u32 v{TMP}, v{TMP+1}, 15, v{TMP}
    s_cmp_lt_u32 s45, 28
    s_cselect_b32 s36, 0, {256 - 28*4*32768 + (1<<32)}
    s_lshl_b32 s37, s45, 17
    s_add_u32 s36, s36, s37
    s_lshl_b32 s37, s47, 11
    s_add_u32 s36, s36, s37
    s_add_u32 s36, s36, {WGF}
    s_add_u32 s37, s36, 65536
    """)
    for s_ in range(2):
        for nt in range(2):
            r = WF + 8 * s_ + 4 * nt
            k(f"buffer_store_dwordx4 v[{r}:{r+3}], v{TMP}, s[20:23], s{36+nt} offen offset:{s_*1024} sc1")
    k(f"""
    v_cmp_gt_u32 vcc, 32, v1
    v_lshlrev_b32 v{TMP}, 4, v1
    s_lshl_b32 s36, s45, 10
    s_lshl_b32 s37, s26, 2
    s_add_u32 s36, s36, s37
    s_and_b32 s37, s2, 3
    s_mul_i32 s37, s37, {3584*16}
    s_add_u32 s36, s36, s37
    s_add_u32 s36, s36, {CS}
    v_cndmask_b32 v{TMP+1}, v{CA+4}, v{CA}, vcc
    buffer_store_dword v{TMP+1}, v{TMP}, s[20:23], s36 offen sc1
    s_branch L_k2_csret
    """)
    k.label("L_k2_touch")
    if fused:
        k(f"""
        s_waitcnt vmcnt(0)
        s_lshr_b32 s36, s2, 5
        s_lshl_b32 s36, s36, 8
        s_add_u32 s36, s36, {CNT + 40*256}
        v_mov_b32 v{TMP}, 0
        v_mov_b32 v{TMP+1}, 1
        s_mov_b64 exec, 1
        buffer_atomic_add v{TMP+1}, v{TMP}, s[20:23], s36 offen sc1
        s_mov_b64 exec, -1
        """)
    k(f"""
    s_lshr_b32 s36, s2, 3
    s_lshl_b32 s36, s36, 2
    s_add_u32 s36, s36, s26
    s_min_u32 s36, s36, 111
    s_lshl_b32 s36, s36, 15
    s_add_u32 s36, s36, {WGF}
    v_lshlrev_b32 v{TMP}, 7, v1
    """)
    for i in range(WT):
        k(f"buffer_load_dword v{PF}, v{TMP}, s[20:23], s36 offen")
        k("s_add_u32 s36, s36, 8192")
    if fused:
        k(f"""
        s_and_b32 s36, s2, 7
        s_lshl_b32 s36, s36, 2
        s_lshr_b32 s37, s2, 3
        s_and_b32 s37, s37, 3
        s_add_u32 s36, s36, s37
        s_lshl_b32 s36, s36, 1
        s_lshr_b32 s37, s26, 1
        s_add_u32 s36, s36, s37
        s_lshr_b32 s37, s2, 5
        s_lshl_b32 s37, s37, 1
        s_and_b32 s38, s26, 1
        s_add_u32 s37, s37, s38
        s_lshl_b32 s38, s36, 15
        s_lshl_b32 s39, s37, 11
        s_add_u32 s38, s38, s39
        s_add_u32 s38, s38, {HF}
        v_min_u32 v{TMP}, 15, v1
        v_lshlrev_b32 v{TMP}, 7, v{TMP}
        buffer_load_dword v{PF}, v{TMP}, s[20:23], s38 offen
        s_lshl_b32 s38, s36, 12
        s_lshl_b32 s39, s37, 8
        s_add_u32 s38, s38, s39
        s_add_u32 s38, s38, {ST}
        v_min_u32 v{TMP}, 1, v1
        v_lshlrev_b32 v{TMP}, 7, v{TMP}
        buffer_load_dword v{PF}, v{TMP}, s[20:23], s38 offen
        """)
    if fused and os.environ.get("AFT", "1") == "1":
        k(f"""
        s_and_b32 s36, s2, 7
        s_lshl_b32 s36, s36, 1
        s_lshr_b32 s37, s2, 3
        s_and_b32 s37, s37, 1
        s_add_u32 s36, s36, s37
        s_lshl_b32 s36, s36, 2
        s_add_u32 s36, s36, s26
        s_mul_i32 s36, s36, {112*1024}
        s_lshr_b32 s37, s2, 4
        s_mul_i32 s37, s37, {7*1024}
        s_add_u32 s36, s36, s37
        s_add_u32 s36, s36, {AF}
        v_min_u32 v{TMP}, 55, v1
        v_lshlrev_b32 v{TMP}, 7, v{TMP}
        buffer_load_dword v{PF}, v{TMP}, s[20:23], s36 offen
        """)
    if os.environ.get("TLBW", "0") == "1":
        k(f"""
        v_min_u32 v{TMP}, 39, v1
        v_lshlrev_b32 v{TMP}, 19, v{TMP}
        s_mov_b32 s36, {OF}
        buffer_load_dword v{PF}, v{TMP}, s[20:23], s36 offen sc1
        s_mov_b32 s16, s54
        s_mov_b32 s17, s55
        s_mov_b32 s18, {2*MB}
        s_mov_b32 s19, 0x20000
        buffer_load_dword v{PF}, v{TMP}, s[16:19], 0 offen sc1
        """)
    k("s_branch L_k2_touchret")
    k.label("L_k2_slow")
    M = TMP + 6
    k(f"v_subrev_u32 v{AK}, 65536, v{AK}")
    k(f"v_subrev_u32 v{AV0}, {64*VSTR}, v{AV0}")
    k(f"v_subrev_u32 v{AV1}, {64*VSTR}, v{AV1}")
    for i in range(16):
        k(f"v_mov_b32 v{O+i}, 0")
    k(f"v_mov_b32 v{M}, 0xff7fffff")
    k("s_mov_b32 s35, 64")
    k.label("L_k2_sloop")
    rdK(0, 0)
    rdV(0, 0)
    k("s_waitcnt lgkmcnt(0)")
    k(f"v_mfma_f32_32x32x16_bf16 {Sr(0)}, {Kr(0)}, {Qr}, 0")
    s0 = S
    tilemax(s0)
    k(f"v_max3_f32 v{TMP}, v{TMP}, v{TMP+1}, v{M}")
    k(f"v_sub_f32 v{TMP+1}, v{M}, v{TMP}")
    k(f"v_exp_f32 v{TMP+1}, v{TMP+1}")
    k(f"v_mov_b32 v{M}, v{TMP}")
    for i in range(16):
        k(f"v_mul_f32 v{O+i}, v{O+i}, v{TMP+1}")
    for i in range(16):
        k(f"v_sub_f32 v{s0+i}, v{s0+i}, v{M}")
    E(0, 0, 16)
    for i in range(4):
        CV(P0 + i, 0, i)
        CV(P1 + i, 0, 4 + i)
    k(f"v_mfma_f32_32x32x16_bf16 {Or}, {Vr(0,0)}, v[{P0}:{P0+3}], {Or}")
    k(f"v_mfma_f32_32x32x16_bf16 {Or}, {Vr(0,1)}, v[{P1}:{P1+3}], {Or}")
    k(f"v_add_u32 v{AK}, 1024, v{AK}")
    k(f"v_add_u32 v{AV0}, {VSTR}, v{AV0}")
    k(f"v_add_u32 v{AV1}, {VSTR}, v{AV1}")
    k("s_nop 15")
    k("s_sub_u32 s35, s35, 1")
    k("s_cmp_lg_u32 s35, 0")
    k("s_cbranch_scc1 L_k2_sloop")
    k.check_backedge("L_k2_sloop")
    k("s_nop 15")
    k("s_branch L_k2_fin")
    if fused:
        import fused as F
        F.tail(k)
        return k, "grid=(256,1,1) block=(512,1,1) lds=163840"
    return k, f"grid=(256,1,1) block=(512,1,1) lds={LDS}"
```

```python
from common import *
import os

SPIN = 1 << int(os.environ.get('SPINB', '20'))
SPOLL = os.environ.get('SPOLL', '1') == '1'
SLEEP = os.environ.get('SLEEP', '')
LDP = os.environ.get('LDP', ' sc1')


def signal(k, cnt_sgpr, lbl):
    k(f"""
    s_barrier
    s_cmp_lg_u32 s25, 0
    s_cbranch_scc1 {lbl}
    v_mov_b32 v4, 0
    v_mov_b32 v5, 1
    s_mov_b64 exec, 1
    buffer_atomic_add v5, v4, s[20:23], s{cnt_sgpr} offen sc1
    s_mov_b64 exec, -1
    """)
    k.label(lbl)


def fsignal(k, off_sgpr, lbl, local=True):
    k(f"""
    s_barrier
    s_cmp_lg_u32 s25, 0
    s_cbranch_scc1 {lbl}
    v_mov_b32 v4, 0
    v_mov_b32 v5, 1
    s_mov_b64 exec, 1
    """)
    st = f"buffer_store_dword v5, v4, s[20:23], s{off_sgpr} offen"
    if local:
        mstore(k, st)
    else:
        k(st + " sc1")
    k("s_mov_b64 exec, -1")
    k.label(lbl)


def fpoll(k, grp_sgpr, G, lbl):
    k(f"""
    v_and_b32 v7, {G-1}, v1
    v_lshlrev_b32 v7, 2, v7
    v_add_u32 v7, s{grp_sgpr}, v7
    v_mov_b32 v8, 1
    """)
    poll(k, 7, 8, lbl, 0)


def poll(k, vaddr, vexp, lbl, pending):
    k(f"s_mov_b32 s46, {CNT}")
    k("s_mov_b32 s47, 0")
    k.label(lbl)
    k(f"""
    buffer_load_dword v6, v{vaddr}, s[20:23], s46 offen sc1
    s_add_u32 s47, s47, 1
    {SLEEP}
    s_waitcnt vmcnt(0)
    v_cmp_gt_u32 vcc, v{vexp}, v6
    s_cmp_gt_u32 s47, {SPIN}
    s_cbranch_scc1 {lbl}_out
    s_cbranch_vccnz {lbl}
    """)
    k.label(f"{lbl}_out")


def spoll(k, soff, exp, lbl):
    k(f"s_add_u32 s46, s{soff}, {CNT}")
    k("s_mov_b32 s47, 0")
    k.label(lbl)
    k(f"""
    s_load_dword s49, s[8:9], s46 glc
    s_add_u32 s47, s47, 1
    s_waitcnt lgkmcnt(0)
    s_cmp_gt_u32 s47, {SPIN}
    s_cbranch_scc1 {lbl}_out
    s_cmp_lt_u32 s49, {exp}
    s_cbranch_scc1 {lbl}
    """)
    k.label(f"{lbl}_out")


def tail(k):
    HKEEP = 200
    VL16 = 208
    k.label("L_f_p3")
    k(f"""
    s_mov_b32 s25, s26
    s_and_b32 s26, s25, 3
    v_lshlrev_b32 v{VL16}, 4, v1
    s_and_b32 s27, s2, 7
    s_lshl_b32 s27, s27, 2
    s_lshr_b32 s28, s2, 3
    s_and_b32 s28, s28, 3
    s_add_u32 s27, s27, s28
    s_lshr_b32 s28, s2, 5
    s_and_b32 s29, s26, 1
    s_lshr_b32 s30, s26, 1
    s_lshl_b32 s31, s27, 1
    s_add_u32 s31, s31, s30
    s_lshr_b32 s45, s2, 5
    s_lshl_b32 s45, s45, 8
    s_add_u32 s45, s45, {CNT}
    s_setprio 0
    s_waitcnt vmcnt(0)
    """)
    signal(k, 45, "L_f_s2")
    k("s_cmp_lt_u32 s25, 4")
    k("s_cbranch_scc1 L_f_p3C")

    VWD = 11
    k(f"""
    s_lshl_b32 s34, s26, 11
    v_lshrrev_b32 v2, 3, v1
    v_bfe_u32 v3, v1, 2, 1
    v_bfe_u32 v4, v1, 4, 1
    v_xor_b32 v3, v3, v4
    v_and_b32 v4, 3, v1
    v_lshlrev_b32 v4, 4, v4
    v_lshl_add_u32 v4, v3, 6, v4
    v_lshl_add_u32 v4, v2, 10, v4
    s_lshl_b32 s35, s26, 14
    s_lshl_b32 s36, s28, 7
    s_add_u32 s35, s35, s36
    v_add_u32 v210, s35, v4
    v_add_u32 v211, 8192-1024, v210
    """)
    srd(k, 16, 10, 11, 512 * 1024)
    srd(k, 56, 14, 15, 2 * MB)
    for c in range(8):
        k(f"""
        s_mov_b32 s41, {c*65536}
        s_add_u32 m0, s34, {c*8192}
        buffer_load_dwordx4 v210, s[16:19], s41 offen lds
        buffer_load_dwordx4 v211, s[16:19], s41 offen offset:1024 lds
        """)
    XL = 131072
    k(f"""
    v_and_b32 v5, 7, v1
    v_xor_b32 v5, v5, v2
    v_lshlrev_b32 v5, 4, v5
    v_lshl_add_u32 v4, v2, 10, v5
    s_lshl_b32 s38, s27, 16
    s_add_u32 s38, s38, s35
    s_add_u32 m0, s34, {XL}
    buffer_load_dwordx4 v4, s[56:59], s38 offen lds
    s_add_u32 s38, s38, 8192
    s_add_u32 m0, s34, {XL+1024}
    buffer_load_dwordx4 v4, s[56:59], s38 offen lds
    s_lshl_b32 s32, s31, 15
    s_lshl_b32 s33, s29, 11
    s_add_u32 s32, s32, s33
    s_add_u32 s32, s32, {OF}
    """)
    k("s_barrier")
    for c in range(8):
        k(f"""
        s_add_u32 s40, s32, {c*4096}
        s_add_u32 m0, s34, {65536 + c*8192}
        buffer_load_dwordx4 v{VL16}, s[20:23], s40 offen{LDP} lds
        buffer_load_dwordx4 v{VL16}, s[20:23], s40 offen offset:1024{LDP} lds
        """)
    for c in range(8):
        k(f"s_waitcnt vmcnt({2*(7-c)})")
        k("s_barrier")
    p4_ids(k, VL16)
    k("s_mul_i32 s42, s26, 7")
    for j in range(7):
        k(f"""
        s_add_u32 s36, s42, {j}
        s_lshr_b32 s37, s36, 2
        s_lshl_b32 s37, s37, 15
        s_and_b32 s39, s36, 3
        s_lshl_b32 s39, s39, 10
        s_add_u32 s37, s37, s39
        v_add_u32 v{212+j}, s37, v{VL16}
        """)
    k("s_lshl_b32 s42, s42, 10")
    k("s_barrier")
    PRE = int(os.environ.get("PRE3", "4"))
    for c in range(3):
        k(f"s_add_u32 s37, s32, {c*4096}")
        for j in range(7):
            if c * 7 + j == PRE:
                k("s_barrier")
            k(f"""
            s_add_u32 m0, s42, {c*28672 + j*1024}
            buffer_load_dwordx4 v{212+j}, s[20:23], s37 offen sc1 lds
            """)
    if PRE >= 21:
        k("s_barrier")
    k("s_barrier")
    p4_body(k, "Y", VL16)
    p5_loader(k, VL16)

    k.label("L_f_p3C")
    VBA, VWA = 12, 13
    RES, FR, ACC, T = 20, 96, 64, 80
    k(f"""
    v_and_b32 v2, 31, v1
    v_lshrrev_b32 v3, 5, v1
    s_lshl_b32 s37, s28, 1
    s_add_u32 s37, s37, s29
    s_lshl_b32 s40, s30, 12
    s_add_u32 s40, s40, 65536
    v_add_u32 v{VBA}, s40, v{VL16}
    v_bfe_u32 v4, v1, 2, 2
    v_lshl_add_u32 v5, v3, 2, v4
    v_lshlrev_b32 v5, 7, v5
    v_lshrrev_b32 v4, 1, v4
    v_xor_b32 v4, s29, v4
    v_lshl_add_u32 v5, v4, 6, v5
    v_bfe_u32 v4, v1, 4, 1
    v_lshl_add_u32 v5, v4, 5, v5
    v_and_b32 v4, 3, v1
    v_lshl_add_u32 v209, v4, 3, v5
    s_lshl_b32 s38, s30, 12
    s_lshl_b32 s39, s29, 2
    v_and_b32 v4, 7, v2
    v_xor_b32 v4, s39, v4
    v_lshlrev_b32 v5, 7, v2
    v_lshl_add_u32 v5, v3, 3, v5
    v_add_u32 v5, s38, v5
    v_add_u32 v5, {XL}, v5
    """)
    for g in range(4):
        k(f"v_xor_b32 v{T+g}, {g}, v4")
        k(f"v_lshl_add_u32 v{T+g}, v{T+g}, 4, v5")
    k(f"""
    s_cmp_lg_u32 s25, 1
    s_cbranch_scc1 L_f_w2
    v_cmp_gt_u32 vcc, 8, v1
    v_lshlrev_b32 v7, 8, v1
    v_add_u32 v7, {40*256}, v7
    s_and_b32 s36, s2, 7
    s_lshl_b32 s36, s36, 8
    v_mov_b32 v8, s36
    v_cndmask_b32 v7, v8, v7, vcc
    v_mov_b32 v8, 32
    v_mov_b32 v9, 128
    v_cndmask_b32 v8, v8, v9, vcc
    """)
    poll(k, 7, 8, "L_f_poll2", 0)
    k.label("L_f_w2")
    k("s_barrier")
    stamp(k, 4)
    PD = int(os.environ.get('PD', '4')); NB = PD + 1

    def reads3(n):
        c, s_ = n // 4, n % 4
        b = FR + (n % NB) * 8
        k(f"ds_read_b128 v[{b}:{b+3}], v{VBA} offset:{c*8192 + s_*1024}")
        k(f"ds_read_b64_tr_b16 v[{b+4}:{b+5}], v209 offset:{n*2048}")
        k(f"ds_read_b64_tr_b16 v[{b+6}:{b+7}], v209 offset:{n*2048 + 1024}")

    k("s_barrier")
    k("s_waitcnt lgkmcnt(0)")
    for n in range(PD):
        reads3(n)
    for n in range(32):
        if n + PD < 32:
            if (n + PD) % 4 == 0:
                k("s_barrier")
            reads3(n + PD)
            k(f"s_waitcnt lgkmcnt({3*PD})")
        else:
            if n == 30:
                for g in range(4):
                    k(f"ds_read_b64 v[{RES+2*g}:{RES+2*g+1}], v{T+g}")
            k(f"s_waitcnt lgkmcnt({3*(31-n) + (4 if n >= 30 else 0)})")
        b = FR + (n % NB) * 8
        k(f"v_mfma_f32_32x32x16_bf16 v[{ACC}:{ACC+15}], v[{b+4}:{b+7}], v[{b}:{b+3}], " + (f"v[{ACC}:{ACC+15}]" if n else "0"))
    k("s_waitcnt lgkmcnt(0)")
    k("s_barrier")
    stamp(k, 5)
    for i in range(8):
        k(f"v_lshlrev_b32 v{T+2*i}, 16, v{RES+i}")
        k(f"v_and_b32 v{T+2*i+1}, 0xffff0000, v{RES+i}")
    for r in range(0, 16, 2):
        k(f"v_pk_add_f32 v[{ACC+r}:{ACC+r+1}], v[{ACC+r}:{ACC+r+1}], v[{T+r}:{T+r+1}]")
    for i in range(8):
        k(f"v_cvt_pk_bf16_f32 v{HKEEP+i}, v{ACC+2*i}, v{ACC+2*i+1}")
    k(f"""
    s_lshl_b32 s38, s31, 15
    s_lshl_b32 s39, s37, 11
    s_add_u32 s38, s38, s39
    s_add_u32 s38, s38, {HF}
    """)
    mstore(k, [f"buffer_store_dwordx4 v[{HKEEP}:{HKEEP+3}], v{VL16}, s[20:23], s38 offen",
               f"buffer_store_dwordx4 v[{HKEEP+4}:{HKEEP+7}], v{VL16}, s[20:23], s38 offen offset:1024"])
    k(f"v_pk_add_f32 v[{T}:{T+1}], v[{ACC}:{ACC+1}], v[{ACC+2}:{ACC+3}]")
    k(f"v_pk_mul_f32 v[{T+2}:{T+3}], v[{ACC}:{ACC+1}], v[{ACC}:{ACC+1}]")
    k(f"v_pk_fma_f32 v[{T+2}:{T+3}], v[{ACC+2}:{ACC+3}], v[{ACC+2}:{ACC+3}], v[{T+2}:{T+3}]")
    for r in range(4, 16, 2):
        k(f"v_pk_add_f32 v[{T}:{T+1}], v[{T}:{T+1}], v[{ACC+r}:{ACC+r+1}]")
        k(f"v_pk_fma_f32 v[{T+2}:{T+3}], v[{ACC+r}:{ACC+r+1}], v[{ACC+r}:{ACC+r+1}], v[{T+2}:{T+3}]")
    k(f"""
    v_add_f32 v{T}, v{T}, v{T+1}
    v_add_f32 v{T+1}, v{T+2}, v{T+3}
    v_mov_b32 v{T+2}, v{T}
    v_mov_b32 v{T+3}, v{T+1}
    v_permlane32_swap_b32 v{T}, v{T+2}
    v_permlane32_swap_b32 v{T+1}, v{T+3}
    v_add_f32 v{T}, v{T}, v{T+2}
    v_add_f32 v{T+1}, v{T+1}, v{T+3}
    v_lshlrev_b32 v4, 3, v2
    s_lshl_b32 s38, s31, 12
    s_lshl_b32 s39, s37, 8
    s_add_u32 s38, s38, s39
    s_add_u32 s38, s38, {ST}
    s_mov_b64 exec, 0xffffffff
    """)
    mstore(k, f"buffer_store_dwordx2 v[{T}:{T+1}], v4, s[20:23], s38 offen")
    k(f"""
    s_mov_b64 exec, -1
    s_lshr_b32 s45, s27, 1
    s_lshl_b32 s45, s45, 8
    s_and_b32 s39, s27, 1
    s_lshl_b32 s39, s39, 3
    s_add_u32 s39, s39, s28
    s_lshl_b32 s39, s39, 2
    s_add_u32 s45, s45, s39
    s_add_u32 s45, s45, {CNT + 8*256}
    """)
    p4_ids(k, VL16)
    k("s_waitcnt vmcnt(0)")
    fsignal(k, 45, "L_f_s3")
    k(f"""
    s_cmp_lg_u32 s25, 1
    s_cbranch_scc1 L_f_w3
    s_lshl_b32 s36, s27, 8
    s_add_u32 s36, s36, {8*256}
    """)
    fpoll(k, 36, 16, "L_f_poll3")
    k.label("L_f_w3")
    k("s_barrier")
    stamp(k, 6)
    p4_body(k, "X", VL16)
    p5_compute(k, VL16, HKEEP)


HOFF4 = 3 * 28672
PT4 = int(os.environ.get('PT4', '3'))
CSL4 = HOFF4 + 3 * 16384


def p4_ids(k, VL16):
    k(f"""
    s_and_b32 s27, s2, 7
    s_lshl_b32 s27, s27, 1
    s_lshr_b32 s28, s2, 3
    s_and_b32 s28, s28, 1
    s_add_u32 s27, s27, s28
    s_lshr_b32 s28, s2, 4
    s_lshl_b32 s29, s27, 2
    s_add_u32 s29, s29, s26
    s_cmp_lt_u32 s25, 4
    s_cselect_b32 s31, 2, 5
    s_cselect_b32 s35, 20, 0
    s_mul_i32 s31, s31, s26
    s_add_u32 s31, s31, s35
    s_mul_i32 s32, s28, {7*32768}
    s_add_u32 s32, s32, {WGF}
    s_lshl_b32 s34, s31, 10
    s_lshl_b32 s38, s29, 15
    s_add_u32 s38, s38, {HF}
    s_lshl_b32 s40, s26, 12
    s_add_u32 s40, s40, {HOFF4}
    """)


def p4_body(k, cls, VL16):
    X = cls == "X"
    tiles = [0, 1, 2, 3] if X else [4, 5, 6]
    NT = len(tiles)
    NW = 2 if X else 5
    VWD, VWA, VHA, VCSA = 10, 16, 19, 23
    STT, HB, FR, ACC, T, CSB = 24, 40, 48, 64, 128, 144
    PF = 176
    MEAN, NMEAN, C1, C2 = 177, 178, 180, 182

    def group_ops(c):
        ops = []
        if X:
            for i in range(4):
                p2 = f"s_add_u32 s39, s38, {c*4096}\ns_add_u32 m0, s40, {(c%3)*16384}\n" if i == 0 else ""
                ops.append(p2 + f"buffer_load_dwordx4 v{VL16}, s[20:23], s39 offen offset:{i*1024}{LDP} lds")
        if c >= 3:
            for j in range(NW):
                p2 = f"s_add_u32 s37, s32, {c*4096}\n" if j == 0 else ""
                ops.append(p2 + f"s_add_u32 m0, s34, {(c%3)*28672 + j*1024}\nbuffer_load_dwordx4 v{VWD+j}, s[20:23], s37 offen sc1 lds")
        return ops

    for c in range(2):
        for o in group_ops(c):
            k(o)
    for j in range(NW):
        k(f"""
        s_add_u32 s35, s31, {j}
        s_lshr_b32 s36, s35, 2
        s_lshl_b32 s36, s36, 15
        s_and_b32 s35, s35, 3
        s_lshl_b32 s35, s35, 10
        s_add_u32 s35, s35, s36
        v_add_u32 v{VWD+j}, s35, v{VL16}
        """)
    k(f"""
    v_lshrrev_b32 v3, 5, v1
    v_mov_b32 v{VWA}, v{VL16}
    v_add_u32 v{VWA+1}, 28672, v{VWA}
    v_add_u32 v{VWA+2}, {2*28672}, v{VWA}
    v_add_u32 v{VHA}, s40, v{VL16}
    v_lshlrev_b32 v{VCSA}, 4, v3
    v_add_u32 v{VCSA}, {CSL4}, v{VCSA}
    """)

    def rdh(n):
        c, s_ = n // 4, n % 4
        b = HB + 4 * (n % 2)
        k(f"ds_read_b128 v[{b}:{b+3}], v{VHA} offset:{(c%3)*16384 + s_*1024}")

    def rdw(n, i):
        c, s_ = n // 4, n % 4
        k(f"ds_read_b128 v[{FR+4*i}:{FR+4*i+3}], v{VWA + c % 3} offset:{tiles[i]*4096 + s_*1024}")

    k(f"s_waitcnt vmcnt({4 if X else 14})")
    k("s_barrier")
    k("s_waitcnt lgkmcnt(0)")
    rdh(0)
    for i in range(NT):
        rdw(0, i)
    pend = group_ops(2)
    extra = 0
    for n in range(32):
        last = n == 31
        bar = (n + 1) % 4 == 0 and not last
        if bar:
            c1 = (n + 1) // 4
            for o in pend:
                k(o)
            nxt = len(group_ops(c1 + 1)) if c1 + 1 <= 7 else 0
            if not X and c1 == 1:
                nxt = 7
            k(f"s_waitcnt vmcnt({nxt + extra}) lgkmcnt(0)")
            k("s_barrier")
            pend = group_ops(c1 + 2) if c1 + 2 <= 7 else []
            if c1 == 6:
                ops = [f"s_lshl_b32 s36, s29, 12\ns_add_u32 s36, s36, {ST}\nv_lshlrev_b32 v8, 3, v1\n" +
                       f"buffer_load_dwordx2 v[{STT}:{STT+1}], v8, s[20:23], s36 offen sc1"]
                for i in range(1, 8):
                    ops.append(f"buffer_load_dwordx2 v[{STT+2*i}:{STT+2*i+1}], v8, s[20:23], s36 offen offset:{512*i} sc1")
                if X:
                    ops.append(f"""
                    v_min_u32 v5, 223, v0
                    v_cmp_lt_u32 vcc, 111, v5
                    v_mov_b32 v6, {1792-112}
                    v_cndmask_b32 v6, 0, v6, vcc
                    v_add_u32 v6, v6, v5
                    v_lshlrev_b32 v6, 4, v6
                    v_lshlrev_b32 v9, 2, v5
                    v_add_u32 v9, {CSL4}, v9
                    s_mul_i32 s37, s28, {112*16}
                    s_add_u32 s37, s37, {CS}
                    buffer_load_dwordx4 v[{T}:{T+3}], v6, s[20:23], s37 offen sc1""")
                    for q in range(1, 4):
                        ops.append(f"s_add_u32 s37, s37, {3584*16}\nbuffer_load_dwordx4 v[{T+4*q}:{T+4*q+3}], v6, s[20:23], s37 offen sc1")
                else:
                    ops.append(f"""
                    s_mov_b32 s16, s12
                    s_mov_b32 s17, s13
                    s_mov_b32 s18, {1792*1024}
                    s_mov_b32 s19, 0x20000
                    v_min_u32 v5, 55, v1
                    v_lshlrev_b32 v6, 8, v5
                    s_lshr_b32 s37, s2, 3
                    s_lshl_b32 s37, s37, 2
                    s_add_u32 s37, s37, s26
                    s_mul_i32 s37, s37, {14*1024}
                    buffer_load_dword v{PF}, v6, s[16:19], s37 offen""")
                    ops.append(f"buffer_load_dword v{PF}, v6, s[16:19], s37 offen offset:128")
                pend = ops
                extra = len(ops)
        b = HB + 4 * (n % 2)
        if not last:
            rdh(n + 1)
        for i in range(NT):
            A = f"v[{ACC+16*i}:{ACC+16*i+15}]"
            if not bar:
                k(f"s_waitcnt lgkmcnt({NT if not last else NT-1-i})")
            k(f"v_mfma_f32_32x32x16_bf16 {A}, v[{FR+4*i}:{FR+4*i+3}], v[{b}:{b+3}], " + (A if n else "0"))
            if not last:
                rdw(n + 1, i)
            if pend and (i % 2 == 0 or len(pend) > 6):
                k(pend.pop(0))
        if n == 29:
            k(f"s_waitcnt vmcnt({0 if X else extra - 8})")
            if X:
                for st_ in (8, 4, 2, 1):
                    for i in range(st_):
                        k(f"v_add_f32 v{T+i}, v{T+i}, v{T+i+st_}")
            for i in range(1, 8):
                k(f"v_add_f32 v{STT}, v{STT}, v{STT+2*i}")
                k(f"v_add_f32 v{STT+1}, v{STT+1}, v{STT+2*i+1}")
            k(f"""
            v_mov_b32 v{STT+2}, v{STT}
            v_mov_b32 v{STT+3}, v{STT+1}
            v_permlane32_swap_b32 v{STT}, v{STT+2}
            v_permlane32_swap_b32 v{STT+1}, v{STT+3}
            v_add_f32 v{STT}, v{STT}, v{STT+2}
            v_add_f32 v{STT+1}, v{STT+1}, v{STT+3}
            v_mul_f32 v{MEAN}, {f32(1/512)}, v{STT}
            v_mul_f32 v{C2}, {f32(1/512)}, v{STT+1}
            v_fma_f32 v{C2}, -v{MEAN}, v{MEAN}, v{C2}
            v_max_f32 v{C2}, 0, v{C2}
            v_add_f32 v{C2}, {f32(1e-5)}, v{C2}
            v_rsq_f32 v{C1}, v{C2}
            v_mul_f32 v{C1}, {f32(-LOG2E)}, v{C1}
            v_mov_b32 v{C1+1}, v{C1}
            v_mov_b32 v{C2+1}, v{C2}
            v_sub_f32 v{NMEAN}, 0, v{MEAN}
            v_sub_f32 v{NMEAN+1}, 0, v{MEAN}
            """)
    if X:
        stamp(k, 7)
        k(f"ds_write_b32 v9, v{T}")
    k("s_waitcnt lgkmcnt(0)")
    k("s_barrier")
    wq = []
    if not X:
        k(f"""
        s_lshr_b32 s43, s2, 5
        s_mul_i32 s43, s43, {7*ROT5}
        s_lshr_b32 s43, s43, 1
        s_mov_b32 s44, s43
        s_lshl_b32 s48, s26, 11
        """)
        if EARLYW:
            wq = list(range(NWS))

    def wpop(n=1):
        for _ in range(n):
            if wq:
                wdma(k, wq.pop(0))
    k(f"""
    s_mul_i32 s36, s29, {112*1024}
    s_mul_i32 s37, s28, {7*1024}
    s_add_u32 s36, s36, s37
    s_add_u32 s36, s36, {AF + tiles[0]*1024}
    """)

    def csread(i):
        p = tiles[i]
        d = CSB + (i % 2) * 16
        k(f"ds_read_b128 v[{d}:{d+3}], v{VCSA} offset:{p*64}")
        k(f"ds_read_b128 v[{d+4}:{d+7}], v{VCSA} offset:{p*64+32}")
        k(f"ds_read_b128 v[{d+8}:{d+11}], v{VCSA} offset:{448+p*64}")
        k(f"ds_read_b128 v[{d+12}:{d+15}], v{VCSA} offset:{448+p*64+32}")

    def pr(x): return f"v[{x}:{x+1}]"
    csread(0)
    for i in range(NT):
        k("s_waitcnt lgkmcnt(0)")
        if i + 1 < NT:
            csread(i + 1)
        d = CSB + (i % 2) * 16
        A = ACC + 16 * i
        wpop(2)
        for r in range(0, 16, 2):
            k(f"v_pk_fma_f32 {pr(A+r)}, {pr(NMEAN)}, {pr(d+r)}, {pr(A+r)}")
        for r in range(0, 8, 2):
            k(f"v_pk_mul_f32 {pr(T+r)}, {pr(A+r)}, {pr(C1)}")
        for r in range(8):
            k(f"v_exp_f32 v{T+r}, v{T+r}")
        wpop(2)
        for r in range(0, 8, 2):
            k(f"v_pk_mul_f32 {pr(A+r)}, {pr(A+r)}, {pr(A+8+r)}")
        for r in range(0, 8, 2):
            k(f"v_pk_fma_f32 {pr(T+r)}, {pr(T+r)}, {pr(C2)}, {pr(C2)}")
        for r in range(8):
            k(f"v_rcp_f32 v{T+r}, v{T+r}")
        for r in range(0, 8, 2):
            k(f"v_pk_mul_f32 {pr(A+r)}, {pr(A+r)}, {pr(T+r)}")
        if i == NT - 1:
            wpop(99)
        for j in range(4):
            k(f"v_cvt_pk_bf16_f32 v{A+j}, v{A+2*j}, v{A+2*j+1}")
        mstore(k, f"buffer_store_dwordx4 v[{A}:{A+3}], v{VL16}, s[20:23], s36 offen offset:{i*1024}")
    k(f"""
    s_lshl_b32 s45, s27, 8
    s_lshl_b32 s39, s28, 2
    s_add_u32 s45, s45, s39
    s_add_u32 s45, s45, {CNT + 24*256}
    """)


NWS = int(os.environ.get('NWS', '12'))
NAS = 20 - NWS
ROT5 = int(os.environ.get('ROT5', '0'))
EARLYW = os.environ.get('EARLYW', '0') == '1'
AOFF = NWS * 8192


def p5_ids(k):
    k(f"""
    s_and_b32 s27, s2, 7
    s_lshl_b32 s27, s27, 2
    s_lshr_b32 s28, s2, 3
    s_and_b32 s28, s28, 3
    s_add_u32 s27, s27, s28
    s_lshr_b32 s28, s2, 5
    s_and_b32 s29, s26, 1
    s_lshr_b32 s30, s26, 1
    s_lshl_b32 s31, s27, 1
    s_add_u32 s31, s31, s30
    """)


def wdma(k, c):
    k(f"""
    s_lshl_b32 s41, s43, 16
    s_add_u32 m0, s48, {(c % NWS)*8192}
    s_add_u32 s43, s43, 1
    buffer_load_dwordx4 v210, s[16:19], s41 offen lds
    buffer_load_dwordx4 v211, s[16:19], s41 offen offset:1024 lds
    s_cmp_eq_u32 s43, 28
    s_cselect_b32 s43, 0, s43
    """)


def p5_loader(k, VL16):
    p5_ids(k)
    k(f"""
    s_lshl_b32 s34, s26, 11
    s_mul_i32 s32, s31, {112*1024}
    s_lshl_b32 s33, s29, 11
    s_add_u32 s32, s32, s33
    s_add_u32 s32, s32, {AF}
    """)

    def adma(c):
        k(f"""
        s_lshl_b32 s40, s44, 12
        s_add_u32 s40, s40, s32
        s_add_u32 m0, s34, {AOFF + (c % NAS)*8192}
        s_add_u32 s44, s44, 1
        buffer_load_dwordx4 v{VL16}, s[20:23], s40 offen{LDP} lds
        buffer_load_dwordx4 v{VL16}, s[20:23], s40 offen offset:1024{LDP} lds
        s_cmp_eq_u32 s44, 28
        s_cselect_b32 s44, 0, s44
        """)

    if EARLYW:
        k("s_waitcnt vmcnt(0)")
        k("s_barrier")
    else:
        for c in range(4):
            wdma(k, c)
        k("s_waitcnt vmcnt(8)")
        k("s_barrier")
        for c in range(4, NWS):
            wdma(k, c)
    k("s_barrier")
    order = []
    ia, iw = 0, NWS
    for c in range(NAS - 2):
        adma(c); order.append(("a", c)); ia += 1
    for c in range(28):
        need = max(i for i, g in enumerate(order) if g == ("a", c) or g == ("w", c))
        k(f"s_waitcnt vmcnt({2*(len(order) - 1 - need)})")
        k("s_barrier")
        if ia < 28 and ia <= c - 2 + NAS:
            adma(ia); order.append(("a", ia)); ia += 1
        if iw < 28 and iw <= c - 2 + NWS:
            wdma(k, iw); order.append(("w", iw)); iw += 1
    k("s_endpgm")


def p5_compute(k, VL16, HKEEP):
    VBA, VWA = 12, 13
    FR, ACC, T = 96, 64, 80
    p5s = 45
    k("s_waitcnt vmcnt(0)")
    stamp(k, 8)
    fsignal(k, 45, "L_f_s4")
    p5_ids(k)
    srd(k, 56, 54, 55, 2 * MB)
    k(f"""
    v_and_b32 v2, 31, v1
    v_lshrrev_b32 v3, 5, v1
    s_lshl_b32 s37, s28, 1
    s_add_u32 s37, s37, s29
    s_lshl_b32 s40, s30, 12
    s_add_u32 s40, s40, {AOFF}
    v_add_u32 v{VBA}, s40, v{VL16}
    v_add_u32 v{VWA}, 57344, v209
    """)
    for i in range(8):
        k(f"v_lshlrev_b32 v{T+2*i}, 16, v{HKEEP+i}")
        k(f"v_and_b32 v{T+2*i+1}, 0xffff0000, v{HKEEP+i}")
    k(f"""
    s_cmp_lg_u32 s25, 1
    s_cbranch_scc1 L_f_w4
    s_lshr_b32 s36, s27, 1
    s_lshl_b32 s36, s36, 8
    s_add_u32 s36, s36, {24*256}
    """)
    fpoll(k, 36, 16, "L_f_poll4")
    k.label("L_f_w4")
    k("s_barrier")
    stamp(k, 9)
    PD = int(os.environ.get('PD', '4')); NB = PD + 1

    def reads(n):
        c, s_ = n // 4, n % 4
        b = FR + (n % NB) * 8
        ws = c % NWS
        if os.environ.get("ABL5") == "nords":
            return
        wr, woff = ("v209", ws * 8192) if ws < 7 else (f"v{VWA}", (ws - 7) * 8192)
        k(f"ds_read_b128 v[{b}:{b+3}], v{VBA} offset:{(c % NAS)*8192 + s_*1024}")
        k(f"ds_read_b64_tr_b16 v[{b+4}:{b+5}], {wr} offset:{woff + s_*2048}")
        k(f"ds_read_b64_tr_b16 v[{b+6}:{b+7}], {wr} offset:{woff + s_*2048 + 1024}")

    k("s_barrier")
    k("s_waitcnt lgkmcnt(0)")
    for n in range(PD):
        reads(n)
    KS = 112
    for n in range(KS):
        if n + PD < KS:
            if (n + PD) % 4 == 0:
                k("s_barrier")
            reads(n + PD)
            k(f"s_waitcnt lgkmcnt({3*PD})")
        else:
            k(f"s_waitcnt lgkmcnt({3*(KS-1-n)})")
        b = FR + (n % NB) * 8
        k(f"v_mfma_f32_32x32x16_bf16 v[{ACC}:{ACC+15}], v[{b+4}:{b+7}], v[{b}:{b+3}], " + (f"v[{ACC}:{ACC+15}]" if n else f"v[{T}:{T+15}]"))
    stamp(k, 10)
    for i in range(8):
        k(f"v_cvt_pk_bf16_f32 v{ACC+i}, v{ACC+2*i}, v{ACC+2*i+1}")
    k(f"""
    v_lshlrev_b32 v4, 10, v2
    v_lshl_add_u32 v4, v3, 4, v4
    v_permlane32_swap_b32 v{ACC}, v{ACC+2}
    v_permlane32_swap_b32 v{ACC+1}, v{ACC+3}
    v_permlane32_swap_b32 v{ACC+4}, v{ACC+6}
    v_permlane32_swap_b32 v{ACC+5}, v{ACC+7}
    s_lshl_b32 s38, s31, 15
    s_lshl_b32 s39, s37, 6
    s_add_u32 s38, s38, s39
    buffer_store_dwordx4 v[{ACC}:{ACC+3}], v4, s[56:59], s38 offen
    buffer_store_dwordx4 v[{ACC+4}:{ACC+7}], v4, s[56:59], s38 offen offset:32
    """)
    stamp(k, 11); stamp_rt(k, 12); stamp_flush(k, 2, 16)
    if os.environ.get('DBGSPAN') == '1':
        k("""
        s_load_dwordx2 s[56:57], s[0:1], 64
        s_memrealtime s[94:95]
        s_memtime s[98:99]
        s_mov_b32 s58, 256
        s_mov_b32 s59, 0x20000
        s_waitcnt lgkmcnt(0)
        s_not_b32 s92, s92
        s_sub_u32 s98, s98, s96
        v_mov_b32 v4, 0
        v_mov_b32 v5, s92
        v_mov_b32 v6, s94
        v_mov_b32 v7, s98
        s_mov_b64 exec, 1
        buffer_atomic_umax v5, v4, s[56:59], 0 offen offset:4 sc1
        buffer_atomic_umax v6, v4, s[56:59], 0 offen offset:8 sc1
        buffer_atomic_umax v7, v4, s[56:59], 0 offen offset:12 sc1
        """)
    k("s_endpgm")
```

```python
import os
from dsl import Kern
import common
from common import MB, QF, KF, VF, OF, HF, ST, CS, AF, WGF, CNT, WS_BYTES, LOG2E, f32, srd, MONO

E = os.environ.get
STAMPS = E("STAMPS") == "1"
SPIN = 1 << 20
SMODE = 24
SIDE = 147456
PX, PQKV, PWS, PWO, PWD, POUT, PG, PU, PDBG = 4, 6, 8, 10, 12, 14, 60, 62, 64
SB = 66


def stamp(k, i, rt=False):
    if STAMPS:
        k(f"{'s_memrealtime' if rt else 's_memtime'} s[{SB+2*i}:{SB+1+2*i}]")


def stamp_flush(k, n):
    if not STAMPS:
        return
    k(f"""
    s_waitcnt lgkmcnt(0)
    s_lshl_b32 s51, s2, 4
    s_add_u32 s51, s51, s25
    s_lshl_b32 s51, s51, 6
    s_add_u32 s51, s51, {66*MB}
    v_mov_b32 v0, 0
    """)
    for i in range(n):
        k(f"v_mov_b32 v1, s{SB+2*i}")
        k(f"buffer_store_dword v1, v0, s[20:23], s51 offen offset:{4*i}")


_n = [0]


def uid(p):
    _n[0] += 1
    return f"L_{p}{_n[0]}"


DATAWT = E("DATAWT", "0")


def mstore(k, instrs, kind="flag"):
    if isinstance(instrs, str):
        instrs = [instrs]
    if kind in DATAWT:
        for i in instrs:
            k(i + " sc1")
        return
    g, e = uid("msg"), uid("mse")
    k(f"s_cmp_eq_u32 s{SMODE}, 0")
    k(f"s_cbranch_scc1 {g}")
    for i in instrs:
        k(i)
    k(f"s_branch {e}")
    k.label(g)
    for i in instrs:
        k(i + " sc1")
    k.label(e)


def one_lane(k, instr_fn):
    k("s_mov_b64 exec, 1")
    instr_fn()
    k("s_mov_b64 exec, -1")


def signal(k, soff, kind):
    l = uid("sig")
    k(f"""
    s_barrier
    s_cmp_lg_u32 s25, 0
    s_cbranch_scc1 {l}
    v_mov_b32 v4, 0
    v_mov_b32 v5, 1
    s_mov_b64 exec, 1
    """)
    if kind == "add":
        k(f"buffer_atomic_add v5, v4, s[20:23], s{soff} offen sc1")
    elif kind == "flag":
        k(f"buffer_store_dword v5, v4, s[20:23], s{soff} offen sc1")
    else:
        mstore(k, f"buffer_store_dword v5, v4, s[20:23], s{soff} offen")
    k("s_mov_b64 exec, -1")
    k.label(l)


def poll(k, vaddr, vexp, vtmp, sleep=0):
    l = uid("poll")
    k(f"s_mov_b32 s46, {CNT}")
    k("s_mov_b32 s47, 0")
    k.label(l)
    k(f"""
    buffer_load_dword v{vtmp}, v{vaddr}, s[20:23], s46 offen sc1
    s_add_u32 s47, s47, 1
    s_waitcnt vmcnt(0)
    v_cmp_gt_u32 vcc, v{vexp}, v{vtmp}
    s_cmp_gt_u32 s47, {SPIN}
    s_cbranch_scc1 {l}_out
    s_cbranch_vccz {l}_out
    {'s_sleep %d' % sleep if sleep else ''}
    s_branch {l}
    """)
    k.label(f"{l}_out")


def wave_poll_flags(k, wave, sgrp, G):
    l = uid("wp")
    k(f"""
    s_cmp_lg_u32 s25, {wave}
    s_cbranch_scc1 {l}
    v_and_b32 v7, {G-1}, v1
    v_lshlrev_b32 v7, 2, v7
    v_add_u32 v7, s{sgrp}, v7
    v_mov_b32 v8, 1
    """)
    poll(k, 7, 8, 6)
    k.label(l)
    k("s_barrier")


def pr(x):
    return f"v[{x}:{x+1}]"


def r4(x):
    return f"v[{x}:{x+3}]"


def r16(x):
    return f"v[{x}:{x+15}]"


MF32 = "v_mfma_f32_32x32x16_bf16"
MF16 = "v_mfma_f32_16x16x32_bf16"


def p1(k):
    NST, STAGE, WOFF = 4, 32768, 8192
    SCR = NST * STAGE
    VXD, VWD, VXA, VWA, FR, ACC, CSA, SEL, T, SUM, PF = 10, 12, 20, 28, 40, 80, 128, 144, 156, 164, 168
    k(f"""
    s_load_dwordx4 s[4:7], s[0:1], 0
    s_load_dwordx4 s[64:67], s[0:1], 64
    s_cmp_ge_u32 s2, 256
    s_cbranch_scc1 L_end
    s_getpc_b64 s[46:47]
    """)
    k.label("L_pc")
    k(f"""
    v_lshlrev_b32 v2, 6, v0
    v_min_u32 v3, L_codeend-L_pc, v2
    global_load_dword v{PF}, v3, s[46:47]
    v_add_u32 v2, 32768, v2
    v_min_u32 v3, L_codeend-L_pc, v2
    global_load_dword v{PF}, v3, s[46:47]
    v_and_b32 v1, 63, v0
    v_lshrrev_b32 v2, 6, v0
    """)
    k("v_readfirstlane_b32 s25, v2")
    k(f"""
    s_and_b32 s27, s2, 6
    s_lshl_b32 s27, s27, 2
    s_lshr_b32 s28, s2, 3
    s_and_b32 s41, s28, 7
    s_add_u32 s27, s27, s41
    s_and_b32 s28, s2, 1
    s_lshl_b32 s28, s28, 2
    s_lshr_b32 s29, s2, 6
    s_add_u32 s28, s28, s29
    s_and_b32 s26, s25, 3
    s_getreg_b32 s30, hwreg(HW_REG_XCC_ID)
    s_and_b32 s30, s30, 7
    {E("FAKEXCC", "")}
    s_mul_i32 s31, s30, s30
    s_lshl_b32 s31, s31, 16
    s_lshl_b32 s30, s30, 8
    s_add_u32 s30, s30, s31
    s_add_u32 s51, s30, 1
    s_cmp_lt_u32 s25, 4
    s_cbranch_scc1 L_p1_M
    """)
    k(f"""
    s_lshl_b32 s29, s29, 1
    s_add_u32 s41, s41, s29
    s_and_b32 s41, s41, {E("ROTMASK", "7")}
    v_lshrrev_b32 v8, 3, v1
    v_and_b32 v9, 7, v1
    s_lshl_b32 s30, s27, 16
    s_lshl_b32 s31, s26, 14
    s_add_u32 s30, s30, s31
    v_lshrrev_b32 v5, 1, v8
    v_xor_b32 v5, v5, v9
    v_lshlrev_b32 v5, 4, v5
    v_lshl_add_u32 v5, v8, 10, v5
    v_add_u32 v{VXD}, s30, v5
    v_xor_b32 v5, 64, v5
    v_add_u32 v5, 8192, v5
    v_add_u32 v{VXD+1}, s30, v5
    s_lshl_b32 s34, s26, 11
    s_mul_i32 s31, s26, 384
    s_lshl_b32 s32, s28, 7
    s_mov_b32 s33, 43691
    s_mul_i32 s35, s26, 6144
    s_add_u32 s35, s35, {WOFF}
    s_waitcnt lgkmcnt(0)
    s_mov_b32 s8, s66
    s_mov_b32 s9, s67
    """)
    srd(k, 52, PX, PX + 1, 2 * MB)
    srd(k, 16, PQKV, PQKV + 1, 512 * 3072)

    def xops(c):
        st = (c % NST) * STAGE
        ops = []
        for i in range(2):
            pre = f"s_add_u32 s36, s41, {c}\ns_and_b32 s36, s36, 7\ns_mul_i32 s37, s36, {64*3072}\ns_lshl_b32 s36, s36, 7\n" if i == 0 else ""
            ops.append(pre + f"s_add_u32 m0, s34, {st + i*1024}\nbuffer_load_dwordx4 v{VXD+i}, s[52:55], s36 offen lds")
        return ops

    def wop(c, j):
        st = (c % NST) * STAGE
        return f"s_add_u32 m0, s35, {st + j*1024}\nbuffer_load_dwordx4 v{VWD+j}, s[16:19], s37 offen lds"

    def group_ops(c):
        return xops(c) + [wop(c, j) for j in range(6)]

    for o in xops(0):
        k(o)
    for j in range(6):
        k(f"""
        v_add_u32 v4, s31, v1
        v_add_u32 v4, {64*j}, v4
        v_mul_lo_u32 v5, v4, s33
        v_lshrrev_b32 v5, 20, v5
        v_mul_u32_u24 v6, 24, v5
        v_sub_u32 v6, v4, v6
        v_lshrrev_b32 v7, 3, v6
        v_and_b32 v6, 7, v6
        v_and_b32 v4, 2, v5
        v_lshlrev_b32 v4, 1, v4
        v_xor_b32 v6, v6, v4
        v_mul_u32_u24 v5, 3072, v5
        v_lshl_add_u32 v5, v7, 10, v5
        v_lshl_add_u32 v5, v6, 4, v5
        v_add_u32 v{VWD+j}, s32, v5
        """)
        k(wop(0, j))
    k("s_barrier")
    for o in group_ops(1):
        k(o)
    k(f"""
    s_load_dwordx2 s[10:11], s[0:1], 16
    s_load_dwordx4 s[12:15], s[0:1], 48
    v_and_b32 v2, 31, v1
    v_lshrrev_b32 v3, 5, v1
    v_lshrrev_b32 v4, 1, v2
    v_and_b32 v4, 7, v4
    v_lshlrev_b32 v5, 7, v2
    s_and_b32 s36, s26, 1
    s_lshl_b32 s36, s36, 12
    v_add_u32 v5, s36, v5
    s_lshr_b32 s38, s26, 1
    s_lshl_b32 s38, s38, 2
    v_add_u32 v6, s38, v3
    s_mov_b32 s43, 0xffff0000
    """)
    srd(k, 56, PDBG, PDBG + 1, 256)
    srd(k, 20, PWS, PWS + 1, WS_BYTES)
    for p in range(2):
        k(f"""
        v_add_u32 v7, {2*p}, v6
        v_xor_b32 v7, v7, v4
        v_lshl_add_u32 v{VXA+p}, v7, 4, v5
        v_add_u32 v{VXA+4+p}, {2*STAGE}, v{VXA+p}
        """)
    for i in range(4):
        k(f"v_mov_b32 v{SUM+i}, 0")

    def stats(c, pend):
        fb = FR + 8 * (c % 2)
        for j in range(8):
            if pend:
                k(pend.pop(0))
            lo, hi = T + 2 * (j % 4), T + 2 * (j % 4) + 1
            k(f"""
            v_lshlrev_b32 v{lo}, 16, v{fb+j}
            v_and_b32 v{hi}, s43, v{fb+j}
            v_add_f32 v{SUM}, v{SUM}, v{lo}
            v_add_f32 v{SUM+1}, v{SUM+1}, v{hi}
            v_fmac_f32 v{SUM+2}, v{lo}, v{lo}
            v_fmac_f32 v{SUM+3}, v{hi}, v{hi}
            """)

    for c in range(8):
        k(f"s_waitcnt vmcnt({(8 if c + 1 <= 7 else 0) + (1 if c == 6 else 0)}) lgkmcnt(0)")
        k("s_barrier")
        st = c % NST
        fb = FR + 8 * (c % 2)
        for p in range(2):
            k(f"ds_read_b128 {r4(fb+4*p)}, v{VXA + 4*(st//2) + p} offset:{(st%2)*STAGE}")
        pend = group_ops(c + 2) if c + 2 <= 7 else []
        if c:
            stats(c - 1, pend)
        for o in pend:
            k(o)
        if c == 5:
            k("""
            s_and_b32 s36, s2, 7
            s_lshl_b32 s36, s36, 5
            v_mov_b32 v170, s36
            v_cmp_eq_u32 vcc, 1, v1
            v_mov_b32 v171, 16
            v_cndmask_b32 v170, v170, v171, vcc
            buffer_load_dword v171, v170, s[56:59], 0 offen sc1
            """)
    k("s_waitcnt lgkmcnt(0)")
    stats(7, [])
    k("s_mov_b32 s47, 0")
    k.label("L_t_chk")
    k(f"""
    v_readlane_b32 s36, v171, 0
    v_readlane_b32 s37, v171, 1
    s_and_b32 s38, s36, 255
    s_cmp_gt_u32 s47, {SPIN}
    s_cbranch_scc1 L_t_ok
    s_cmp_lt_u32 s38, 32
    s_cbranch_scc1 L_t_again
    s_cmp_ge_u32 s37, 1
    s_cbranch_scc1 L_t_ok
    """)
    k.label("L_t_again")
    k("""
    buffer_load_dword v171, v170, s[56:59], 0 offen sc1
    s_add_u32 s47, s47, 1
    s_waitcnt vmcnt(0)
    s_branch L_t_chk
    """)
    k.label("L_t_ok")
    k(f"""
    s_lshl_b32 s38, s51, 5
    s_cmp_eq_u32 s36, s38
    s_cselect_b32 s{SMODE}, {E("FORCEMODE", "1")}, 0
    v_mov_b32 v170, {SCR + 1536}
    v_mov_b32 v171, s{SMODE}
    ds_write_b32 v170, v171
    v_add_f32 v164, v164, v165
    v_add_f32 v166, v166, v167
    v_mov_b32 v165, v164
    v_mov_b32 v167, v166
    v_permlane32_swap_b32 v164, v165
    v_permlane32_swap_b32 v166, v167
    v_add_f32 v164, v164, v165
    v_add_f32 v166, v166, v167
    s_lshl_b32 s37, s26, 8
    v_lshlrev_b32 v4, 2, v2
    v_add_u32 v6, s37, v4
    v_add_u32 v6, {SCR+2048}, v6
    ds_write_b32 v6, v164
    ds_write_b32 v6, v166 offset:128
    v_xor_b32 v7, 512, v6
    s_waitcnt lgkmcnt(0)
    s_barrier
    ds_read_b32 v165, v7
    ds_read_b32 v167, v7 offset:128
    v_and_b32 v6, 0xfffffdff, v6
    s_waitcnt lgkmcnt(0)
    v_add_f32 v164, v164, v165
    v_add_f32 v166, v166, v167
    v_mul_f32 v164, {f32(-1/512)}, v164
    v_mul_f32 v166, {f32(1/512)}, v166
    v_fma_f32 v166, -v164, v164, v166
    v_max_f32 v166, 0, v166
    v_add_f32 v166, {f32(1e-5)}, v166
    v_rsq_f32 v165, v166
    ds_write_b32 v6, v164 offset:1024
    ds_write_b32 v6, v165 offset:1152
    s_waitcnt lgkmcnt(0)
    s_barrier
    s_barrier
    """)
    k("s_branch L_p2")
    k.label("L_p1_M")
    k("s_setprio 1")
    k(f"""
    s_and_b32 s30, s26, 1
    s_lshr_b32 s31, s26, 1
    s_lshl_b32 s29, s27, 1
    s_add_u32 s29, s29, s30
    v_and_b32 v2, 31, v1
    v_lshrrev_b32 v3, 5, v1
    v_lshrrev_b32 v4, 1, v2
    v_and_b32 v4, 7, v4
    v_lshlrev_b32 v5, 7, v2
    s_lshl_b32 s34, s30, 12
    v_add_u32 v5, s34, v5
    v_bfe_u32 v6, v1, 2, 2
    v_lshrrev_b32 v7, 1, v6
    v_xor_b32 v7, s31, v7
    v_lshl_add_u32 v6, v3, 3, v6
    v_mul_u32_u24 v6, 384, v6
    v_lshl_add_u32 v6, v7, 6, v6
    v_bfe_u32 v7, v1, 4, 1
    v_lshl_add_u32 v6, v7, 5, v6
    v_and_b32 v7, 3, v1
    v_lshl_add_u32 v6, v7, 3, v6
    v_add_u32 v6, {WOFF}, v6
    s_waitcnt lgkmcnt(0)
    s_mov_b32 s8, s66
    s_mov_b32 s9, s67
    s_load_dwordx2 s[10:11], s[0:1], 16
    s_load_dwordx4 s[12:15], s[0:1], 48
    s_load_dwordx4 s[60:63], s[0:1], 32
    """)
    stamp(k, 0, True); stamp(k, 1)
    srd(k, 56, PDBG, PDBG + 1, 256)
    srd(k, 20, PWS, PWS + 1, WS_BYTES)
    k(f"""
    s_cmp_lg_u32 s25, 1
    s_cbranch_scc1 L_t_notk
    s_and_b32 s36, s2, 7
    s_lshl_b32 s36, s36, 5
    v_mov_b32 v7, 0
    v_mov_b32 v8, s51
    s_mov_b64 exec, 1
    buffer_atomic_add v8, v7, s[56:59], s36 offen sc1
    s_mov_b64 exec, -1
    """)
    k.label("L_t_notk")
    k("s_barrier")
    k(f"""
    s_add_u32 s36, s2, s25
    s_cmp_lg_u32 s36, 0
    s_cbranch_scc1 L_t_nz
    v_lshrrev_b32 v7, 3, v1
    v_and_b32 v9, 7, v1
    v_lshlrev_b32 v7, 8, v7
    v_lshl_add_u32 v7, v9, 4, v7
    v_mov_b32 v8, 0
    v_mov_b32 v9, 0
    v_mov_b32 v10, 0
    v_mov_b32 v11, 0
    """)
    for i in range(8):
        k(f"s_mov_b32 s36, {CNT + i*2048}")
        k("buffer_store_dwordx4 v[8:11], v7, s[20:23], s36 offen sc1")
    k("""
    v_mov_b32 v12, 1
    s_waitcnt vmcnt(0)
    s_mov_b64 exec, 1
    buffer_store_dword v12, v8, s[56:59], 0 offen offset:16 sc1
    s_mov_b64 exec, -1
    """)
    k.label("L_t_nz")
    for p in range(4):
        k(f"""
        s_add_u32 s36, s30, {p}
        s_and_b32 s36, s36, 3
        s_lshl_b32 s37, s36, 1
        s_mul_i32 s38, s36, 6144
        v_add_u32 v7, s37, v3
        v_xor_b32 v7, v7, v4
        v_lshl_add_u32 v{VXA+p}, v7, 4, v5
        v_add_u32 v{VWA+p}, s38, v6
        v_add_u32 v{VXA+4+p}, {2*STAGE}, v{VXA+p}
        v_add_u32 v{VWA+4+p}, {2*STAGE}, v{VWA+p}
        """)
    k("""
    v_and_b32 v7, 15, v1
    v_bfe_u32 v8, v1, 4, 1
    v_sub_u32 v7, v7, v8
    v_mov_b32 v8, 0x3f803f80
    """)
    for t in range(3):
        k(f"v_cmp_eq_u32 vcc, {2*t}, v7")
        for i in range(4):
            k(f"v_cndmask_b32 v{SEL+4*t+i}, 0, v8, vcc")
    k(f"""
    v_lshlrev_b32 v4, 2, v2
    v_add_u32 v4, {SCR+5120}, v4
    v_and_b32 v5, 15, v1
    v_lshlrev_b32 v5, 2, v5
    v_lshrrev_b32 v7, 4, v1
    v_lshl_add_u32 v5, v7, 8, v5
    v_add_u32 v5, {SCR+5120}, v5
    s_lshl_b32 s36, s26, 10
    v_add_u32 v5, s36, v5
    s_lshl_b32 s36, s31, 11
    v_add_u32 v4, s36, v4
    v_lshlrev_b32 v7, 2, v1
    v_add_u32 v7, {SCR+5120}, v7
    v_add_u32 v7, s36, v7
    s_lshl_b32 s37, s30, 8
    s_add_u32 s37, s37, {SCR+3072}
    v_lshlrev_b32 v8, 4, v3
    v_add_u32 v10, s37, v8
    v_lshlrev_b32 v9, 2, v2
    v_add_u32 v9, s37, v9
    s_lshl_b32 s37, s26, 8
    s_add_u32 s37, s37, {SCR+4096}
    v_add_u32 v8, s37, v8
    v_lshlrev_b32 v11, 2, v1
    v_add_u32 v11, s37, v11
    v_mov_b32 v12, {SCR + 1536}
    v_bfe_u32 v13, v1, 4, 1
    v_and_b32 v14, 15, v1
    v_lshlrev_b32 v14, 4, v14
    v_lshl_add_u32 v14, v3, 8, v14
    v_lshl_add_u32 v14, v13, 16, v14
    v_lshlrev_b32 v6, 4, v1
    s_lshl_b32 s38, s28, 18
    s_lshl_b32 s39, s31, 17
    s_add_u32 s38, s38, s39
    s_lshl_b32 s39, s29, 10
    s_add_u32 s38, s38, s39
    s_lshl_b32 s45, s28, 8
    s_lshl_b32 s46, s27, 2
    s_add_u32 s45, s45, s46
    s_add_u32 s45, s45, {CNT + 48*256}
    s_waitcnt lgkmcnt(0)
    """)
    XB, WB = FR, FR + 12

    def addr(n):
        c, p = n // 4, n % 4
        st = c % NST
        return 4 * (st // 2) + p, (st % 2) * STAGE

    def rdx(n):
        ai, off = addr(n)
        k(f"ds_read_b128 {r4(XB + (n % 3) * 4)}, v{VXA+ai} offset:{off}")

    def rdw(n, t):
        ai, off = addr(n)
        for ab in range(2):
            r = WB + 12 * (n % 2) + 4 * t + 2 * ab
            k(f"ds_read_b64_tr_b16 {pr(r)}, v{VWA+ai} offset:{off + ab*1536 + t*128}")

    k("s_barrier")
    for n in range(2):
        rdx(n)
        for t in range(3):
            rdw(n, t)
    for n in range(32):
        pf = n + 2 < 32
        if (n + 2) % 4 == 0 and pf:
            k("s_barrier")
        if n == 30:
            k("s_barrier")
        X = r4(XB + (n % 3) * 4)
        W = [r4(WB + 12 * (n % 2) + 4 * t) for t in range(3)]
        A = [r16(ACC + 16 * t) for t in range(3)]
        Cc = [a if n else "0" for a in A]
        mf = [f"{MF32} {A[0]}, {W[0]}, {X}, {Cc[0]}", f"{MF32} {A[1]}, {W[1]}, {X}, {Cc[1]}", f"{MF32} {A[2]}, {X}, {W[2]}, {Cc[2]}"]
        if pf:
            rdx(n + 2)
        for t in range(3):
            cnt = 12 if pf else (2 * (2 - t) + 7 if n == 30 else 2 * (2 - t))
            k(f"s_waitcnt lgkmcnt({cnt})")
            k(mf[t])
            if n % 2 == 0:
                cc = "0" if (n == 0 and t == 0) else r4(CSA)
                k(f"{MF16} {r4(CSA)}, {r4(SEL+4*t)}, {W[t]}, {cc}")
            if pf:
                rdw(n + 2, t)
    for r in range(4):
        k(f"ds_write_b32 v5, v{CSA+r} offset:{r*64}")
    k("""
    s_waitcnt lgkmcnt(0)
    s_barrier
    ds_read_b32 v12, v12
    """)
    for w in range(2):
        k(f"ds_read_b32 v{T+w}, v7 offset:{w*1024}")
        k(f"ds_read_b32 v{T+2+w}, v4 offset:{w*1024+256}")
    MR = FR
    for g in range(4):
        k(f"ds_read_b128 {r4(MR+4*g)}, v10 offset:{g*32}")
        k(f"ds_read_b128 {r4(MR+16+4*g)}, v10 offset:{128+g*32}")
    NM, RS, RQ, CV = 164, 166, 170, 172
    k(f"ds_read_b32 v{NM}, v9")
    k(f"ds_read_b32 v{RS}, v9 offset:128")
    k("s_waitcnt lgkmcnt(10)")
    k(f"""
    v_readfirstlane_b32 s{SMODE}, v12
    v_add_f32 v{T}, v{T}, v{T+1}
    v_add_f32 v{CV}, v{T+2}, v{T+3}
    v_add_f32 v{CV+1}, v{T+2}, v{T+3}
    ds_write_b32 v11, v{T}
    s_waitcnt lgkmcnt(0)
    """)
    CQ = CSA
    for t in range(2):
        for g in range(4):
            k(f"ds_read_b128 {r4(CQ+16*t+4*g)}, v8 offset:{t*128 + g*32}")
    AV = ACC + 32
    for r in range(0, 16, 2):
        k(f"v_pk_fma_f32 {pr(AV+r)}, {pr(MR+r)}, {pr(CV)}, {pr(AV+r)}")
    for r in range(0, 16, 2):
        k(f"v_pk_mul_f32 {pr(AV+r)}, {pr(AV+r)}, {pr(MR+16+r)}")
    for i in range(8):
        k(f"v_cvt_pk_bf16_f32 v{AV+i}, v{AV+2*i}, v{AV+2*i+1}")
    k(f"""
    s_add_u32 s39, s38, {VF}
    buffer_store_dwordx4 {r4(AV)}, v14, s[20:23], s39 offen sc1
    buffer_store_dwordx4 {r4(AV+4)}, v14, s[20:23], s39 offen offset:512 sc1
    v_mov_b32 v{NM+1}, v{NM}
    v_mov_b32 v{RS+1}, v{RS}
    v_mul_f32 v{RQ}, {f32(0.25*LOG2E)}, v{RS}
    v_mul_f32 v{RQ+1}, {f32(0.25*LOG2E)}, v{RS}
    s_waitcnt lgkmcnt(0)
    """)
    for t in (1, 0):
        A = ACC + 16 * t
        sc = RQ if t == 0 else RS
        for r in range(0, 16, 2):
            k(f"v_pk_fma_f32 {pr(A+r)}, {pr(NM)}, {pr(CQ+16*t+r)}, {pr(A+r)}")
        for r in range(0, 16, 2):
            k(f"v_pk_mul_f32 {pr(A+r)}, {pr(A+r)}, {pr(sc)}")
        for i in range(8):
            k(f"v_cvt_pk_bf16_f32 v{A+i}, v{A+2*i}, v{A+2*i+1}")
        base = QF if t == 0 else KF
        k(f"s_add_u32 s39, s38, {base}")
        k(f"s_add_u32 s40, s38, {base+65536}")
        k(f"buffer_store_dwordx4 {r4(A)}, v6, s[20:23], s39 offen sc1")
        k(f"buffer_store_dwordx4 {r4(A+4)}, v6, s[20:23], s40 offen sc1")
    stamp(k, 13)
    k("s_setprio 0")
    k("s_waitcnt vmcnt(0)")
    signal(k, 45, "flag")


def side_dma(k, T):
    k(f"""
    s_lshr_b32 s44, s2, 2
    s_cmp_lt_u32 s44, 28
    s_cselect_b32 s16, s{PG}, s{PU}
    s_cselect_b32 s17, s{PG+1}, s{PU+1}
    s_cselect_b32 s36, 0, 28
    s_mov_b32 s18, {512*3584}
    s_mov_b32 s19, 0x20000
    s_sub_u32 s36, s44, s36
    s_lshl_b32 s36, s36, 7
    s_and_b32 s43, s2, 3
    s_lshl_b32 s43, s43, 2
    s_add_u32 s43, s43, s26
    s_mul_i32 s37, s43, {32*3584}
    s_add_u32 s36, s36, s37
    s_cmp_lt_u32 s2, 224
    s_cselect_b32 s36, s36, 0x7ff00000
    v_bfe_u32 v{T}, v1, 2, 1
    v_bfe_u32 v{T+1}, v1, 4, 1
    v_xor_b32 v{T}, v{T}, v{T+1}
    v_and_b32 v{T+1}, 3, v1
    v_lshlrev_b32 v{T+1}, 4, v{T+1}
    v_lshl_add_u32 v{T+1}, v{T}, 6, v{T+1}
    v_lshrrev_b32 v{T}, 3, v1
    v_mul_u32_u24 v{T}, 3584, v{T}
    v_add_u32 v{T}, v{T}, v{T+1}
    s_lshl_b32 s48, s26, 12
    s_add_u32 s48, s48, {SIDE}
    """)
    for i in range(4):
        k(f"s_add_u32 m0, s48, {i*1024}")
        k(f"buffer_load_dwordx4 v{T}, s[16:19], s36 offen lds")
        k(f"s_add_u32 s36, s36, {8*3584}")


def side_job(k):
    TMP, WF, SL, CA = 108, 120, 136, 144
    k(f"""
    s_cmp_lt_u32 s2, 224
    s_cbranch_scc0 L_side_end
    s_lshr_b32 s44, s2, 2
    s_and_b32 s43, s2, 3
    s_lshl_b32 s43, s43, 2
    s_add_u32 s43, s43, s26
    s_lshl_b32 s48, s26, 12
    s_add_u32 s48, s48, {SIDE}
    v_bfe_u32 v{TMP}, v1, 2, 2
    v_lshrrev_b32 v{TMP+1}, 5, v1
    v_lshl_add_u32 v{TMP+1}, v{TMP+1}, 2, v{TMP}
    v_lshlrev_b32 v{TMP+1}, 7, v{TMP+1}
    v_lshrrev_b32 v{TMP}, 1, v{TMP}
    v_lshl_add_u32 v{TMP+1}, v{TMP}, 6, v{TMP+1}
    v_bfe_u32 v{TMP}, v1, 4, 1
    v_lshl_add_u32 v{TMP+1}, v{TMP}, 5, v{TMP+1}
    v_and_b32 v{TMP}, 3, v1
    v_lshl_add_u32 v{TMP+1}, v{TMP}, 3, v{TMP+1}
    v_add_u32 v{TMP+1}, s48, v{TMP+1}
    v_xor_b32 v{TMP+2}, 64, v{TMP+1}
    v_bfe_u32 v{TMP}, v1, 3, 2
    v_mov_b32 v{TMP+3}, 0x3f803f80
    v_cmp_eq_u32 vcc, 0, v{TMP}
    v_cmp_eq_u32 s[38:39], 1, v{TMP}
    """)
    for i in range(4):
        k(f"v_cndmask_b32 v{SL+i}, 0, v{TMP+3}, vcc")
        k(f"v_cndmask_b32 v{SL+4+i}, 0, v{TMP+3}, s[38:39]")
    k(f"""
    v_and_b32 v{TMP}, 47, v1
    v_lshlrev_b32 v{TMP}, 4, v{TMP}
    v_bfe_u32 v{TMP+3}, v1, 4, 1
    v_lshl_add_u32 v{TMP}, v{TMP+3}, 15, v{TMP}
    s_cmp_lt_u32 s44, 28
    s_cselect_b32 s36, 0, {256 - 28*4*32768 + (1<<32)}
    s_lshl_b32 s37, s44, 17
    s_add_u32 s36, s36, s37
    s_lshl_b32 s37, s43, 11
    s_add_u32 s36, s36, s37
    s_add_u32 s36, s36, {WGF}
    s_add_u32 s37, s36, 65536
    s_waitcnt vmcnt(0) lgkmcnt(0)
    """)
    for s_ in range(2):
        for nt in range(2):
            for ab in range(2):
                r = WF + 8 * s_ + 4 * nt + 2 * ab
                k(f"ds_read_b64_tr_b16 {pr(r)}, v{TMP+1+nt} offset:{s_*2048 + ab*1024}")
    k("s_waitcnt lgkmcnt(0)")
    first = True
    for s_ in range(2):
        for nt in range(2):
            r = WF + 8 * s_ + 4 * nt
            k(f"{MF32} {r16(CA)}, {r4(SL+4*nt)}, {r4(r)}, {'0' if first else r16(CA)}")
            first = False
            k(f"buffer_store_dwordx4 {r4(r)}, v{TMP}, s[20:23], s{36+nt} offen offset:{s_*1024} sc1")
    k(f"""
    v_cmp_gt_u32 vcc, 32, v1
    v_lshlrev_b32 v{TMP+1}, 4, v1
    s_lshl_b32 s36, s44, 10
    s_lshl_b32 s37, s26, 2
    s_add_u32 s36, s36, s37
    s_and_b32 s37, s2, 3
    s_mul_i32 s37, s37, {3584*16}
    s_add_u32 s36, s36, s37
    s_add_u32 s36, s36, {CS}
    v_cndmask_b32 v{TMP+2}, v{CA+4}, v{CA}, vcc
    buffer_store_dword v{TMP+2}, v{TMP+1}, s[20:23], s36 offen sc1
    """)
    k.label("L_side_end")


VBASE, VSTR = 65536, 1056
SX, SY = 160, 128


def p2(k):
    Q, KFR, VFR, S, C, O, P0, P1 = 4, 8, 16, 32, 64, 80, 96, 100
    AK, AV0, AV1, TMP, PF, XV = 104, 105, 106, 108, 116, 117
    PDROP, TITER = int(E("PDROP", "5")), int(E("TITER", "2"))
    k.label("L_p2")
    k(f"""
    s_and_b32 s27, s2, 31
    s_lshr_b32 s28, s2, 5
    s_lshl_b32 s28, s28, 3
    s_add_u32 s28, s28, s25
    v_lshlrev_b32 v2, 4, v1
    s_lshl_b32 s29, s27, 16
    s_lshl_b32 s30, s25, 10
    s_add_u32 s31, s29, s30
    s_mul_i32 s32, s25, {VSTR}
    s_add_u32 s32, s32, {VBASE}
    s_lshl_b32 s33, s28, 10
    s_add_u32 s33, s33, s29
    v_mov_b32 v{TMP}, 0x3f803f80
    v_mov_b32 v{TMP+1}, 0x3f803f80
    v_mov_b32 v{TMP+2}, 0x3f803f80
    v_mov_b32 v{TMP+3}, 0x3f803f80
    v_mul_u32_u24 v3, {VSTR}, v1
    v_add_u32 v3, {VBASE+1024}, v3
    """)
    for i in range(16):
        k(f"v_mov_b32 v{O+i}, 0")
    k(f"""
    s_cmp_lg_u32 s25, 3
    s_cbranch_scc1 L_p2_noones
    ds_write_b128 v3, {r4(TMP)}
    ds_write_b128 v3, {r4(O)} offset:16
    """)
    k.label("L_p2_noones")
    k(f"""
    v_mov_b32 v{AK}, v2
    v_and_b32 v3, 15, v1
    v_lshlrev_b32 v3, 4, v3
    v_lshrrev_b32 v{TMP+4}, 5, v1
    v_lshl_add_u32 v3, v{TMP+4}, 8, v3
    v_mov_b32 v{TMP+6}, 1024
    v_and_b32 v{TMP+5}, 11, v1
    v_cmp_eq_u32 vcc, 0, v{TMP+5}
    v_mov_b32 v{TMP+7}, 1040
    v_cndmask_b32 v{TMP+6}, v{TMP+7}, v{TMP+6}, vcc
    v_and_b32 v{TMP+5}, 16, v1
    v_cmp_eq_u32 vcc, 0, v{TMP+5}
    v_subrev_u32 v{TMP+7}, 512, v{TMP+6}
    v_cndmask_b32 v{AV0}, v{TMP+6}, v3, vcc
    v_cndmask_b32 v{AV1}, v{TMP+7}, v3, vcc
    v_add_u32 v{AV0}, {VBASE}, v{AV0}
    v_add_u32 v{AV1}, {VBASE}, v{AV1}
    """)
    for i in range(4):
        k(f"v_mov_b32 v{P1+i}, 0")
        k(f"v_mov_b32 v{VFR+12+i}, 0")
    k("""
    s_cmp_lt_u32 s25, 4
    s_cselect_b32 s42, 99, 1
    s_cselect_b32 s41, 99, 0
    s_mov_b32 s35, 0
    """)
    k(f"""
    s_lshr_b32 s36, s27, 2
    s_lshl_b32 s36, s36, 8
    s_add_u32 s36, s36, {48*256}
    s_waitcnt lgkmcnt(0)
    """)
    wave_poll_flags(k, 1, 36, 32)
    stamp(k, 14)

    def dma_tile(t):
        k(f"""
        s_add_u32 s34, s31, {KF + t*1024}
        s_add_u32 m0, s30, {t*1024}
        buffer_load_dwordx4 v2, s[20:23], s34 offen sc1 lds
        s_add_u32 s34, s31, {VF + t*1024}
        s_add_u32 m0, s32, {t*VSTR}
        buffer_load_dwordx4 v2, s[20:23], s34 offen sc1 lds
        """)

    k("s_cmp_lt_u32 s25, 4")
    k("s_cbranch_scc0 L_p2_B")
    for t in range(0, 16, 4):
        dma_tile(t)
    k(f"buffer_load_dwordx4 {r4(Q)}, v2, s[20:23], s33 offen sc1")
    k("s_waitcnt vmcnt(7)")
    k("s_barrier")
    k("s_setprio 1")
    for t in range(16, 32, 4):
        dma_tile(t)
    k("s_waitcnt vmcnt(8)")
    k("s_barrier")
    for t in range(32, 64, 4):
        dma_tile(t)
    side_dma(k, TMP)
    k("s_waitcnt vmcnt(4)")
    k("s_barrier")
    k(f"""
    v_min_u32 v{TMP}, 13, v1
    v_lshlrev_b32 v{TMP}, 7, v{TMP}
    s_lshl_b32 s36, s2, 2
    s_add_u32 s36, s36, s26
    s_mul_i32 s37, s36, {14*128}
    """)
    srd(k, 16, PWD, PWD + 1, 1792 * 1024)
    k(f"""
    buffer_load_dword v{PF}, v{TMP}, s[16:19], s37 offen
    v_min_u32 v{TMP}, 3, v1
    v_lshlrev_b32 v{TMP}, 7, v{TMP}
    s_lshl_b32 s37, s36, 9
    """)
    srd(k, 16, PWO, PWO + 1, 512 * 1024)
    k(f"buffer_load_dword v{PF}, v{TMP}, s[16:19], s37 offen")
    k("s_branch L_p2_go")
    k.label("L_p2_B")
    k(f"""
    buffer_load_dwordx4 {r4(Q)}, v2, s[20:23], s33 offen sc1
    s_waitcnt vmcnt(0)
    s_barrier
    s_setprio 2
    """)
    k.label("L_p2_go")

    def Kr(b): return r4(KFR + 4 * b)
    def Vr(b, j): return r4(VFR + 8 * b + 4 * j)
    def Sr(b): return r16(S + 16 * b)
    Qr, Cr, Or = r4(Q), r16(C), r16(O)
    def rdK(t, b): k(f"ds_read_b128 {Kr(b)}, v{AK} offset:{t*1024}")

    def rdV(t, b):
        k(f"ds_read_b128 {Vr(b,0)}, v{AV0} offset:{t*VSTR}")
        k(f"ds_read_b128 {Vr(b,1)}, v{AV1} offset:{t*VSTR+512}")

    def tilemax(s1):
        k(f"""
        v_max3_f32 v{TMP}, v{s1}, v{s1+1}, v{s1+2}
        v_max3_f32 v{TMP+1}, v{s1+3}, v{s1+4}, v{s1+5}
        v_max3_f32 v{TMP+2}, v{s1+6}, v{s1+7}, v{s1+8}
        v_max3_f32 v{TMP+3}, v{s1+9}, v{s1+10}, v{s1+11}
        v_max3_f32 v{TMP}, v{TMP}, v{s1+12}, v{s1+13}
        v_max3_f32 v{TMP+1}, v{TMP+1}, v{s1+14}, v{s1+15}
        v_max3_f32 v{TMP}, v{TMP}, v{TMP+1}, v{TMP+2}
        v_max_f32 v{TMP}, v{TMP}, v{TMP+3}
        v_mov_b32 v{TMP+1}, v{TMP}
        v_permlane32_swap_b32 v{TMP}, v{TMP+1}
        """)
    k("s_waitcnt lgkmcnt(0)")
    rdK(0, 0)
    rdK(1, 1)
    rdV(0, 0)
    k("s_waitcnt lgkmcnt(3)")
    k(f"{MF32} {Sr(1)}, {Kr(0)}, {Qr}, 0")
    tilemax(S + 16)
    k(f"v_max_f32 v{TMP}, v{TMP}, v{TMP+1}")
    for i in range(16):
        k(f"v_sub_f32 v{C+i}, 0, v{TMP}")
    k(f"{MF32} {Sr(0)}, {Kr(0)}, {Qr}, {Cr}")
    k("s_nop 9")

    def Ex(b, a, n):
        for i in range(a, a + n):
            k(f"v_exp_f32 v{S+16*b+i}, v{S+16*b+i}")

    def CV(dst, b, i):
        k(f"v_cvt_pk_bf16_f32 v{dst}, v{S+16*b+2*i}, v{S+16*b+2*i+1}")

    def tile(t):
        b = t % 2
        nb = 1 - b
        k("s_waitcnt lgkmcnt(0)")
        k(f"{MF32} {Sr(nb)}, {Kr(nb)}, {Qr}, {Cr}")
        rdK(t + 2, b)
        Ex(b, 0, 4)
        k(f"{MF32} {Or}, {Vr(nb,1)}, {r4(P1)}, {Or}")
        rdV(t + 1, nb)
        Ex(b, 4, 2); CV(P0, b, 0)
        Ex(b, 6, 2); CV(P0 + 1, b, 1)
        Ex(b, 8, 2); CV(P0 + 2, b, 2)
        Ex(b, 10, 2); CV(P0 + 3, b, 3)
        Ex(b, 12, 2)
        k(f"{MF32} {Or}, {Vr(b,0)}, {r4(P0)}, {Or}")
        Ex(b, 14, 2)
        for i in range(4):
            CV(P1 + i, b, 4 + i)

    k.raw(".p2align 6")
    k.label("L_p2_loop")
    for t in range(8):
        if t in (2, 6):
            l = uid("nb")
            k(f"s_cmp_lg_u32 s35, s{41 if t == 2 else 42}")
            k(f"s_cbranch_scc1 {l}")
            k("s_barrier")
            k.label(l)
        tile(t)
    k(f"""
    v_add_u32 v{AK}, 8192, v{AK}
    v_add_u32 v{AV0}, {8*VSTR}, v{AV0}
    v_add_u32 v{AV1}, {8*VSTR}, v{AV1}
    s_cmp_lt_u32 s35, 6
    s_cbranch_scc1 L_p2_ev
    """)
    k.label("L_p2_evret")
    k("""
    s_add_u32 s35, s35, 1
    s_cmp_lg_u32 s35, 8
    s_cbranch_scc1 L_p2_loop
    """)
    k.check_backedge("L_p2_loop")
    k(f"{MF32} {Or}, {Vr(1,1)}, {r4(P1)}, {Or}")
    k("s_waitcnt lgkmcnt(0)")
    stamp(k, 3)
    k(f"""
    v_max3_f32 v{TMP}, abs(v{O}), abs(v{O+1}), abs(v{O+2})
    v_max3_f32 v{TMP+1}, abs(v{O+3}), abs(v{O+4}), abs(v{O+5})
    v_max3_f32 v{TMP}, v{TMP}, abs(v{O+6}), abs(v{O+7})
    v_add_f32 v{TMP+2}, v{O}, v{O+1}
    v_add_f32 v{TMP+3}, v{O+2}, v{O+3}
    v_add_f32 v{TMP+4}, v{O+4}, v{O+5}
    v_add_f32 v{TMP+5}, v{O+6}, v{O+7}
    v_add_f32 v{TMP+2}, v{TMP+2}, v{TMP+3}
    v_add_f32 v{TMP+4}, v{TMP+4}, v{TMP+5}
    v_add_f32 v{TMP+2}, v{TMP+2}, v{TMP+4}
    v_max_f32 v{TMP}, v{TMP}, v{TMP+1}
    s_mov_b32 s36, {f32(2.0**100)}
    s_mov_b32 s37, 0x7f000000
    v_cmp_gt_f32 vcc, s36, v{O+8}
    v_cmp_gt_f32 s[38:39], s37, v{TMP}
    v_cmp_o_f32 s[48:49], v{TMP+2}, v{TMP+2}
    s_and_b64 vcc, vcc, s[38:39]
    s_and_b64 vcc, vcc, s[48:49]
    s_cmp_eq_u64 vcc, exec
    s_cbranch_scc0 L_p2_slow
    """)
    k.label("L_p2_fin")
    k(f"v_rcp_f32 v{TMP}, v{O+8}")
    for i in range(8):
        k(f"v_mul_f32 v{O+i}, v{O+i}, v{TMP}")
    for i in range(4):
        k(f"v_cvt_pk_bf16_f32 v{O+i}, v{O+2*i}, v{O+2*i+1}")
    k(f"""
    s_lshl_b32 s36, s28, 15
    s_lshl_b32 s37, s27, 10
    s_add_u32 s36, s36, s37
    s_add_u32 s36, s36, {OF}
    buffer_store_dwordx4 {r4(O)}, v2, s[20:23], s36 offen sc1
    s_branch L_p3
    """)
    k.label("L_p2_ev")
    k("s_cmp_lt_u32 s25, 4")
    k("s_cbranch_scc0 L_p2_evB")

    k("s_cmp_lg_u32 s35, 1")
    k("s_cbranch_scc1 L_p2_evA1")
    side_job(k)
    k("s_branch L_p2_evret")
    k.label("L_p2_evA1")
    k(f"s_cmp_lg_u32 s35, {TITER}")
    k("s_cbranch_scc1 L_p2_evA2")
    k(f"""
    s_lshr_b32 s36, s2, 5
    s_lshl_b32 s36, s36, 8
    s_add_u32 s36, s36, {CNT + 40*256}
    v_mov_b32 v{TMP}, 0
    v_mov_b32 v{TMP+1}, 1
    s_waitcnt vmcnt(0)
    s_mov_b64 exec, 1
    buffer_atomic_add v{TMP+1}, v{TMP}, s[20:23], s36 offen sc1
    s_mov_b64 exec, -1
    """)
    k(f"""
    s_lshr_b32 s36, s2, 3
    s_lshl_b32 s36, s36, 2
    s_add_u32 s36, s36, s26
    v_min_u32 v{TMP}, 31, v1
    v_lshlrev_b32 v{TMP}, 7, v{TMP}
    s_lshl_b32 s37, s36, 12
    """)
    srd(k, 16, PWO, PWO + 1, 512 * 1024)
    k(f"""
    buffer_load_dword v{PF}, v{TMP}, s[16:19], s37 offen
    v_min_u32 v{TMP}, 15, v1
    v_lshlrev_b32 v{TMP}, 7, v{TMP}
    s_and_b32 s38, s2, 7
    s_lshl_b32 s38, s38, 18
    s_lshl_b32 s37, s36, 11
    s_add_u32 s37, s37, s38
    """)
    srd(k, 16, PX, PX + 1, 2 * MB)
    k(f"""
    buffer_load_dword v{PF}, v{TMP}, s[16:19], s37 offen
    s_add_u32 s37, s37, {HF}
    buffer_load_dword v{PF}, v{TMP}, s[20:23], s37 offen
    s_and_b32 s38, s2, 7
    s_lshl_b32 s38, s38, 15
    s_lshl_b32 s37, s36, 8
    s_add_u32 s37, s37, s38
    s_add_u32 s37, s37, {ST}
    v_min_u32 v{TMP}, 1, v1
    v_lshlrev_b32 v{TMP}, 7, v{TMP}
    buffer_load_dword v{PF}, v{TMP}, s[20:23], s37 offen
    s_and_b32 s38, s2, 7
    s_mul_i32 s38, s38, {8*112*1024}
    s_mul_i32 s37, s36, {7*1024}
    s_add_u32 s37, s37, s38
    s_add_u32 s37, s37, {AF}
    v_min_u32 v{TMP}, 55, v1
    v_lshlrev_b32 v{TMP}, 7, v{TMP}
    """)
    if "a" not in DATAWT:
        k(f"buffer_load_dword v{PF}, v{TMP}, s[20:23], s37 offen")
    DW = int(E("DW", "0"))
    if DW:
        srd(k, 16, PWD, PWD + 1, 1792 * 1024)
        k(f"s_mul_i32 s37, s36, {7*1024}")
        for i in range(DW):
            k(f"buffer_load_dword v{PF}, v{TMP}, s[16:19], s37 offen")
            k(f"s_add_u32 s37, s37, {896*1024}")
    k("s_branch L_p2_evret")
    k.label("L_p2_evA2")
    k(f"s_cmp_lg_u32 s35, {TITER+1}")
    k("s_cbranch_scc1 L_p2_evret")
    k(f"""
    s_lshr_b32 s36, s2, 3
    s_lshl_b32 s36, s36, 2
    s_add_u32 s36, s36, s26
    s_min_u32 s36, s36, 111
    s_lshl_b32 s36, s36, 15
    s_add_u32 s36, s36, {WGF}
    v_lshlrev_b32 v{TMP}, 7, v1
    """)
    for i in range(int(E("WT", "2"))):
        k(f"buffer_load_dword v{PF}, v{TMP}, s[20:23], s36 offen")
        k("s_add_u32 s36, s36, 8192")
    k("s_branch L_p2_evret")
    k.label("L_p2_evB")
    k(f"s_cmp_lg_u32 s35, {PDROP}")
    k("s_cbranch_scc1 L_p2_evret")
    k("s_setprio 0")
    k("s_branch L_p2_evret")
    k.label("L_p2_slow")
    M = TMP + 6
    k(f"v_subrev_u32 v{AK}, 65536, v{AK}")
    k(f"v_subrev_u32 v{AV0}, {64*VSTR}, v{AV0}")
    k(f"v_subrev_u32 v{AV1}, {64*VSTR}, v{AV1}")
    for i in range(16):
        k(f"v_mov_b32 v{O+i}, 0")
    k(f"v_mov_b32 v{M}, 0xff7fffff")
    k("s_mov_b32 s35, 64")
    k.label("L_p2_sloop")
    rdK(0, 0)
    rdV(0, 0)
    k("s_waitcnt lgkmcnt(0)")
    k(f"{MF32} {Sr(0)}, {Kr(0)}, {Qr}, 0")
    tilemax(S)
    k(f"""
    v_max3_f32 v{TMP}, v{TMP}, v{TMP+1}, v{M}
    v_sub_f32 v{TMP+1}, v{M}, v{TMP}
    v_exp_f32 v{TMP+1}, v{TMP+1}
    v_mov_b32 v{M}, v{TMP}
    """)
    for i in range(16):
        k(f"v_mul_f32 v{O+i}, v{O+i}, v{TMP+1}")
    for i in range(16):
        k(f"v_sub_f32 v{S+i}, v{S+i}, v{M}")
    Ex(0, 0, 16)
    for i in range(4):
        CV(P0 + i, 0, i)
        CV(P1 + i, 0, 4 + i)
    k(f"""
    {MF32} {Or}, {Vr(0,0)}, {r4(P0)}, {Or}
    {MF32} {Or}, {Vr(0,1)}, {r4(P1)}, {Or}
    v_add_u32 v{AK}, 1024, v{AK}
    v_add_u32 v{AV0}, {VSTR}, v{AV0}
    v_add_u32 v{AV1}, {VSTR}, v{AV1}
    s_nop 15
    s_sub_u32 s35, s35, 1
    s_cmp_lg_u32 s35, 0
    s_cbranch_scc1 L_p2_sloop
    """)
    k.check_backedge("L_p2_sloop")
    k("s_nop 15")
    k("s_branch L_p2_fin")


HKEEP, VL16, TRA, WD0 = 104, 112, 113, 113
HOFF4 = 3 * 28672
CSL4 = HOFF4 + 3 * 16384
NWS = int(E("NWS", "12"))
NAS = 20 - NWS
AOFF = NWS * 8192
EARLYW = E("EARLYW", "0") == "1"
PD = int(E("PD", "4"))
NB = PD + 1
XL = 131072
STAGED = False
DS, DV = 192, 115


def ids64(k):
    k("""
    s_and_b32 s27, s2, 7
    s_lshl_b32 s27, s27, 2
    s_lshr_b32 s28, s2, 3
    s_and_b32 s28, s28, 3
    s_add_u32 s27, s27, s28
    s_lshr_b32 s28, s2, 5
    s_and_b32 s29, s26, 1
    s_lshr_b32 s30, s26, 1
    s_lshl_b32 s31, s27, 1
    s_add_u32 s31, s31, s30
    """)


def p4_ids(k):
    k(f"""
    s_and_b32 s27, s2, 7
    s_lshl_b32 s27, s27, 1
    s_lshr_b32 s28, s2, 3
    s_and_b32 s28, s28, 1
    s_add_u32 s27, s27, s28
    s_lshr_b32 s28, s2, 4
    s_lshl_b32 s29, s27, 2
    s_add_u32 s29, s29, s26
    s_lshl_b32 s38, s29, 15
    s_add_u32 s38, s38, {HF}
    s_lshl_b32 s40, s26, 12
    s_add_u32 s40, s40, {HOFF4}
    s_cmp_lt_u32 s25, 4
    s_cselect_b32 s31, 2, 5
    s_cselect_b32 s35, 20, 0
    s_mul_i32 s31, s31, s26
    s_add_u32 s31, s31, s35
    s_lshl_b32 s34, s31, 10
    s_mul_i32 s32, s28, {7*32768}
    s_add_u32 s32, s32, {WGF}
    """)


def wstage(k, X, c):
    for o in wstage_ops(X, c):
        k(o)


def wstage_ops(X, c):
    n, base = (3, SX + 12 * (7 - c)) if X else (4, SY + 16 * (7 - c))
    return [f"ds_write_b128 v15, {r4(base + 4*i)} offset:{(c % 3)*28672 + i*1024}" for i in range(n)]


class LdsQ:
    def __init__(self, k):
        self.k, self.q = k, []

    def op(self, text, tag=None):
        self.k(text)
        self.q.append(tag)

    def wait(self, *tags):
        idx = [i for i, t in enumerate(self.q) if t in tags]
        if not idx:
            return
        n = len(self.q) - 1 - max(idx)
        assert n <= 15
        self.k(f"s_waitcnt lgkmcnt({n})")
        self.q = self.q[max(idx) + 1:]

    def clear(self):
        self.q = []


def p3(k):
    k.label("L_p3")
    k(f"v_lshlrev_b32 v{VL16}, 4, v1")
    ids64(k)
    k(f"""
    s_lshr_b32 s45, s2, 5
    s_lshl_b32 s45, s45, 8
    s_add_u32 s45, s45, {CNT}
    s_setprio 0
    s_waitcnt vmcnt(0)
    """)
    signal(k, 45, "add")
    k("s_cmp_lt_u32 s25, 4")
    k("s_cbranch_scc1 L_p3C")
    k(f"""
    s_lshl_b32 s34, s26, 11
    v_lshrrev_b32 v2, 3, v1
    v_bfe_u32 v3, v1, 2, 1
    v_bfe_u32 v4, v1, 4, 1
    v_xor_b32 v3, v3, v4
    v_and_b32 v4, 3, v1
    v_lshlrev_b32 v4, 4, v4
    v_lshl_add_u32 v4, v3, 6, v4
    v_lshl_add_u32 v4, v2, 10, v4
    s_lshl_b32 s35, s26, 14
    s_lshl_b32 s36, s28, 7
    s_add_u32 s35, s35, s36
    v_add_u32 v{WD0}, s35, v4
    v_add_u32 v{WD0+1}, 8192-1024, v{WD0}
    """)
    srd(k, 16, PWO, PWO + 1, 512 * 1024)
    srd(k, 56, PX, PX + 1, 2 * MB)
    for c in range(8):
        k(f"""
        s_mov_b32 s41, {c*65536}
        s_add_u32 m0, s34, {c*8192}
        buffer_load_dwordx4 v{WD0}, s[16:19], s41 offen lds
        buffer_load_dwordx4 v{WD0+1}, s[16:19], s41 offen offset:1024 lds
        """)
    k(f"""
    v_and_b32 v5, 7, v1
    v_xor_b32 v5, v5, v2
    v_lshlrev_b32 v5, 4, v5
    v_lshl_add_u32 v4, v2, 10, v5
    s_lshl_b32 s38, s27, 16
    s_add_u32 s38, s38, s35
    s_add_u32 m0, s34, {XL}
    buffer_load_dwordx4 v4, s[56:59], s38 offen lds
    s_add_u32 s38, s38, 8192
    s_add_u32 m0, s34, {XL+1024}
    buffer_load_dwordx4 v4, s[56:59], s38 offen lds
    s_lshl_b32 s32, s31, 15
    s_lshl_b32 s33, s29, 11
    s_add_u32 s32, s32, s33
    s_add_u32 s32, s32, {OF}
    s_barrier
    """)
    for c in range(8):
        k(f"""
        s_add_u32 s40, s32, {c*4096}
        s_add_u32 m0, s34, {65536 + c*8192}
        buffer_load_dwordx4 v{VL16}, s[20:23], s40 offen sc1 lds
        buffer_load_dwordx4 v{VL16}, s[20:23], s40 offen offset:1024 sc1 lds
        """)
    for c in range(8):
        k(f"s_waitcnt vmcnt({2*(7-c)})")
        k("s_barrier")
    p4_ids(k)
    srd(k, 16, PWD, PWD + 1, 1792 * 1024)
    k("s_mul_i32 s42, s26, 7")
    for j in range(7):
        k(f"""
        s_add_u32 s36, s42, {j}
        s_lshr_b32 s37, s36, 2
        s_lshl_b32 s37, s37, 15
        s_and_b32 s39, s36, 3
        s_lshl_b32 s39, s39, 10
        s_add_u32 s37, s37, s39
        v_add_u32 v{120+j}, s37, v{VL16}
        """)
    k("s_lshl_b32 s42, s42, 10")
    k("s_barrier")
    PRE = int(E("PRE3", "4"))
    for c in range(3):
        k(f"s_add_u32 s37, s32, {c*4096}")
        for j in range(7):
            if c * 7 + j == PRE:
                k("s_barrier")
            k(f"""
            s_add_u32 m0, s42, {c*28672 + j*1024}
            buffer_load_dwordx4 v{120+j}, s[20:23], s37 offen sc1 lds
            """)
    k("s_barrier")
    p4_body(k, False)
    p5_loader(k)
    k.label("L_p3C")
    VBA, RES, ACC, T, FR = 12, 20, 64, 80, 120
    k(f"""
    v_and_b32 v2, 31, v1
    v_lshrrev_b32 v3, 5, v1
    s_lshl_b32 s37, s28, 1
    s_add_u32 s37, s37, s29
    s_lshl_b32 s40, s30, 12
    s_add_u32 s40, s40, 65536
    v_add_u32 v{VBA}, s40, v{VL16}
    v_bfe_u32 v4, v1, 2, 2
    v_lshl_add_u32 v5, v3, 2, v4
    v_lshlrev_b32 v5, 7, v5
    v_lshrrev_b32 v4, 1, v4
    v_xor_b32 v4, s29, v4
    v_lshl_add_u32 v5, v4, 6, v5
    v_bfe_u32 v4, v1, 4, 1
    v_lshl_add_u32 v5, v4, 5, v5
    v_and_b32 v4, 3, v1
    v_lshl_add_u32 v{TRA}, v4, 3, v5
    s_lshl_b32 s38, s30, 12
    s_lshl_b32 s39, s29, 2
    v_and_b32 v4, 7, v2
    v_xor_b32 v4, s39, v4
    v_lshlrev_b32 v5, 7, v2
    v_lshl_add_u32 v5, v3, 3, v5
    v_add_u32 v5, s38, v5
    v_add_u32 v5, {XL}, v5
    """)
    for g in range(4):
        k(f"v_xor_b32 v{T+g}, {g}, v4")
        k(f"v_lshl_add_u32 v{T+g}, v{T+g}, 4, v5")
    k(f"""
    s_cmp_lg_u32 s25, 1
    s_cbranch_scc1 L_p3_w
    v_cmp_gt_u32 vcc, 8, v1
    v_lshlrev_b32 v7, 8, v1
    v_add_u32 v7, {40*256}, v7
    s_and_b32 s36, s2, 7
    s_lshl_b32 s36, s36, 8
    v_mov_b32 v8, s36
    v_cndmask_b32 v7, v8, v7, vcc
    v_mov_b32 v8, 32
    v_mov_b32 v9, 128
    v_cndmask_b32 v8, v8, v9, vcc
    """)
    poll(k, 7, 8, 6)
    k.label("L_p3_w")
    k("s_barrier")
    stamp(k, 4)

    def reads3(n):
        c, s_ = n // 4, n % 4
        b = FR + (n % NB) * 8
        k(f"ds_read_b128 {r4(b)}, v{VBA} offset:{c*8192 + s_*1024}")
        k(f"ds_read_b64_tr_b16 {pr(b+4)}, v{TRA} offset:{n*2048}")
        k(f"ds_read_b64_tr_b16 {pr(b+6)}, v{TRA} offset:{n*2048 + 1024}")

    k("s_barrier")
    k("s_waitcnt lgkmcnt(0)")
    for n in range(PD):
        reads3(n)
    for n in range(32):
        if n + PD < 32:
            if (n + PD) % 4 == 0:
                k("s_barrier")
            reads3(n + PD)
            k(f"s_waitcnt lgkmcnt({3*PD})")
        else:
            if n == 30:
                for g in range(4):
                    k(f"ds_read_b64 {pr(RES+2*g)}, v{T+g}")
            k(f"s_waitcnt lgkmcnt({3*(31-n) + (4 if n >= 30 else 0)})")
        b = FR + (n % NB) * 8
        k(f"{MF32} {r16(ACC)}, {r4(b+4)}, {r4(b)}, " + (r16(ACC) if n else "0"))
    k("s_waitcnt lgkmcnt(0)")
    k("s_barrier")
    stamp(k, 5)
    for i in range(8):
        k(f"v_lshlrev_b32 v{T+2*i}, 16, v{RES+i}")
        k(f"v_and_b32 v{T+2*i+1}, 0xffff0000, v{RES+i}")
    for r in range(0, 16, 2):
        k(f"v_pk_add_f32 {pr(ACC+r)}, {pr(ACC+r)}, {pr(T+r)}")
    for i in range(8):
        k(f"v_cvt_pk_bf16_f32 v{HKEEP+i}, v{ACC+2*i}, v{ACC+2*i+1}")
    k(f"""
    s_lshl_b32 s38, s31, 15
    s_lshl_b32 s39, s37, 11
    s_add_u32 s38, s38, s39
    s_add_u32 s38, s38, {HF}
    """)
    mstore(k, [f"buffer_store_dwordx4 {r4(HKEEP)}, v{VL16}, s[20:23], s38 offen",
               f"buffer_store_dwordx4 {r4(HKEEP+4)}, v{VL16}, s[20:23], s38 offen offset:1024"], "h")
    k(f"v_pk_add_f32 {pr(T)}, {pr(ACC)}, {pr(ACC+2)}")
    k(f"v_pk_mul_f32 {pr(T+2)}, {pr(ACC)}, {pr(ACC)}")
    k(f"v_pk_fma_f32 {pr(T+2)}, {pr(ACC+2)}, {pr(ACC+2)}, {pr(T+2)}")
    for r in range(4, 16, 2):
        k(f"v_pk_add_f32 {pr(T)}, {pr(T)}, {pr(ACC+r)}")
        k(f"v_pk_fma_f32 {pr(T+2)}, {pr(ACC+r)}, {pr(ACC+r)}, {pr(T+2)}")
    k(f"""
    v_add_f32 v{T}, v{T}, v{T+1}
    v_add_f32 v{T+1}, v{T+2}, v{T+3}
    v_mov_b32 v{T+2}, v{T}
    v_mov_b32 v{T+3}, v{T+1}
    v_permlane32_swap_b32 v{T}, v{T+2}
    v_permlane32_swap_b32 v{T+1}, v{T+3}
    v_add_f32 v{T}, v{T}, v{T+2}
    v_add_f32 v{T+1}, v{T+1}, v{T+3}
    v_lshlrev_b32 v4, 3, v2
    s_lshl_b32 s38, s31, 12
    s_lshl_b32 s39, s37, 8
    s_add_u32 s38, s38, s39
    s_add_u32 s38, s38, {ST}
    s_mov_b64 exec, 0xffffffff
    """)
    mstore(k, f"buffer_store_dwordx2 {pr(T)}, v4, s[20:23], s38 offen", "h")
    k(f"""
    s_mov_b64 exec, -1
    s_lshr_b32 s45, s27, 1
    s_lshl_b32 s45, s45, 8
    s_and_b32 s39, s27, 1
    s_lshl_b32 s39, s39, 3
    s_add_u32 s39, s39, s28
    s_lshl_b32 s39, s39, 2
    s_add_u32 s45, s45, s39
    s_add_u32 s45, s45, {CNT + 8*256}
    """)
    p4_ids(k)
    k("s_waitcnt vmcnt(0)")
    signal(k, 45, "lflag")
    k(f"""
    s_lshl_b32 s36, s27, 8
    s_add_u32 s36, s36, {8*256}
    """)
    wave_poll_flags(k, 1, 36, 16)
    stamp(k, 6)
    p4_body(k, True)
    p5_compute(k)


def wdma(k, c):
    k(f"""
    s_mov_b32 s41, {c*65536}
    s_add_u32 m0, s48, {(c % NWS)*8192}
    buffer_load_dwordx4 v{WD0}, s[16:19], s41 offen lds
    buffer_load_dwordx4 v{WD0+1}, s[16:19], s41 offen offset:1024 lds
    """)


def p4_body(k, X):
    tiles = [0, 1, 2, 3] if X else [4, 5, 6]
    NT = len(tiles)
    VWA, VHA, VCSA, HB, FR, ACC = 10, 13, 14, 16, 24, 40
    if E('ACC64') == '1':
        HB, FR, ACC = 208, 216, 32
    STT, T, CSB = 128, 144, 160
    MEAN, NMEAN, C1, C2 = 117, 118, 120, 122

    NW = 2 if X else 5
    VWD = 200

    def group_ops(c):
        ops = []
        if X:
            for i in range(4):
                p2 = f"s_add_u32 s39, s38, {c*4096}\ns_add_u32 m0, s40, {(c%3)*16384}\n" if i == 0 else ""
                ops.append(p2 + f"buffer_load_dwordx4 v{VL16}, s[20:23], s39 offen offset:{i*1024} sc1 lds")
        if c >= 3:
            for j in range(NW):
                p2 = f"s_add_u32 s37, s32, {c*4096}\n" if j == 0 else ""
                ops.append(p2 + f"s_add_u32 m0, s34, {(c%3)*28672 + j*1024}\nbuffer_load_dwordx4 v{VWD+j}, s[20:23], s37 offen sc1 lds")
        return ops

    for c in range(3):
        for o in group_ops(c):
            k(o)
    for j in range(NW):
        k(f"""
        s_add_u32 s35, s31, {j}
        s_lshr_b32 s36, s35, 2
        s_lshl_b32 s36, s36, 15
        s_and_b32 s35, s35, 3
        s_lshl_b32 s35, s35, 10
        s_add_u32 s35, s35, s36
        v_add_u32 v{VWD+j}, s35, v{VL16}
        """)
    k(f"""
    v_lshrrev_b32 v3, 5, v1
    v_mov_b32 v{VWA}, v{VL16}
    v_add_u32 v{VWA+1}, 28672, v{VWA}
    v_add_u32 v{VWA+2}, {2*28672}, v{VWA}
    v_add_u32 v{VHA}, s40, v{VL16}
    v_lshlrev_b32 v{VCSA}, 4, v3
    v_add_u32 v{VCSA}, {CSL4}, v{VCSA}
    """)

    Q = LdsQ(k)

    def rdh(n):
        c, s_ = n // 4, n % 4
        Q.op(f"ds_read_b128 {r4(HB + 4*(n % 2))}, v{VHA} offset:{(c%3)*16384 + s_*1024}", ("h", n))

    def rdw(n, i):
        c, s_ = n // 4, n % 4
        Q.op(f"ds_read_b128 {r4(FR+4*i)}, v{VWA + c % 3} offset:{tiles[i]*4096 + s_*1024}", ("w", n, i))

    vq = []

    def vop(text, tag):
        k(text)
        vq.append(tag)

    def vwait(tag, lg=""):
        idx = [i for i, t in enumerate(vq) if t == tag]
        n = len(vq) - 1 - max(idx) if idx else None
        if n is not None:
            k(f"s_waitcnt vmcnt({n}) {lg}")
        elif lg:
            k(f"s_waitcnt {lg}")

    for c in range(3):
        vq.extend([("H", c)] * (4 if X else 7))
    vwait(("H", 0), "lgkmcnt(0)")
    k("s_barrier")
    if X and STAMPS:
        stamp(k, 2); k("s_waitcnt lgkmcnt(0)")
    rdh(0)
    for i in range(NT):
        rdw(0, i)
    pend = []
    wpend = []
    for n in range(32):
        last = n == 31
        bar = (n + 1) % 4 == 0 and not last
        if bar:
            c1 = (n + 1) // 4
            for o, t in pend:
                vop(o, t)
            for o in wpend:
                Q.op(o)
            vwait(("H", c1), "lgkmcnt(0)")
            Q.clear()
            k("s_barrier")
            if X and STAMPS and c1 == int(E("MID", "4")):
                stamp(k, 15); k("s_waitcnt lgkmcnt(0)")
            pend = [(o, ("H", c1 + 2)) for o in group_ops(c1 + 2)] if c1 + 2 <= 7 else []
            if c1 == 6:
                ops = [f"s_lshl_b32 s36, s29, 12\ns_add_u32 s36, s36, {ST}\nv_lshlrev_b32 v8, 3, v1\n" +
                       f"buffer_load_dwordx2 {pr(STT)}, v8, s[20:23], s36 offen sc1"]
                for i in range(1, 8):
                    ops.append(f"buffer_load_dwordx2 {pr(STT+2*i)}, v8, s[20:23], s36 offen offset:{512*i} sc1")
                if X:
                    ops.append(f"""
                    v_min_u32 v5, 223, v0
                    v_cmp_lt_u32 vcc, 111, v5
                    v_mov_b32 v6, {1792-112}
                    v_cndmask_b32 v6, 0, v6, vcc
                    v_add_u32 v6, v6, v5
                    v_lshlrev_b32 v6, 4, v6
                    v_lshlrev_b32 v9, 2, v5
                    v_add_u32 v9, {CSL4}, v9
                    s_mul_i32 s37, s28, {112*16}
                    s_add_u32 s37, s37, {CS}
                    buffer_load_dwordx4 {r4(T)}, v6, s[20:23], s37 offen sc1""")
                    for q in range(1, 4):
                        ops.append(f"s_add_u32 s37, s37, {3584*16}\nbuffer_load_dwordx4 {r4(T+4*q)}, v6, s[20:23], s37 offen sc1")
                pend += [(o, "S") for o in ops]
                DW = int(E("DW", "0"))
                if not X and DW < 2:
                    pend.append((f"""
                    v_min_u32 v5, 55, v1
                    v_lshlrev_b32 v6, 7, v5
                    s_lshr_b32 s37, s2, 3
                    s_lshl_b32 s37, s37, 2
                    s_add_u32 s37, s37, s26
                    s_mul_i32 s37, s37, {7*1024}
                    s_add_u32 s37, s37, {DW*896*1024}
                    buffer_load_dword v124, v6, s[16:19], s37 offen""", "T"))
                    if DW == 0:
                        pend.append((f"s_add_u32 s37, s37, {896*1024}\nbuffer_load_dword v124, v6, s[16:19], s37 offen", "T"))
        b = HB + 4 * (n % 2)
        if not last:
            rdh(n + 1)
        for i in range(NT):
            A = r16(ACC + 16 * i)
            Q.wait(("h", n), ("w", n, i))
            k(f"{MF32} {A}, {r4(FR+4*i)}, {r4(b)}, " + (A if n else "0"))
            if not last:
                rdw(n + 1, i)
            if pend and (i % 2 == 0 or len(pend) > 6 or E('BURST') == '1'):
                vop(*pend.pop(0))
            if wpend and i == 1:
                Q.op(wpend.pop(0))
        if n == 29:
            for o, t in pend:
                vop(o, t)
            pend = []
            vwait("S")
            if X:
                for st_ in (8, 4, 2, 1):
                    for i in range(st_):
                        k(f"v_add_f32 v{T+i}, v{T+i}, v{T+i+st_}")
            for i in range(1, 8):
                k(f"v_add_f32 v{STT}, v{STT}, v{STT+2*i}")
                k(f"v_add_f32 v{STT+1}, v{STT+1}, v{STT+2*i+1}")
            k(f"""
            v_mov_b32 v{STT+2}, v{STT}
            v_mov_b32 v{STT+3}, v{STT+1}
            v_permlane32_swap_b32 v{STT}, v{STT+2}
            v_permlane32_swap_b32 v{STT+1}, v{STT+3}
            v_add_f32 v{STT}, v{STT}, v{STT+2}
            v_add_f32 v{STT+1}, v{STT+1}, v{STT+3}
            v_mul_f32 v{MEAN}, {f32(1/512)}, v{STT}
            v_mul_f32 v{C2}, {f32(1/512)}, v{STT+1}
            v_fma_f32 v{C2}, -v{MEAN}, v{MEAN}, v{C2}
            v_max_f32 v{C2}, 0, v{C2}
            v_add_f32 v{C2}, {f32(1e-5)}, v{C2}
            v_rsq_f32 v{C1}, v{C2}
            v_mul_f32 v{C1}, {f32(-LOG2E)}, v{C1}
            v_mov_b32 v{C1+1}, v{C1}
            v_mov_b32 v{C2+1}, v{C2}
            v_sub_f32 v{NMEAN}, 0, v{MEAN}
            v_sub_f32 v{NMEAN+1}, 0, v{MEAN}
            """)
    if X:
        stamp(k, 7)
        k(f"ds_write_b32 v9, v{T}")
    k("s_waitcnt lgkmcnt(0)")
    k("s_barrier")
    wq = []
    if not X:
        k("s_lshl_b32 s48, s26, 11")
        if EARLYW:
            wq = list(range(NWS))

    def wpop(n=1):
        for _ in range(n):
            if wq:
                wdma(k, wq.pop(0))

    k(f"""
    s_mul_i32 s36, s29, {112*1024}
    s_mul_i32 s37, s28, {7*1024}
    s_add_u32 s36, s36, s37
    s_add_u32 s36, s36, {AF + tiles[0]*1024}
    """)

    def csread(i):
        p = tiles[i]
        d = CSB + (i % 2) * 16
        k(f"ds_read_b128 {r4(d)}, v{VCSA} offset:{p*64}")
        k(f"ds_read_b128 {r4(d+4)}, v{VCSA} offset:{p*64+32}")
        k(f"ds_read_b128 {r4(d+8)}, v{VCSA} offset:{448+p*64}")
        k(f"ds_read_b128 {r4(d+12)}, v{VCSA} offset:{448+p*64+32}")

    csread(0)
    for i in range(NT):
        k("s_waitcnt lgkmcnt(0)")
        if i + 1 < NT:
            csread(i + 1)
        d = CSB + (i % 2) * 16
        A = ACC + 16 * i
        wpop(2)
        for r in range(0, 16, 2):
            k(f"v_pk_fma_f32 {pr(A+r)}, {pr(NMEAN)}, {pr(d+r)}, {pr(A+r)}")
        for r in range(0, 8, 2):
            k(f"v_pk_mul_f32 {pr(T+r)}, {pr(A+r)}, {pr(C1)}")
        for r in range(8):
            k(f"v_exp_f32 v{T+r}, v{T+r}")
        wpop(2)
        for r in range(0, 8, 2):
            k(f"v_pk_mul_f32 {pr(A+r)}, {pr(A+r)}, {pr(A+8+r)}")
        for r in range(0, 8, 2):
            k(f"v_pk_fma_f32 {pr(T+r)}, {pr(T+r)}, {pr(C2)}, {pr(C2)}")
        for r in range(8):
            k(f"v_rcp_f32 v{T+r}, v{T+r}")
        for r in range(0, 8, 2):
            k(f"v_pk_mul_f32 {pr(A+r)}, {pr(A+r)}, {pr(T+r)}")
        if i == NT - 1:
            wpop(99)
        for j in range(4):
            k(f"v_cvt_pk_bf16_f32 v{A+j}, v{A+2*j}, v{A+2*j+1}")
        mstore(k, f"buffer_store_dwordx4 {r4(A)}, v{VL16}, s[20:23], s36 offen offset:{i*1024}", "a")
    k(f"""
    s_lshl_b32 s45, s27, 8
    s_lshl_b32 s39, s28, 2
    s_add_u32 s45, s45, s39
    s_add_u32 s45, s45, {CNT + 24*256}
    """)


def dwrite(c):
    ws = c % NWS
    a, off = (DV, ws * 8192) if ws < 7 else (DV + 1, (ws - 7) * 8192)
    return f"ds_write_b128 v{a}, {r4(DS + 4*(27 - c))} offset:{off}"


def dsetup(k):
    k(f"""
    s_lshl_b32 s35, s25, 10
    v_add_u32 v{DV}, s35, v{VL16}
    v_add_u32 v{DV+1}, 57344, v{DV}
    """)


def p5_loader(k):
    ids64(k)
    k(f"""
    s_lshl_b32 s34, s26, 11
    s_mul_i32 s32, s31, {112*1024}
    s_lshl_b32 s33, s29, 11
    s_add_u32 s32, s32, s33
    s_add_u32 s32, s32, {AF}
    """)

    def adma(c):
        k(f"""
        s_add_u32 s40, s32, {c*4096}
        s_add_u32 m0, s34, {AOFF + (c % NAS)*8192}
        buffer_load_dwordx4 v{VL16}, s[20:23], s40 offen sc1 lds
        buffer_load_dwordx4 v{VL16}, s[20:23], s40 offen offset:1024 sc1 lds
        """)

    if EARLYW:
        k("s_waitcnt vmcnt(0)")
        k("s_barrier")
    else:
        for c in range(4):
            wdma(k, c)
        k("s_waitcnt vmcnt(8)")
        k("s_barrier")
        for c in range(4, NWS):
            wdma(k, c)
    k("s_barrier")
    order = []
    ia, iw = 0, NWS
    for c in range(NAS - 2):
        adma(c); order.append(("a", c)); ia += 1
    for c in range(28):
        need = max(i for i, g in enumerate(order) if g == ("a", c) or g == ("w", c))
        k(f"s_waitcnt vmcnt({2*(len(order) - 1 - need)}) lgkmcnt(0)")
        k("s_barrier")
        if ia < 28 and ia <= c - 2 + NAS:
            adma(ia); order.append(("a", ia)); ia += 1
        if iw < 28 and iw <= c - 2 + NWS:
            if STAGED:
                k(dwrite(iw))
            else:
                wdma(k, iw); order.append(("w", iw))
            iw += 1
    k("s_endpgm")


def p5_compute(k):
    VBA, VWA, ACC, T, FR = 12, 13, 64, 80, 120
    k("s_waitcnt vmcnt(0)")
    stamp(k, 8)
    signal(k, 45, "lflag")
    ids64(k)
    srd(k, 56, POUT, POUT + 1, 2 * MB)
    k(f"""
    v_and_b32 v2, 31, v1
    v_lshrrev_b32 v3, 5, v1
    s_lshl_b32 s37, s28, 1
    s_add_u32 s37, s37, s29
    s_lshl_b32 s40, s30, 12
    s_add_u32 s40, s40, {AOFF}
    v_add_u32 v{VBA}, s40, v{VL16}
    v_add_u32 v{VWA}, 57344, v{TRA}
    """)
    for i in range(8):
        k(f"v_lshlrev_b32 v{T+2*i}, 16, v{HKEEP+i}")
        k(f"v_and_b32 v{T+2*i+1}, 0xffff0000, v{HKEEP+i}")
    k(f"""
    s_lshr_b32 s36, s27, 1
    s_lshl_b32 s36, s36, 8
    s_add_u32 s36, s36, {24*256}
    """)
    wave_poll_flags(k, 1, 36, 16)
    stamp(k, 9)

    Q = LdsQ(k)
    PD5 = min(PD, 3) if STAGED else PD
    NB5 = PD5 + 1

    def reads(n):
        c, s_ = n // 4, n % 4
        b = FR + (n % NB5) * 8
        ws = c % NWS
        wr, woff = (f"v{TRA}", ws * 8192) if ws < 7 else (f"v{VWA}", (ws - 7) * 8192)
        Q.op(f"ds_read_b128 {r4(b)}, v{VBA} offset:{(c % NAS)*8192 + s_*1024}", n)
        Q.op(f"ds_read_b64_tr_b16 {pr(b+4)}, {wr} offset:{woff + s_*2048}", n)
        Q.op(f"ds_read_b64_tr_b16 {pr(b+6)}, {wr} offset:{woff + s_*2048 + 1024}", n)

    k("s_barrier")
    k("s_waitcnt lgkmcnt(0)")
    for n in range(PD5):
        reads(n)
    KS = 112
    for n in range(KS):
        if n + PD5 < KS:
            if (n + PD5) % 4 == 0:
                c = (n + PD5) // 4
                k("s_barrier")
                iw = c - 2 + NWS
                if STAGED and NWS <= iw < 28:
                    Q.op(dwrite(iw))
            reads(n + PD5)
        Q.wait(n)
        b = FR + (n % NB5) * 8
        k(f"{MF32} {r16(ACC)}, {r4(b+4)}, {r4(b)}, " + (r16(ACC) if n else r16(T)))
    stamp(k, 10)
    for i in range(8):
        k(f"v_cvt_pk_bf16_f32 v{ACC+i}, v{ACC+2*i}, v{ACC+2*i+1}")
    k(f"""
    v_lshlrev_b32 v4, 10, v2
    v_lshl_add_u32 v4, v3, 4, v4
    v_permlane32_swap_b32 v{ACC}, v{ACC+2}
    v_permlane32_swap_b32 v{ACC+1}, v{ACC+3}
    v_permlane32_swap_b32 v{ACC+4}, v{ACC+6}
    v_permlane32_swap_b32 v{ACC+5}, v{ACC+7}
    s_lshl_b32 s38, s31, 15
    s_lshl_b32 s39, s37, 6
    s_add_u32 s38, s38, s39
    buffer_store_dwordx4 {r4(ACC)}, v4, s[56:59], s38 offen
    buffer_store_dwordx4 {r4(ACC+4)}, v4, s[56:59], s38 offen offset:32
    """)
    stamp(k, 11); stamp(k, 12, True); stamp_flush(k, 16)
    k.label("L_end")
    k("s_endpgm")


def build(out):
    k = Kern(MONO)
    p1(k)
    p2(k)
    p3(k)
    k.label("L_codeend")
    k("s_nop 0")
    hdr = open("sequential_preLN__softmax_full_mha__swiglu_ffn__prompt.s.ref").read().split("; Override launch")[0]
    l = "grid=(256,1,1) block=(512,1,1) lds=163840"
    hdr += f"; @launch kernel={MONO} {l}\n" if (STAMPS or E("LIST") == "1") else f"; @launch {l}\n"
    open(out, "w").write(hdr + '.amdgcn_target "amdgcn-amd-amdhsa--gfx950"\n' + k.full())


if __name__ == "__main__":
    import sys
    build(sys.argv[1])
```

```python
import os
from dsl import Kern
import common
from common import MB, QF, KF, VF, OF, HF, ST, CS, AF, WGF, CNT, WS_BYTES, LOG2E, f32, srd, MONO

E = os.environ.get
STAMPS = E("STAMPS") == "1"
SPIN = 1 << 20
SMODE = 24
SIDE = 147456
WIDE0 = E('WIDE0', '0') == '1'
PX, PQKV, PWS, PWO, PWD, POUT, PG, PU, PDBG = 4, 6, 8, 10, 12, 14, 60, 62, 64
SB = 66


def stamp(k, i, rt=False):
    if STAMPS:
        k(f"{'s_memrealtime' if rt else 's_memtime'} s[{SB+2*i}:{SB+1+2*i}]")


def stamp_flush(k, n):
    if not STAMPS:
        return
    k(f"""
    s_waitcnt lgkmcnt(0)
    s_lshl_b32 s51, s2, 4
    s_add_u32 s51, s51, s25
    s_lshl_b32 s51, s51, 6
    s_add_u32 s51, s51, {66*MB}
    v_mov_b32 v0, 0
    """)
    for i in range(n):
        k(f"v_mov_b32 v1, s{SB+2*i}")
        k(f"buffer_store_dword v1, v0, s[20:23], s51 offen offset:{4*i}")


_n = [0]


def uid(p):
    _n[0] += 1
    return f"L_{p}{_n[0]}"


DATAWT = E("DATAWT", "a")


def mstore(k, instrs, kind="flag"):
    if isinstance(instrs, str):
        instrs = [instrs]
    if kind in DATAWT:
        for i in instrs:
            k(i + " sc1")
        return
    g, e = uid("msg"), uid("mse")
    k(f"s_cmp_eq_u32 s{SMODE}, 0")
    k(f"s_cbranch_scc1 {g}")
    for i in instrs:
        k(i)
    k(f"s_branch {e}")
    k.label(g)
    for i in instrs:
        k(i + " sc1")
    k.label(e)


def one_lane(k, instr_fn):
    k("s_mov_b64 exec, 1")
    instr_fn()
    k("s_mov_b64 exec, -1")


def signal(k, soff, kind):
    l = uid("sig")
    k(f"""
    s_barrier
    s_cmp_lg_u32 s25, 0
    s_cbranch_scc1 {l}
    v_mov_b32 v4, 0
    v_mov_b32 v5, 1
    s_mov_b64 exec, 1
    """)
    if kind == "add":
        k(f"buffer_atomic_add v5, v4, s[20:23], s{soff} offen sc1")
    elif kind == "flag":
        k(f"buffer_store_dword v5, v4, s[20:23], s{soff} offen sc1")
    else:
        mstore(k, f"buffer_store_dword v5, v4, s[20:23], s{soff} offen")
    k("s_mov_b64 exec, -1")
    k.label(l)


def poll(k, vaddr, vexp, vtmp, sleep=0):
    l = uid("poll")
    k(f"s_mov_b32 s46, {CNT}")
    k("s_mov_b32 s47, 0")
    k.label(l)
    if sleep:
        k(f"s_sleep {sleep}")
    k(f"""
    buffer_load_dword v{vtmp}, v{vaddr}, s[20:23], s46 offen sc1
    s_add_u32 s47, s47, 1
    s_waitcnt vmcnt(0)
    v_cmp_gt_u32 vcc, v{vexp}, v{vtmp}
    s_cmp_gt_u32 s47, {SPIN}
    s_cbranch_scc1 {l}_out
    s_cbranch_vccnz {l}
    """)
    k.label(f"{l}_out")


def wave_poll_flags(k, wave, sgrp, G, sleep=0, pre=0, stride=2):
    l = uid("wp")
    k(f"""
    s_cmp_lg_u32 s25, {wave}
    s_cbranch_scc1 {l}
    v_and_b32 v7, {G-1}, v1
    v_lshlrev_b32 v7, {stride}, v7
    v_add_u32 v7, s{sgrp}, v7
    v_mov_b32 v8, 1
    """)
    poll(k, 7, 8, 6, sleep)
    k.label(l)
    k("s_barrier")


def pr(x):
    return f"v[{x}:{x+1}]"


def r4(x):
    return f"v[{x}:{x+3}]"


def r16(x):
    return f"v[{x}:{x+15}]"


MF32 = "v_mfma_f32_32x32x16_bf16"
MF16 = "v_mfma_f32_16x16x32_bf16"


def p1(k):
    NST, STAGE, WOFF = 4, 32768, 8192
    SCR = NST * STAGE
    VXD, VWD, VXA, VWA, FR, ACC, CSA, SEL, T, SUM, PF = 10, 12, 20, 28, 40, 80, 128, 144, 156, 164, 168
    k(f"""
    s_load_dwordx4 s[4:7], s[0:1], 0
    s_load_dwordx4 s[64:67], s[0:1], 64
    s_cmp_ge_u32 s2, 256
    s_cbranch_scc1 L_end
    s_getpc_b64 s[46:47]
    """)
    k.label("L_pc")
    k(f"""
    v_lshlrev_b32 v2, 6, v0
    v_min_u32 v3, L_codeend-L_pc, v2
    global_load_dword v{PF}, v3, s[46:47]
    v_add_u32 v2, 32768, v2
    v_min_u32 v3, L_codeend-L_pc, v2
    global_load_dword v{PF}, v3, s[46:47]
    v_and_b32 v1, 63, v0
    v_lshrrev_b32 v2, 6, v0
    """)
    k("v_readfirstlane_b32 s25, v2")
    k(f"""
    s_and_b32 s27, s2, 6
    s_lshl_b32 s27, s27, 2
    s_lshr_b32 s28, s2, 3
    s_and_b32 s41, s28, 7
    s_add_u32 s27, s27, s41
    s_and_b32 s28, s2, 1
    s_lshl_b32 s28, s28, 2
    s_lshr_b32 s29, s2, 6
    s_add_u32 s28, s28, s29
    s_and_b32 s26, s25, 3
    s_getreg_b32 s30, hwreg(HW_REG_XCC_ID)
    s_and_b32 s30, s30, 7
    {E("FAKEXCC", "")}
    s_mul_i32 s31, s30, s30
    s_lshl_b32 s31, s31, 16
    s_lshl_b32 s30, s30, 8
    s_add_u32 s30, s30, s31
    s_add_u32 s51, s30, 1
    s_cmp_lt_u32 s25, 4
    s_cbranch_scc1 L_p1_M
    """)
    k(f"""
    s_lshl_b32 s29, s29, 1
    s_add_u32 s41, s41, s29
    s_and_b32 s41, s41, {E("ROTMASK", "7")}
    v_lshrrev_b32 v8, 3, v1
    v_and_b32 v9, 7, v1
    s_lshl_b32 s30, s27, 16
    s_lshl_b32 s31, s26, 14
    s_add_u32 s30, s30, s31
    v_lshrrev_b32 v5, 1, v8
    v_xor_b32 v5, v5, v9
    v_lshlrev_b32 v5, 4, v5
    v_lshl_add_u32 v5, v8, 10, v5
    v_add_u32 v{VXD}, s30, v5
    v_xor_b32 v5, 64, v5
    v_add_u32 v5, 8192, v5
    v_add_u32 v{VXD+1}, s30, v5
    s_lshl_b32 s34, s26, 11
    s_mul_i32 s31, s26, {16*3072}
    s_lshl_b32 s32, s28, 7
    s_add_u32 s31, s31, s32
    v_bfe_u32 v4, v1, 4, 1
    v_lshlrev_b32 v4, 2, v4
    v_xor_b32 v4, v4, v9
    v_lshlrev_b32 v4, 4, v4
    v_mul_u32_u24 v5, 3072, v8
    v_add3_u32 v{VWD}, v4, v5, s31
    s_add_u32 s35, s34, {WOFF}
    s_waitcnt lgkmcnt(0)
    s_mov_b32 s8, s66
    s_mov_b32 s9, s67
    """)
    srd(k, 52, PX, PX + 1, 2 * MB)
    srd(k, 16, PQKV, PQKV + 1, 512 * 3072)

    def xops(c):
        st = (c % NST) * STAGE
        ops = []
        for i in range(2):
            pre = f"s_add_u32 s36, s41, {c}\ns_and_b32 s36, s36, 7\ns_mul_i32 s37, s36, {64*3072}\ns_lshl_b32 s36, s36, 7\n" if i == 0 else ""
            ops.append(pre + f"s_add_u32 m0, s34, {st + i*1024}\nbuffer_load_dwordx4 v{VXD+i}, s[52:55], s36 offen lds")
        return ops

    def wop(c, j):
        st = (c % NST) * STAGE
        t, i = j >> 1, j & 1
        return (f"s_add_u32 s38, s37, {t*1024 + i*8*3072}\ns_add_u32 m0, s35, {st + t*8192 + i*1024}\n"
                f"buffer_load_dwordx4 v{VWD}, s[16:19], s38 offen lds")

    def group_ops(c):
        return xops(c) + [wop(c, j) for j in range(6)]

    for o in group_ops(0):
        k(o)
    k("s_barrier")
    for o in group_ops(1):
        k(o)
    k(f"""
    s_load_dwordx2 s[10:11], s[0:1], 16
    s_load_dwordx4 s[12:15], s[0:1], 48
    v_and_b32 v2, 31, v1
    v_lshrrev_b32 v3, 5, v1
    v_lshrrev_b32 v4, 1, v2
    v_and_b32 v4, 7, v4
    v_lshlrev_b32 v5, 7, v2
    s_and_b32 s36, s26, 1
    s_lshl_b32 s36, s36, 12
    v_add_u32 v5, s36, v5
    s_lshr_b32 s39, s26, 1
    s_lshl_b32 s39, s39, 2
    v_add_u32 v6, s39, v3
    s_mov_b32 s43, 0xffff0000
    """)
    srd(k, 56, PDBG, PDBG + 1, 256)
    srd(k, 20, PWS, PWS + 1, WS_BYTES)
    for p in range(2):
        k(f"""
        v_add_u32 v7, {2*p}, v6
        v_xor_b32 v7, v7, v4
        v_lshl_add_u32 v{VXA+p}, v7, 4, v5
        v_add_u32 v{VXA+4+p}, {2*STAGE}, v{VXA+p}
        """)
    for i in range(4):
        k(f"v_mov_b32 v{SUM+i}, 0")

    def stats(c, pend):
        fb = FR + 8 * (c % 2)
        for j in range(8):
            if pend:
                k(pend.pop(0))
            lo, hi = T + 2 * (j % 4), T + 2 * (j % 4) + 1
            k(f"""
            v_lshlrev_b32 v{lo}, 16, v{fb+j}
            v_and_b32 v{hi}, s43, v{fb+j}
            v_add_f32 v{SUM}, v{SUM}, v{lo}
            v_add_f32 v{SUM+1}, v{SUM+1}, v{hi}
            v_fmac_f32 v{SUM+2}, v{lo}, v{lo}
            v_fmac_f32 v{SUM+3}, v{hi}, v{hi}
            """)

    for c in range(8):
        k(f"s_waitcnt vmcnt({(8 if c + 1 <= 7 else 0) + (1 if c == 6 else 0)}) lgkmcnt(0)")
        k("s_barrier")
        st = c % NST
        fb = FR + 8 * (c % 2)
        for p in range(2):
            k(f"ds_read_b128 {r4(fb+4*p)}, v{VXA + 4*(st//2) + p} offset:{(st%2)*STAGE}")
        pend = group_ops(c + 2) if c + 2 <= 7 else []
        if c:
            stats(c - 1, pend)
        for o in pend:
            k(o)
        if c == 5:
            k("""
            s_and_b32 s36, s2, 7
            s_lshl_b32 s36, s36, 5
            v_mov_b32 v170, s36
            v_cmp_eq_u32 vcc, 1, v1
            v_mov_b32 v171, 16
            v_cndmask_b32 v170, v170, v171, vcc
            buffer_load_dword v171, v170, s[56:59], 0 offen sc1
            """)
    k("s_waitcnt lgkmcnt(0)")
    stats(7, [])
    k("s_mov_b32 s47, 0")
    k.label("L_t_chk")
    k(f"""
    v_readlane_b32 s36, v171, 0
    v_readlane_b32 s37, v171, 1
    s_and_b32 s38, s36, 255
    s_cmp_gt_u32 s47, {SPIN}
    s_cbranch_scc1 L_t_ok
    s_cmp_lt_u32 s38, 32
    s_cbranch_scc1 L_t_again
    s_cmp_ge_u32 s37, 1
    s_cbranch_scc1 L_t_ok
    """)
    k.label("L_t_again")
    k("""
    buffer_load_dword v171, v170, s[56:59], 0 offen sc1
    s_add_u32 s47, s47, 1
    s_waitcnt vmcnt(0)
    s_branch L_t_chk
    """)
    k.label("L_t_ok")
    k(f"""
    s_lshl_b32 s38, s51, 5
    s_cmp_eq_u32 s36, s38
    s_cselect_b32 s{SMODE}, {E("FORCEMODE", "1")}, 0
    v_mov_b32 v170, {SCR + 1536}
    v_mov_b32 v171, s{SMODE}
    ds_write_b32 v170, v171
    v_add_f32 v164, v164, v165
    v_add_f32 v166, v166, v167
    v_mov_b32 v165, v164
    v_mov_b32 v167, v166
    v_permlane32_swap_b32 v164, v165
    v_permlane32_swap_b32 v166, v167
    v_add_f32 v164, v164, v165
    v_add_f32 v166, v166, v167
    s_lshl_b32 s37, s26, 8
    v_lshlrev_b32 v4, 2, v2
    v_add_u32 v6, s37, v4
    v_add_u32 v6, {SCR+2048}, v6
    ds_write_b32 v6, v164
    ds_write_b32 v6, v166 offset:128
    v_xor_b32 v7, 512, v6
    s_waitcnt lgkmcnt(0)
    s_barrier
    ds_read_b32 v165, v7
    ds_read_b32 v167, v7 offset:128
    v_and_b32 v6, 0xfffffdff, v6
    s_waitcnt lgkmcnt(0)
    v_add_f32 v164, v164, v165
    v_add_f32 v166, v166, v167
    v_mul_f32 v164, {f32(-1/512)}, v164
    v_mul_f32 v166, {f32(1/512)}, v166
    v_fma_f32 v166, -v164, v164, v166
    v_max_f32 v166, 0, v166
    v_add_f32 v166, {f32(1e-5)}, v166
    v_rsq_f32 v165, v166
    ds_write_b32 v6, v164 offset:1024
    ds_write_b32 v6, v165 offset:1152
    s_waitcnt lgkmcnt(0)
    s_barrier
    s_barrier
    """)
    k("s_branch L_p2")
    k.label("L_p1_M")
    k("s_setprio 1")
    k(f"""
    s_and_b32 s30, s26, 1
    s_lshr_b32 s31, s26, 1
    s_lshl_b32 s29, s27, 1
    s_add_u32 s29, s29, s30
    v_and_b32 v2, 31, v1
    v_lshrrev_b32 v3, 5, v1
    v_lshrrev_b32 v4, 1, v2
    v_and_b32 v4, 7, v4
    v_lshlrev_b32 v5, 7, v2
    s_lshl_b32 s34, s30, 12
    v_add_u32 v5, s34, v5
    v_bfe_u32 v6, v1, 2, 2
    v_lshrrev_b32 v7, 1, v6
    v_xor_b32 v7, s31, v7
    v_lshl_add_u32 v6, v3, 3, v6
    v_lshlrev_b32 v6, 7, v6
    v_lshl_add_u32 v6, v7, 6, v6
    v_bfe_u32 v7, v1, 4, 1
    v_lshl_add_u32 v6, v7, 5, v6
    v_and_b32 v7, 3, v1
    v_lshl_add_u32 v6, v7, 3, v6
    v_add_u32 v6, {WOFF}, v6
    s_waitcnt lgkmcnt(0)
    s_mov_b32 s8, s66
    s_mov_b32 s9, s67
    s_load_dwordx2 s[10:11], s[0:1], 16
    s_load_dwordx4 s[12:15], s[0:1], 48
    s_load_dwordx4 s[60:63], s[0:1], 32
    """)
    stamp(k, 0, True); stamp(k, 1)
    srd(k, 56, PDBG, PDBG + 1, 256)
    srd(k, 20, PWS, PWS + 1, WS_BYTES)
    k(f"""
    s_cmp_lg_u32 s25, 1
    s_cbranch_scc1 L_t_notk
    s_and_b32 s36, s2, 7
    s_lshl_b32 s36, s36, 5
    v_mov_b32 v7, 0
    v_mov_b32 v8, s51
    s_mov_b64 exec, 1
    buffer_atomic_add v8, v7, s[56:59], s36 offen sc1
    s_mov_b64 exec, -1
    """)
    k.label("L_t_notk")
    k("s_barrier")
    k(f"""
    s_add_u32 s36, s2, s25
    s_cmp_lg_u32 s36, 0
    s_cbranch_scc1 L_t_nz
    v_lshrrev_b32 v7, 3, v1
    v_and_b32 v9, 7, v1
    v_lshlrev_b32 v7, 8, v7
    v_lshl_add_u32 v7, v9, 4, v7
    v_mov_b32 v8, 0
    v_mov_b32 v9, 0
    v_mov_b32 v10, 0
    v_mov_b32 v11, 0
    """)
    for i in range(8):
        k(f"s_mov_b32 s36, {CNT + i*2048}")
        k("buffer_store_dwordx4 v[8:11], v7, s[20:23], s36 offen sc1")
    if WIDE0:
        k("v_lshlrev_b32 v7, 7, v1")
        for i in range(4):
            k(f"s_mov_b32 s36, {CNT + 16384 + i*8192}")
            k("buffer_store_dword v8, v7, s[20:23], s36 offen sc1")
    k("""
    v_mov_b32 v12, 1
    s_waitcnt vmcnt(0)
    s_mov_b64 exec, 1
    buffer_store_dword v12, v8, s[56:59], 0 offen offset:16 sc1
    s_mov_b64 exec, -1
    """)
    k.label("L_t_nz")
    for p in range(4):
        k(f"""
        s_add_u32 s36, s30, {p}
        s_and_b32 s36, s36, 3
        s_lshl_b32 s37, s36, 1
        s_lshl_b32 s38, s36, 11
        v_add_u32 v7, s37, v3
        v_xor_b32 v7, v7, v4
        v_lshl_add_u32 v{VXA+p}, v7, 4, v5
        v_add_u32 v{VWA+p}, s38, v6
        v_add_u32 v{VXA+4+p}, {2*STAGE}, v{VXA+p}
        v_add_u32 v{VWA+4+p}, {2*STAGE}, v{VWA+p}
        """)
    k("""
    v_and_b32 v7, 15, v1
    v_bfe_u32 v8, v1, 4, 1
    v_sub_u32 v7, v7, v8
    v_mov_b32 v8, 0x3f803f80
    """)
    for t in range(3):
        k(f"v_cmp_eq_u32 vcc, {2*t}, v7")
        for i in range(4):
            k(f"v_cndmask_b32 v{SEL+4*t+i}, 0, v8, vcc")
    k(f"""
    v_lshlrev_b32 v4, 2, v2
    v_add_u32 v4, {SCR+5120}, v4
    v_and_b32 v5, 15, v1
    v_lshlrev_b32 v5, 2, v5
    v_lshrrev_b32 v7, 4, v1
    v_lshl_add_u32 v5, v7, 8, v5
    v_add_u32 v5, {SCR+5120}, v5
    s_lshl_b32 s36, s26, 10
    v_add_u32 v5, s36, v5
    s_lshl_b32 s36, s31, 11
    v_add_u32 v4, s36, v4
    v_lshlrev_b32 v7, 2, v1
    v_add_u32 v7, {SCR+5120}, v7
    v_add_u32 v7, s36, v7
    s_lshl_b32 s37, s30, 8
    s_add_u32 s37, s37, {SCR+3072}
    v_lshlrev_b32 v8, 4, v3
    v_add_u32 v10, s37, v8
    v_lshlrev_b32 v9, 2, v2
    v_add_u32 v9, s37, v9
    s_lshl_b32 s37, s26, 8
    s_add_u32 s37, s37, {SCR+4096}
    v_add_u32 v8, s37, v8
    v_lshlrev_b32 v11, 2, v1
    v_add_u32 v11, s37, v11
    v_mov_b32 v12, {SCR + 1536}
    v_bfe_u32 v13, v1, 4, 1
    v_and_b32 v14, 15, v1
    v_lshlrev_b32 v14, 4, v14
    v_lshl_add_u32 v14, v3, 8, v14
    v_lshl_add_u32 v14, v13, 16, v14
    v_lshlrev_b32 v6, 4, v1
    s_lshl_b32 s38, s28, 18
    s_lshl_b32 s39, s31, 17
    s_add_u32 s38, s38, s39
    s_lshl_b32 s39, s29, 10
    s_add_u32 s38, s38, s39
    s_lshl_b32 s45, s28, {12 if WIDE0 else 8}
    s_lshl_b32 s46, s27, {7 if WIDE0 else 2}
    s_add_u32 s45, s45, s46
    s_add_u32 s45, s45, {CNT + (16384 if WIDE0 else 48*256)}
    s_waitcnt lgkmcnt(0)
    """)
    XB, WB = FR, FR + 12

    def addr(n):
        c, p = n // 4, n % 4
        st = c % NST
        return 4 * (st // 2) + p, (st % 2) * STAGE

    def rdx(n):
        ai, off = addr(n)
        k(f"ds_read_b128 {r4(XB + (n % 3) * 4)}, v{VXA+ai} offset:{off}")

    def rdw(n, t):
        ai, off = addr(n)
        for ab in range(2):
            r = WB + 12 * (n % 2) + 4 * t + 2 * ab
            k(f"ds_read_b64_tr_b16 {pr(r)}, v{VWA+ai} offset:{off + ab*512 + t*8192}")

    k("s_barrier")
    for n in range(2):
        rdx(n)
        for t in range(3):
            rdw(n, t)
    for n in range(32):
        pf = n + 2 < 32
        if (n + 2) % 4 == 0 and pf:
            k("s_barrier")
        if n == 30:
            k("s_barrier")
        X = r4(XB + (n % 3) * 4)
        W = [r4(WB + 12 * (n % 2) + 4 * t) for t in range(3)]
        A = [r16(ACC + 16 * t) for t in range(3)]
        Cc = [a if n else "0" for a in A]
        mf = [f"{MF32} {A[0]}, {W[0]}, {X}, {Cc[0]}", f"{MF32} {A[1]}, {W[1]}, {X}, {Cc[1]}", f"{MF32} {A[2]}, {X}, {W[2]}, {Cc[2]}"]
        if pf:
            rdx(n + 2)
        for t in range(3):
            cnt = 12 if pf else (2 * (2 - t) + 7 if n == 30 else 2 * (2 - t))
            k(f"s_waitcnt lgkmcnt({cnt})")
            k(mf[t])
            if n % 2 == 0:
                cc = "0" if (n == 0 and t == 0) else r4(CSA)
                k(f"{MF16} {r4(CSA)}, {r4(SEL+4*t)}, {W[t]}, {cc}")
            if pf:
                rdw(n + 2, t)
    for r in range(4):
        k(f"ds_write_b32 v5, v{CSA+r} offset:{r*64}")
    k("""
    s_waitcnt lgkmcnt(0)
    s_barrier
    ds_read_b32 v12, v12
    """)
    for w in range(2):
        k(f"ds_read_b32 v{T+w}, v7 offset:{w*1024}")
        k(f"ds_read_b32 v{T+2+w}, v4 offset:{w*1024+256}")
    MR = FR
    for g in range(4):
        k(f"ds_read_b128 {r4(MR+4*g)}, v10 offset:{g*32}")
        k(f"ds_read_b128 {r4(MR+16+4*g)}, v10 offset:{128+g*32}")
    NM, RS, RQ, CV = 164, 166, 170, 172
    k(f"ds_read_b32 v{NM}, v9")
    k(f"ds_read_b32 v{RS}, v9 offset:128")
    k("s_waitcnt lgkmcnt(10)")
    k(f"""
    v_readfirstlane_b32 s{SMODE}, v12
    v_add_f32 v{T}, v{T}, v{T+1}
    v_add_f32 v{CV}, v{T+2}, v{T+3}
    v_add_f32 v{CV+1}, v{T+2}, v{T+3}
    ds_write_b32 v11, v{T}
    s_waitcnt lgkmcnt(0)
    """)
    CQ = CSA
    for t in range(2):
        for g in range(4):
            k(f"ds_read_b128 {r4(CQ+16*t+4*g)}, v8 offset:{t*128 + g*32}")
    AV = ACC + 32
    for r in range(0, 16, 2):
        k(f"v_pk_fma_f32 {pr(AV+r)}, {pr(MR+r)}, {pr(CV)}, {pr(AV+r)}")
    for r in range(0, 16, 2):
        k(f"v_pk_mul_f32 {pr(AV+r)}, {pr(AV+r)}, {pr(MR+16+r)}")
    for i in range(8):
        k(f"v_cvt_pk_bf16_f32 v{AV+i}, v{AV+2*i}, v{AV+2*i+1}")
    k(f"""
    s_add_u32 s39, s38, {VF}
    buffer_store_dwordx4 {r4(AV)}, v14, s[20:23], s39 offen sc1
    buffer_store_dwordx4 {r4(AV+4)}, v14, s[20:23], s39 offen offset:512 sc1
    v_mov_b32 v{NM+1}, v{NM}
    v_mov_b32 v{RS+1}, v{RS}
    v_mul_f32 v{RQ}, {f32(0.25*LOG2E)}, v{RS}
    v_mul_f32 v{RQ+1}, {f32(0.25*LOG2E)}, v{RS}
    s_waitcnt lgkmcnt(0)
    """)
    for t in (1, 0):
        A = ACC + 16 * t
        sc = RQ if t == 0 else RS
        for r in range(0, 16, 2):
            k(f"v_pk_fma_f32 {pr(A+r)}, {pr(NM)}, {pr(CQ+16*t+r)}, {pr(A+r)}")
        for r in range(0, 16, 2):
            k(f"v_pk_mul_f32 {pr(A+r)}, {pr(A+r)}, {pr(sc)}")
        for i in range(8):
            k(f"v_cvt_pk_bf16_f32 v{A+i}, v{A+2*i}, v{A+2*i+1}")
        base = QF if t == 0 else KF
        k(f"s_add_u32 s39, s38, {base}")
        k(f"s_add_u32 s40, s38, {base+65536}")
        k(f"buffer_store_dwordx4 {r4(A)}, v6, s[20:23], s39 offen sc1")
        k(f"buffer_store_dwordx4 {r4(A+4)}, v6, s[20:23], s40 offen sc1")
    stamp(k, 13)
    k("s_setprio 0")
    k("s_waitcnt vmcnt(0)")
    signal(k, 45, "flag")


def side_dma(k, T):
    k(f"""
    s_lshr_b32 s44, s2, 2
    s_cmp_lt_u32 s44, 28
    s_cselect_b32 s16, s{PG}, s{PU}
    s_cselect_b32 s17, s{PG+1}, s{PU+1}
    s_cselect_b32 s36, 0, 28
    s_mov_b32 s18, {512*3584}
    s_mov_b32 s19, 0x20000
    s_sub_u32 s36, s44, s36
    s_lshl_b32 s36, s36, 7
    s_and_b32 s43, s2, 3
    s_lshl_b32 s43, s43, 2
    s_add_u32 s43, s43, s26
    s_mul_i32 s37, s43, {32*3584}
    s_add_u32 s36, s36, s37
    s_cmp_lt_u32 s2, 224
    s_cselect_b32 s36, s36, 0x7ff00000
    v_bfe_u32 v{T}, v1, 2, 1
    v_bfe_u32 v{T+1}, v1, 4, 1
    v_xor_b32 v{T}, v{T}, v{T+1}
    v_and_b32 v{T+1}, 3, v1
    v_lshlrev_b32 v{T+1}, 4, v{T+1}
    v_lshl_add_u32 v{T+1}, v{T}, 6, v{T+1}
    v_lshrrev_b32 v{T}, 3, v1
    v_mul_u32_u24 v{T}, 3584, v{T}
    v_add_u32 v{T}, v{T}, v{T+1}
    s_lshl_b32 s48, s26, 12
    s_add_u32 s48, s48, {SIDE}
    """)
    for i in range(4):
        k(f"s_add_u32 m0, s48, {i*1024}")
        k(f"buffer_load_dwordx4 v{T}, s[16:19], s36 offen lds")
        k(f"s_add_u32 s36, s36, {8*3584}")


def side_job(k):
    TMP, WF, SL, CA = 108, 120, 136, 144
    k(f"""
    s_cmp_lt_u32 s2, 224
    s_cbranch_scc0 L_side_end
    s_lshr_b32 s44, s2, 2
    s_and_b32 s43, s2, 3
    s_lshl_b32 s43, s43, 2
    s_add_u32 s43, s43, s26
    s_lshl_b32 s48, s26, 12
    s_add_u32 s48, s48, {SIDE}
    v_bfe_u32 v{TMP}, v1, 2, 2
    v_lshrrev_b32 v{TMP+1}, 5, v1
    v_lshl_add_u32 v{TMP+1}, v{TMP+1}, 2, v{TMP}
    v_lshlrev_b32 v{TMP+1}, 7, v{TMP+1}
    v_lshrrev_b32 v{TMP}, 1, v{TMP}
    v_lshl_add_u32 v{TMP+1}, v{TMP}, 6, v{TMP+1}
    v_bfe_u32 v{TMP}, v1, 4, 1
    v_lshl_add_u32 v{TMP+1}, v{TMP}, 5, v{TMP+1}
    v_and_b32 v{TMP}, 3, v1
    v_lshl_add_u32 v{TMP+1}, v{TMP}, 3, v{TMP+1}
    v_add_u32 v{TMP+1}, s48, v{TMP+1}
    v_xor_b32 v{TMP+2}, 64, v{TMP+1}
    v_bfe_u32 v{TMP}, v1, 3, 2
    v_mov_b32 v{TMP+3}, 0x3f803f80
    v_cmp_eq_u32 vcc, 0, v{TMP}
    v_cmp_eq_u32 s[38:39], 1, v{TMP}
    """)
    for i in range(4):
        k(f"v_cndmask_b32 v{SL+i}, 0, v{TMP+3}, vcc")
        k(f"v_cndmask_b32 v{SL+4+i}, 0, v{TMP+3}, s[38:39]")
    k(f"""
    v_and_b32 v{TMP}, 47, v1
    v_lshlrev_b32 v{TMP}, 4, v{TMP}
    v_bfe_u32 v{TMP+3}, v1, 4, 1
    v_lshl_add_u32 v{TMP}, v{TMP+3}, 15, v{TMP}
    s_cmp_lt_u32 s44, 28
    s_cselect_b32 s36, 0, {256 - 28*4*32768 + (1<<32)}
    s_lshl_b32 s37, s44, 17
    s_add_u32 s36, s36, s37
    s_lshl_b32 s37, s43, 11
    s_add_u32 s36, s36, s37
    s_add_u32 s36, s36, {WGF}
    s_add_u32 s37, s36, 65536
    s_waitcnt vmcnt(0) lgkmcnt(0)
    """)
    for s_ in range(2):
        for nt in range(2):
            for ab in range(2):
                r = WF + 8 * s_ + 4 * nt + 2 * ab
                k(f"ds_read_b64_tr_b16 {pr(r)}, v{TMP+1+nt} offset:{s_*2048 + ab*1024}")
    k("s_waitcnt lgkmcnt(0)")
    first = True
    for s_ in range(2):
        for nt in range(2):
            r = WF + 8 * s_ + 4 * nt
            k(f"{MF32} {r16(CA)}, {r4(SL+4*nt)}, {r4(r)}, {'0' if first else r16(CA)}")
            first = False
            k(f"buffer_store_dwordx4 {r4(r)}, v{TMP}, s[20:23], s{36+nt} offen offset:{s_*1024} sc1")
    k(f"""
    v_cmp_gt_u32 vcc, 32, v1
    v_lshlrev_b32 v{TMP+1}, 4, v1
    s_lshl_b32 s36, s44, 10
    s_lshl_b32 s37, s26, 2
    s_add_u32 s36, s36, s37
    s_and_b32 s37, s2, 3
    s_mul_i32 s37, s37, {3584*16}
    s_add_u32 s36, s36, s37
    s_add_u32 s36, s36, {CS}
    v_cndmask_b32 v{TMP+2}, v{CA+4}, v{CA}, vcc
    buffer_store_dword v{TMP+2}, v{TMP+1}, s[20:23], s36 offen sc1
    """)
    k.label("L_side_end")


VBASE, VSTR = 65536, 1056
SX, SY = 160, 128


def p2(k):
    Q, KFR, VFR, S, C, O, P0, P1 = 4, 8, 16, 32, 64, 80, 96, 100
    AK, AV0, AV1, TMP, PF, XV = 104, 105, 106, 108, 116, 117
    PDROP, TITER = int(E("PDROP", "5")), int(E("TITER", "2"))
    k.label("L_p2")
    k(f"""
    s_and_b32 s27, s2, 31
    s_lshr_b32 s28, s2, 5
    s_lshl_b32 s28, s28, 3
    s_add_u32 s28, s28, s25
    v_lshlrev_b32 v2, 4, v1
    s_lshl_b32 s29, s27, 16
    s_lshl_b32 s30, s25, 10
    s_add_u32 s31, s29, s30
    s_mul_i32 s32, s25, {VSTR}
    s_add_u32 s32, s32, {VBASE}
    s_lshl_b32 s33, s28, 10
    s_add_u32 s33, s33, s29
    v_mov_b32 v{TMP}, 0x3f803f80
    v_mov_b32 v{TMP+1}, 0x3f803f80
    v_mov_b32 v{TMP+2}, 0x3f803f80
    v_mov_b32 v{TMP+3}, 0x3f803f80
    v_mul_u32_u24 v3, {VSTR}, v1
    v_add_u32 v3, {VBASE+1024}, v3
    """)
    for i in range(16):
        k(f"v_mov_b32 v{O+i}, 0")
    k(f"""
    s_cmp_lg_u32 s25, 3
    s_cbranch_scc1 L_p2_noones
    ds_write_b128 v3, {r4(TMP)}
    ds_write_b128 v3, {r4(O)} offset:16
    """)
    k.label("L_p2_noones")
    k(f"""
    v_mov_b32 v{AK}, v2
    v_and_b32 v3, 15, v1
    v_lshlrev_b32 v3, 4, v3
    v_lshrrev_b32 v{TMP+4}, 5, v1
    v_lshl_add_u32 v3, v{TMP+4}, 8, v3
    v_mov_b32 v{TMP+6}, 1024
    v_and_b32 v{TMP+5}, 11, v1
    v_cmp_eq_u32 vcc, 0, v{TMP+5}
    v_mov_b32 v{TMP+7}, 1040
    v_cndmask_b32 v{TMP+6}, v{TMP+7}, v{TMP+6}, vcc
    v_and_b32 v{TMP+5}, 16, v1
    v_cmp_eq_u32 vcc, 0, v{TMP+5}
    v_subrev_u32 v{TMP+7}, 512, v{TMP+6}
    v_cndmask_b32 v{AV0}, v{TMP+6}, v3, vcc
    v_cndmask_b32 v{AV1}, v{TMP+7}, v3, vcc
    v_add_u32 v{AV0}, {VBASE}, v{AV0}
    v_add_u32 v{AV1}, {VBASE}, v{AV1}
    """)
    for i in range(4):
        k(f"v_mov_b32 v{P1+i}, 0")
        k(f"v_mov_b32 v{VFR+12+i}, 0")
    k("""
    s_cmp_lt_u32 s25, 4
    s_cselect_b32 s42, 99, 1
    s_cselect_b32 s41, 99, 0
    s_mov_b32 s35, 0
    """)
    k(f"""
    s_lshr_b32 s36, s27, 2
    s_lshl_b32 s36, s36, {12 if WIDE0 else 8}
    s_add_u32 s36, s36, {16384 if WIDE0 else 48*256}
    s_waitcnt lgkmcnt(0)
    """)
    wave_poll_flags(k, 1, 36, 32, int(E('PS0', '24')), int(E('PP0', '0')), 7 if WIDE0 else 2)
    stamp(k, 14)

    def dma_tile(t):
        k(f"""
        s_add_u32 s34, s31, {KF + t*1024}
        s_add_u32 m0, s30, {t*1024}
        buffer_load_dwordx4 v2, s[20:23], s34 offen sc1 lds
        s_add_u32 s34, s31, {VF + t*1024}
        s_add_u32 m0, s32, {t*VSTR}
        buffer_load_dwordx4 v2, s[20:23], s34 offen sc1 lds
        """)

    k("s_cmp_lt_u32 s25, 4")
    k("s_cbranch_scc0 L_p2_B")
    for t in range(0, 16, 4):
        dma_tile(t)
    k(f"buffer_load_dwordx4 {r4(Q)}, v2, s[20:23], s33 offen sc1")
    k("s_waitcnt vmcnt(7)")
    k("s_barrier")
    k("s_setprio 1")
    for t in range(16, 32, 4):
        dma_tile(t)
    k("s_waitcnt vmcnt(8)")
    k("s_barrier")
    for t in range(32, 64, 4):
        dma_tile(t)
    side_dma(k, TMP)
    k("s_waitcnt vmcnt(4)")
    k("s_barrier")
    k(f"""
    v_min_u32 v{TMP}, 13, v1
    v_lshlrev_b32 v{TMP}, 7, v{TMP}
    s_lshl_b32 s36, s2, 2
    s_add_u32 s36, s36, s26
    s_mul_i32 s37, s36, {14*128}
    """)
    srd(k, 16, PWD, PWD + 1, 1792 * 1024)
    k(f"""
    buffer_load_dword v{PF}, v{TMP}, s[16:19], s37 offen
    v_min_u32 v{TMP}, 3, v1
    v_lshlrev_b32 v{TMP}, 7, v{TMP}
    s_lshl_b32 s37, s36, 9
    """)
    srd(k, 16, PWO, PWO + 1, 512 * 1024)
    k(f"buffer_load_dword v{PF}, v{TMP}, s[16:19], s37 offen")
    k("s_branch L_p2_go")
    k.label("L_p2_B")
    k(f"""
    buffer_load_dwordx4 {r4(Q)}, v2, s[20:23], s33 offen sc1
    s_waitcnt vmcnt(0)
    s_barrier
    s_setprio 2
    """)
    k.label("L_p2_go")

    def Kr(b): return r4(KFR + 4 * b)
    def Vr(b, j): return r4(VFR + 8 * b + 4 * j)
    def Sr(b): return r16(S + 16 * b)
    Qr, Cr, Or = r4(Q), r16(C), r16(O)
    def rdK(t, b): k(f"ds_read_b128 {Kr(b)}, v{AK} offset:{t*1024}")

    def rdV(t, b):
        k(f"ds_read_b128 {Vr(b,0)}, v{AV0} offset:{t*VSTR}")
        k(f"ds_read_b128 {Vr(b,1)}, v{AV1} offset:{t*VSTR+512}")

    def tilemax(s1):
        k(f"""
        v_max3_f32 v{TMP}, v{s1}, v{s1+1}, v{s1+2}
        v_max3_f32 v{TMP+1}, v{s1+3}, v{s1+4}, v{s1+5}
        v_max3_f32 v{TMP+2}, v{s1+6}, v{s1+7}, v{s1+8}
        v_max3_f32 v{TMP+3}, v{s1+9}, v{s1+10}, v{s1+11}
        v_max3_f32 v{TMP}, v{TMP}, v{s1+12}, v{s1+13}
        v_max3_f32 v{TMP+1}, v{TMP+1}, v{s1+14}, v{s1+15}
        v_max3_f32 v{TMP}, v{TMP}, v{TMP+1}, v{TMP+2}
        v_max_f32 v{TMP}, v{TMP}, v{TMP+3}
        v_mov_b32 v{TMP+1}, v{TMP}
        v_permlane32_swap_b32 v{TMP}, v{TMP+1}
        """)
    k("s_waitcnt lgkmcnt(0)")
    rdK(0, 0)
    rdK(1, 1)
    rdV(0, 0)
    k("s_waitcnt lgkmcnt(3)")
    k(f"{MF32} {Sr(1)}, {Kr(0)}, {Qr}, 0")
    tilemax(S + 16)
    k(f"v_max_f32 v{TMP}, v{TMP}, v{TMP+1}")
    for i in range(16):
        k(f"v_sub_f32 v{C+i}, 0, v{TMP}")
    k(f"{MF32} {Sr(0)}, {Kr(0)}, {Qr}, {Cr}")
    k("s_nop 9")

    def Ex(b, a, n):
        for i in range(a, a + n):
            k(f"v_exp_f32 v{S+16*b+i}, v{S+16*b+i}")

    def CV(dst, b, i):
        k(f"v_cvt_pk_bf16_f32 v{dst}, v{S+16*b+2*i}, v{S+16*b+2*i+1}")

    def tile(t):
        b = t % 2
        nb = 1 - b
        k("s_waitcnt lgkmcnt(0)")
        k(f"{MF32} {Sr(nb)}, {Kr(nb)}, {Qr}, {Cr}")
        rdK(t + 2, b)
        Ex(b, 0, 4)
        k(f"{MF32} {Or}, {Vr(nb,1)}, {r4(P1)}, {Or}")
        rdV(t + 1, nb)
        Ex(b, 4, 2); CV(P0, b, 0)
        Ex(b, 6, 2); CV(P0 + 1, b, 1)
        Ex(b, 8, 2); CV(P0 + 2, b, 2)
        Ex(b, 10, 2); CV(P0 + 3, b, 3)
        Ex(b, 12, 2)
        k(f"{MF32} {Or}, {Vr(b,0)}, {r4(P0)}, {Or}")
        Ex(b, 14, 2)
        for i in range(4):
            CV(P1 + i, b, 4 + i)

    k.raw(".p2align 6")
    k.label("L_p2_loop")
    for t in range(8):
        if t in (2, 6):
            l = uid("nb")
            k(f"s_cmp_lg_u32 s35, s{41 if t == 2 else 42}")
            k(f"s_cbranch_scc1 {l}")
            k("s_barrier")
            k.label(l)
        tile(t)
    k(f"""
    v_add_u32 v{AK}, 8192, v{AK}
    v_add_u32 v{AV0}, {8*VSTR}, v{AV0}
    v_add_u32 v{AV1}, {8*VSTR}, v{AV1}
    s_cmp_lt_u32 s35, 6
    s_cbranch_scc1 L_p2_ev
    """)
    k.label("L_p2_evret")
    k("""
    s_add_u32 s35, s35, 1
    s_cmp_lg_u32 s35, 8
    s_cbranch_scc1 L_p2_loop
    """)
    k.check_backedge("L_p2_loop")
    k(f"{MF32} {Or}, {Vr(1,1)}, {r4(P1)}, {Or}")
    k("s_waitcnt lgkmcnt(0)")
    stamp(k, 3)
    k(f"""
    v_max3_f32 v{TMP}, abs(v{O}), abs(v{O+1}), abs(v{O+2})
    v_max3_f32 v{TMP+1}, abs(v{O+3}), abs(v{O+4}), abs(v{O+5})
    v_max3_f32 v{TMP}, v{TMP}, abs(v{O+6}), abs(v{O+7})
    v_add_f32 v{TMP+2}, v{O}, v{O+1}
    v_add_f32 v{TMP+3}, v{O+2}, v{O+3}
    v_add_f32 v{TMP+4}, v{O+4}, v{O+5}
    v_add_f32 v{TMP+5}, v{O+6}, v{O+7}
    v_add_f32 v{TMP+2}, v{TMP+2}, v{TMP+3}
    v_add_f32 v{TMP+4}, v{TMP+4}, v{TMP+5}
    v_add_f32 v{TMP+2}, v{TMP+2}, v{TMP+4}
    v_max_f32 v{TMP}, v{TMP}, v{TMP+1}
    s_mov_b32 s36, {f32(2.0**100)}
    s_mov_b32 s37, 0x7f000000
    v_cmp_gt_f32 vcc, s36, v{O+8}
    v_cmp_gt_f32 s[38:39], s37, v{TMP}
    v_cmp_o_f32 s[48:49], v{TMP+2}, v{TMP+2}
    s_and_b64 vcc, vcc, s[38:39]
    s_and_b64 vcc, vcc, s[48:49]
    s_cmp_eq_u64 vcc, exec
    s_cbranch_scc0 L_p2_slow
    """)
    k.label("L_p2_fin")
    k(f"v_rcp_f32 v{TMP}, v{O+8}")
    for i in range(8):
        k(f"v_mul_f32 v{O+i}, v{O+i}, v{TMP}")
    for i in range(4):
        k(f"v_cvt_pk_bf16_f32 v{O+i}, v{O+2*i}, v{O+2*i+1}")
    k(f"""
    s_lshl_b32 s36, s28, 15
    s_lshl_b32 s37, s27, 10
    s_add_u32 s36, s36, s37
    s_add_u32 s36, s36, {OF}
    buffer_store_dwordx4 {r4(O)}, v2, s[20:23], s36 offen sc1
    s_branch L_p3
    """)
    k.label("L_p2_ev")
    k("s_cmp_lt_u32 s25, 4")
    k("s_cbranch_scc0 L_p2_evB")

    k("s_cmp_lg_u32 s35, 1")
    k("s_cbranch_scc1 L_p2_evA1")
    side_job(k)
    k("s_branch L_p2_evret")
    k.label("L_p2_evA1")
    k(f"s_cmp_lg_u32 s35, {TITER}")
    k("s_cbranch_scc1 L_p2_evA2")
    k(f"""
    s_lshr_b32 s36, s2, 5
    s_lshl_b32 s36, s36, 8
    s_add_u32 s36, s36, {CNT + 40*256}
    v_mov_b32 v{TMP}, 0
    v_mov_b32 v{TMP+1}, 1
    s_waitcnt vmcnt(0)
    s_mov_b64 exec, 1
    buffer_atomic_add v{TMP+1}, v{TMP}, s[20:23], s36 offen sc1
    s_mov_b64 exec, -1
    """)
    k(f"""
    s_lshr_b32 s36, s2, 3
    s_lshl_b32 s36, s36, 2
    s_add_u32 s36, s36, s26
    v_min_u32 v{TMP}, 31, v1
    v_lshlrev_b32 v{TMP}, 7, v{TMP}
    s_lshl_b32 s37, s36, 12
    """)
    srd(k, 16, PWO, PWO + 1, 512 * 1024)
    k(f"""
    buffer_load_dword v{PF}, v{TMP}, s[16:19], s37 offen
    v_min_u32 v{TMP}, 15, v1
    v_lshlrev_b32 v{TMP}, 7, v{TMP}
    s_and_b32 s38, s2, 7
    s_lshl_b32 s38, s38, 18
    s_lshl_b32 s37, s36, 11
    s_add_u32 s37, s37, s38
    """)
    srd(k, 16, PX, PX + 1, 2 * MB)
    k(f"""
    buffer_load_dword v{PF}, v{TMP}, s[16:19], s37 offen
    s_add_u32 s37, s37, {HF}
    buffer_load_dword v{PF}, v{TMP}, s[20:23], s37 offen
    s_and_b32 s38, s2, 7
    s_lshl_b32 s38, s38, 15
    s_lshl_b32 s37, s36, 8
    s_add_u32 s37, s37, s38
    s_add_u32 s37, s37, {ST}
    v_min_u32 v{TMP}, 1, v1
    v_lshlrev_b32 v{TMP}, 7, v{TMP}
    buffer_load_dword v{PF}, v{TMP}, s[20:23], s37 offen
    s_and_b32 s38, s2, 7
    s_mul_i32 s38, s38, {8*112*1024}
    s_mul_i32 s37, s36, {7*1024}
    s_add_u32 s37, s37, s38
    s_add_u32 s37, s37, {AF}
    v_min_u32 v{TMP}, 55, v1
    v_lshlrev_b32 v{TMP}, 7, v{TMP}
    """)
    if "a" not in DATAWT:
        k(f"buffer_load_dword v{PF}, v{TMP}, s[20:23], s37 offen")
    DW = int(E("DW", "0"))
    if DW:
        srd(k, 16, PWD, PWD + 1, 1792 * 1024)
        k(f"s_mul_i32 s37, s36, {7*1024}")
        for i in range(DW):
            k(f"buffer_load_dword v{PF}, v{TMP}, s[16:19], s37 offen")
            k(f"s_add_u32 s37, s37, {896*1024}")
    k("s_branch L_p2_evret")
    k.label("L_p2_evA2")
    k(f"s_cmp_lg_u32 s35, {TITER+1}")
    k("s_cbranch_scc1 L_p2_evret")
    k(f"""
    s_lshr_b32 s36, s2, 3
    s_lshl_b32 s36, s36, 2
    s_add_u32 s36, s36, s26
    s_min_u32 s36, s36, 111
    s_lshl_b32 s36, s36, 15
    s_add_u32 s36, s36, {WGF}
    v_lshlrev_b32 v{TMP}, 7, v1
    """)
    for i in range(int(E("WT", "2"))):
        k(f"buffer_load_dword v{PF}, v{TMP}, s[20:23], s36 offen")
        k("s_add_u32 s36, s36, 8192")
    k("s_branch L_p2_evret")
    k.label("L_p2_evB")
    k(f"s_cmp_lg_u32 s35, {PDROP}")
    k("s_cbranch_scc1 L_p2_evret")
    k("s_setprio 0")
    k("s_branch L_p2_evret")
    k.label("L_p2_slow")
    M = TMP + 6
    k(f"v_subrev_u32 v{AK}, 65536, v{AK}")
    k(f"v_subrev_u32 v{AV0}, {64*VSTR}, v{AV0}")
    k(f"v_subrev_u32 v{AV1}, {64*VSTR}, v{AV1}")
    for i in range(16):
        k(f"v_mov_b32 v{O+i}, 0")
    k(f"v_mov_b32 v{M}, 0xff7fffff")
    k("s_mov_b32 s35, 64")
    k.label("L_p2_sloop")
    rdK(0, 0)
    rdV(0, 0)
    k("s_waitcnt lgkmcnt(0)")
    k(f"{MF32} {Sr(0)}, {Kr(0)}, {Qr}, 0")
    tilemax(S)
    k(f"""
    v_max3_f32 v{TMP}, v{TMP}, v{TMP+1}, v{M}
    v_sub_f32 v{TMP+1}, v{M}, v{TMP}
    v_exp_f32 v{TMP+1}, v{TMP+1}
    v_mov_b32 v{M}, v{TMP}
    """)
    for i in range(16):
        k(f"v_mul_f32 v{O+i}, v{O+i}, v{TMP+1}")
    for i in range(16):
        k(f"v_sub_f32 v{S+i}, v{S+i}, v{M}")
    Ex(0, 0, 16)
    for i in range(4):
        CV(P0 + i, 0, i)
        CV(P1 + i, 0, 4 + i)
    k(f"""
    {MF32} {Or}, {Vr(0,0)}, {r4(P0)}, {Or}
    {MF32} {Or}, {Vr(0,1)}, {r4(P1)}, {Or}
    v_add_u32 v{AK}, 1024, v{AK}
    v_add_u32 v{AV0}, {VSTR}, v{AV0}
    v_add_u32 v{AV1}, {VSTR}, v{AV1}
    s_nop 15
    s_sub_u32 s35, s35, 1
    s_cmp_lg_u32 s35, 0
    s_cbranch_scc1 L_p2_sloop
    """)
    k.check_backedge("L_p2_sloop")
    k("s_nop 15")
    k("s_branch L_p2_fin")


HKEEP, VL16, TRA, WD0 = 104, 112, 113, 113
HOFF4 = 3 * 28672
CSL4 = HOFF4 + 3 * 16384
NWS = int(E("NWS", "12"))
NAS = 20 - NWS
AOFF = NWS * 8192
EARLYW = E("EARLYW", "0") == "1"
PD = int(E("PD", "4"))
NB = PD + 1
XL = 131072
STAGED = False
DS, DV = 192, 115


def ids64(k):
    k("""
    s_and_b32 s27, s2, 7
    s_lshl_b32 s27, s27, 2
    s_lshr_b32 s28, s2, 3
    s_and_b32 s28, s28, 3
    s_add_u32 s27, s27, s28
    s_lshr_b32 s28, s2, 5
    s_and_b32 s29, s26, 1
    s_lshr_b32 s30, s26, 1
    s_lshl_b32 s31, s27, 1
    s_add_u32 s31, s31, s30
    """)


def p4_ids(k):
    k(f"""
    s_and_b32 s27, s2, 7
    s_lshl_b32 s27, s27, 1
    s_lshr_b32 s28, s2, 3
    s_and_b32 s28, s28, 1
    s_add_u32 s27, s27, s28
    s_lshr_b32 s28, s2, 4
    s_lshl_b32 s29, s27, 2
    s_add_u32 s29, s29, s26
    s_lshl_b32 s38, s29, 15
    s_add_u32 s38, s38, {HF}
    s_lshl_b32 s40, s26, 12
    s_add_u32 s40, s40, {HOFF4}
    s_cmp_lt_u32 s25, 4
    s_cselect_b32 s31, 2, 5
    s_cselect_b32 s35, 20, 0
    s_mul_i32 s31, s31, s26
    s_add_u32 s31, s31, s35
    s_lshl_b32 s34, s31, 10
    s_mul_i32 s32, s28, {7*32768}
    s_add_u32 s32, s32, {WGF}
    """)


def wstage(k, X, c):
    for o in wstage_ops(X, c):
        k(o)


def wstage_ops(X, c):
    n, base = (3, SX + 12 * (7 - c)) if X else (4, SY + 16 * (7 - c))
    return [f"ds_write_b128 v15, {r4(base + 4*i)} offset:{(c % 3)*28672 + i*1024}" for i in range(n)]


class LdsQ:
    def __init__(self, k):
        self.k, self.q = k, []

    def op(self, text, tag=None):
        self.k(text)
        self.q.append(tag)

    def wait(self, *tags):
        idx = [i for i, t in enumerate(self.q) if t in tags]
        if not idx:
            return
        n = len(self.q) - 1 - max(idx)
        assert n <= 15
        self.k(f"s_waitcnt lgkmcnt({n})")
        self.q = self.q[max(idx) + 1:]

    def clear(self):
        self.q = []


def p3(k):
    k.label("L_p3")
    k(f"v_lshlrev_b32 v{VL16}, 4, v1")
    ids64(k)
    k(f"""
    s_lshr_b32 s45, s2, 5
    s_lshl_b32 s45, s45, 8
    s_add_u32 s45, s45, {CNT}
    s_setprio 0
    s_waitcnt vmcnt(0)
    """)
    signal(k, 45, "add")
    k("s_cmp_lt_u32 s25, 4")
    k("s_cbranch_scc1 L_p3C")
    k(f"""
    s_lshl_b32 s34, s26, 11
    v_lshrrev_b32 v2, 3, v1
    v_bfe_u32 v3, v1, 2, 1
    v_bfe_u32 v4, v1, 4, 1
    v_xor_b32 v3, v3, v4
    v_and_b32 v4, 3, v1
    v_lshlrev_b32 v4, 4, v4
    v_lshl_add_u32 v4, v3, 6, v4
    v_lshl_add_u32 v4, v2, 10, v4
    s_lshl_b32 s35, s26, 14
    s_lshl_b32 s36, s28, 7
    s_add_u32 s35, s35, s36
    v_add_u32 v{WD0}, s35, v4
    v_add_u32 v{WD0+1}, 8192-1024, v{WD0}
    """)
    srd(k, 16, PWO, PWO + 1, 512 * 1024)
    srd(k, 56, PX, PX + 1, 2 * MB)
    for c in range(8):
        k(f"""
        s_mov_b32 s41, {c*65536}
        s_add_u32 m0, s34, {c*8192}
        buffer_load_dwordx4 v{WD0}, s[16:19], s41 offen lds
        buffer_load_dwordx4 v{WD0+1}, s[16:19], s41 offen offset:1024 lds
        """)
    k(f"""
    v_and_b32 v5, 7, v1
    v_xor_b32 v5, v5, v2
    v_lshlrev_b32 v5, 4, v5
    v_lshl_add_u32 v4, v2, 10, v5
    s_lshl_b32 s38, s27, 16
    s_add_u32 s38, s38, s35
    s_add_u32 m0, s34, {XL}
    buffer_load_dwordx4 v4, s[56:59], s38 offen lds
    s_add_u32 s38, s38, 8192
    s_add_u32 m0, s34, {XL+1024}
    buffer_load_dwordx4 v4, s[56:59], s38 offen lds
    s_lshl_b32 s32, s31, 15
    s_lshl_b32 s33, s29, 11
    s_add_u32 s32, s32, s33
    s_add_u32 s32, s32, {OF}
    s_barrier
    """)
    for c in range(8):
        k(f"""
        s_add_u32 s40, s32, {c*4096}
        s_add_u32 m0, s34, {65536 + c*8192}
        buffer_load_dwordx4 v{VL16}, s[20:23], s40 offen sc1 lds
        buffer_load_dwordx4 v{VL16}, s[20:23], s40 offen offset:1024 sc1 lds
        """)
    for c in range(8):
        k(f"s_waitcnt vmcnt({2*(7-c)})")
        k("s_barrier")
    p4_ids(k)
    srd(k, 16, PWD, PWD + 1, 1792 * 1024)
    k("s_mul_i32 s42, s26, 7")
    for j in range(7):
        k(f"""
        s_add_u32 s36, s42, {j}
        s_lshr_b32 s37, s36, 2
        s_lshl_b32 s37, s37, 15
        s_and_b32 s39, s36, 3
        s_lshl_b32 s39, s39, 10
        s_add_u32 s37, s37, s39
        v_add_u32 v{120+j}, s37, v{VL16}
        """)
    k("s_lshl_b32 s42, s42, 10")
    k("s_barrier")
    PRE = int(E("PRE3", "4"))
    for c in range(3):
        k(f"s_add_u32 s37, s32, {c*4096}")
        for j in range(7):
            if c * 7 + j == PRE:
                k("s_barrier")
            k(f"""
            s_add_u32 m0, s42, {c*28672 + j*1024}
            buffer_load_dwordx4 v{120+j}, s[20:23], s37 offen sc1 lds
            """)
    k("s_barrier")
    p4_body(k, False)
    p5_loader(k)
    k.label("L_p3C")
    VBA, RES, ACC, T, FR = 12, 20, 64, 80, 120
    k(f"""
    v_and_b32 v2, 31, v1
    v_lshrrev_b32 v3, 5, v1
    s_lshl_b32 s37, s28, 1
    s_add_u32 s37, s37, s29
    s_lshl_b32 s40, s30, 12
    s_add_u32 s40, s40, 65536
    v_add_u32 v{VBA}, s40, v{VL16}
    v_bfe_u32 v4, v1, 2, 2
    v_lshl_add_u32 v5, v3, 2, v4
    v_lshlrev_b32 v5, 7, v5
    v_lshrrev_b32 v4, 1, v4
    v_xor_b32 v4, s29, v4
    v_lshl_add_u32 v5, v4, 6, v5
    v_bfe_u32 v4, v1, 4, 1
    v_lshl_add_u32 v5, v4, 5, v5
    v_and_b32 v4, 3, v1
    v_lshl_add_u32 v{TRA}, v4, 3, v5
    s_lshl_b32 s38, s30, 12
    s_lshl_b32 s39, s29, 2
    v_and_b32 v4, 7, v2
    v_xor_b32 v4, s39, v4
    v_lshlrev_b32 v5, 7, v2
    v_lshl_add_u32 v5, v3, 3, v5
    v_add_u32 v5, s38, v5
    v_add_u32 v5, {XL}, v5
    """)
    for g in range(4):
        k(f"v_xor_b32 v{T+g}, {g}, v4")
        k(f"v_lshl_add_u32 v{T+g}, v{T+g}, 4, v5")
    k(f"""
    s_cmp_lg_u32 s25, 1
    s_cbranch_scc1 L_p3_w
    v_cmp_gt_u32 vcc, 8, v1
    v_lshlrev_b32 v7, 8, v1
    v_add_u32 v7, {40*256}, v7
    s_and_b32 s36, s2, 7
    s_lshl_b32 s36, s36, 8
    v_mov_b32 v8, s36
    v_cndmask_b32 v7, v8, v7, vcc
    v_mov_b32 v8, 32
    v_mov_b32 v9, 128
    v_cndmask_b32 v8, v8, v9, vcc
    """)
    poll(k, 7, 8, 6, int(E('PS1', '12')))
    k.label("L_p3_w")
    k("s_barrier")
    stamp(k, 4)

    def reads3(n):
        c, s_ = n // 4, n % 4
        b = FR + (n % NB) * 8
        k(f"ds_read_b128 {r4(b)}, v{VBA} offset:{c*8192 + s_*1024}")
        k(f"ds_read_b64_tr_b16 {pr(b+4)}, v{TRA} offset:{n*2048}")
        k(f"ds_read_b64_tr_b16 {pr(b+6)}, v{TRA} offset:{n*2048 + 1024}")

    k("s_barrier")
    k("s_waitcnt lgkmcnt(0)")
    for n in range(PD):
        reads3(n)
    for n in range(32):
        if n + PD < 32:
            if (n + PD) % 4 == 0:
                k("s_barrier")
            reads3(n + PD)
            k(f"s_waitcnt lgkmcnt({3*PD})")
        else:
            if n == 30:
                for g in range(4):
                    k(f"ds_read_b64 {pr(RES+2*g)}, v{T+g}")
            k(f"s_waitcnt lgkmcnt({3*(31-n) + (4 if n >= 30 else 0)})")
        b = FR + (n % NB) * 8
        k(f"{MF32} {r16(ACC)}, {r4(b+4)}, {r4(b)}, " + (r16(ACC) if n else "0"))
    k("s_waitcnt lgkmcnt(0)")
    k("s_barrier")
    stamp(k, 5)
    for i in range(8):
        k(f"v_lshlrev_b32 v{T+2*i}, 16, v{RES+i}")
        k(f"v_and_b32 v{T+2*i+1}, 0xffff0000, v{RES+i}")
    for r in range(0, 16, 2):
        k(f"v_pk_add_f32 {pr(ACC+r)}, {pr(ACC+r)}, {pr(T+r)}")
    for i in range(8):
        k(f"v_cvt_pk_bf16_f32 v{HKEEP+i}, v{ACC+2*i}, v{ACC+2*i+1}")
    k(f"""
    s_lshl_b32 s38, s31, 15
    s_lshl_b32 s39, s37, 11
    s_add_u32 s38, s38, s39
    s_add_u32 s38, s38, {HF}
    """)
    mstore(k, [f"buffer_store_dwordx4 {r4(HKEEP)}, v{VL16}, s[20:23], s38 offen",
               f"buffer_store_dwordx4 {r4(HKEEP+4)}, v{VL16}, s[20:23], s38 offen offset:1024"], "h")
    k(f"v_pk_add_f32 {pr(T)}, {pr(ACC)}, {pr(ACC+2)}")
    k(f"v_pk_mul_f32 {pr(T+2)}, {pr(ACC)}, {pr(ACC)}")
    k(f"v_pk_fma_f32 {pr(T+2)}, {pr(ACC+2)}, {pr(ACC+2)}, {pr(T+2)}")
    for r in range(4, 16, 2):
        k(f"v_pk_add_f32 {pr(T)}, {pr(T)}, {pr(ACC+r)}")
        k(f"v_pk_fma_f32 {pr(T+2)}, {pr(ACC+r)}, {pr(ACC+r)}, {pr(T+2)}")
    k(f"""
    v_add_f32 v{T}, v{T}, v{T+1}
    v_add_f32 v{T+1}, v{T+2}, v{T+3}
    v_mov_b32 v{T+2}, v{T}
    v_mov_b32 v{T+3}, v{T+1}
    v_permlane32_swap_b32 v{T}, v{T+2}
    v_permlane32_swap_b32 v{T+1}, v{T+3}
    v_add_f32 v{T}, v{T}, v{T+2}
    v_add_f32 v{T+1}, v{T+1}, v{T+3}
    v_lshlrev_b32 v4, 3, v2
    s_lshl_b32 s38, s31, 12
    s_lshl_b32 s39, s37, 8
    s_add_u32 s38, s38, s39
    s_add_u32 s38, s38, {ST}
    s_mov_b64 exec, 0xffffffff
    """)
    mstore(k, f"buffer_store_dwordx2 {pr(T)}, v4, s[20:23], s38 offen", "h")
    k(f"""
    s_mov_b64 exec, -1
    s_lshr_b32 s45, s27, 1
    s_lshl_b32 s45, s45, 8
    s_and_b32 s39, s27, 1
    s_lshl_b32 s39, s39, 3
    s_add_u32 s39, s39, s28
    s_lshl_b32 s39, s39, 2
    s_add_u32 s45, s45, s39
    s_add_u32 s45, s45, {CNT + 8*256}
    """)
    p4_ids(k)
    k("s_waitcnt vmcnt(0)")
    signal(k, 45, "lflag")
    k(f"""
    s_lshl_b32 s36, s27, 8
    s_add_u32 s36, s36, {8*256}
    """)
    wave_poll_flags(k, 1, 36, 16)
    stamp(k, 6)
    p4_body(k, True)
    p5_compute(k)


def wdma(k, c):
    k(f"""
    s_mov_b32 s41, {c*65536}
    s_add_u32 m0, s48, {(c % NWS)*8192}
    buffer_load_dwordx4 v{WD0}, s[16:19], s41 offen lds
    buffer_load_dwordx4 v{WD0+1}, s[16:19], s41 offen offset:1024 lds
    """)


def p4_body(k, X):
    tiles = [0, 1, 2, 3] if X else [4, 5, 6]
    NT = len(tiles)
    VWA, VHA, VCSA, HB, FR, ACC = 10, 13, 14, 16, 24, 40
    if E('ACC64') == '1':
        HB, FR, ACC = 208, 216, 32
    STT, T, CSB = 128, 144, 160
    MEAN, NMEAN, C1, C2 = 117, 118, 120, 122

    NW = 2 if X else 5
    VWD = 200

    def group_ops(c):
        ops = []
        if X:
            for i in range(4):
                p2 = f"s_add_u32 s39, s38, {c*4096}\ns_add_u32 m0, s40, {(c%3)*16384}\n" if i == 0 else ""
                ops.append(p2 + f"buffer_load_dwordx4 v{VL16}, s[20:23], s39 offen offset:{i*1024} sc1 lds")
        if c >= 3:
            for j in range(NW):
                p2 = f"s_add_u32 s37, s32, {c*4096}\n" if j == 0 else ""
                ops.append(p2 + f"s_add_u32 m0, s34, {(c%3)*28672 + j*1024}\nbuffer_load_dwordx4 v{VWD+j}, s[20:23], s37 offen sc1 lds")
        return ops

    for c in range(3):
        for o in group_ops(c):
            k(o)
    for j in range(NW):
        k(f"""
        s_add_u32 s35, s31, {j}
        s_lshr_b32 s36, s35, 2
        s_lshl_b32 s36, s36, 15
        s_and_b32 s35, s35, 3
        s_lshl_b32 s35, s35, 10
        s_add_u32 s35, s35, s36
        v_add_u32 v{VWD+j}, s35, v{VL16}
        """)
    k(f"""
    v_lshrrev_b32 v3, 5, v1
    v_mov_b32 v{VWA}, v{VL16}
    v_add_u32 v{VWA+1}, 28672, v{VWA}
    v_add_u32 v{VWA+2}, {2*28672}, v{VWA}
    v_add_u32 v{VHA}, s40, v{VL16}
    v_lshlrev_b32 v{VCSA}, 4, v3
    v_add_u32 v{VCSA}, {CSL4}, v{VCSA}
    """)

    Q = LdsQ(k)

    def rdh(n):
        c, s_ = n // 4, n % 4
        Q.op(f"ds_read_b128 {r4(HB + 4*(n % 2))}, v{VHA} offset:{(c%3)*16384 + s_*1024}", ("h", n))

    def rdw(n, i):
        c, s_ = n // 4, n % 4
        Q.op(f"ds_read_b128 {r4(FR+4*i)}, v{VWA + c % 3} offset:{tiles[i]*4096 + s_*1024}", ("w", n, i))

    vq = []

    def vop(text, tag):
        k(text)
        vq.append(tag)

    def vwait(tag, lg=""):
        idx = [i for i, t in enumerate(vq) if t == tag]
        n = len(vq) - 1 - max(idx) if idx else None
        if n is not None:
            k(f"s_waitcnt vmcnt({n}) {lg}")
        elif lg:
            k(f"s_waitcnt {lg}")

    for c in range(3):
        vq.extend([("H", c)] * (4 if X else 7))
    vwait(("H", 0), "lgkmcnt(0)")
    k("s_barrier")
    if X and STAMPS:
        stamp(k, 2); k("s_waitcnt lgkmcnt(0)")
    rdh(0)
    for i in range(NT):
        rdw(0, i)
    pend = []
    wpend = []
    for n in range(32):
        last = n == 31
        bar = (n + 1) % 4 == 0 and not last
        if bar:
            c1 = (n + 1) // 4
            for o, t in pend:
                vop(o, t)
            for o in wpend:
                Q.op(o)
            vwait(("H", c1), "lgkmcnt(0)")
            Q.clear()
            k("s_barrier")
            if X and STAMPS and c1 == int(E("MID", "4")):
                stamp(k, 15); k("s_waitcnt lgkmcnt(0)")
            pend = [(o, ("H", c1 + 2)) for o in group_ops(c1 + 2)] if c1 + 2 <= 7 else []
            if c1 == int(E("SL", "1")):
                ops = [f"s_lshl_b32 s36, s29, 12\ns_add_u32 s36, s36, {ST}\nv_lshlrev_b32 v8, 3, v1\n" +
                       f"buffer_load_dwordx2 {pr(STT)}, v8, s[20:23], s36 offen sc1"]
                for i in range(1, 8):
                    ops.append(f"buffer_load_dwordx2 {pr(STT+2*i)}, v8, s[20:23], s36 offen offset:{512*i} sc1")
                if X:
                    ops.append(f"""
                    v_min_u32 v5, 223, v0
                    v_cmp_lt_u32 vcc, 111, v5
                    v_mov_b32 v6, {1792-112}
                    v_cndmask_b32 v6, 0, v6, vcc
                    v_add_u32 v6, v6, v5
                    v_lshlrev_b32 v6, 4, v6
                    v_lshlrev_b32 v9, 2, v5
                    v_add_u32 v9, {CSL4}, v9
                    s_mul_i32 s37, s28, {112*16}
                    s_add_u32 s37, s37, {CS}
                    buffer_load_dwordx4 {r4(T)}, v6, s[20:23], s37 offen sc1""")
                    for q in range(1, 4):
                        ops.append(f"s_add_u32 s37, s37, {3584*16}\nbuffer_load_dwordx4 {r4(T+4*q)}, v6, s[20:23], s37 offen sc1")
                ops = [o.replace("s36", "s43").replace("s37", "s44") for o in ops]
                pend += [(o, "S") for o in ops]
            if c1 == 6:
                DW = int(E("DW", "0"))
                if not X and DW < 2 and E('TP', 'half') != 'late':
                    pend.append((f"""
                    v_min_u32 v5, 55, v1
                    v_lshlrev_b32 v6, 7, v5
                    s_lshr_b32 s37, s2, 3
                    s_lshl_b32 s37, s37, 2
                    s_add_u32 s37, s37, s26
                    s_mul_i32 s37, s37, {7*1024}
                    s_add_u32 s37, s37, {DW*896*1024}
                    buffer_load_dword v124, v6, s[16:19], s37 offen""", "T"))
                    if DW == 0 and E('TP', 'half') != 'half':
                        pend.append((f"s_add_u32 s37, s37, {896*1024}\nbuffer_load_dword v124, v6, s[16:19], s37 offen", "T"))
        b = HB + 4 * (n % 2)
        if not last:
            rdh(n + 1)
        for i in range(NT):
            A = r16(ACC + 16 * i)
            Q.wait(("h", n), ("w", n, i))
            k(f"{MF32} {A}, {r4(FR+4*i)}, {r4(b)}, " + (A if n else "0"))
            if not last:
                rdw(n + 1, i)
            if pend and (i % 2 == 0 or len(pend) > 6 or E('BURST') == '1'):
                vop(*pend.pop(0))
            if wpend and i == 1:
                Q.op(wpend.pop(0))
        if n == int(E("SN", "13")):
            vwait("S")
            if X:
                for st_ in (8, 4, 2, 1):
                    for i in range(st_):
                        k(f"v_add_f32 v{T+i}, v{T+i}, v{T+i+st_}")
            for i in range(1, 8):
                k(f"v_add_f32 v{STT}, v{STT}, v{STT+2*i}")
                k(f"v_add_f32 v{STT+1}, v{STT+1}, v{STT+2*i+1}")
            k(f"""
            v_mov_b32 v{STT+2}, v{STT}
            v_mov_b32 v{STT+3}, v{STT+1}
            v_permlane32_swap_b32 v{STT}, v{STT+2}
            v_permlane32_swap_b32 v{STT+1}, v{STT+3}
            v_add_f32 v{STT}, v{STT}, v{STT+2}
            v_add_f32 v{STT+1}, v{STT+1}, v{STT+3}
            v_mul_f32 v{MEAN}, {f32(1/512)}, v{STT}
            v_mul_f32 v{C2}, {f32(1/512)}, v{STT+1}
            v_fma_f32 v{C2}, -v{MEAN}, v{MEAN}, v{C2}
            v_max_f32 v{C2}, 0, v{C2}
            v_add_f32 v{C2}, {f32(1e-5)}, v{C2}
            v_rsq_f32 v{C1}, v{C2}
            v_mul_f32 v{C1}, {f32(-LOG2E)}, v{C1}
            v_mov_b32 v{C1+1}, v{C1}
            v_mov_b32 v{C2+1}, v{C2}
            v_sub_f32 v{NMEAN}, 0, v{MEAN}
            v_sub_f32 v{NMEAN+1}, 0, v{MEAN}
            """)
    if X:
        stamp(k, 7)
        k(f"ds_write_b32 v9, v{T}")
    k("s_waitcnt lgkmcnt(0)")
    k("s_barrier")
    wq = []
    if not X:
        k("s_lshl_b32 s48, s26, 11")
        if EARLYW:
            wq = list(range(NWS))

    def wpop(n=1):
        for _ in range(n):
            if wq:
                wdma(k, wq.pop(0))

    k(f"""
    s_mul_i32 s36, s29, {112*1024}
    s_mul_i32 s37, s28, {7*1024}
    s_add_u32 s36, s36, s37
    s_add_u32 s36, s36, {AF + tiles[0]*1024}
    """)

    def csread(i):
        p = tiles[i]
        d = CSB + (i % 2) * 16
        k(f"ds_read_b128 {r4(d)}, v{VCSA} offset:{p*64}")
        k(f"ds_read_b128 {r4(d+4)}, v{VCSA} offset:{p*64+32}")
        k(f"ds_read_b128 {r4(d+8)}, v{VCSA} offset:{448+p*64}")
        k(f"ds_read_b128 {r4(d+12)}, v{VCSA} offset:{448+p*64+32}")

    csread(0)
    for i in range(NT):
        k("s_waitcnt lgkmcnt(0)")
        if i + 1 < NT:
            csread(i + 1)
        d = CSB + (i % 2) * 16
        A = ACC + 16 * i
        wpop(2)
        for r in range(0, 16, 2):
            k(f"v_pk_fma_f32 {pr(A+r)}, {pr(NMEAN)}, {pr(d+r)}, {pr(A+r)}")
        for r in range(0, 8, 2):
            k(f"v_pk_mul_f32 {pr(T+r)}, {pr(A+r)}, {pr(C1)}")
        for r in range(8):
            k(f"v_exp_f32 v{T+r}, v{T+r}")
        wpop(2)
        for r in range(0, 8, 2):
            k(f"v_pk_mul_f32 {pr(A+r)}, {pr(A+r)}, {pr(A+8+r)}")
        for r in range(0, 8, 2):
            k(f"v_pk_fma_f32 {pr(T+r)}, {pr(T+r)}, {pr(C2)}, {pr(C2)}")
        for r in range(8):
            k(f"v_rcp_f32 v{T+r}, v{T+r}")
        for r in range(0, 8, 2):
            k(f"v_pk_mul_f32 {pr(A+r)}, {pr(A+r)}, {pr(T+r)}")
        if i == NT - 1:
            wpop(99)
        for j in range(4):
            k(f"v_cvt_pk_bf16_f32 v{A+j}, v{A+2*j}, v{A+2*j+1}")
        mstore(k, f"buffer_store_dwordx4 {r4(A)}, v{VL16}, s[20:23], s36 offen offset:{i*1024}", "a")
    k(f"""
    s_lshl_b32 s45, s27, 8
    s_lshl_b32 s39, s28, 2
    s_add_u32 s45, s45, s39
    s_add_u32 s45, s45, {CNT + 24*256}
    """)


def dwrite(c):
    ws = c % NWS
    a, off = (DV, ws * 8192) if ws < 7 else (DV + 1, (ws - 7) * 8192)
    return f"ds_write_b128 v{a}, {r4(DS + 4*(27 - c))} offset:{off}"


def dsetup(k):
    k(f"""
    s_lshl_b32 s35, s25, 10
    v_add_u32 v{DV}, s35, v{VL16}
    v_add_u32 v{DV+1}, 57344, v{DV}
    """)


def p5_loader(k):
    ids64(k)
    k(f"""
    s_lshl_b32 s34, s26, 11
    s_mul_i32 s32, s31, {112*1024}
    s_lshl_b32 s33, s29, 11
    s_add_u32 s32, s32, s33
    s_add_u32 s32, s32, {AF}
    """)

    def adma(c):
        k(f"""
        s_add_u32 s40, s32, {c*4096}
        s_add_u32 m0, s34, {AOFF + (c % NAS)*8192}
        buffer_load_dwordx4 v{VL16}, s[20:23], s40 offen sc1 lds
        buffer_load_dwordx4 v{VL16}, s[20:23], s40 offen offset:1024 sc1 lds
        """)

    if EARLYW:
        k("s_waitcnt vmcnt(0)")
        k("s_barrier")
    else:
        for c in range(4):
            wdma(k, c)
        k("s_waitcnt vmcnt(8)")
        k("s_barrier")
        for c in range(4, NWS):
            wdma(k, c)
        if E('TP', 'half') in ('late', 'half'):
            k(f"""
            v_min_u32 v5, 55, v1
            v_lshlrev_b32 v6, 7, v5
            s_lshr_b32 s37, s2, 3
            s_lshl_b32 s37, s37, 2
            s_add_u32 s37, s37, s26
            s_mul_i32 s37, s37, {7*1024}
            s_add_u32 s37, s37, {896*1024}
            buffer_load_dword v124, v6, s[16:19], s37 offen
            """)
    k("s_barrier")
    order = []
    ia, iw = 0, NWS
    for c in range(NAS - 2):
        adma(c); order.append(("a", c)); ia += 1
    for c in range(28):
        need = max(i for i, g in enumerate(order) if g == ("a", c) or g == ("w", c))
        k(f"s_waitcnt vmcnt({2*(len(order) - 1 - need)}) lgkmcnt(0)")
        k("s_barrier")
        if ia < 28 and ia <= c - 2 + NAS:
            adma(ia); order.append(("a", ia)); ia += 1
        if iw < 28 and iw <= c - 2 + NWS:
            if STAGED:
                k(dwrite(iw))
            else:
                wdma(k, iw); order.append(("w", iw))
            iw += 1
    k("s_endpgm")


def p5_compute(k):
    VBA, VWA, ACC, T, FR = 12, 13, 64, 80, 120
    k("s_waitcnt vmcnt(0)")
    stamp(k, 8)
    signal(k, 45, "lflag")
    ids64(k)
    srd(k, 56, POUT, POUT + 1, 2 * MB)
    k(f"""
    v_and_b32 v2, 31, v1
    v_lshrrev_b32 v3, 5, v1
    s_lshl_b32 s37, s28, 1
    s_add_u32 s37, s37, s29
    s_lshl_b32 s40, s30, 12
    s_add_u32 s40, s40, {AOFF}
    v_add_u32 v{VBA}, s40, v{VL16}
    v_add_u32 v{VWA}, 57344, v{TRA}
    """)
    for i in range(8):
        k(f"v_lshlrev_b32 v{T+2*i}, 16, v{HKEEP+i}")
        k(f"v_and_b32 v{T+2*i+1}, 0xffff0000, v{HKEEP+i}")
    k(f"""
    s_lshr_b32 s36, s27, 1
    s_lshl_b32 s36, s36, 8
    s_add_u32 s36, s36, {24*256}
    """)
    wave_poll_flags(k, 1, 36, 16)
    stamp(k, 9)

    Q = LdsQ(k)
    PD5 = min(PD, 3) if STAGED else PD
    NB5 = PD5 + 1

    def reads(n):
        c, s_ = n // 4, n % 4
        b = FR + (n % NB5) * 8
        ws = c % NWS
        wr, woff = (f"v{TRA}", ws * 8192) if ws < 7 else (f"v{VWA}", (ws - 7) * 8192)
        Q.op(f"ds_read_b128 {r4(b)}, v{VBA} offset:{(c % NAS)*8192 + s_*1024}", n)
        Q.op(f"ds_read_b64_tr_b16 {pr(b+4)}, {wr} offset:{woff + s_*2048}", n)
        Q.op(f"ds_read_b64_tr_b16 {pr(b+6)}, {wr} offset:{woff + s_*2048 + 1024}", n)

    k("s_barrier")
    k("s_waitcnt lgkmcnt(0)")
    for n in range(PD5):
        reads(n)
    KS = 112
    for n in range(KS):
        if n + PD5 < KS:
            if (n + PD5) % 4 == 0:
                c = (n + PD5) // 4
                k("s_barrier")
                iw = c - 2 + NWS
                if STAGED and NWS <= iw < 28:
                    Q.op(dwrite(iw))
            reads(n + PD5)
        Q.wait(n)
        b = FR + (n % NB5) * 8
        k(f"{MF32} {r16(ACC)}, {r4(b+4)}, {r4(b)}, " + (r16(ACC) if n else r16(T)))
    stamp(k, 10)
    for i in range(8):
        k(f"v_cvt_pk_bf16_f32 v{ACC+i}, v{ACC+2*i}, v{ACC+2*i+1}")
    k(f"""
    v_lshlrev_b32 v4, 10, v2
    v_lshl_add_u32 v4, v3, 4, v4
    v_permlane32_swap_b32 v{ACC}, v{ACC+2}
    v_permlane32_swap_b32 v{ACC+1}, v{ACC+3}
    v_permlane32_swap_b32 v{ACC+4}, v{ACC+6}
    v_permlane32_swap_b32 v{ACC+5}, v{ACC+7}
    s_lshl_b32 s38, s31, 15
    s_lshl_b32 s39, s37, 6
    s_add_u32 s38, s38, s39
    buffer_store_dwordx4 {r4(ACC)}, v4, s[56:59], s38 offen
    buffer_store_dwordx4 {r4(ACC+4)}, v4, s[56:59], s38 offen offset:32
    """)
    stamp(k, 11); stamp(k, 12, True); stamp_flush(k, 16)
    k.label("L_end")
    k("s_endpgm")


def build(out):
    k = Kern(MONO)
    p1(k)
    p2(k)
    p3(k)
    k.label("L_codeend")
    k("s_nop 0")
    hdr = open("sequential_preLN__softmax_full_mha__swiglu_ffn__prompt.s.ref").read().split("; Override launch")[0]
    l = "grid=(256,1,1) block=(512,1,1) lds=163840"
    hdr += f"; @launch kernel={MONO} {l}\n" if (STAMPS or E("LIST") == "1") else f"; @launch {l}\n"
    open(out, "w").write(hdr + '.amdgcn_target "amdgcn-amd-amdhsa--gfx950"\n' + k.full())


if __name__ == "__main__":
    import sys
    build(sys.argv[1])
```

```python
import os
from dsl import Kern
import common
from common import MB, QF, KF, VF, OF, HF, ST, CS, AF, WGF, CNT, WS_BYTES, LOG2E, f32, srd, MONO

E = os.environ.get
STAMPS = E("STAMPS") == "1"
SPIN = 1 << 20
SMODE = 24
SIDE = 147456
WIDE0 = E('WIDE0', '0') == '1'
PX, PQKV, PWS, PWO, PWD, POUT, PG, PU, PDBG = 4, 6, 8, 10, 12, 14, 60, 62, 64
SB = 66


DIAG = E("DIAG")


def stamp(k, i, rt=False):
    if DIAG and int(DIAG) == i:
        k("s_memrealtime s[92:93]")
    if STAMPS:
        k(f"{'s_memrealtime' if rt else 's_memtime'} s[{SB+2*i}:{SB+1+2*i}]")


def stamp_flush(k, n):
    if not STAMPS:
        return
    k(f"""
    s_waitcnt lgkmcnt(0)
    s_lshl_b32 s51, s2, 4
    s_add_u32 s51, s51, s25
    s_lshl_b32 s51, s51, 6
    s_add_u32 s51, s51, {66*MB}
    v_mov_b32 v0, 0
    """)
    for i in range(n):
        k(f"v_mov_b32 v1, s{SB+2*i}")
        k(f"buffer_store_dword v1, v0, s[20:23], s51 offen offset:{4*i}")


_n = [0]


def uid(p):
    _n[0] += 1
    return f"L_{p}{_n[0]}"


DATAWT = E("DATAWT", "a")


def mstore(k, instrs, kind="flag"):
    if isinstance(instrs, str):
        instrs = [instrs]
    if kind in DATAWT:
        for i in instrs:
            k(i + " sc1")
        return
    g, e = uid("msg"), uid("mse")
    k(f"s_cmp_eq_u32 s{SMODE}, 0")
    k(f"s_cbranch_scc1 {g}")
    for i in instrs:
        k(i)
    k(f"s_branch {e}")
    k.label(g)
    for i in instrs:
        k(i + " sc1")
    k.label(e)


def one_lane(k, instr_fn):
    k("s_mov_b64 exec, 1")
    instr_fn()
    k("s_mov_b64 exec, -1")


def signal(k, soff, kind):
    l = uid("sig")
    k(f"""
    s_barrier
    s_cmp_lg_u32 s25, 0
    s_cbranch_scc1 {l}
    v_mov_b32 v4, 0
    v_mov_b32 v5, 1
    s_mov_b64 exec, 1
    """)
    if kind == "add":
        k(f"buffer_atomic_add v5, v4, s[20:23], s{soff} offen sc1")
    elif kind == "flag":
        k(f"buffer_store_dword v5, v4, s[20:23], s{soff} offen sc1")
    else:
        mstore(k, f"buffer_store_dword v5, v4, s[20:23], s{soff} offen")
    k("s_mov_b64 exec, -1")
    k.label(l)


def poll(k, vaddr, vexp, vtmp, sleep=0):
    l = uid("poll")
    k(f"s_mov_b32 s46, {CNT}")
    k("s_mov_b32 s47, 0")
    k.label(l)
    if sleep:
        k(f"s_sleep {sleep}")
    k(f"""
    buffer_load_dword v{vtmp}, v{vaddr}, s[20:23], s46 offen sc1
    s_add_u32 s47, s47, 1
    s_waitcnt vmcnt(0)
    v_cmp_gt_u32 vcc, v{vexp}, v{vtmp}
    s_cmp_gt_u32 s47, {SPIN}
    s_cbranch_scc1 {l}_out
    s_cbranch_vccnz {l}
    """)
    k.label(f"{l}_out")


def wave_poll_flags(k, wave, sgrp, G, sleep=0, pre=0, stride=2):
    l = uid("wp")
    k(f"""
    s_cmp_lg_u32 s25, {wave}
    s_cbranch_scc1 {l}
    v_and_b32 v7, {G-1}, v1
    v_lshlrev_b32 v7, {stride}, v7
    v_add_u32 v7, s{sgrp}, v7
    v_mov_b32 v8, 1
    """)
    poll(k, 7, 8, 6, sleep)
    k.label(l)
    k("s_barrier")


def pr(x):
    return f"v[{x}:{x+1}]"


def r4(x):
    return f"v[{x}:{x+3}]"


def r16(x):
    return f"v[{x}:{x+15}]"


MF32 = "v_mfma_f32_32x32x16_bf16"
MF16 = "v_mfma_f32_16x16x32_bf16"


def p1(k):
    NST, STAGE, WOFF = 4, 32768, 8192
    SCR = NST * STAGE
    VXD, VWD, VXA, VWA, FR, ACC, CSA, SEL, T, SUM, PF = 10, 12, 20, 28, 40, 80, 128, 144, 156, 164, 168
    k(f"""
    s_load_dwordx4 s[4:7], s[0:1], 0
    s_load_dwordx4 s[64:67], s[0:1], 64
    s_cmp_ge_u32 s2, 256
    s_cbranch_scc1 L_end
    s_getpc_b64 s[46:47]
    """)
    if DIAG:
        k("s_memrealtime s[90:91]")
    k.label("L_pc")
    k(f"""
    v_lshlrev_b32 v2, 6, v0
    v_min_u32 v3, L_codeend-L_pc, v2
    global_load_dword v{PF}, v3, s[46:47]
    v_add_u32 v2, 32768, v2
    v_min_u32 v3, L_codeend-L_pc, v2
    global_load_dword v{PF}, v3, s[46:47]
    v_and_b32 v1, 63, v0
    v_lshrrev_b32 v2, 6, v0
    """)
    k("v_readfirstlane_b32 s25, v2")
    k(f"""
    s_and_b32 s27, s2, 6
    s_lshl_b32 s27, s27, 2
    s_lshr_b32 s28, s2, 3
    s_and_b32 s41, s28, 7
    s_add_u32 s27, s27, s41
    s_and_b32 s28, s2, 1
    s_lshl_b32 s28, s28, 2
    s_lshr_b32 s29, s2, 6
    s_add_u32 s28, s28, s29
    s_and_b32 s26, s25, 3
    s_getreg_b32 s30, hwreg(HW_REG_XCC_ID)
    s_and_b32 s30, s30, 7
    {E("FAKEXCC", "")}
    s_mul_i32 s31, s30, s30
    s_lshl_b32 s31, s31, 16
    s_lshl_b32 s30, s30, 8
    s_add_u32 s30, s30, s31
    s_add_u32 s51, s30, 1
    s_cmp_lt_u32 s25, 4
    s_cbranch_scc1 L_p1_M
    """)
    k(f"""
    s_lshl_b32 s29, s29, 1
    s_add_u32 s41, s41, s29
    s_and_b32 s41, s41, {E("ROTMASK", "7")}
    v_lshrrev_b32 v8, 3, v1
    v_and_b32 v9, 7, v1
    s_lshl_b32 s30, s27, 16
    s_lshl_b32 s31, s26, 14
    s_add_u32 s30, s30, s31
    v_lshrrev_b32 v5, 1, v8
    v_xor_b32 v5, v5, v9
    v_lshlrev_b32 v5, 4, v5
    v_lshl_add_u32 v5, v8, 10, v5
    v_add_u32 v{VXD}, s30, v5
    v_xor_b32 v5, 64, v5
    v_add_u32 v5, 8192, v5
    v_add_u32 v{VXD+1}, s30, v5
    s_lshl_b32 s34, s26, 11
    s_mul_i32 s31, s26, {16*3072}
    s_lshl_b32 s32, s28, 7
    s_add_u32 s31, s31, s32
    v_bfe_u32 v4, v1, 4, 1
    v_lshlrev_b32 v4, 2, v4
    v_xor_b32 v4, v4, v9
    v_lshlrev_b32 v4, 4, v4
    v_mul_u32_u24 v5, 3072, v8
    v_add3_u32 v{VWD}, v4, v5, s31
    s_add_u32 s35, s34, {WOFF}
    s_waitcnt lgkmcnt(0)
    s_mov_b32 s8, s66
    s_mov_b32 s9, s67
    """)
    srd(k, 52, PX, PX + 1, 2 * MB)
    srd(k, 16, PQKV, PQKV + 1, 512 * 3072)

    def xops(c):
        st = (c % NST) * STAGE
        ops = []
        for i in range(2):
            pre = f"s_add_u32 s36, s41, {c}\ns_and_b32 s36, s36, 7\ns_mul_i32 s37, s36, {64*3072}\ns_lshl_b32 s36, s36, 7\n" if i == 0 else ""
            ops.append(pre + f"s_add_u32 m0, s34, {st + i*1024}\nbuffer_load_dwordx4 v{VXD+i}, s[52:55], s36 offen lds")
        return ops

    def wop(c, j):
        st = (c % NST) * STAGE
        t, i = j >> 1, j & 1
        return (f"s_add_u32 s38, s37, {t*1024 + i*8*3072}\ns_add_u32 m0, s35, {st + t*8192 + i*1024}\n"
                f"buffer_load_dwordx4 v{VWD}, s[16:19], s38 offen lds")

    def group_ops(c):
        return xops(c) + [wop(c, j) for j in range(6)]

    for o in group_ops(0):
        k(o)
    k("s_barrier")
    for o in group_ops(1):
        k(o)
    k(f"""
    s_load_dwordx2 s[10:11], s[0:1], 16
    s_load_dwordx4 s[12:15], s[0:1], 48
    v_and_b32 v2, 31, v1
    v_lshrrev_b32 v3, 5, v1
    v_lshrrev_b32 v4, 1, v2
    v_and_b32 v4, 7, v4
    v_lshlrev_b32 v5, 7, v2
    s_and_b32 s36, s26, 1
    s_lshl_b32 s36, s36, 12
    v_add_u32 v5, s36, v5
    s_lshr_b32 s39, s26, 1
    s_lshl_b32 s39, s39, 2
    v_add_u32 v6, s39, v3
    s_mov_b32 s43, 0xffff0000
    """)
    srd(k, 56, PDBG, PDBG + 1, 256)
    srd(k, 20, PWS, PWS + 1, WS_BYTES)
    for p in range(2):
        k(f"""
        v_add_u32 v7, {2*p}, v6
        v_xor_b32 v7, v7, v4
        v_lshl_add_u32 v{VXA+p}, v7, 4, v5
        v_add_u32 v{VXA+4+p}, {2*STAGE}, v{VXA+p}
        """)
    for i in range(4):
        k(f"v_mov_b32 v{SUM+i}, 0")

    def stats(c, pend):
        fb = FR + 8 * (c % 2)
        for j in range(8):
            if pend:
                k(pend.pop(0))
            lo, hi = T + 2 * (j % 4), T + 2 * (j % 4) + 1
            k(f"""
            v_lshlrev_b32 v{lo}, 16, v{fb+j}
            v_and_b32 v{hi}, s43, v{fb+j}
            v_add_f32 v{SUM}, v{SUM}, v{lo}
            v_add_f32 v{SUM+1}, v{SUM+1}, v{hi}
            v_fmac_f32 v{SUM+2}, v{lo}, v{lo}
            v_fmac_f32 v{SUM+3}, v{hi}, v{hi}
            """)

    for c in range(8):
        k(f"s_waitcnt vmcnt({(8 if c + 1 <= 7 else 0) + (1 if c == 6 else 0)}) lgkmcnt(0)")
        k("s_barrier")
        st = c % NST
        fb = FR + 8 * (c % 2)
        for p in range(2):
            k(f"ds_read_b128 {r4(fb+4*p)}, v{VXA + 4*(st//2) + p} offset:{(st%2)*STAGE}")
        pend = group_ops(c + 2) if c + 2 <= 7 else []
        if c:
            stats(c - 1, pend)
        for o in pend:
            k(o)
        if c == 5:
            k("""
            s_and_b32 s36, s2, 7
            s_lshl_b32 s36, s36, 5
            v_mov_b32 v170, s36
            v_cmp_eq_u32 vcc, 1, v1
            v_mov_b32 v171, 16
            v_cndmask_b32 v170, v170, v171, vcc
            buffer_load_dword v171, v170, s[56:59], 0 offen sc1
            """)
    k("s_waitcnt lgkmcnt(0)")
    stats(7, [])
    k("s_mov_b32 s47, 0")
    k.label("L_t_chk")
    k(f"""
    v_readlane_b32 s36, v171, 0
    v_readlane_b32 s37, v171, 1
    s_and_b32 s38, s36, 255
    s_cmp_gt_u32 s47, {SPIN}
    s_cbranch_scc1 L_t_ok
    s_cmp_lt_u32 s38, 32
    s_cbranch_scc1 L_t_again
    s_cmp_ge_u32 s37, 1
    s_cbranch_scc1 L_t_ok
    """)
    k.label("L_t_again")
    k("""
    buffer_load_dword v171, v170, s[56:59], 0 offen sc1
    s_add_u32 s47, s47, 1
    s_waitcnt vmcnt(0)
    s_branch L_t_chk
    """)
    k.label("L_t_ok")
    k(f"""
    s_lshl_b32 s38, s51, 5
    s_cmp_eq_u32 s36, s38
    s_cselect_b32 s{SMODE}, {E("FORCEMODE", "1")}, 0
    v_mov_b32 v170, {SCR + 1536}
    v_mov_b32 v171, s{SMODE}
    ds_write_b32 v170, v171
    v_add_f32 v164, v164, v165
    v_add_f32 v166, v166, v167
    v_mov_b32 v165, v164
    v_mov_b32 v167, v166
    v_permlane32_swap_b32 v164, v165
    v_permlane32_swap_b32 v166, v167
    v_add_f32 v164, v164, v165
    v_add_f32 v166, v166, v167
    s_lshl_b32 s37, s26, 8
    v_lshlrev_b32 v4, 2, v2
    v_add_u32 v6, s37, v4
    v_add_u32 v6, {SCR+2048}, v6
    ds_write_b32 v6, v164
    ds_write_b32 v6, v166 offset:128
    v_xor_b32 v7, 512, v6
    s_waitcnt lgkmcnt(0)
    s_barrier
    ds_read_b32 v165, v7
    ds_read_b32 v167, v7 offset:128
    v_and_b32 v6, 0xfffffdff, v6
    s_waitcnt lgkmcnt(0)
    v_add_f32 v164, v164, v165
    v_add_f32 v166, v166, v167
    v_mul_f32 v164, {f32(-1/512)}, v164
    v_mul_f32 v166, {f32(1/512)}, v166
    v_fma_f32 v166, -v164, v164, v166
    v_max_f32 v166, 0, v166
    v_add_f32 v166, {f32(1e-5)}, v166
    v_rsq_f32 v165, v166
    ds_write_b32 v6, v164 offset:1024
    ds_write_b32 v6, v165 offset:1152
    s_waitcnt lgkmcnt(0)
    s_barrier
    s_barrier
    """)
    k("s_branch L_p2")
    k.label("L_p1_M")
    k("s_setprio 1")
    k(f"""
    s_and_b32 s30, s26, 1
    s_lshr_b32 s31, s26, 1
    s_lshl_b32 s29, s27, 1
    s_add_u32 s29, s29, s30
    v_and_b32 v2, 31, v1
    v_lshrrev_b32 v3, 5, v1
    v_lshrrev_b32 v4, 1, v2
    v_and_b32 v4, 7, v4
    v_lshlrev_b32 v5, 7, v2
    s_lshl_b32 s34, s30, 12
    v_add_u32 v5, s34, v5
    v_bfe_u32 v6, v1, 2, 2
    v_lshrrev_b32 v7, 1, v6
    v_xor_b32 v7, s31, v7
    v_lshl_add_u32 v6, v3, 3, v6
    v_lshlrev_b32 v6, 7, v6
    v_lshl_add_u32 v6, v7, 6, v6
    v_bfe_u32 v7, v1, 4, 1
    v_lshl_add_u32 v6, v7, 5, v6
    v_and_b32 v7, 3, v1
    v_lshl_add_u32 v6, v7, 3, v6
    v_add_u32 v6, {WOFF}, v6
    s_waitcnt lgkmcnt(0)
    s_mov_b32 s8, s66
    s_mov_b32 s9, s67
    s_load_dwordx2 s[10:11], s[0:1], 16
    s_load_dwordx4 s[12:15], s[0:1], 48
    s_load_dwordx4 s[60:63], s[0:1], 32
    """)
    stamp(k, 0, True); stamp(k, 1)
    srd(k, 56, PDBG, PDBG + 1, 256)
    srd(k, 20, PWS, PWS + 1, WS_BYTES)
    k(f"""
    s_cmp_lg_u32 s25, 1
    s_cbranch_scc1 L_t_notk
    s_and_b32 s36, s2, 7
    s_lshl_b32 s36, s36, 5
    v_mov_b32 v7, 0
    v_mov_b32 v8, s51
    s_mov_b64 exec, 1
    buffer_atomic_add v8, v7, s[56:59], s36 offen sc1
    s_mov_b64 exec, -1
    """)
    k.label("L_t_notk")
    k("s_barrier")
    k(f"""
    s_add_u32 s36, s2, s25
    s_cmp_lg_u32 s36, 0
    s_cbranch_scc1 L_t_nz
    v_lshrrev_b32 v7, 3, v1
    v_and_b32 v9, 7, v1
    v_lshlrev_b32 v7, 8, v7
    v_lshl_add_u32 v7, v9, 4, v7
    v_mov_b32 v8, 0
    v_mov_b32 v9, 0
    v_mov_b32 v10, 0
    v_mov_b32 v11, 0
    """)
    for i in range(8):
        k(f"s_mov_b32 s36, {CNT + i*2048}")
        k("buffer_store_dwordx4 v[8:11], v7, s[20:23], s36 offen sc1")
    if WIDE0:
        k("v_lshlrev_b32 v7, 7, v1")
        for i in range(4):
            k(f"s_mov_b32 s36, {CNT + 16384 + i*8192}")
            k("buffer_store_dword v8, v7, s[20:23], s36 offen sc1")
    k("""
    v_mov_b32 v12, 1
    s_waitcnt vmcnt(0)
    s_mov_b64 exec, 1
    buffer_store_dword v12, v8, s[56:59], 0 offen offset:16 sc1
    s_mov_b64 exec, -1
    """)
    k.label("L_t_nz")
    for p in range(4):
        k(f"""
        s_add_u32 s36, s30, {p}
        s_and_b32 s36, s36, 3
        s_lshl_b32 s37, s36, 1
        s_lshl_b32 s38, s36, 11
        v_add_u32 v7, s37, v3
        v_xor_b32 v7, v7, v4
        v_lshl_add_u32 v{VXA+p}, v7, 4, v5
        v_add_u32 v{VWA+p}, s38, v6
        v_add_u32 v{VXA+4+p}, {2*STAGE}, v{VXA+p}
        v_add_u32 v{VWA+4+p}, {2*STAGE}, v{VWA+p}
        """)
    k("""
    v_and_b32 v7, 15, v1
    v_bfe_u32 v8, v1, 4, 1
    v_sub_u32 v7, v7, v8
    v_mov_b32 v8, 0x3f803f80
    """)
    for t in range(3):
        k(f"v_cmp_eq_u32 vcc, {2*t}, v7")
        for i in range(4):
            k(f"v_cndmask_b32 v{SEL+4*t+i}, 0, v8, vcc")
    k(f"""
    v_lshlrev_b32 v4, 2, v2
    v_add_u32 v4, {SCR+5120}, v4
    v_and_b32 v5, 15, v1
    v_lshlrev_b32 v5, 2, v5
    v_lshrrev_b32 v7, 4, v1
    v_lshl_add_u32 v5, v7, 8, v5
    v_add_u32 v5, {SCR+5120}, v5
    s_lshl_b32 s36, s26, 10
    v_add_u32 v5, s36, v5
    s_lshl_b32 s36, s31, 11
    v_add_u32 v4, s36, v4
    v_lshlrev_b32 v7, 2, v1
    v_add_u32 v7, {SCR+5120}, v7
    v_add_u32 v7, s36, v7
    s_lshl_b32 s37, s30, 8
    s_add_u32 s37, s37, {SCR+3072}
    v_lshlrev_b32 v8, 4, v3
    v_add_u32 v10, s37, v8
    v_lshlrev_b32 v9, 2, v2
    v_add_u32 v9, s37, v9
    s_lshl_b32 s37, s26, 8
    s_add_u32 s37, s37, {SCR+4096}
    v_add_u32 v8, s37, v8
    v_lshlrev_b32 v11, 2, v1
    v_add_u32 v11, s37, v11
    v_mov_b32 v12, {SCR + 1536}
    v_bfe_u32 v13, v1, 4, 1
    v_and_b32 v14, 15, v1
    v_lshlrev_b32 v14, 4, v14
    v_lshl_add_u32 v14, v3, 8, v14
    v_lshl_add_u32 v14, v13, 16, v14
    v_lshlrev_b32 v6, 4, v1
    s_lshl_b32 s38, s28, 18
    s_lshl_b32 s39, s31, 17
    s_add_u32 s38, s38, s39
    s_lshl_b32 s39, s29, 10
    s_add_u32 s38, s38, s39
    s_lshl_b32 s45, s28, {12 if WIDE0 else 8}
    s_lshl_b32 s46, s27, {7 if WIDE0 else 2}
    s_add_u32 s45, s45, s46
    s_add_u32 s45, s45, {CNT + (16384 if WIDE0 else 48*256)}
    s_waitcnt lgkmcnt(0)
    """)
    XB, WB = FR, FR + 12

    def addr(n):
        c, p = n // 4, n % 4
        st = c % NST
        return 4 * (st // 2) + p, (st % 2) * STAGE

    def rdx(n):
        ai, off = addr(n)
        k(f"ds_read_b128 {r4(XB + (n % 3) * 4)}, v{VXA+ai} offset:{off}")

    def rdw(n, t):
        ai, off = addr(n)
        for ab in range(2):
            r = WB + 12 * (n % 2) + 4 * t + 2 * ab
            k(f"ds_read_b64_tr_b16 {pr(r)}, v{VWA+ai} offset:{off + ab*512 + t*8192}")

    k("s_barrier")
    for n in range(2):
        rdx(n)
        for t in range(3):
            rdw(n, t)
    for n in range(32):
        pf = n + 2 < 32
        if (n + 2) % 4 == 0 and pf:
            k("s_barrier")
        if n == 30:
            k("s_barrier")
        X = r4(XB + (n % 3) * 4)
        W = [r4(WB + 12 * (n % 2) + 4 * t) for t in range(3)]
        A = [r16(ACC + 16 * t) for t in range(3)]
        Cc = [a if n else "0" for a in A]
        mf = [f"{MF32} {A[0]}, {W[0]}, {X}, {Cc[0]}", f"{MF32} {A[1]}, {W[1]}, {X}, {Cc[1]}", f"{MF32} {A[2]}, {X}, {W[2]}, {Cc[2]}"]
        if pf:
            rdx(n + 2)
        for t in range(3):
            cnt = 12 if pf else (2 * (2 - t) + 7 if n == 30 else 2 * (2 - t))
            k(f"s_waitcnt lgkmcnt({cnt})")
            k(mf[t])
            if n % 2 == 0:
                cc = "0" if (n == 0 and t == 0) else r4(CSA)
                k(f"{MF16} {r4(CSA)}, {r4(SEL+4*t)}, {W[t]}, {cc}")
            if pf:
                rdw(n + 2, t)
    for r in range(4):
        k(f"ds_write_b32 v5, v{CSA+r} offset:{r*64}")
    k("""
    s_waitcnt lgkmcnt(0)
    s_barrier
    ds_read_b32 v12, v12
    """)
    for w in range(2):
        k(f"ds_read_b32 v{T+w}, v7 offset:{w*1024}")
        k(f"ds_read_b32 v{T+2+w}, v4 offset:{w*1024+256}")
    MR = FR
    for g in range(4):
        k(f"ds_read_b128 {r4(MR+4*g)}, v10 offset:{g*32}")
        k(f"ds_read_b128 {r4(MR+16+4*g)}, v10 offset:{128+g*32}")
    NM, RS, RQ, CV = 164, 166, 170, 172
    k(f"ds_read_b32 v{NM}, v9")
    k(f"ds_read_b32 v{RS}, v9 offset:128")
    k("s_waitcnt lgkmcnt(10)")
    k(f"""
    v_readfirstlane_b32 s{SMODE}, v12
    v_add_f32 v{T}, v{T}, v{T+1}
    v_add_f32 v{CV}, v{T+2}, v{T+3}
    v_add_f32 v{CV+1}, v{T+2}, v{T+3}
    ds_write_b32 v11, v{T}
    s_waitcnt lgkmcnt(0)
    """)
    CQ = CSA
    for t in range(2):
        for g in range(4):
            k(f"ds_read_b128 {r4(CQ+16*t+4*g)}, v8 offset:{t*128 + g*32}")
    AV = ACC + 32
    for r in range(0, 16, 2):
        k(f"v_pk_fma_f32 {pr(AV+r)}, {pr(MR+r)}, {pr(CV)}, {pr(AV+r)}")
    for r in range(0, 16, 2):
        k(f"v_pk_mul_f32 {pr(AV+r)}, {pr(AV+r)}, {pr(MR+16+r)}")
    for i in range(8):
        k(f"v_cvt_pk_bf16_f32 v{AV+i}, v{AV+2*i}, v{AV+2*i+1}")
    k(f"""
    s_add_u32 s39, s38, {VF}
    buffer_store_dwordx4 {r4(AV)}, v14, s[20:23], s39 offen sc1
    buffer_store_dwordx4 {r4(AV+4)}, v14, s[20:23], s39 offen offset:512 sc1
    v_mov_b32 v{NM+1}, v{NM}
    v_mov_b32 v{RS+1}, v{RS}
    v_mul_f32 v{RQ}, {f32(0.25*LOG2E)}, v{RS}
    v_mul_f32 v{RQ+1}, {f32(0.25*LOG2E)}, v{RS}
    s_waitcnt lgkmcnt(0)
    """)
    for t in (1, 0):
        A = ACC + 16 * t
        sc = RQ if t == 0 else RS
        for r in range(0, 16, 2):
            k(f"v_pk_fma_f32 {pr(A+r)}, {pr(NM)}, {pr(CQ+16*t+r)}, {pr(A+r)}")
        for r in range(0, 16, 2):
            k(f"v_pk_mul_f32 {pr(A+r)}, {pr(A+r)}, {pr(sc)}")
        for i in range(8):
            k(f"v_cvt_pk_bf16_f32 v{A+i}, v{A+2*i}, v{A+2*i+1}")
        base = QF if t == 0 else KF
        k(f"s_add_u32 s39, s38, {base}")
        k(f"s_add_u32 s40, s38, {base+65536}")
        k(f"buffer_store_dwordx4 {r4(A)}, v6, s[20:23], s39 offen sc1")
        k(f"buffer_store_dwordx4 {r4(A+4)}, v6, s[20:23], s40 offen sc1")
    stamp(k, 13)
    k("s_setprio 0")
    k("s_waitcnt vmcnt(0)")
    signal(k, 45, "flag")


def side_dma(k, T):
    k(f"""
    s_lshr_b32 s44, s2, 2
    s_cmp_lt_u32 s44, 28
    s_cselect_b32 s16, s{PG}, s{PU}
    s_cselect_b32 s17, s{PG+1}, s{PU+1}
    s_cselect_b32 s36, 0, 28
    s_mov_b32 s18, {512*3584}
    s_mov_b32 s19, 0x20000
    s_sub_u32 s36, s44, s36
    s_lshl_b32 s36, s36, 7
    s_and_b32 s43, s2, 3
    s_lshl_b32 s43, s43, 2
    s_add_u32 s43, s43, s26
    s_mul_i32 s37, s43, {32*3584}
    s_add_u32 s36, s36, s37
    s_cmp_lt_u32 s2, 224
    s_cselect_b32 s36, s36, 0x7ff00000
    v_bfe_u32 v{T}, v1, 2, 1
    v_bfe_u32 v{T+1}, v1, 4, 1
    v_xor_b32 v{T}, v{T}, v{T+1}
    v_and_b32 v{T+1}, 3, v1
    v_lshlrev_b32 v{T+1}, 4, v{T+1}
    v_lshl_add_u32 v{T+1}, v{T}, 6, v{T+1}
    v_lshrrev_b32 v{T}, 3, v1
    v_mul_u32_u24 v{T}, 3584, v{T}
    v_add_u32 v{T}, v{T}, v{T+1}
    s_lshl_b32 s48, s26, 12
    s_add_u32 s48, s48, {SIDE}
    """)
    for i in range(4):
        k(f"s_add_u32 m0, s48, {i*1024}")
        k(f"buffer_load_dwordx4 v{T}, s[16:19], s36 offen lds")
        k(f"s_add_u32 s36, s36, {8*3584}")


def side_job(k):
    TMP, WF, SL, CA = 108, 120, 136, 144
    k(f"""
    s_cmp_lt_u32 s2, 224
    s_cbranch_scc0 L_side_end
    s_lshr_b32 s44, s2, 2
    s_and_b32 s43, s2, 3
    s_lshl_b32 s43, s43, 2
    s_add_u32 s43, s43, s26
    s_lshl_b32 s48, s26, 12
    s_add_u32 s48, s48, {SIDE}
    v_bfe_u32 v{TMP}, v1, 2, 2
    v_lshrrev_b32 v{TMP+1}, 5, v1
    v_lshl_add_u32 v{TMP+1}, v{TMP+1}, 2, v{TMP}
    v_lshlrev_b32 v{TMP+1}, 7, v{TMP+1}
    v_lshrrev_b32 v{TMP}, 1, v{TMP}
    v_lshl_add_u32 v{TMP+1}, v{TMP}, 6, v{TMP+1}
    v_bfe_u32 v{TMP}, v1, 4, 1
    v_lshl_add_u32 v{TMP+1}, v{TMP}, 5, v{TMP+1}
    v_and_b32 v{TMP}, 3, v1
    v_lshl_add_u32 v{TMP+1}, v{TMP}, 3, v{TMP+1}
    v_add_u32 v{TMP+1}, s48, v{TMP+1}
    v_xor_b32 v{TMP+2}, 64, v{TMP+1}
    v_bfe_u32 v{TMP}, v1, 3, 2
    v_mov_b32 v{TMP+3}, 0x3f803f80
    v_cmp_eq_u32 vcc, 0, v{TMP}
    v_cmp_eq_u32 s[38:39], 1, v{TMP}
    """)
    for i in range(4):
        k(f"v_cndmask_b32 v{SL+i}, 0, v{TMP+3}, vcc")
        k(f"v_cndmask_b32 v{SL+4+i}, 0, v{TMP+3}, s[38:39]")
    k(f"""
    v_and_b32 v{TMP}, 47, v1
    v_lshlrev_b32 v{TMP}, 4, v{TMP}
    v_bfe_u32 v{TMP+3}, v1, 4, 1
    v_lshl_add_u32 v{TMP}, v{TMP+3}, 15, v{TMP}
    s_cmp_lt_u32 s44, 28
    s_cselect_b32 s36, 0, {256 - 28*4*32768 + (1<<32)}
    s_lshl_b32 s37, s44, 17
    s_add_u32 s36, s36, s37
    s_lshl_b32 s37, s43, 11
    s_add_u32 s36, s36, s37
    s_add_u32 s36, s36, {WGF}
    s_add_u32 s37, s36, 65536
    s_waitcnt vmcnt(0) lgkmcnt(0)
    """)
    for s_ in range(2):
        for nt in range(2):
            for ab in range(2):
                r = WF + 8 * s_ + 4 * nt + 2 * ab
                k(f"ds_read_b64_tr_b16 {pr(r)}, v{TMP+1+nt} offset:{s_*2048 + ab*1024}")
    k("s_waitcnt lgkmcnt(0)")
    first = True
    for s_ in range(2):
        for nt in range(2):
            r = WF + 8 * s_ + 4 * nt
            k(f"{MF32} {r16(CA)}, {r4(SL+4*nt)}, {r4(r)}, {'0' if first else r16(CA)}")
            first = False
            k(f"buffer_store_dwordx4 {r4(r)}, v{TMP}, s[20:23], s{36+nt} offen offset:{s_*1024} sc1")
    k(f"""
    v_cmp_gt_u32 vcc, 32, v1
    v_lshlrev_b32 v{TMP+1}, 4, v1
    s_lshl_b32 s36, s44, 10
    s_lshl_b32 s37, s26, 2
    s_add_u32 s36, s36, s37
    s_and_b32 s37, s2, 3
    s_mul_i32 s37, s37, {3584*16}
    s_add_u32 s36, s36, s37
    s_add_u32 s36, s36, {CS}
    v_cndmask_b32 v{TMP+2}, v{CA+4}, v{CA}, vcc
    buffer_store_dword v{TMP+2}, v{TMP+1}, s[20:23], s36 offen sc1
    """)
    k.label("L_side_end")


VBASE, VSTR = 65536, 1056
SX, SY = 160, 128


def p2(k):
    Q, KFR, VFR, S, C, O, P0, P1 = 4, 8, 16, 32, 64, 80, 96, 100
    AK, AV0, AV1, TMP, PF, XV = 104, 105, 106, 108, 116, 117
    PDROP, TITER = int(E("PDROP", "5")), int(E("TITER", "2"))
    k.label("L_p2")
    k(f"""
    s_and_b32 s27, s2, 31
    s_lshr_b32 s28, s2, 5
    s_lshl_b32 s28, s28, 3
    s_add_u32 s28, s28, s25
    v_lshlrev_b32 v2, 4, v1
    s_lshl_b32 s29, s27, 16
    s_lshl_b32 s30, s25, 10
    s_add_u32 s31, s29, s30
    s_mul_i32 s32, s25, {VSTR}
    s_add_u32 s32, s32, {VBASE}
    s_lshl_b32 s33, s28, 10
    s_add_u32 s33, s33, s29
    v_mov_b32 v{TMP}, 0x3f803f80
    v_mov_b32 v{TMP+1}, 0x3f803f80
    v_mov_b32 v{TMP+2}, 0x3f803f80
    v_mov_b32 v{TMP+3}, 0x3f803f80
    v_mul_u32_u24 v3, {VSTR}, v1
    v_add_u32 v3, {VBASE+1024}, v3
    """)
    for i in range(16):
        k(f"v_mov_b32 v{O+i}, 0")
    k(f"""
    s_cmp_lg_u32 s25, 3
    s_cbranch_scc1 L_p2_noones
    ds_write_b128 v3, {r4(TMP)}
    ds_write_b128 v3, {r4(O)} offset:16
    """)
    k.label("L_p2_noones")
    k(f"""
    v_mov_b32 v{AK}, v2
    v_and_b32 v3, 15, v1
    v_lshlrev_b32 v3, 4, v3
    v_lshrrev_b32 v{TMP+4}, 5, v1
    v_lshl_add_u32 v3, v{TMP+4}, 8, v3
    v_mov_b32 v{TMP+6}, 1024
    v_and_b32 v{TMP+5}, 11, v1
    v_cmp_eq_u32 vcc, 0, v{TMP+5}
    v_mov_b32 v{TMP+7}, 1040
    v_cndmask_b32 v{TMP+6}, v{TMP+7}, v{TMP+6}, vcc
    v_and_b32 v{TMP+5}, 16, v1
    v_cmp_eq_u32 vcc, 0, v{TMP+5}
    v_subrev_u32 v{TMP+7}, 512, v{TMP+6}
    v_cndmask_b32 v{AV0}, v{TMP+6}, v3, vcc
    v_cndmask_b32 v{AV1}, v{TMP+7}, v3, vcc
    v_add_u32 v{AV0}, {VBASE}, v{AV0}
    v_add_u32 v{AV1}, {VBASE}, v{AV1}
    """)
    for i in range(4):
        k(f"v_mov_b32 v{P1+i}, 0")
        k(f"v_mov_b32 v{VFR+12+i}, 0")
    k("""
    s_cmp_lt_u32 s25, 4
    s_cselect_b32 s42, 99, 1
    s_cselect_b32 s41, 99, 0
    s_mov_b32 s35, 0
    """)
    k(f"""
    s_lshr_b32 s36, s27, 2
    s_lshl_b32 s36, s36, {12 if WIDE0 else 8}
    s_add_u32 s36, s36, {16384 if WIDE0 else 48*256}
    s_waitcnt lgkmcnt(0)
    """)
    wave_poll_flags(k, 1, 36, 32, int(E('PS0', '24')), int(E('PP0', '0')), 7 if WIDE0 else 2)
    stamp(k, 14)

    def dma_tile(t):
        k(f"""
        s_add_u32 s34, s31, {KF + t*1024}
        s_add_u32 m0, s30, {t*1024}
        buffer_load_dwordx4 v2, s[20:23], s34 offen sc1 lds
        s_add_u32 s34, s31, {VF + t*1024}
        s_add_u32 m0, s32, {t*VSTR}
        buffer_load_dwordx4 v2, s[20:23], s34 offen sc1 lds
        """)

    k("s_cmp_lt_u32 s25, 4")
    k("s_cbranch_scc0 L_p2_B")
    for t in range(0, 16, 4):
        dma_tile(t)
    k(f"buffer_load_dwordx4 {r4(Q)}, v2, s[20:23], s33 offen sc1")
    k("s_waitcnt vmcnt(7)")
    k("s_barrier")
    k("s_setprio 1")
    for t in range(16, 32, 4):
        dma_tile(t)
    k("s_waitcnt vmcnt(8)")
    k("s_barrier")
    for t in range(32, 64, 4):
        dma_tile(t)
    side_dma(k, TMP)
    k("s_waitcnt vmcnt(4)")
    k("s_barrier")
    k(f"""
    v_min_u32 v{TMP}, 13, v1
    v_lshlrev_b32 v{TMP}, 7, v{TMP}
    s_lshl_b32 s36, s2, 2
    s_add_u32 s36, s36, s26
    s_mul_i32 s37, s36, {14*128}
    """)
    srd(k, 16, PWD, PWD + 1, 1792 * 1024)
    k(f"""
    buffer_load_dword v{PF}, v{TMP}, s[16:19], s37 offen
    v_min_u32 v{TMP}, 3, v1
    v_lshlrev_b32 v{TMP}, 7, v{TMP}
    s_lshl_b32 s37, s36, 9
    """)
    srd(k, 16, PWO, PWO + 1, 512 * 1024)
    k(f"buffer_load_dword v{PF}, v{TMP}, s[16:19], s37 offen")
    k("s_branch L_p2_go")
    k.label("L_p2_B")
    k(f"""
    buffer_load_dwordx4 {r4(Q)}, v2, s[20:23], s33 offen sc1
    s_waitcnt vmcnt(0)
    s_barrier
    s_setprio 2
    """)
    k.label("L_p2_go")

    def Kr(b): return r4(KFR + 4 * b)
    def Vr(b, j): return r4(VFR + 8 * b + 4 * j)
    def Sr(b): return r16(S + 16 * b)
    Qr, Cr, Or = r4(Q), r16(C), r16(O)
    def rdK(t, b): k(f"ds_read_b128 {Kr(b)}, v{AK} offset:{t*1024}")

    def rdV(t, b):
        k(f"ds_read_b128 {Vr(b,0)}, v{AV0} offset:{t*VSTR}")
        k(f"ds_read_b128 {Vr(b,1)}, v{AV1} offset:{t*VSTR+512}")

    def tilemax(s1):
        k(f"""
        v_max3_f32 v{TMP}, v{s1}, v{s1+1}, v{s1+2}
        v_max3_f32 v{TMP+1}, v{s1+3}, v{s1+4}, v{s1+5}
        v_max3_f32 v{TMP+2}, v{s1+6}, v{s1+7}, v{s1+8}
        v_max3_f32 v{TMP+3}, v{s1+9}, v{s1+10}, v{s1+11}
        v_max3_f32 v{TMP}, v{TMP}, v{s1+12}, v{s1+13}
        v_max3_f32 v{TMP+1}, v{TMP+1}, v{s1+14}, v{s1+15}
        v_max3_f32 v{TMP}, v{TMP}, v{TMP+1}, v{TMP+2}
        v_max_f32 v{TMP}, v{TMP}, v{TMP+3}
        v_mov_b32 v{TMP+1}, v{TMP}
        v_permlane32_swap_b32 v{TMP}, v{TMP+1}
        """)
    k("s_waitcnt lgkmcnt(0)")
    rdK(0, 0)
    rdK(1, 1)
    rdV(0, 0)
    k("s_waitcnt lgkmcnt(3)")
    k(f"{MF32} {Sr(1)}, {Kr(0)}, {Qr}, 0")
    tilemax(S + 16)
    k(f"v_max_f32 v{TMP}, v{TMP}, v{TMP+1}")
    for i in range(16):
        k(f"v_sub_f32 v{C+i}, 0, v{TMP}")
    k(f"{MF32} {Sr(0)}, {Kr(0)}, {Qr}, {Cr}")
    k("s_nop 9")

    def Ex(b, a, n):
        for i in range(a, a + n):
            k(f"v_exp_f32 v{S+16*b+i}, v{S+16*b+i}")

    def CV(dst, b, i):
        k(f"v_cvt_pk_bf16_f32 v{dst}, v{S+16*b+2*i}, v{S+16*b+2*i+1}")

    def tile(t):
        b = t % 2
        nb = 1 - b
        k("s_waitcnt lgkmcnt(0)")
        k(f"{MF32} {Sr(nb)}, {Kr(nb)}, {Qr}, {Cr}")
        rdK(t + 2, b)
        Ex(b, 0, 4)
        k(f"{MF32} {Or}, {Vr(nb,1)}, {r4(P1)}, {Or}")
        rdV(t + 1, nb)
        Ex(b, 4, 2); CV(P0, b, 0)
        Ex(b, 6, 2); CV(P0 + 1, b, 1)
        Ex(b, 8, 2); CV(P0 + 2, b, 2)
        Ex(b, 10, 2); CV(P0 + 3, b, 3)
        Ex(b, 12, 2)
        k(f"{MF32} {Or}, {Vr(b,0)}, {r4(P0)}, {Or}")
        Ex(b, 14, 2)
        for i in range(4):
            CV(P1 + i, b, 4 + i)

    k.raw(".p2align 6")
    k.label("L_p2_loop")
    for t in range(8):
        if t in (2, 6):
            l = uid("nb")
            k(f"s_cmp_lg_u32 s35, s{41 if t == 2 else 42}")
            k(f"s_cbranch_scc1 {l}")
            k("s_barrier")
            k.label(l)
        tile(t)
    k(f"""
    v_add_u32 v{AK}, 8192, v{AK}
    v_add_u32 v{AV0}, {8*VSTR}, v{AV0}
    v_add_u32 v{AV1}, {8*VSTR}, v{AV1}
    s_cmp_lt_u32 s35, 6
    s_cbranch_scc1 L_p2_ev
    """)
    k.label("L_p2_evret")
    k("""
    s_add_u32 s35, s35, 1
    s_cmp_lg_u32 s35, 8
    s_cbranch_scc1 L_p2_loop
    """)
    k.check_backedge("L_p2_loop")
    k(f"{MF32} {Or}, {Vr(1,1)}, {r4(P1)}, {Or}")
    k("s_waitcnt lgkmcnt(0)")
    stamp(k, 3)
    k(f"""
    v_max3_f32 v{TMP}, abs(v{O}), abs(v{O+1}), abs(v{O+2})
    v_max3_f32 v{TMP+1}, abs(v{O+3}), abs(v{O+4}), abs(v{O+5})
    v_max3_f32 v{TMP}, v{TMP}, abs(v{O+6}), abs(v{O+7})
    v_add_f32 v{TMP+2}, v{O}, v{O+1}
    v_add_f32 v{TMP+3}, v{O+2}, v{O+3}
    v_add_f32 v{TMP+4}, v{O+4}, v{O+5}
    v_add_f32 v{TMP+5}, v{O+6}, v{O+7}
    v_add_f32 v{TMP+2}, v{TMP+2}, v{TMP+3}
    v_add_f32 v{TMP+4}, v{TMP+4}, v{TMP+5}
    v_add_f32 v{TMP+2}, v{TMP+2}, v{TMP+4}
    v_max_f32 v{TMP}, v{TMP}, v{TMP+1}
    s_mov_b32 s36, {f32(2.0**100)}
    s_mov_b32 s37, 0x7f000000
    v_cmp_gt_f32 vcc, s36, v{O+8}
    v_cmp_gt_f32 s[38:39], s37, v{TMP}
    v_cmp_o_f32 s[48:49], v{TMP+2}, v{TMP+2}
    s_and_b64 vcc, vcc, s[38:39]
    s_and_b64 vcc, vcc, s[48:49]
    s_cmp_eq_u64 vcc, exec
    s_cbranch_scc0 L_p2_slow
    """)
    k.label("L_p2_fin")
    k(f"v_rcp_f32 v{TMP}, v{O+8}")
    for i in range(8):
        k(f"v_mul_f32 v{O+i}, v{O+i}, v{TMP}")
    for i in range(4):
        k(f"v_cvt_pk_bf16_f32 v{O+i}, v{O+2*i}, v{O+2*i+1}")
    k(f"""
    s_lshl_b32 s36, s28, 15
    s_lshl_b32 s37, s27, 10
    s_add_u32 s36, s36, s37
    s_add_u32 s36, s36, {OF}
    buffer_store_dwordx4 {r4(O)}, v2, s[20:23], s36 offen sc1
    s_branch L_p3
    """)
    k.label("L_p2_ev")
    k("s_cmp_lt_u32 s25, 4")
    k("s_cbranch_scc0 L_p2_evB")

    k("s_cmp_lg_u32 s35, 1")
    k("s_cbranch_scc1 L_p2_evA1")
    side_job(k)
    k("s_branch L_p2_evret")
    k.label("L_p2_evA1")
    k(f"s_cmp_lg_u32 s35, {TITER}")
    k("s_cbranch_scc1 L_p2_evA2")
    k(f"""
    s_lshr_b32 s36, s2, 5
    s_lshl_b32 s36, s36, 8
    s_add_u32 s36, s36, {CNT + 40*256}
    v_mov_b32 v{TMP}, 0
    v_mov_b32 v{TMP+1}, 1
    s_waitcnt vmcnt(0)
    s_mov_b64 exec, 1
    buffer_atomic_add v{TMP+1}, v{TMP}, s[20:23], s36 offen sc1
    s_mov_b64 exec, -1
    """)
    k(f"""
    s_lshr_b32 s36, s2, 3
    s_lshl_b32 s36, s36, 2
    s_add_u32 s36, s36, s26
    v_min_u32 v{TMP}, 31, v1
    v_lshlrev_b32 v{TMP}, 7, v{TMP}
    s_lshl_b32 s37, s36, 12
    """)
    srd(k, 16, PWO, PWO + 1, 512 * 1024)
    k(f"""
    buffer_load_dword v{PF}, v{TMP}, s[16:19], s37 offen
    v_min_u32 v{TMP}, 15, v1
    v_lshlrev_b32 v{TMP}, 7, v{TMP}
    s_and_b32 s38, s2, 7
    s_lshl_b32 s38, s38, 18
    s_lshl_b32 s37, s36, 11
    s_add_u32 s37, s37, s38
    """)
    srd(k, 16, PX, PX + 1, 2 * MB)
    k(f"""
    buffer_load_dword v{PF}, v{TMP}, s[16:19], s37 offen
    s_add_u32 s37, s37, {HF}
    buffer_load_dword v{PF}, v{TMP}, s[20:23], s37 offen
    s_and_b32 s38, s2, 7
    s_lshl_b32 s38, s38, 15
    s_lshl_b32 s37, s36, 8
    s_add_u32 s37, s37, s38
    s_add_u32 s37, s37, {ST}
    v_min_u32 v{TMP}, 1, v1
    v_lshlrev_b32 v{TMP}, 7, v{TMP}
    buffer_load_dword v{PF}, v{TMP}, s[20:23], s37 offen
    s_and_b32 s38, s2, 7
    s_mul_i32 s38, s38, {8*112*1024}
    s_mul_i32 s37, s36, {7*1024}
    s_add_u32 s37, s37, s38
    s_add_u32 s37, s37, {AF}
    v_min_u32 v{TMP}, 55, v1
    v_lshlrev_b32 v{TMP}, 7, v{TMP}
    """)
    if "a" not in DATAWT:
        k(f"buffer_load_dword v{PF}, v{TMP}, s[20:23], s37 offen")
    DW = int(E("DW", "0"))
    if DW:
        srd(k, 16, PWD, PWD + 1, 1792 * 1024)
        k(f"s_mul_i32 s37, s36, {7*1024}")
        for i in range(DW):
            k(f"buffer_load_dword v{PF}, v{TMP}, s[16:19], s37 offen")
            k(f"s_add_u32 s37, s37, {896*1024}")
    k("s_branch L_p2_evret")
    k.label("L_p2_evA2")
    k(f"s_cmp_lg_u32 s35, {TITER+1}")
    k("s_cbranch_scc1 L_p2_evret")
    k(f"""
    s_lshr_b32 s36, s2, 3
    s_lshl_b32 s36, s36, 2
    s_add_u32 s36, s36, s26
    s_min_u32 s36, s36, 111
    s_lshl_b32 s36, s36, 15
    s_add_u32 s36, s36, {WGF}
    v_lshlrev_b32 v{TMP}, 7, v1
    """)
    for i in range(int(E("WT", "2"))):
        k(f"buffer_load_dword v{PF}, v{TMP}, s[20:23], s36 offen")
        k("s_add_u32 s36, s36, 8192")
    k("s_branch L_p2_evret")
    k.label("L_p2_evB")
    k(f"s_cmp_lg_u32 s35, {PDROP}")
    k("s_cbranch_scc1 L_p2_evret")
    k("s_setprio 0")
    k("s_branch L_p2_evret")
    k.label("L_p2_slow")
    M = TMP + 6
    k(f"v_subrev_u32 v{AK}, 65536, v{AK}")
    k(f"v_subrev_u32 v{AV0}, {64*VSTR}, v{AV0}")
    k(f"v_subrev_u32 v{AV1}, {64*VSTR}, v{AV1}")
    for i in range(16):
        k(f"v_mov_b32 v{O+i}, 0")
    k(f"v_mov_b32 v{M}, 0xff7fffff")
    k("s_mov_b32 s35, 64")
    k.label("L_p2_sloop")
    rdK(0, 0)
    rdV(0, 0)
    k("s_waitcnt lgkmcnt(0)")
    k(f"{MF32} {Sr(0)}, {Kr(0)}, {Qr}, 0")
    tilemax(S)
    k(f"""
    v_max3_f32 v{TMP}, v{TMP}, v{TMP+1}, v{M}
    v_sub_f32 v{TMP+1}, v{M}, v{TMP}
    v_exp_f32 v{TMP+1}, v{TMP+1}
    v_mov_b32 v{M}, v{TMP}
    """)
    for i in range(16):
        k(f"v_mul_f32 v{O+i}, v{O+i}, v{TMP+1}")
    for i in range(16):
        k(f"v_sub_f32 v{S+i}, v{S+i}, v{M}")
    Ex(0, 0, 16)
    for i in range(4):
        CV(P0 + i, 0, i)
        CV(P1 + i, 0, 4 + i)
    k(f"""
    {MF32} {Or}, {Vr(0,0)}, {r4(P0)}, {Or}
    {MF32} {Or}, {Vr(0,1)}, {r4(P1)}, {Or}
    v_add_u32 v{AK}, 1024, v{AK}
    v_add_u32 v{AV0}, {VSTR}, v{AV0}
    v_add_u32 v{AV1}, {VSTR}, v{AV1}
    s_nop 15
    s_sub_u32 s35, s35, 1
    s_cmp_lg_u32 s35, 0
    s_cbranch_scc1 L_p2_sloop
    """)
    k.check_backedge("L_p2_sloop")
    k("s_nop 15")
    k("s_branch L_p2_fin")


HKEEP, VL16, TRA, WD0 = 104, 112, 113, 113
HOFF4 = 3 * 28672
CSL4 = HOFF4 + 3 * 16384
NWS = int(E("NWS", "12"))
NAS = 20 - NWS
AOFF = NWS * 8192
EARLYW = E("EARLYW", "0") == "1"
PD = int(E("PD", "4"))
NB = PD + 1
XL = 131072
STAGED = False
DS, DV = 192, 115


def ids64(k):
    k("""
    s_and_b32 s27, s2, 7
    s_lshl_b32 s27, s27, 2
    s_lshr_b32 s28, s2, 3
    s_and_b32 s28, s28, 3
    s_add_u32 s27, s27, s28
    s_lshr_b32 s28, s2, 5
    s_and_b32 s29, s26, 1
    s_lshr_b32 s30, s26, 1
    s_lshl_b32 s31, s27, 1
    s_add_u32 s31, s31, s30
    """)


def p4_ids(k):
    k(f"""
    s_and_b32 s27, s2, 7
    s_lshl_b32 s27, s27, 1
    s_lshr_b32 s28, s2, 3
    s_and_b32 s28, s28, 1
    s_add_u32 s27, s27, s28
    s_lshr_b32 s28, s2, 4
    s_lshl_b32 s29, s27, 2
    s_add_u32 s29, s29, s26
    s_lshl_b32 s38, s29, 15
    s_add_u32 s38, s38, {HF}
    s_lshl_b32 s40, s26, 12
    s_add_u32 s40, s40, {HOFF4}
    s_cmp_lt_u32 s25, 4
    s_cselect_b32 s31, 2, 5
    s_cselect_b32 s35, 20, 0
    s_mul_i32 s31, s31, s26
    s_add_u32 s31, s31, s35
    s_lshl_b32 s34, s31, 10
    s_mul_i32 s32, s28, {7*32768}
    s_add_u32 s32, s32, {WGF}
    """)


def wstage(k, X, c):
    for o in wstage_ops(X, c):
        k(o)


def wstage_ops(X, c):
    n, base = (3, SX + 12 * (7 - c)) if X else (4, SY + 16 * (7 - c))
    return [f"ds_write_b128 v15, {r4(base + 4*i)} offset:{(c % 3)*28672 + i*1024}" for i in range(n)]


class LdsQ:
    def __init__(self, k):
        self.k, self.q = k, []

    def op(self, text, tag=None):
        self.k(text)
        self.q.append(tag)

    def wait(self, *tags):
        idx = [i for i, t in enumerate(self.q) if t in tags]
        if not idx:
            return
        n = len(self.q) - 1 - max(idx)
        assert n <= 15
        self.k(f"s_waitcnt lgkmcnt({n})")
        self.q = self.q[max(idx) + 1:]

    def clear(self):
        self.q = []


def p3(k):
    k.label("L_p3")
    k(f"v_lshlrev_b32 v{VL16}, 4, v1")
    ids64(k)
    k(f"""
    s_lshr_b32 s45, s2, 5
    s_lshl_b32 s45, s45, 8
    s_add_u32 s45, s45, {CNT}
    s_setprio 0
    s_waitcnt vmcnt(0)
    """)
    signal(k, 45, "add")
    k("s_cmp_lt_u32 s25, 4")
    k("s_cbranch_scc1 L_p3C")
    k(f"""
    s_lshl_b32 s34, s26, 11
    v_lshrrev_b32 v2, 3, v1
    v_bfe_u32 v3, v1, 2, 1
    v_bfe_u32 v4, v1, 4, 1
    v_xor_b32 v3, v3, v4
    v_and_b32 v4, 3, v1
    v_lshlrev_b32 v4, 4, v4
    v_lshl_add_u32 v4, v3, 6, v4
    v_lshl_add_u32 v4, v2, 10, v4
    s_lshl_b32 s35, s26, 14
    s_lshl_b32 s36, s28, 7
    s_add_u32 s35, s35, s36
    v_add_u32 v{WD0}, s35, v4
    v_add_u32 v{WD0+1}, 8192-1024, v{WD0}
    """)
    srd(k, 16, PWO, PWO + 1, 512 * 1024)
    srd(k, 56, PX, PX + 1, 2 * MB)
    for c in range(8):
        k(f"""
        s_mov_b32 s41, {c*65536}
        s_add_u32 m0, s34, {c*8192}
        buffer_load_dwordx4 v{WD0}, s[16:19], s41 offen lds
        buffer_load_dwordx4 v{WD0+1}, s[16:19], s41 offen offset:1024 lds
        """)
    k(f"""
    v_and_b32 v5, 7, v1
    v_xor_b32 v5, v5, v2
    v_lshlrev_b32 v5, 4, v5
    v_lshl_add_u32 v4, v2, 10, v5
    s_lshl_b32 s38, s27, 16
    s_add_u32 s38, s38, s35
    s_add_u32 m0, s34, {XL}
    buffer_load_dwordx4 v4, s[56:59], s38 offen lds
    s_add_u32 s38, s38, 8192
    s_add_u32 m0, s34, {XL+1024}
    buffer_load_dwordx4 v4, s[56:59], s38 offen lds
    s_lshl_b32 s32, s31, 15
    s_lshl_b32 s33, s29, 11
    s_add_u32 s32, s32, s33
    s_add_u32 s32, s32, {OF}
    s_barrier
    """)
    for c in range(8):
        k(f"""
        s_add_u32 s40, s32, {c*4096}
        s_add_u32 m0, s34, {65536 + c*8192}
        buffer_load_dwordx4 v{VL16}, s[20:23], s40 offen sc1 lds
        buffer_load_dwordx4 v{VL16}, s[20:23], s40 offen offset:1024 sc1 lds
        """)
    for c in range(8):
        k(f"s_waitcnt vmcnt({2*(7-c)})")
        k("s_barrier")
    p4_ids(k)
    srd(k, 16, PWD, PWD + 1, 1792 * 1024)
    k("s_mul_i32 s42, s26, 7")
    for j in range(7):
        k(f"""
        s_add_u32 s36, s42, {j}
        s_lshr_b32 s37, s36, 2
        s_lshl_b32 s37, s37, 15
        s_and_b32 s39, s36, 3
        s_lshl_b32 s39, s39, 10
        s_add_u32 s37, s37, s39
        v_add_u32 v{120+j}, s37, v{VL16}
        """)
    k("s_lshl_b32 s42, s42, 10")
    k("s_barrier")
    PRE = int(E("PRE3", "4"))
    for c in range(3):
        k(f"s_add_u32 s37, s32, {c*4096}")
        for j in range(7):
            if c * 7 + j == PRE:
                k("s_barrier")
            k(f"""
            s_add_u32 m0, s42, {c*28672 + j*1024}
            buffer_load_dwordx4 v{120+j}, s[20:23], s37 offen sc1 lds
            """)
    k("s_barrier")
    p4_body(k, False)
    p5_loader(k)
    k.label("L_p3C")
    VBA, RES, ACC, T, FR = 12, 20, 64, 80, 120
    k(f"""
    v_and_b32 v2, 31, v1
    v_lshrrev_b32 v3, 5, v1
    s_lshl_b32 s37, s28, 1
    s_add_u32 s37, s37, s29
    s_lshl_b32 s40, s30, 12
    s_add_u32 s40, s40, 65536
    v_add_u32 v{VBA}, s40, v{VL16}
    v_bfe_u32 v4, v1, 2, 2
    v_lshl_add_u32 v5, v3, 2, v4
    v_lshlrev_b32 v5, 7, v5
    v_lshrrev_b32 v4, 1, v4
    v_xor_b32 v4, s29, v4
    v_lshl_add_u32 v5, v4, 6, v5
    v_bfe_u32 v4, v1, 4, 1
    v_lshl_add_u32 v5, v4, 5, v5
    v_and_b32 v4, 3, v1
    v_lshl_add_u32 v{TRA}, v4, 3, v5
    s_lshl_b32 s38, s30, 12
    s_lshl_b32 s39, s29, 2
    v_and_b32 v4, 7, v2
    v_xor_b32 v4, s39, v4
    v_lshlrev_b32 v5, 7, v2
    v_lshl_add_u32 v5, v3, 3, v5
    v_add_u32 v5, s38, v5
    v_add_u32 v5, {XL}, v5
    """)
    for g in range(4):
        k(f"v_xor_b32 v{T+g}, {g}, v4")
        k(f"v_lshl_add_u32 v{T+g}, v{T+g}, 4, v5")
    k(f"""
    s_cmp_lg_u32 s25, 1
    s_cbranch_scc1 L_p3_w
    v_cmp_gt_u32 vcc, 8, v1
    v_lshlrev_b32 v7, 8, v1
    v_add_u32 v7, {40*256}, v7
    s_and_b32 s36, s2, 7
    s_lshl_b32 s36, s36, 8
    v_mov_b32 v8, s36
    v_cndmask_b32 v7, v8, v7, vcc
    v_mov_b32 v8, 32
    v_mov_b32 v9, 128
    v_cndmask_b32 v8, v8, v9, vcc
    """)
    poll(k, 7, 8, 6, int(E('PS1', '12')))
    k.label("L_p3_w")
    k("s_barrier")
    stamp(k, 4)

    def reads3(n):
        c, s_ = n // 4, n % 4
        b = FR + (n % NB) * 8
        k(f"ds_read_b128 {r4(b)}, v{VBA} offset:{c*8192 + s_*1024}")
        k(f"ds_read_b64_tr_b16 {pr(b+4)}, v{TRA} offset:{n*2048}")
        k(f"ds_read_b64_tr_b16 {pr(b+6)}, v{TRA} offset:{n*2048 + 1024}")

    k("s_barrier")
    k("s_waitcnt lgkmcnt(0)")
    for n in range(PD):
        reads3(n)
    for n in range(32):
        if n + PD < 32:
            if (n + PD) % 4 == 0:
                k("s_barrier")
            reads3(n + PD)
            k(f"s_waitcnt lgkmcnt({3*PD})")
        else:
            if n == 30:
                for g in range(4):
                    k(f"ds_read_b64 {pr(RES+2*g)}, v{T+g}")
            k(f"s_waitcnt lgkmcnt({3*(31-n) + (4 if n >= 30 else 0)})")
        b = FR + (n % NB) * 8
        k(f"{MF32} {r16(ACC)}, {r4(b+4)}, {r4(b)}, " + (r16(ACC) if n else "0"))
    k("s_waitcnt lgkmcnt(0)")
    k("s_barrier")
    stamp(k, 5)
    for i in range(8):
        k(f"v_lshlrev_b32 v{T+2*i}, 16, v{RES+i}")
        k(f"v_and_b32 v{T+2*i+1}, 0xffff0000, v{RES+i}")
    for r in range(0, 16, 2):
        k(f"v_pk_add_f32 {pr(ACC+r)}, {pr(ACC+r)}, {pr(T+r)}")
    for i in range(8):
        k(f"v_cvt_pk_bf16_f32 v{HKEEP+i}, v{ACC+2*i}, v{ACC+2*i+1}")
    k(f"""
    s_lshl_b32 s38, s31, 15
    s_lshl_b32 s39, s37, 11
    s_add_u32 s38, s38, s39
    s_add_u32 s38, s38, {HF}
    """)
    mstore(k, [f"buffer_store_dwordx4 {r4(HKEEP)}, v{VL16}, s[20:23], s38 offen",
               f"buffer_store_dwordx4 {r4(HKEEP+4)}, v{VL16}, s[20:23], s38 offen offset:1024"], "h")
    k(f"v_pk_add_f32 {pr(T)}, {pr(ACC)}, {pr(ACC+2)}")
    k(f"v_pk_mul_f32 {pr(T+2)}, {pr(ACC)}, {pr(ACC)}")
    k(f"v_pk_fma_f32 {pr(T+2)}, {pr(ACC+2)}, {pr(ACC+2)}, {pr(T+2)}")
    for r in range(4, 16, 2):
        k(f"v_pk_add_f32 {pr(T)}, {pr(T)}, {pr(ACC+r)}")
        k(f"v_pk_fma_f32 {pr(T+2)}, {pr(ACC+r)}, {pr(ACC+r)}, {pr(T+2)}")
    k(f"""
    v_add_f32 v{T}, v{T}, v{T+1}
    v_add_f32 v{T+1}, v{T+2}, v{T+3}
    v_mov_b32 v{T+2}, v{T}
    v_mov_b32 v{T+3}, v{T+1}
    v_permlane32_swap_b32 v{T}, v{T+2}
    v_permlane32_swap_b32 v{T+1}, v{T+3}
    v_add_f32 v{T}, v{T}, v{T+2}
    v_add_f32 v{T+1}, v{T+1}, v{T+3}
    v_lshlrev_b32 v4, 3, v2
    s_lshl_b32 s38, s31, 12
    s_lshl_b32 s39, s37, 8
    s_add_u32 s38, s38, s39
    s_add_u32 s38, s38, {ST}
    s_mov_b64 exec, 0xffffffff
    """)
    mstore(k, f"buffer_store_dwordx2 {pr(T)}, v4, s[20:23], s38 offen", "h")
    k(f"""
    s_mov_b64 exec, -1
    s_lshr_b32 s45, s27, 1
    s_lshl_b32 s45, s45, 8
    s_and_b32 s39, s27, 1
    s_lshl_b32 s39, s39, 3
    s_add_u32 s39, s39, s28
    s_lshl_b32 s39, s39, 2
    s_add_u32 s45, s45, s39
    s_add_u32 s45, s45, {CNT + 8*256}
    """)
    p4_ids(k)
    k("s_waitcnt vmcnt(0)")
    signal(k, 45, "lflag")
    k(f"""
    s_lshl_b32 s36, s27, 8
    s_add_u32 s36, s36, {8*256}
    """)
    wave_poll_flags(k, 1, 36, 16)
    stamp(k, 6)
    p4_body(k, True)
    p5_compute(k)


def wdma(k, c):
    k(f"""
    s_mov_b32 s41, {c*65536}
    s_add_u32 m0, s48, {(c % NWS)*8192}
    buffer_load_dwordx4 v{WD0}, s[16:19], s41 offen lds
    buffer_load_dwordx4 v{WD0+1}, s[16:19], s41 offen offset:1024 lds
    """)


def p4_body(k, X):
    tiles = [0, 1, 2, 3] if X else [4, 5, 6]
    NT = len(tiles)
    VWA, VHA, VCSA, HB, FR, ACC = 10, 13, 14, 16, 24, 40
    if E('ACC64') == '1':
        HB, FR, ACC = 208, 216, 32
    STT, T, CSB = 128, 144, 160
    MEAN, NMEAN, C1, C2 = 117, 118, 120, 122

    NW = 2 if X else 5
    VWD = 200

    def group_ops(c):
        ops = []
        if X:
            for i in range(4):
                p2 = f"s_add_u32 s39, s38, {c*4096}\ns_add_u32 m0, s40, {(c%3)*16384}\n" if i == 0 else ""
                ops.append(p2 + f"buffer_load_dwordx4 v{VL16}, s[20:23], s39 offen offset:{i*1024} sc1 lds")
        if c >= 3:
            for j in range(NW):
                p2 = f"s_add_u32 s37, s32, {c*4096}\n" if j == 0 else ""
                ops.append(p2 + f"s_add_u32 m0, s34, {(c%3)*28672 + j*1024}\nbuffer_load_dwordx4 v{VWD+j}, s[20:23], s37 offen sc1 lds")
        return ops

    for c in range(3):
        for o in group_ops(c):
            k(o)
    for j in range(NW):
        k(f"""
        s_add_u32 s35, s31, {j}
        s_lshr_b32 s36, s35, 2
        s_lshl_b32 s36, s36, 15
        s_and_b32 s35, s35, 3
        s_lshl_b32 s35, s35, 10
        s_add_u32 s35, s35, s36
        v_add_u32 v{VWD+j}, s35, v{VL16}
        """)
    k(f"""
    v_lshrrev_b32 v3, 5, v1
    v_mov_b32 v{VWA}, v{VL16}
    v_add_u32 v{VWA+1}, 28672, v{VWA}
    v_add_u32 v{VWA+2}, {2*28672}, v{VWA}
    v_add_u32 v{VHA}, s40, v{VL16}
    v_lshlrev_b32 v{VCSA}, 4, v3
    v_add_u32 v{VCSA}, {CSL4}, v{VCSA}
    """)

    Q = LdsQ(k)

    def rdh(n):
        c, s_ = n // 4, n % 4
        Q.op(f"ds_read_b128 {r4(HB + 4*(n % 2))}, v{VHA} offset:{(c%3)*16384 + s_*1024}", ("h", n))

    def rdw(n, i):
        c, s_ = n // 4, n % 4
        Q.op(f"ds_read_b128 {r4(FR+4*i)}, v{VWA + c % 3} offset:{tiles[i]*4096 + s_*1024}", ("w", n, i))

    vq = []

    def vop(text, tag):
        k(text)
        vq.append(tag)

    def vwait(tag, lg=""):
        idx = [i for i, t in enumerate(vq) if t == tag]
        n = len(vq) - 1 - max(idx) if idx else None
        if n is not None:
            k(f"s_waitcnt vmcnt({n}) {lg}")
        elif lg:
            k(f"s_waitcnt {lg}")

    for c in range(3):
        vq.extend([("H", c)] * (4 if X else 7))
    vwait(("H", 0), "lgkmcnt(0)")
    k("s_barrier")
    if X and STAMPS:
        stamp(k, 2); k("s_waitcnt lgkmcnt(0)")
    rdh(0)
    for i in range(NT):
        rdw(0, i)
    pend = []
    wpend = []
    for n in range(32):
        last = n == 31
        bar = (n + 1) % 4 == 0 and not last
        if bar:
            c1 = (n + 1) // 4
            for o, t in pend:
                vop(o, t)
            for o in wpend:
                Q.op(o)
            vwait(("H", c1), "lgkmcnt(0)")
            Q.clear()
            k("s_barrier")
            if X and STAMPS and c1 == int(E("MID", "4")):
                stamp(k, 15); k("s_waitcnt lgkmcnt(0)")
            pend = [(o, ("H", c1 + 2)) for o in group_ops(c1 + 2)] if c1 + 2 <= 7 else []
            if c1 == int(E("SL", "1")):
                ops = [f"s_lshl_b32 s36, s29, 12\ns_add_u32 s36, s36, {ST}\nv_lshlrev_b32 v8, 3, v1\n" +
                       f"buffer_load_dwordx2 {pr(STT)}, v8, s[20:23], s36 offen sc1"]
                for i in range(1, 8):
                    ops.append(f"buffer_load_dwordx2 {pr(STT+2*i)}, v8, s[20:23], s36 offen offset:{512*i} sc1")
                if X:
                    ops.append(f"""
                    v_min_u32 v5, 223, v0
                    v_cmp_lt_u32 vcc, 111, v5
                    v_mov_b32 v6, {1792-112}
                    v_cndmask_b32 v6, 0, v6, vcc
                    v_add_u32 v6, v6, v5
                    v_lshlrev_b32 v6, 4, v6
                    v_lshlrev_b32 v9, 2, v5
                    v_add_u32 v9, {CSL4}, v9
                    s_mul_i32 s37, s28, {112*16}
                    s_add_u32 s37, s37, {CS}
                    buffer_load_dwordx4 {r4(T)}, v6, s[20:23], s37 offen sc1""")
                    for q in range(1, 4):
                        ops.append(f"s_add_u32 s37, s37, {3584*16}\nbuffer_load_dwordx4 {r4(T+4*q)}, v6, s[20:23], s37 offen sc1")
                ops = [o.replace("s36", "s43").replace("s37", "s44") for o in ops]
                pend += [(o, "S") for o in ops]
            if c1 == 6:
                DW = int(E("DW", "0"))
                if not X and DW < 2 and E('TP', 'half') != 'late':
                    pend.append((f"""
                    v_min_u32 v5, 55, v1
                    v_lshlrev_b32 v6, 7, v5
                    s_lshr_b32 s37, s2, 3
                    s_lshl_b32 s37, s37, 2
                    s_add_u32 s37, s37, s26
                    s_mul_i32 s37, s37, {7*1024}
                    s_add_u32 s37, s37, {DW*896*1024}
                    buffer_load_dword v124, v6, s[16:19], s37 offen""", "T"))
                    if DW == 0 and E('TP', 'half') != 'half':
                        pend.append((f"s_add_u32 s37, s37, {896*1024}\nbuffer_load_dword v124, v6, s[16:19], s37 offen", "T"))
        b = HB + 4 * (n % 2)
        if not last:
            rdh(n + 1)
        for i in range(NT):
            A = r16(ACC + 16 * i)
            Q.wait(("h", n), ("w", n, i))
            k(f"{MF32} {A}, {r4(FR+4*i)}, {r4(b)}, " + (A if n else "0"))
            if not last:
                rdw(n + 1, i)
            if pend and (i % 2 == 0 or len(pend) > 6 or E('BURST') == '1'):
                vop(*pend.pop(0))
            if wpend and i == 1:
                Q.op(wpend.pop(0))
        if n == int(E("SN", "13")):
            vwait("S")
            if X:
                for st_ in (8, 4, 2, 1):
                    for i in range(st_):
                        k(f"v_add_f32 v{T+i}, v{T+i}, v{T+i+st_}")
            for i in range(1, 8):
                k(f"v_add_f32 v{STT}, v{STT}, v{STT+2*i}")
                k(f"v_add_f32 v{STT+1}, v{STT+1}, v{STT+2*i+1}")
            k(f"""
            v_mov_b32 v{STT+2}, v{STT}
            v_mov_b32 v{STT+3}, v{STT+1}
            v_permlane32_swap_b32 v{STT}, v{STT+2}
            v_permlane32_swap_b32 v{STT+1}, v{STT+3}
            v_add_f32 v{STT}, v{STT}, v{STT+2}
            v_add_f32 v{STT+1}, v{STT+1}, v{STT+3}
            v_mul_f32 v{MEAN}, {f32(1/512)}, v{STT}
            v_mul_f32 v{C2}, {f32(1/512)}, v{STT+1}
            v_fma_f32 v{C2}, -v{MEAN}, v{MEAN}, v{C2}
            v_max_f32 v{C2}, 0, v{C2}
            v_add_f32 v{C2}, {f32(1e-5)}, v{C2}
            v_rsq_f32 v{C1}, v{C2}
            v_mul_f32 v{C1}, {f32(-LOG2E)}, v{C1}
            v_mov_b32 v{C1+1}, v{C1}
            v_mov_b32 v{C2+1}, v{C2}
            v_sub_f32 v{NMEAN}, 0, v{MEAN}
            v_sub_f32 v{NMEAN+1}, 0, v{MEAN}
            """)
    if X:
        stamp(k, 7)
        k(f"ds_write_b32 v9, v{T}")
    k("s_waitcnt lgkmcnt(0)")
    k("s_barrier")
    wq = []
    if not X:
        k("s_lshl_b32 s48, s26, 11")
        if EARLYW:
            wq = list(range(NWS))

    def wpop(n=1):
        for _ in range(n):
            if wq:
                wdma(k, wq.pop(0))

    k(f"""
    s_mul_i32 s36, s29, {112*1024}
    s_mul_i32 s37, s28, {7*1024}
    s_add_u32 s36, s36, s37
    s_add_u32 s36, s36, {AF + tiles[0]*1024}
    """)

    def csread(i):
        p = tiles[i]
        d = CSB + (i % 2) * 16
        k(f"ds_read_b128 {r4(d)}, v{VCSA} offset:{p*64}")
        k(f"ds_read_b128 {r4(d+4)}, v{VCSA} offset:{p*64+32}")
        k(f"ds_read_b128 {r4(d+8)}, v{VCSA} offset:{448+p*64}")
        k(f"ds_read_b128 {r4(d+12)}, v{VCSA} offset:{448+p*64+32}")

    csread(0)
    for i in range(NT):
        k("s_waitcnt lgkmcnt(0)")
        if i + 1 < NT:
            csread(i + 1)
        d = CSB + (i % 2) * 16
        A = ACC + 16 * i
        wpop(2)
        for r in range(0, 16, 2):
            k(f"v_pk_fma_f32 {pr(A+r)}, {pr(NMEAN)}, {pr(d+r)}, {pr(A+r)}")
        for r in range(0, 8, 2):
            k(f"v_pk_mul_f32 {pr(T+r)}, {pr(A+r)}, {pr(C1)}")
        for r in range(8):
            k(f"v_exp_f32 v{T+r}, v{T+r}")
        wpop(2)
        for r in range(0, 8, 2):
            k(f"v_pk_mul_f32 {pr(A+r)}, {pr(A+r)}, {pr(A+8+r)}")
        for r in range(0, 8, 2):
            k(f"v_pk_fma_f32 {pr(T+r)}, {pr(T+r)}, {pr(C2)}, {pr(C2)}")
        for r in range(8):
            k(f"v_rcp_f32 v{T+r}, v{T+r}")
        for r in range(0, 8, 2):
            k(f"v_pk_mul_f32 {pr(A+r)}, {pr(A+r)}, {pr(T+r)}")
        if i == NT - 1:
            wpop(99)
        for j in range(4):
            k(f"v_cvt_pk_bf16_f32 v{A+j}, v{A+2*j}, v{A+2*j+1}")
        mstore(k, f"buffer_store_dwordx4 {r4(A)}, v{VL16}, s[20:23], s36 offen offset:{i*1024}", "a")
    k(f"""
    s_lshl_b32 s45, s27, 8
    s_lshl_b32 s39, s28, 2
    s_add_u32 s45, s45, s39
    s_add_u32 s45, s45, {CNT + 24*256}
    """)


def dwrite(c):
    ws = c % NWS
    a, off = (DV, ws * 8192) if ws < 7 else (DV + 1, (ws - 7) * 8192)
    return f"ds_write_b128 v{a}, {r4(DS + 4*(27 - c))} offset:{off}"


def dsetup(k):
    k(f"""
    s_lshl_b32 s35, s25, 10
    v_add_u32 v{DV}, s35, v{VL16}
    v_add_u32 v{DV+1}, 57344, v{DV}
    """)


def p5_loader(k):
    ids64(k)
    k(f"""
    s_lshl_b32 s34, s26, 11
    s_mul_i32 s32, s31, {112*1024}
    s_lshl_b32 s33, s29, 11
    s_add_u32 s32, s32, s33
    s_add_u32 s32, s32, {AF}
    """)

    def adma(c):
        k(f"""
        s_add_u32 s40, s32, {c*4096}
        s_add_u32 m0, s34, {AOFF + (c % NAS)*8192}
        buffer_load_dwordx4 v{VL16}, s[20:23], s40 offen sc1 lds
        buffer_load_dwordx4 v{VL16}, s[20:23], s40 offen offset:1024 sc1 lds
        """)

    if EARLYW:
        k("s_waitcnt vmcnt(0)")
        k("s_barrier")
    else:
        for c in range(4):
            wdma(k, c)
        k("s_waitcnt vmcnt(8)")
        k("s_barrier")
        for c in range(4, NWS):
            wdma(k, c)
        if E('TP', 'half') in ('late', 'half'):
            k(f"""
            v_min_u32 v5, 55, v1
            v_lshlrev_b32 v6, 7, v5
            s_lshr_b32 s37, s2, 3
            s_lshl_b32 s37, s37, 2
            s_add_u32 s37, s37, s26
            s_mul_i32 s37, s37, {7*1024}
            s_add_u32 s37, s37, {896*1024}
            buffer_load_dword v124, v6, s[16:19], s37 offen
            """)
    k("s_barrier")
    order = []
    ia, iw = 0, NWS
    for c in range(NAS - 2):
        adma(c); order.append(("a", c)); ia += 1
    for c in range(28):
        need = max(i for i, g in enumerate(order) if g == ("a", c) or g == ("w", c))
        k(f"s_waitcnt vmcnt({2*(len(order) - 1 - need)}) lgkmcnt(0)")
        k("s_barrier")
        if ia < 28 and ia <= c - 2 + NAS:
            adma(ia); order.append(("a", ia)); ia += 1
        if iw < 28 and iw <= c - 2 + NWS:
            if STAGED:
                k(dwrite(iw))
            else:
                wdma(k, iw); order.append(("w", iw))
            iw += 1
    k("s_endpgm")


def p5_compute(k):
    VBA, VWA, ACC, T, FR = 12, 13, 64, 80, 120
    k("s_waitcnt vmcnt(0)")
    stamp(k, 8)
    signal(k, 45, "lflag")
    ids64(k)
    srd(k, 56, POUT, POUT + 1, 2 * MB)
    k(f"""
    v_and_b32 v2, 31, v1
    v_lshrrev_b32 v3, 5, v1
    s_lshl_b32 s37, s28, 1
    s_add_u32 s37, s37, s29
    s_lshl_b32 s40, s30, 12
    s_add_u32 s40, s40, {AOFF}
    v_add_u32 v{VBA}, s40, v{VL16}
    v_add_u32 v{VWA}, 57344, v{TRA}
    """)
    for i in range(8):
        k(f"v_lshlrev_b32 v{T+2*i}, 16, v{HKEEP+i}")
        k(f"v_and_b32 v{T+2*i+1}, 0xffff0000, v{HKEEP+i}")
    k(f"""
    s_lshr_b32 s36, s27, 1
    s_lshl_b32 s36, s36, 8
    s_add_u32 s36, s36, {24*256}
    """)
    wave_poll_flags(k, 1, 36, 16)
    stamp(k, 9)

    Q = LdsQ(k)
    PD5 = min(PD, 3) if STAGED else PD
    NB5 = PD5 + 1

    def reads(n):
        c, s_ = n // 4, n % 4
        b = FR + (n % NB5) * 8
        ws = c % NWS
        wr, woff = (f"v{TRA}", ws * 8192) if ws < 7 else (f"v{VWA}", (ws - 7) * 8192)
        Q.op(f"ds_read_b128 {r4(b)}, v{VBA} offset:{(c % NAS)*8192 + s_*1024}", n)
        Q.op(f"ds_read_b64_tr_b16 {pr(b+4)}, {wr} offset:{woff + s_*2048}", n)
        Q.op(f"ds_read_b64_tr_b16 {pr(b+6)}, {wr} offset:{woff + s_*2048 + 1024}", n)

    k("s_barrier")
    k("s_waitcnt lgkmcnt(0)")
    for n in range(PD5):
        reads(n)
    KS = 112
    for n in range(KS):
        if n + PD5 < KS:
            if (n + PD5) % 4 == 0:
                c = (n + PD5) // 4
                k("s_barrier")
                iw = c - 2 + NWS
                if STAGED and NWS <= iw < 28:
                    Q.op(dwrite(iw))
            reads(n + PD5)
        Q.wait(n)
        b = FR + (n % NB5) * 8
        k(f"{MF32} {r16(ACC)}, {r4(b+4)}, {r4(b)}, " + (r16(ACC) if n else r16(T)))
    stamp(k, 10)
    for i in range(8):
        k(f"v_cvt_pk_bf16_f32 v{ACC+i}, v{ACC+2*i}, v{ACC+2*i+1}")
    k(f"""
    v_lshlrev_b32 v4, 10, v2
    v_lshl_add_u32 v4, v3, 4, v4
    v_permlane32_swap_b32 v{ACC}, v{ACC+2}
    v_permlane32_swap_b32 v{ACC+1}, v{ACC+3}
    v_permlane32_swap_b32 v{ACC+4}, v{ACC+6}
    v_permlane32_swap_b32 v{ACC+5}, v{ACC+7}
    s_lshl_b32 s38, s31, 15
    s_lshl_b32 s39, s37, 6
    s_add_u32 s38, s38, s39
    buffer_store_dwordx4 {r4(ACC)}, v4, s[56:59], s38 offen
    buffer_store_dwordx4 {r4(ACC+4)}, v4, s[56:59], s38 offen offset:32
    """)
    stamp(k, 11); stamp(k, 12, True); stamp_flush(k, 16)
    if DIAG:
        k("""
        s_memrealtime s[94:95]
        s_waitcnt lgkmcnt(0)
        s_sub_u32 s92, s92, s90
        s_lshl_b32 s92, s92, 2
        s_add_u32 s92, s92, s94
        """)
        k.label("L_diag")
        k("""
        s_memrealtime s[94:95]
        s_waitcnt lgkmcnt(0)
        s_sub_u32 s96, s94, s92
        s_cmp_lt_i32 s96, 0
        s_cbranch_scc1 L_diag
        """)
    k.label("L_end")
    k("s_endpgm")


def build(out):
    k = Kern(MONO)
    p1(k)
    p2(k)
    p3(k)
    k.label("L_codeend")
    k("s_nop 0")
    hdr = open("sequential_preLN__softmax_full_mha__swiglu_ffn__prompt.s.ref").read().split("; Override launch")[0]
    l = "grid=(256,1,1) block=(512,1,1) lds=163840"
    hdr += f"; @launch kernel={MONO} {l}\n" if (STAMPS or E("LIST") == "1") else f"; @launch {l}\n"
    open(out, "w").write(hdr + '.amdgcn_target "amdgcn-amd-amdhsa--gfx950"\n' + k.full())


if __name__ == "__main__":
    import sys
    build(sys.argv[1])
```

```python
import os
from dsl import Kern
import common
from common import MB, QF, KF, VF, OF, HF, ST, CS, AF, WGF, CNT, WS_BYTES, LOG2E, f32, srd, MONO

E = os.environ.get
STAMPS = E("STAMPS") == "1"
SPIN = 1 << 20
SMODE = 24
SIDE = 147456
WIDE0 = E('WIDE0', '0') == '1'
PX, PQKV, PWS, PWO, PWD, POUT, PG, PU, PDBG = 4, 6, 8, 10, 12, 14, 60, 62, 64
SB = 66


DIAG = E("DIAG")


def stamp(k, i, rt=False):
    if DIAG and int(DIAG) == i:
        k("s_memrealtime s[92:93]")
    if STAMPS:
        k(f"{'s_memrealtime' if rt else 's_memtime'} s[{SB+2*i}:{SB+1+2*i}]")


def stamp_flush(k, n):
    if not STAMPS:
        return
    k(f"""
    s_waitcnt lgkmcnt(0)
    s_lshl_b32 s51, s2, 4
    s_add_u32 s51, s51, s25
    s_lshl_b32 s51, s51, 6
    s_add_u32 s51, s51, {66*MB}
    v_mov_b32 v0, 0
    """)
    for i in range(n):
        k(f"v_mov_b32 v1, s{SB+2*i}")
        k(f"buffer_store_dword v1, v0, s[20:23], s51 offen offset:{4*i}")


_n = [0]


def uid(p):
    _n[0] += 1
    return f"L_{p}{_n[0]}"


DATAWT = E("DATAWT", "a")


def mstore(k, instrs, kind="flag"):
    if isinstance(instrs, str):
        instrs = [instrs]
    if kind in DATAWT:
        for i in instrs:
            k(i + " sc1")
        return
    g, e = uid("msg"), uid("mse")
    k(f"s_cmp_eq_u32 s{SMODE}, 0")
    k(f"s_cbranch_scc1 {g}")
    for i in instrs:
        k(i)
    k(f"s_branch {e}")
    k.label(g)
    for i in instrs:
        k(i + " sc1")
    k.label(e)


def one_lane(k, instr_fn):
    k("s_mov_b64 exec, 1")
    instr_fn()
    k("s_mov_b64 exec, -1")


def signal(k, soff, kind):
    l = uid("sig")
    k(f"""
    s_barrier
    s_cmp_lg_u32 s25, 0
    s_cbranch_scc1 {l}
    v_mov_b32 v4, 0
    v_mov_b32 v5, 1
    s_mov_b64 exec, 1
    """)
    if kind == "add":
        k(f"buffer_atomic_add v5, v4, s[20:23], s{soff} offen sc1")
    elif kind == "flag":
        k(f"buffer_store_dword v5, v4, s[20:23], s{soff} offen sc1")
    else:
        mstore(k, f"buffer_store_dword v5, v4, s[20:23], s{soff} offen")
    k("s_mov_b64 exec, -1")
    k.label(l)


def poll(k, vaddr, vexp, vtmp, sleep=0, pre=0):
    l = uid("poll")
    k(f"s_mov_b32 s46, {CNT}")
    k("s_mov_b32 s47, 0")
    if pre:
        k(f"s_sleep {pre}")
    k.label(l)
    if sleep:
        k(f"s_sleep {sleep}")
    k(f"""
    buffer_load_dword v{vtmp}, v{vaddr}, s[20:23], s46 offen sc1
    s_add_u32 s47, s47, 1
    s_waitcnt vmcnt(0)
    v_cmp_gt_u32 vcc, v{vexp}, v{vtmp}
    s_cmp_gt_u32 s47, {SPIN}
    s_cbranch_scc1 {l}_out
    s_cbranch_vccnz {l}
    """)
    k.label(f"{l}_out")


def wave_poll_flags(k, wave, sgrp, G, sleep=0, pre=0, stride=2):
    l = uid("wp")
    k(f"""
    s_cmp_lg_u32 s25, {wave}
    s_cbranch_scc1 {l}
    v_and_b32 v7, {G-1}, v1
    v_lshlrev_b32 v7, {stride}, v7
    v_add_u32 v7, s{sgrp}, v7
    v_mov_b32 v8, 1
    """)
    poll(k, 7, 8, 6, sleep, pre)
    k.label(l)
    k("s_barrier")


def pr(x):
    return f"v[{x}:{x+1}]"


def r4(x):
    return f"v[{x}:{x+3}]"


def r16(x):
    return f"v[{x}:{x+15}]"


MF32 = "v_mfma_f32_32x32x16_bf16"
MF16 = "v_mfma_f32_16x16x32_bf16"


def p1(k):
    NST, STAGE, WOFF = 4, 32768, 8192
    SCR = NST * STAGE
    VXD, VWD, VXA, VWA, FR, ACC, CSA, SEL, T, SUM, PF = 10, 12, 20, 28, 40, 80, 128, 144, 156, 164, 168
    k(f"""
    s_load_dwordx4 s[4:7], s[0:1], 0
    s_load_dwordx4 s[64:67], s[0:1], 64
    s_cmp_ge_u32 s2, 256
    s_cbranch_scc1 L_end
    s_getpc_b64 s[46:47]
    """)
    if DIAG:
        k("s_memrealtime s[90:91]")
    k.label("L_pc")
    k(f"""
    """)
    PFM = E("PFM", "0")
    if PFM == "0":
        k(f"""
        v_lshlrev_b32 v2, 6, v0
        v_min_u32 v3, L_codeend-L_pc, v2
        global_load_dword v{PF}, v3, s[46:47]
        v_add_u32 v2, 32768, v2
        v_min_u32 v3, L_codeend-L_pc, v2
        global_load_dword v{PF}, v3, s[46:47]
        """)
    else:
        k(f"""
        v_lshlrev_b32 v2, 7, v0
        v_min_u32 v3, L_p2-L_pc, v2
        global_load_dword v{PF}, v3, s[46:47]
        """)
    k(f"""
    v_and_b32 v1, 63, v0
    v_lshrrev_b32 v2, 6, v0
    """)
    k("v_readfirstlane_b32 s25, v2")
    k(f"""
    s_and_b32 s27, s2, 6
    s_lshl_b32 s27, s27, 2
    s_lshr_b32 s28, s2, 3
    s_and_b32 s41, s28, 7
    s_add_u32 s27, s27, s41
    s_and_b32 s28, s2, 1
    s_lshl_b32 s28, s28, 2
    s_lshr_b32 s29, s2, 6
    s_add_u32 s28, s28, s29
    s_and_b32 s26, s25, 3
    s_getreg_b32 s30, hwreg(HW_REG_XCC_ID)
    s_and_b32 s30, s30, 7
    {E("FAKEXCC", "")}
    s_mul_i32 s31, s30, s30
    s_lshl_b32 s31, s31, 16
    s_lshl_b32 s30, s30, 8
    s_add_u32 s30, s30, s31
    s_add_u32 s51, s30, 1
    s_cmp_lt_u32 s25, 4
    s_cbranch_scc1 L_p1_M
    """)
    k(f"""
    s_lshl_b32 s29, s29, 1
    s_add_u32 s41, s41, s29
    s_and_b32 s41, s41, {E("ROTMASK", "7")}
    v_lshrrev_b32 v8, 3, v1
    v_and_b32 v9, 7, v1
    s_lshl_b32 s30, s27, 16
    s_lshl_b32 s31, s26, 14
    s_add_u32 s30, s30, s31
    v_lshrrev_b32 v5, 1, v8
    v_xor_b32 v5, v5, v9
    v_lshlrev_b32 v5, 4, v5
    v_lshl_add_u32 v5, v8, 10, v5
    v_add_u32 v{VXD}, s30, v5
    v_xor_b32 v5, 64, v5
    v_add_u32 v5, 8192, v5
    v_add_u32 v{VXD+1}, s30, v5
    s_lshl_b32 s34, s26, 11
    s_mul_i32 s31, s26, {16*3072}
    s_lshl_b32 s32, s28, 7
    s_add_u32 s31, s31, s32
    v_bfe_u32 v4, v1, 4, 1
    v_lshlrev_b32 v4, 2, v4
    v_xor_b32 v4, v4, v9
    v_lshlrev_b32 v4, 4, v4
    v_mul_u32_u24 v5, 3072, v8
    v_add3_u32 v{VWD}, v4, v5, s31
    s_add_u32 s35, s34, {WOFF}
    s_waitcnt lgkmcnt(0)
    s_mov_b32 s8, s66
    s_mov_b32 s9, s67
    """)
    srd(k, 52, PX, PX + 1, 2 * MB)
    srd(k, 16, PQKV, PQKV + 1, 512 * 3072)

    def xops(c):
        st = (c % NST) * STAGE
        ops = []
        for i in range(2):
            pre = f"s_add_u32 s36, s41, {c}\ns_and_b32 s36, s36, 7\ns_mul_i32 s37, s36, {64*3072}\ns_lshl_b32 s36, s36, 7\n" if i == 0 else ""
            ops.append(pre + f"s_add_u32 m0, s34, {st + i*1024}\nbuffer_load_dwordx4 v{VXD+i}, s[52:55], s36 offen lds")
        return ops

    def wop(c, j):
        st = (c % NST) * STAGE
        t, i = j >> 1, j & 1
        return (f"s_add_u32 s38, s37, {t*1024 + i*8*3072}\ns_add_u32 m0, s35, {st + t*8192 + i*1024}\n"
                f"buffer_load_dwordx4 v{VWD}, s[16:19], s38 offen lds")

    def group_ops(c):
        return xops(c) + [wop(c, j) for j in range(6)]

    for o in group_ops(0):
        k(o)
    k("s_barrier")
    for o in group_ops(1):
        k(o)
    k(f"""
    s_load_dwordx2 s[10:11], s[0:1], 16
    s_load_dwordx4 s[12:15], s[0:1], 48
    v_and_b32 v2, 31, v1
    v_lshrrev_b32 v3, 5, v1
    v_lshrrev_b32 v4, 1, v2
    v_and_b32 v4, 7, v4
    v_lshlrev_b32 v5, 7, v2
    s_and_b32 s36, s26, 1
    s_lshl_b32 s36, s36, 12
    v_add_u32 v5, s36, v5
    s_lshr_b32 s39, s26, 1
    s_lshl_b32 s39, s39, 2
    v_add_u32 v6, s39, v3
    s_mov_b32 s43, 0xffff0000
    """)
    srd(k, 56, PDBG, PDBG + 1, 256)
    srd(k, 20, PWS, PWS + 1, WS_BYTES)
    for p in range(2):
        k(f"""
        v_add_u32 v7, {2*p}, v6
        v_xor_b32 v7, v7, v4
        v_lshl_add_u32 v{VXA+p}, v7, 4, v5
        v_add_u32 v{VXA+4+p}, {2*STAGE}, v{VXA+p}
        """)
    for i in range(4):
        k(f"v_mov_b32 v{SUM+i}, 0")

    def stats(c, pend):
        fb = FR + 8 * (c % 2)
        for j in range(8):
            if pend:
                k(pend.pop(0))
            lo, hi = T + 2 * (j % 4), T + 2 * (j % 4) + 1
            k(f"""
            v_lshlrev_b32 v{lo}, 16, v{fb+j}
            v_and_b32 v{hi}, s43, v{fb+j}
            v_add_f32 v{SUM}, v{SUM}, v{lo}
            v_add_f32 v{SUM+1}, v{SUM+1}, v{hi}
            v_fmac_f32 v{SUM+2}, v{lo}, v{lo}
            v_fmac_f32 v{SUM+3}, v{hi}, v{hi}
            """)

    for c in range(8):
        k(f"s_waitcnt vmcnt({(8 if c + 1 <= 7 else 0) + (1 if c == 6 else 0)}) lgkmcnt(0)")
        k("s_barrier")
        st = c % NST
        fb = FR + 8 * (c % 2)
        for p in range(2):
            k(f"ds_read_b128 {r4(fb+4*p)}, v{VXA + 4*(st//2) + p} offset:{(st%2)*STAGE}")
        pend = group_ops(c + 2) if c + 2 <= 7 else []
        if c:
            stats(c - 1, pend)
        for o in pend:
            k(o)
        if c == 5:
            k("""
            s_and_b32 s36, s2, 7
            s_lshl_b32 s36, s36, 5
            v_mov_b32 v170, s36
            v_cmp_eq_u32 vcc, 1, v1
            v_mov_b32 v171, 16
            v_cndmask_b32 v170, v170, v171, vcc
            buffer_load_dword v171, v170, s[56:59], 0 offen sc1
            """)
    k("s_waitcnt lgkmcnt(0)")
    stats(7, [])
    k("s_mov_b32 s47, 0")
    k.label("L_t_chk")
    k(f"""
    v_readlane_b32 s36, v171, 0
    v_readlane_b32 s37, v171, 1
    s_and_b32 s38, s36, 255
    s_cmp_gt_u32 s47, {SPIN}
    s_cbranch_scc1 L_t_ok
    s_cmp_lt_u32 s38, 32
    s_cbranch_scc1 L_t_again
    s_cmp_ge_u32 s37, 1
    s_cbranch_scc1 L_t_ok
    """)
    k.label("L_t_again")
    k("""
    buffer_load_dword v171, v170, s[56:59], 0 offen sc1
    s_add_u32 s47, s47, 1
    s_waitcnt vmcnt(0)
    s_branch L_t_chk
    """)
    k.label("L_t_ok")
    k(f"""
    s_lshl_b32 s38, s51, 5
    s_cmp_eq_u32 s36, s38
    s_cselect_b32 s{SMODE}, {E("FORCEMODE", "1")}, 0
    v_mov_b32 v170, {SCR + 1536}
    v_mov_b32 v171, s{SMODE}
    ds_write_b32 v170, v171
    v_add_f32 v164, v164, v165
    v_add_f32 v166, v166, v167
    v_mov_b32 v165, v164
    v_mov_b32 v167, v166
    v_permlane32_swap_b32 v164, v165
    v_permlane32_swap_b32 v166, v167
    v_add_f32 v164, v164, v165
    v_add_f32 v166, v166, v167
    s_lshl_b32 s37, s26, 8
    v_lshlrev_b32 v4, 2, v2
    v_add_u32 v6, s37, v4
    v_add_u32 v6, {SCR+2048}, v6
    ds_write_b32 v6, v164
    ds_write_b32 v6, v166 offset:128
    v_xor_b32 v7, 512, v6
    s_waitcnt lgkmcnt(0)
    s_barrier
    ds_read_b32 v165, v7
    ds_read_b32 v167, v7 offset:128
    v_and_b32 v6, 0xfffffdff, v6
    s_waitcnt lgkmcnt(0)
    v_add_f32 v164, v164, v165
    v_add_f32 v166, v166, v167
    v_mul_f32 v164, {f32(-1/512)}, v164
    v_mul_f32 v166, {f32(1/512)}, v166
    v_fma_f32 v166, -v164, v164, v166
    v_max_f32 v166, 0, v166
    v_add_f32 v166, {f32(1e-5)}, v166
    v_rsq_f32 v165, v166
    ds_write_b32 v6, v164 offset:1024
    ds_write_b32 v6, v165 offset:1152
    s_waitcnt lgkmcnt(0)
    s_barrier
    s_barrier
    """)
    k("s_branch L_p2")
    k.label("L_p1_M")
    k("s_setprio 1")
    k("s_mov_b64 s[48:49], s[46:47]")
    k(f"""
    s_and_b32 s30, s26, 1
    s_lshr_b32 s31, s26, 1
    s_lshl_b32 s29, s27, 1
    s_add_u32 s29, s29, s30
    v_and_b32 v2, 31, v1
    v_lshrrev_b32 v3, 5, v1
    v_lshrrev_b32 v4, 1, v2
    v_and_b32 v4, 7, v4
    v_lshlrev_b32 v5, 7, v2
    s_lshl_b32 s34, s30, 12
    v_add_u32 v5, s34, v5
    v_bfe_u32 v6, v1, 2, 2
    v_lshrrev_b32 v7, 1, v6
    v_xor_b32 v7, s31, v7
    v_lshl_add_u32 v6, v3, 3, v6
    v_lshlrev_b32 v6, 7, v6
    v_lshl_add_u32 v6, v7, 6, v6
    v_bfe_u32 v7, v1, 4, 1
    v_lshl_add_u32 v6, v7, 5, v6
    v_and_b32 v7, 3, v1
    v_lshl_add_u32 v6, v7, 3, v6
    v_add_u32 v6, {WOFF}, v6
    s_waitcnt lgkmcnt(0)
    s_mov_b32 s8, s66
    s_mov_b32 s9, s67
    s_load_dwordx2 s[10:11], s[0:1], 16
    s_load_dwordx4 s[12:15], s[0:1], 48
    s_load_dwordx4 s[60:63], s[0:1], 32
    """)
    stamp(k, 0, True); stamp(k, 1)
    srd(k, 56, PDBG, PDBG + 1, 256)
    srd(k, 20, PWS, PWS + 1, WS_BYTES)
    k(f"""
    s_cmp_lg_u32 s25, 1
    s_cbranch_scc1 L_t_notk
    s_and_b32 s36, s2, 7
    s_lshl_b32 s36, s36, 5
    v_mov_b32 v7, 0
    v_mov_b32 v8, s51
    s_mov_b64 exec, 1
    buffer_atomic_add v8, v7, s[56:59], s36 offen sc1
    s_mov_b64 exec, -1
    """)
    k.label("L_t_notk")
    k("s_barrier")
    if E("TOUCH1", "0") == "1":
        srd(k, 52, PX, PX + 1, 2 * MB)
        srd(k, 16, PQKV, PQKV + 1, 512 * 3072)
        k(f"""
        s_lshr_b32 s36, s2, 3
        s_lshl_b32 s36, s36, 2
        s_add_u32 s36, s36, s26
        v_min_u32 v7, 31, v1
        v_and_b32 v8, 7, v7
        v_max_u32 v8, 2, v8
        v_lshrrev_b32 v7, 3, v7
        v_lshlrev_b32 v7, 10, v7
        v_lshl_add_u32 v7, v8, 7, v7
        s_and_b32 s37, s2, 6
        s_lshl_b32 s37, s37, 18
        s_lshl_b32 s38, s36, 12
        s_add_u32 s37, s37, s38
        v_min_u32 v8, 35, v1
        v_lshrrev_b32 v9, 2, v8
        v_and_b32 v8, 3, v8
        v_lshlrev_b32 v9, 10, v9
        v_lshl_add_u32 v8, v8, 7, v9
        s_mul_i32 s38, s36, {3*3072}
        s_and_b32 s39, s2, 1
        s_lshl_b32 s39, s39, 9
        s_add_u32 s38, s38, s39
        s_add_u32 s38, s38, {128*3072}
        buffer_load_dword v{PF}, v8, s[16:19], s38 offen
        buffer_load_dword v{PF}, v7, s[52:55], s37 offen
        """)
    k(f"""
    s_add_u32 s36, s2, s25
    s_cmp_lg_u32 s36, 0
    s_cbranch_scc1 L_t_nz
    v_lshrrev_b32 v7, 3, v1
    v_and_b32 v9, 7, v1
    v_lshlrev_b32 v7, 8, v7
    v_lshl_add_u32 v7, v9, 4, v7
    v_mov_b32 v8, 0
    v_mov_b32 v9, 0
    v_mov_b32 v10, 0
    v_mov_b32 v11, 0
    """)
    for i in range(8):
        k(f"s_mov_b32 s36, {CNT + i*2048}")
        k("buffer_store_dwordx4 v[8:11], v7, s[20:23], s36 offen sc1")
    if WIDE0:
        k("v_lshlrev_b32 v7, 7, v1")
        for i in range(4):
            k(f"s_mov_b32 s36, {CNT + 16384 + i*8192}")
            k("buffer_store_dword v8, v7, s[20:23], s36 offen sc1")
    k("""
    v_mov_b32 v12, 1
    s_waitcnt vmcnt(0)
    s_mov_b64 exec, 1
    buffer_store_dword v12, v8, s[56:59], 0 offen offset:16 sc1
    s_mov_b64 exec, -1
    """)
    k.label("L_t_nz")
    for p in range(4):
        k(f"""
        s_add_u32 s36, s30, {p}
        s_and_b32 s36, s36, 3
        s_lshl_b32 s37, s36, 1
        s_lshl_b32 s38, s36, 11
        v_add_u32 v7, s37, v3
        v_xor_b32 v7, v7, v4
        v_lshl_add_u32 v{VXA+p}, v7, 4, v5
        v_add_u32 v{VWA+p}, s38, v6
        v_add_u32 v{VXA+4+p}, {2*STAGE}, v{VXA+p}
        v_add_u32 v{VWA+4+p}, {2*STAGE}, v{VWA+p}
        """)
    k("""
    v_and_b32 v7, 15, v1
    v_bfe_u32 v8, v1, 4, 1
    v_sub_u32 v7, v7, v8
    v_mov_b32 v8, 0x3f803f80
    """)
    for t in range(3):
        k(f"v_cmp_eq_u32 vcc, {2*t}, v7")
        for i in range(4):
            k(f"v_cndmask_b32 v{SEL+4*t+i}, 0, v8, vcc")
    k(f"""
    v_lshlrev_b32 v4, 2, v2
    v_add_u32 v4, {SCR+5120}, v4
    v_and_b32 v5, 15, v1
    v_lshlrev_b32 v5, 2, v5
    v_lshrrev_b32 v7, 4, v1
    v_lshl_add_u32 v5, v7, 8, v5
    v_add_u32 v5, {SCR+5120}, v5
    s_lshl_b32 s36, s26, 10
    v_add_u32 v5, s36, v5
    s_lshl_b32 s36, s31, 11
    v_add_u32 v4, s36, v4
    v_lshlrev_b32 v7, 2, v1
    v_add_u32 v7, {SCR+5120}, v7
    v_add_u32 v7, s36, v7
    s_lshl_b32 s37, s30, 8
    s_add_u32 s37, s37, {SCR+3072}
    v_lshlrev_b32 v8, 4, v3
    v_add_u32 v10, s37, v8
    v_lshlrev_b32 v9, 2, v2
    v_add_u32 v9, s37, v9
    s_lshl_b32 s37, s26, 8
    s_add_u32 s37, s37, {SCR+4096}
    v_add_u32 v8, s37, v8
    v_lshlrev_b32 v11, 2, v1
    v_add_u32 v11, s37, v11
    v_mov_b32 v12, {SCR + 1536}
    v_bfe_u32 v13, v1, 4, 1
    v_and_b32 v14, 15, v1
    v_lshlrev_b32 v14, 4, v14
    v_lshl_add_u32 v14, v3, 8, v14
    v_lshl_add_u32 v14, v13, 16, v14
    v_lshlrev_b32 v6, 4, v1
    s_lshl_b32 s38, s28, 18
    s_lshl_b32 s39, s31, 17
    s_add_u32 s38, s38, s39
    s_lshl_b32 s39, s29, 10
    s_add_u32 s38, s38, s39
    s_lshl_b32 s45, s28, {12 if WIDE0 else 8}
    s_lshl_b32 s46, s27, {7 if WIDE0 else 2}
    s_add_u32 s45, s45, s46
    s_add_u32 s45, s45, {CNT + (16384 if WIDE0 else 48*256)}
    s_waitcnt lgkmcnt(0)
    """)
    XB, WB = FR, FR + 12

    def addr(n):
        c, p = n // 4, n % 4
        st = c % NST
        return 4 * (st // 2) + p, (st % 2) * STAGE

    def rdx(n):
        ai, off = addr(n)
        k(f"ds_read_b128 {r4(XB + (n % 3) * 4)}, v{VXA+ai} offset:{off}")

    def rdw(n, t):
        ai, off = addr(n)
        for ab in range(2):
            r = WB + 12 * (n % 2) + 4 * t + 2 * ab
            k(f"ds_read_b64_tr_b16 {pr(r)}, v{VWA+ai} offset:{off + ab*512 + t*8192}")

    k("s_barrier")
    for n in range(2):
        rdx(n)
        for t in range(3):
            rdw(n, t)
    for n in range(32):
        pf = n + 2 < 32
        if (n + 2) % 4 == 0 and pf:
            k("s_barrier")
        if n == 30:
            k("s_barrier")
        if n == 12 and PFM != "0":
            k(f"""
            v_lshlrev_b32 v15, 7, v0
            v_add_u32 v15, L_p2-L_pc, v15
            v_min_u32 v15, L_codeend-L_pc, v15
            global_load_dword v{PF}, v15, s[48:49]
            """)
        X = r4(XB + (n % 3) * 4)
        W = [r4(WB + 12 * (n % 2) + 4 * t) for t in range(3)]
        A = [r16(ACC + 16 * t) for t in range(3)]
        Cc = [a if n else "0" for a in A]
        mf = [f"{MF32} {A[0]}, {W[0]}, {X}, {Cc[0]}", f"{MF32} {A[1]}, {W[1]}, {X}, {Cc[1]}", f"{MF32} {A[2]}, {X}, {W[2]}, {Cc[2]}"]
        if pf:
            rdx(n + 2)
        for t in range(3):
            cnt = 12 if pf else (2 * (2 - t) + 7 if n == 30 else 2 * (2 - t))
            k(f"s_waitcnt lgkmcnt({cnt})")
            k(mf[t])
            if n % 2 == 0:
                cc = "0" if (n == 0 and t == 0) else r4(CSA)
                k(f"{MF16} {r4(CSA)}, {r4(SEL+4*t)}, {W[t]}, {cc}")
            if pf:
                rdw(n + 2, t)
    for r in range(4):
        k(f"ds_write_b32 v5, v{CSA+r} offset:{r*64}")
    k("""
    s_waitcnt lgkmcnt(0)
    s_barrier
    ds_read_b32 v12, v12
    """)
    for w in range(2):
        k(f"ds_read_b32 v{T+w}, v7 offset:{w*1024}")
        k(f"ds_read_b32 v{T+2+w}, v4 offset:{w*1024+256}")
    MR = FR
    for g in range(4):
        k(f"ds_read_b128 {r4(MR+4*g)}, v10 offset:{g*32}")
        k(f"ds_read_b128 {r4(MR+16+4*g)}, v10 offset:{128+g*32}")
    NM, RS, RQ, CV = 164, 166, 170, 172
    k(f"ds_read_b32 v{NM}, v9")
    k(f"ds_read_b32 v{RS}, v9 offset:128")
    k("s_waitcnt lgkmcnt(10)")
    k(f"""
    v_readfirstlane_b32 s{SMODE}, v12
    v_add_f32 v{T}, v{T}, v{T+1}
    v_add_f32 v{CV}, v{T+2}, v{T+3}
    v_add_f32 v{CV+1}, v{T+2}, v{T+3}
    ds_write_b32 v11, v{T}
    s_waitcnt lgkmcnt(0)
    """)
    CQ = CSA
    for t in range(2):
        for g in range(4):
            k(f"ds_read_b128 {r4(CQ+16*t+4*g)}, v8 offset:{t*128 + g*32}")
    AV = ACC + 32
    for r in range(0, 16, 2):
        k(f"v_pk_fma_f32 {pr(AV+r)}, {pr(MR+r)}, {pr(CV)}, {pr(AV+r)}")
    for r in range(0, 16, 2):
        k(f"v_pk_mul_f32 {pr(AV+r)}, {pr(AV+r)}, {pr(MR+16+r)}")
    for i in range(8):
        k(f"v_cvt_pk_bf16_f32 v{AV+i}, v{AV+2*i}, v{AV+2*i+1}")
    k(f"""
    s_add_u32 s39, s38, {VF}
    buffer_store_dwordx4 {r4(AV)}, v14, s[20:23], s39 offen sc1
    buffer_store_dwordx4 {r4(AV+4)}, v14, s[20:23], s39 offen offset:512 sc1
    v_mov_b32 v{NM+1}, v{NM}
    v_mov_b32 v{RS+1}, v{RS}
    v_mul_f32 v{RQ}, {f32(0.25*LOG2E)}, v{RS}
    v_mul_f32 v{RQ+1}, {f32(0.25*LOG2E)}, v{RS}
    s_waitcnt lgkmcnt(0)
    """)
    for t in (1, 0):
        A = ACC + 16 * t
        sc = RQ if t == 0 else RS
        for r in range(0, 16, 2):
            k(f"v_pk_fma_f32 {pr(A+r)}, {pr(NM)}, {pr(CQ+16*t+r)}, {pr(A+r)}")
        for r in range(0, 16, 2):
            k(f"v_pk_mul_f32 {pr(A+r)}, {pr(A+r)}, {pr(sc)}")
        for i in range(8):
            k(f"v_cvt_pk_bf16_f32 v{A+i}, v{A+2*i}, v{A+2*i+1}")
        base = QF if t == 0 else KF
        k(f"s_add_u32 s39, s38, {base}")
        k(f"s_add_u32 s40, s38, {base+65536}")
        k(f"buffer_store_dwordx4 {r4(A)}, v6, s[20:23], s39 offen sc1")
        k(f"buffer_store_dwordx4 {r4(A+4)}, v6, s[20:23], s40 offen sc1")
    stamp(k, 13)
    k("s_setprio 0")
    k("s_waitcnt vmcnt(0)")
    signal(k, 45, "flag")


def side_dma(k, T):
    k(f"""
    s_lshr_b32 s44, s2, 2
    s_cmp_lt_u32 s44, 28
    s_cselect_b32 s16, s{PG}, s{PU}
    s_cselect_b32 s17, s{PG+1}, s{PU+1}
    s_cselect_b32 s36, 0, 28
    s_mov_b32 s18, {512*3584}
    s_mov_b32 s19, 0x20000
    s_sub_u32 s36, s44, s36
    s_lshl_b32 s36, s36, 7
    s_and_b32 s43, s2, 3
    s_lshl_b32 s43, s43, 2
    s_add_u32 s43, s43, s26
    s_mul_i32 s37, s43, {32*3584}
    s_add_u32 s36, s36, s37
    s_cmp_lt_u32 s2, 224
    s_cselect_b32 s36, s36, 0x7ff00000
    v_bfe_u32 v{T}, v1, 2, 1
    v_bfe_u32 v{T+1}, v1, 4, 1
    v_xor_b32 v{T}, v{T}, v{T+1}
    v_and_b32 v{T+1}, 3, v1
    v_lshlrev_b32 v{T+1}, 4, v{T+1}
    v_lshl_add_u32 v{T+1}, v{T}, 6, v{T+1}
    v_lshrrev_b32 v{T}, 3, v1
    v_mul_u32_u24 v{T}, 3584, v{T}
    v_add_u32 v{T}, v{T}, v{T+1}
    s_lshl_b32 s48, s26, 12
    s_add_u32 s48, s48, {SIDE}
    """)
    for i in range(4):
        k(f"s_add_u32 m0, s48, {i*1024}")
        k(f"buffer_load_dwordx4 v{T}, s[16:19], s36 offen lds")
        k(f"s_add_u32 s36, s36, {8*3584}")


def side_job(k):
    TMP, WF, SL, CA = 108, 120, 136, 144
    k(f"""
    s_cmp_lt_u32 s2, 224
    s_cbranch_scc0 L_side_end
    s_lshr_b32 s44, s2, 2
    s_and_b32 s43, s2, 3
    s_lshl_b32 s43, s43, 2
    s_add_u32 s43, s43, s26
    s_lshl_b32 s48, s26, 12
    s_add_u32 s48, s48, {SIDE}
    v_bfe_u32 v{TMP}, v1, 2, 2
    v_lshrrev_b32 v{TMP+1}, 5, v1
    v_lshl_add_u32 v{TMP+1}, v{TMP+1}, 2, v{TMP}
    v_lshlrev_b32 v{TMP+1}, 7, v{TMP+1}
    v_lshrrev_b32 v{TMP}, 1, v{TMP}
    v_lshl_add_u32 v{TMP+1}, v{TMP}, 6, v{TMP+1}
    v_bfe_u32 v{TMP}, v1, 4, 1
    v_lshl_add_u32 v{TMP+1}, v{TMP}, 5, v{TMP+1}
    v_and_b32 v{TMP}, 3, v1
    v_lshl_add_u32 v{TMP+1}, v{TMP}, 3, v{TMP+1}
    v_add_u32 v{TMP+1}, s48, v{TMP+1}
    v_xor_b32 v{TMP+2}, 64, v{TMP+1}
    v_bfe_u32 v{TMP}, v1, 3, 2
    v_mov_b32 v{TMP+3}, 0x3f803f80
    v_cmp_eq_u32 vcc, 0, v{TMP}
    v_cmp_eq_u32 s[38:39], 1, v{TMP}
    """)
    for i in range(4):
        k(f"v_cndmask_b32 v{SL+i}, 0, v{TMP+3}, vcc")
        k(f"v_cndmask_b32 v{SL+4+i}, 0, v{TMP+3}, s[38:39]")
    k(f"""
    v_and_b32 v{TMP}, 47, v1
    v_lshlrev_b32 v{TMP}, 4, v{TMP}
    v_bfe_u32 v{TMP+3}, v1, 4, 1
    v_lshl_add_u32 v{TMP}, v{TMP+3}, 15, v{TMP}
    s_cmp_lt_u32 s44, 28
    s_cselect_b32 s36, 0, {256 - 28*4*32768 + (1<<32)}
    s_lshl_b32 s37, s44, 17
    s_add_u32 s36, s36, s37
    s_lshl_b32 s37, s43, 11
    s_add_u32 s36, s36, s37
    s_add_u32 s36, s36, {WGF}
    s_add_u32 s37, s36, 65536
    s_waitcnt vmcnt(0) lgkmcnt(0)
    """)
    for s_ in range(2):
        for nt in range(2):
            for ab in range(2):
                r = WF + 8 * s_ + 4 * nt + 2 * ab
                k(f"ds_read_b64_tr_b16 {pr(r)}, v{TMP+1+nt} offset:{s_*2048 + ab*1024}")
    k("s_waitcnt lgkmcnt(0)")
    first = True
    for s_ in range(2):
        for nt in range(2):
            r = WF + 8 * s_ + 4 * nt
            k(f"{MF32} {r16(CA)}, {r4(SL+4*nt)}, {r4(r)}, {'0' if first else r16(CA)}")
            first = False
            k(f"buffer_store_dwordx4 {r4(r)}, v{TMP}, s[20:23], s{36+nt} offen offset:{s_*1024} sc1")
    k(f"""
    v_cmp_gt_u32 vcc, 32, v1
    v_lshlrev_b32 v{TMP+1}, 4, v1
    s_lshl_b32 s36, s44, 10
    s_lshl_b32 s37, s26, 2
    s_add_u32 s36, s36, s37
    s_and_b32 s37, s2, 3
    s_mul_i32 s37, s37, {3584*16}
    s_add_u32 s36, s36, s37
    s_add_u32 s36, s36, {CS}
    v_cndmask_b32 v{TMP+2}, v{CA+4}, v{CA}, vcc
    buffer_store_dword v{TMP+2}, v{TMP+1}, s[20:23], s36 offen sc1
    """)
    k.label("L_side_end")


VBASE, VSTR = 65536, 1056
SX, SY = 160, 128


def p2(k):
    Q, KFR, VFR, S, C, O, P0, P1 = 4, 8, 16, 32, 64, 80, 96, 100
    AK, AV0, AV1, TMP, PF, XV = 104, 105, 106, 108, 116, 117
    PDROP, TITER = int(E("PDROP", "5")), int(E("TITER", "2"))
    k.label("L_p2")
    k(f"""
    s_and_b32 s27, s2, 31
    s_lshr_b32 s28, s2, 5
    s_lshl_b32 s28, s28, 3
    s_add_u32 s28, s28, s25
    v_lshlrev_b32 v2, 4, v1
    s_lshl_b32 s29, s27, 16
    s_lshl_b32 s30, s25, 10
    s_add_u32 s31, s29, s30
    s_mul_i32 s32, s25, {VSTR}
    s_add_u32 s32, s32, {VBASE}
    s_lshl_b32 s33, s28, 10
    s_add_u32 s33, s33, s29
    v_mov_b32 v{TMP}, 0x3f803f80
    v_mov_b32 v{TMP+1}, 0x3f803f80
    v_mov_b32 v{TMP+2}, 0x3f803f80
    v_mov_b32 v{TMP+3}, 0x3f803f80
    v_mul_u32_u24 v3, {VSTR}, v1
    v_add_u32 v3, {VBASE+1024}, v3
    """)
    for i in range(16):
        k(f"v_mov_b32 v{O+i}, 0")
    k(f"""
    s_cmp_lg_u32 s25, 3
    s_cbranch_scc1 L_p2_noones
    ds_write_b128 v3, {r4(TMP)}
    ds_write_b128 v3, {r4(O)} offset:16
    """)
    k.label("L_p2_noones")
    k(f"""
    v_mov_b32 v{AK}, v2
    v_and_b32 v3, 15, v1
    v_lshlrev_b32 v3, 4, v3
    v_lshrrev_b32 v{TMP+4}, 5, v1
    v_lshl_add_u32 v3, v{TMP+4}, 8, v3
    v_mov_b32 v{TMP+6}, 1024
    v_and_b32 v{TMP+5}, 11, v1
    v_cmp_eq_u32 vcc, 0, v{TMP+5}
    v_mov_b32 v{TMP+7}, 1040
    v_cndmask_b32 v{TMP+6}, v{TMP+7}, v{TMP+6}, vcc
    v_and_b32 v{TMP+5}, 16, v1
    v_cmp_eq_u32 vcc, 0, v{TMP+5}
    v_subrev_u32 v{TMP+7}, 512, v{TMP+6}
    v_cndmask_b32 v{AV0}, v{TMP+6}, v3, vcc
    v_cndmask_b32 v{AV1}, v{TMP+7}, v3, vcc
    v_add_u32 v{AV0}, {VBASE}, v{AV0}
    v_add_u32 v{AV1}, {VBASE}, v{AV1}
    """)
    for i in range(4):
        k(f"v_mov_b32 v{P1+i}, 0")
        k(f"v_mov_b32 v{VFR+12+i}, 0")
    k("""
    s_cmp_lt_u32 s25, 4
    s_cselect_b32 s42, 99, 1
    s_cselect_b32 s41, 99, 0
    s_mov_b32 s35, 0
    """)
    k(f"""
    s_lshr_b32 s36, s27, 2
    s_lshl_b32 s36, s36, {12 if WIDE0 else 8}
    s_add_u32 s36, s36, {16384 if WIDE0 else 48*256}
    s_waitcnt lgkmcnt(0)
    """)
    wave_poll_flags(k, 1, 36, 32, int(E('PS0', '4')), int(E('PP0', '20')), 7 if WIDE0 else 2)
    stamp(k, 14)

    def dma_tile(t):
        k(f"""
        s_add_u32 s34, s31, {KF + t*1024}
        s_add_u32 m0, s30, {t*1024}
        buffer_load_dwordx4 v2, s[20:23], s34 offen sc1 lds
        s_add_u32 s34, s31, {VF + t*1024}
        s_add_u32 m0, s32, {t*VSTR}
        buffer_load_dwordx4 v2, s[20:23], s34 offen sc1 lds
        """)

    k("s_cmp_lt_u32 s25, 4")
    k("s_cbranch_scc0 L_p2_B")
    for t in range(0, 16, 4):
        dma_tile(t)
    k(f"buffer_load_dwordx4 {r4(Q)}, v2, s[20:23], s33 offen sc1")
    k("s_waitcnt vmcnt(7)")
    k("s_barrier")
    k("s_setprio 1")
    for t in range(16, 32, 4):
        dma_tile(t)
    k("s_waitcnt vmcnt(8)")
    k("s_barrier")
    for t in range(32, 64, 4):
        dma_tile(t)
    side_dma(k, TMP)
    k("s_waitcnt vmcnt(4)")
    k("s_barrier")
    k(f"""
    v_min_u32 v{TMP}, 13, v1
    v_lshlrev_b32 v{TMP}, 7, v{TMP}
    s_lshl_b32 s36, s2, 2
    s_add_u32 s36, s36, s26
    s_mul_i32 s37, s36, {14*128}
    """)
    srd(k, 16, PWD, PWD + 1, 1792 * 1024)
    k(f"""
    buffer_load_dword v{PF}, v{TMP}, s[16:19], s37 offen
    v_min_u32 v{TMP}, 3, v1
    v_lshlrev_b32 v{TMP}, 7, v{TMP}
    s_lshl_b32 s37, s36, 9
    """)
    srd(k, 16, PWO, PWO + 1, 512 * 1024)
    k(f"buffer_load_dword v{PF}, v{TMP}, s[16:19], s37 offen")
    k("s_branch L_p2_go")
    k.label("L_p2_B")
    k(f"""
    buffer_load_dwordx4 {r4(Q)}, v2, s[20:23], s33 offen sc1
    s_waitcnt vmcnt(0)
    s_barrier
    s_setprio 2
    """)
    k.label("L_p2_go")

    def Kr(b): return r4(KFR + 4 * b)
    def Vr(b, j): return r4(VFR + 8 * b + 4 * j)
    def Sr(b): return r16(S + 16 * b)
    Qr, Cr, Or = r4(Q), r16(C), r16(O)
    def rdK(t, b): k(f"ds_read_b128 {Kr(b)}, v{AK} offset:{t*1024}")

    def rdV(t, b):
        k(f"ds_read_b128 {Vr(b,0)}, v{AV0} offset:{t*VSTR}")
        k(f"ds_read_b128 {Vr(b,1)}, v{AV1} offset:{t*VSTR+512}")

    def tilemax(s1):
        k(f"""
        v_max3_f32 v{TMP}, v{s1}, v{s1+1}, v{s1+2}
        v_max3_f32 v{TMP+1}, v{s1+3}, v{s1+4}, v{s1+5}
        v_max3_f32 v{TMP+2}, v{s1+6}, v{s1+7}, v{s1+8}
        v_max3_f32 v{TMP+3}, v{s1+9}, v{s1+10}, v{s1+11}
        v_max3_f32 v{TMP}, v{TMP}, v{s1+12}, v{s1+13}
        v_max3_f32 v{TMP+1}, v{TMP+1}, v{s1+14}, v{s1+15}
        v_max3_f32 v{TMP}, v{TMP}, v{TMP+1}, v{TMP+2}
        v_max_f32 v{TMP}, v{TMP}, v{TMP+3}
        v_mov_b32 v{TMP+1}, v{TMP}
        v_permlane32_swap_b32 v{TMP}, v{TMP+1}
        """)
    k("s_waitcnt lgkmcnt(0)")
    rdK(0, 0)
    rdK(1, 1)
    rdV(0, 0)
    k("s_waitcnt lgkmcnt(3)")
    k(f"{MF32} {Sr(1)}, {Kr(0)}, {Qr}, 0")
    tilemax(S + 16)
    k(f"v_max_f32 v{TMP}, v{TMP}, v{TMP+1}")
    for i in range(16):
        k(f"v_sub_f32 v{C+i}, 0, v{TMP}")
    k(f"{MF32} {Sr(0)}, {Kr(0)}, {Qr}, {Cr}")
    k("s_nop 9")

    def Ex(b, a, n):
        for i in range(a, a + n):
            k(f"v_exp_f32 v{S+16*b+i}, v{S+16*b+i}")

    def CV(dst, b, i):
        k(f"v_cvt_pk_bf16_f32 v{dst}, v{S+16*b+2*i}, v{S+16*b+2*i+1}")

    def tile(t):
        b = t % 2
        nb = 1 - b
        k("s_waitcnt lgkmcnt(0)")
        k(f"{MF32} {Sr(nb)}, {Kr(nb)}, {Qr}, {Cr}")
        rdK(t + 2, b)
        Ex(b, 0, 4)
        k(f"{MF32} {Or}, {Vr(nb,1)}, {r4(P1)}, {Or}")
        rdV(t + 1, nb)
        Ex(b, 4, 2); CV(P0, b, 0)
        Ex(b, 6, 2); CV(P0 + 1, b, 1)
        Ex(b, 8, 2); CV(P0 + 2, b, 2)
        Ex(b, 10, 2); CV(P0 + 3, b, 3)
        Ex(b, 12, 2)
        k(f"{MF32} {Or}, {Vr(b,0)}, {r4(P0)}, {Or}")
        Ex(b, 14, 2)
        for i in range(4):
            CV(P1 + i, b, 4 + i)

    k.raw(".p2align 6")
    k.label("L_p2_loop")
    for t in range(8):
        if t in (2, 6):
            l = uid("nb")
            k(f"s_cmp_lg_u32 s35, s{41 if t == 2 else 42}")
            k(f"s_cbranch_scc1 {l}")
            k("s_barrier")
            k.label(l)
        tile(t)
    k(f"""
    v_add_u32 v{AK}, 8192, v{AK}
    v_add_u32 v{AV0}, {8*VSTR}, v{AV0}
    v_add_u32 v{AV1}, {8*VSTR}, v{AV1}
    s_cmp_lt_u32 s35, 6
    s_cbranch_scc1 L_p2_ev
    """)
    k.label("L_p2_evret")
    k("""
    s_add_u32 s35, s35, 1
    s_cmp_lg_u32 s35, 8
    s_cbranch_scc1 L_p2_loop
    """)
    k.check_backedge("L_p2_loop")
    k(f"{MF32} {Or}, {Vr(1,1)}, {r4(P1)}, {Or}")
    k("s_waitcnt lgkmcnt(0)")
    stamp(k, 3)
    k(f"""
    v_max3_f32 v{TMP}, abs(v{O}), abs(v{O+1}), abs(v{O+2})
    v_max3_f32 v{TMP+1}, abs(v{O+3}), abs(v{O+4}), abs(v{O+5})
    v_max3_f32 v{TMP}, v{TMP}, abs(v{O+6}), abs(v{O+7})
    v_add_f32 v{TMP+2}, v{O}, v{O+1}
    v_add_f32 v{TMP+3}, v{O+2}, v{O+3}
    v_add_f32 v{TMP+4}, v{O+4}, v{O+5}
    v_add_f32 v{TMP+5}, v{O+6}, v{O+7}
    v_add_f32 v{TMP+2}, v{TMP+2}, v{TMP+3}
    v_add_f32 v{TMP+4}, v{TMP+4}, v{TMP+5}
    v_add_f32 v{TMP+2}, v{TMP+2}, v{TMP+4}
    v_max_f32 v{TMP}, v{TMP}, v{TMP+1}
    s_mov_b32 s36, {f32(2.0**100)}
    s_mov_b32 s37, 0x7f000000
    v_cmp_gt_f32 vcc, s36, v{O+8}
    v_cmp_gt_f32 s[38:39], s37, v{TMP}
    v_cmp_o_f32 s[48:49], v{TMP+2}, v{TMP+2}
    s_and_b64 vcc, vcc, s[38:39]
    s_and_b64 vcc, vcc, s[48:49]
    s_cmp_eq_u64 vcc, exec
    s_cbranch_scc0 L_p2_slow
    """)
    k.label("L_p2_fin")
    k(f"v_rcp_f32 v{TMP}, v{O+8}")
    for i in range(8):
        k(f"v_mul_f32 v{O+i}, v{O+i}, v{TMP}")
    for i in range(4):
        k(f"v_cvt_pk_bf16_f32 v{O+i}, v{O+2*i}, v{O+2*i+1}")
    k(f"""
    s_lshl_b32 s36, s28, 15
    s_lshl_b32 s37, s27, 10
    s_add_u32 s36, s36, s37
    s_add_u32 s36, s36, {OF}
    buffer_store_dwordx4 {r4(O)}, v2, s[20:23], s36 offen sc1
    s_branch L_p3
    """)
    k.label("L_p2_ev")
    k("s_cmp_lt_u32 s25, 4")
    k("s_cbranch_scc0 L_p2_evB")

    k("s_cmp_lg_u32 s35, 1")
    k("s_cbranch_scc1 L_p2_evA1")
    side_job(k)
    k("s_branch L_p2_evret")
    k.label("L_p2_evA1")
    k(f"s_cmp_lg_u32 s35, {TITER}")
    k("s_cbranch_scc1 L_p2_evA2")
    k(f"""
    s_lshr_b32 s36, s2, 5
    s_lshl_b32 s36, s36, 8
    s_add_u32 s36, s36, {CNT + 40*256}
    v_mov_b32 v{TMP}, 0
    v_mov_b32 v{TMP+1}, 1
    s_waitcnt vmcnt(0)
    s_mov_b64 exec, 1
    buffer_atomic_add v{TMP+1}, v{TMP}, s[20:23], s36 offen sc1
    s_mov_b64 exec, -1
    """)
    k(f"""
    s_lshr_b32 s36, s2, 3
    s_lshl_b32 s36, s36, 2
    s_add_u32 s36, s36, s26
    v_min_u32 v{TMP}, 31, v1
    v_lshlrev_b32 v{TMP}, 7, v{TMP}
    s_lshl_b32 s37, s36, 12
    """)
    srd(k, 16, PWO, PWO + 1, 512 * 1024)
    k(f"""
    buffer_load_dword v{PF}, v{TMP}, s[16:19], s37 offen
    v_min_u32 v{TMP}, 15, v1
    v_lshlrev_b32 v{TMP}, 7, v{TMP}
    s_and_b32 s38, s2, 7
    s_lshl_b32 s38, s38, 18
    s_lshl_b32 s37, s36, 11
    s_add_u32 s37, s37, s38
    """)
    srd(k, 16, PX, PX + 1, 2 * MB)
    k(f"""
    buffer_load_dword v{PF}, v{TMP}, s[16:19], s37 offen
    s_add_u32 s37, s37, {HF}
    buffer_load_dword v{PF}, v{TMP}, s[20:23], s37 offen
    s_and_b32 s38, s2, 7
    s_lshl_b32 s38, s38, 15
    s_lshl_b32 s37, s36, 8
    s_add_u32 s37, s37, s38
    s_add_u32 s37, s37, {ST}
    v_min_u32 v{TMP}, 1, v1
    v_lshlrev_b32 v{TMP}, 7, v{TMP}
    buffer_load_dword v{PF}, v{TMP}, s[20:23], s37 offen
    s_and_b32 s38, s2, 7
    s_mul_i32 s38, s38, {8*112*1024}
    s_mul_i32 s37, s36, {7*1024}
    s_add_u32 s37, s37, s38
    s_add_u32 s37, s37, {AF}
    v_min_u32 v{TMP}, 55, v1
    v_lshlrev_b32 v{TMP}, 7, v{TMP}
    """)
    if "a" not in DATAWT:
        k(f"buffer_load_dword v{PF}, v{TMP}, s[20:23], s37 offen")
    DW = int(E("DW", "0"))
    if DW:
        srd(k, 16, PWD, PWD + 1, 1792 * 1024)
        k(f"s_mul_i32 s37, s36, {7*1024}")
        for i in range(DW):
            k(f"buffer_load_dword v{PF}, v{TMP}, s[16:19], s37 offen")
            k(f"s_add_u32 s37, s37, {896*1024}")
    k("s_branch L_p2_evret")
    k.label("L_p2_evA2")
    if E("CPF", "1") == "1":
        k(f"""
        s_cmp_lg_u32 s35, 5
        s_cbranch_scc1 L_p2_evA3
        s_getpc_b64 s[36:37]
        """)
        k.label("L_pc2")
        k(f"""
        v_lshlrev_b32 v{TMP}, 7, v0
        v_min_u32 v{TMP}, L_codeend-L_pc2, v{TMP}
        global_load_dword v{PF}, v{TMP}, s[36:37]
        s_branch L_p2_evret
        """)
        k.label("L_p2_evA3")
    k(f"s_cmp_lg_u32 s35, {TITER+1}")
    k("s_cbranch_scc1 L_p2_evret")
    k(f"""
    s_lshr_b32 s36, s2, 3
    s_lshl_b32 s36, s36, 2
    s_add_u32 s36, s36, s26
    s_min_u32 s36, s36, 111
    s_lshl_b32 s36, s36, 15
    s_add_u32 s36, s36, {WGF}
    v_lshlrev_b32 v{TMP}, 7, v1
    """)
    for i in range(int(E("WT", "2"))):
        k(f"buffer_load_dword v{PF}, v{TMP}, s[20:23], s36 offen")
        k("s_add_u32 s36, s36, 8192")
    k("s_branch L_p2_evret")
    k.label("L_p2_evB")
    k(f"s_cmp_lg_u32 s35, {PDROP}")
    k("s_cbranch_scc1 L_p2_evret")
    k("s_setprio 0")
    k("s_branch L_p2_evret")
    k.label("L_p2_slow")
    M = TMP + 6
    k(f"v_subrev_u32 v{AK}, 65536, v{AK}")
    k(f"v_subrev_u32 v{AV0}, {64*VSTR}, v{AV0}")
    k(f"v_subrev_u32 v{AV1}, {64*VSTR}, v{AV1}")
    for i in range(16):
        k(f"v_mov_b32 v{O+i}, 0")
    k(f"v_mov_b32 v{M}, 0xff7fffff")
    k("s_mov_b32 s35, 64")
    k.label("L_p2_sloop")
    rdK(0, 0)
    rdV(0, 0)
    k("s_waitcnt lgkmcnt(0)")
    k(f"{MF32} {Sr(0)}, {Kr(0)}, {Qr}, 0")
    tilemax(S)
    k(f"""
    v_max3_f32 v{TMP}, v{TMP}, v{TMP+1}, v{M}
    v_sub_f32 v{TMP+1}, v{M}, v{TMP}
    v_exp_f32 v{TMP+1}, v{TMP+1}
    v_mov_b32 v{M}, v{TMP}
    """)
    for i in range(16):
        k(f"v_mul_f32 v{O+i}, v{O+i}, v{TMP+1}")
    for i in range(16):
        k(f"v_sub_f32 v{S+i}, v{S+i}, v{M}")
    Ex(0, 0, 16)
    for i in range(4):
        CV(P0 + i, 0, i)
        CV(P1 + i, 0, 4 + i)
    k(f"""
    {MF32} {Or}, {Vr(0,0)}, {r4(P0)}, {Or}
    {MF32} {Or}, {Vr(0,1)}, {r4(P1)}, {Or}
    v_add_u32 v{AK}, 1024, v{AK}
    v_add_u32 v{AV0}, {VSTR}, v{AV0}
    v_add_u32 v{AV1}, {VSTR}, v{AV1}
    s_nop 15
    s_sub_u32 s35, s35, 1
    s_cmp_lg_u32 s35, 0
    s_cbranch_scc1 L_p2_sloop
    """)
    k.check_backedge("L_p2_sloop")
    k("s_nop 15")
    k("s_branch L_p2_fin")


HKEEP, VL16, TRA, WD0 = 104, 112, 113, 113
HOFF4 = 3 * 28672
CSL4 = HOFF4 + 3 * 16384
NWS = int(E("NWS", "12"))
NAS = 20 - NWS
AOFF = NWS * 8192
EARLYW = E("EARLYW", "0") == "1"
PD = int(E("PD", "4"))
NB = PD + 1
XL = 131072
STAGED = False
YS = int(E('YS', '0'))
DS, DV = 192, 115


def ids64(k):
    k("""
    s_and_b32 s27, s2, 7
    s_lshl_b32 s27, s27, 2
    s_lshr_b32 s28, s2, 3
    s_and_b32 s28, s28, 3
    s_add_u32 s27, s27, s28
    s_lshr_b32 s28, s2, 5
    s_and_b32 s29, s26, 1
    s_lshr_b32 s30, s26, 1
    s_lshl_b32 s31, s27, 1
    s_add_u32 s31, s31, s30
    """)


def p4_ids(k):
    k(f"""
    s_and_b32 s27, s2, 7
    s_lshl_b32 s27, s27, 1
    s_lshr_b32 s28, s2, 3
    s_and_b32 s28, s28, 1
    s_add_u32 s27, s27, s28
    s_lshr_b32 s28, s2, 4
    s_lshl_b32 s29, s27, 2
    s_add_u32 s29, s29, s26
    s_lshl_b32 s38, s29, 15
    s_add_u32 s38, s38, {HF}
    s_lshl_b32 s40, s26, 12
    s_add_u32 s40, s40, {HOFF4}
    s_cmp_lt_u32 s25, 4
    s_cselect_b32 s31, 2, 5
    s_cselect_b32 s35, 20, 0
    s_mul_i32 s31, s31, s26
    s_add_u32 s31, s31, s35
    s_lshl_b32 s34, s31, 10
    s_mul_i32 s32, s28, {7*32768}
    s_add_u32 s32, s32, {WGF}
    """)


def wstage(k, X, c):
    for o in wstage_ops(X, c):
        k(o)


def wstage_ops(X, c):
    n, base = (3, SX + 12 * (7 - c)) if X else (4, SY + 16 * (7 - c))
    return [f"ds_write_b128 v15, {r4(base + 4*i)} offset:{(c % 3)*28672 + i*1024}" for i in range(n)]


class LdsQ:
    def __init__(self, k):
        self.k, self.q = k, []

    def op(self, text, tag=None):
        self.k(text)
        self.q.append(tag)

    def wait(self, *tags):
        idx = [i for i, t in enumerate(self.q) if t in tags]
        if not idx:
            return
        n = len(self.q) - 1 - max(idx)
        assert n <= 15
        self.k(f"s_waitcnt lgkmcnt({n})")
        self.q = self.q[max(idx) + 1:]

    def clear(self):
        self.q = []


def p3(k):
    k.label("L_p3")
    k(f"v_lshlrev_b32 v{VL16}, 4, v1")
    ids64(k)
    k(f"""
    s_lshr_b32 s45, s2, 5
    s_lshl_b32 s45, s45, 8
    s_add_u32 s45, s45, {CNT}
    s_setprio 0
    s_waitcnt vmcnt(0)
    """)
    signal(k, 45, "add")
    k("s_cmp_lt_u32 s25, 4")
    k("s_cbranch_scc1 L_p3C")
    k(f"""
    s_lshl_b32 s34, s26, 11
    v_lshrrev_b32 v2, 3, v1
    v_bfe_u32 v3, v1, 2, 1
    v_bfe_u32 v4, v1, 4, 1
    v_xor_b32 v3, v3, v4
    v_and_b32 v4, 3, v1
    v_lshlrev_b32 v4, 4, v4
    v_lshl_add_u32 v4, v3, 6, v4
    v_lshl_add_u32 v4, v2, 10, v4
    s_lshl_b32 s35, s26, 14
    s_lshl_b32 s36, s28, 7
    s_add_u32 s35, s35, s36
    v_add_u32 v{WD0}, s35, v4
    v_add_u32 v{WD0+1}, 8192-1024, v{WD0}
    """)
    srd(k, 16, PWO, PWO + 1, 512 * 1024)
    srd(k, 56, PX, PX + 1, 2 * MB)
    for c in range(8):
        k(f"""
        s_mov_b32 s41, {c*65536}
        s_add_u32 m0, s34, {c*8192}
        buffer_load_dwordx4 v{WD0}, s[16:19], s41 offen lds
        buffer_load_dwordx4 v{WD0+1}, s[16:19], s41 offen offset:1024 lds
        """)
    k(f"""
    v_and_b32 v5, 7, v1
    v_xor_b32 v5, v5, v2
    v_lshlrev_b32 v5, 4, v5
    v_lshl_add_u32 v4, v2, 10, v5
    s_lshl_b32 s38, s27, 16
    s_add_u32 s38, s38, s35
    s_add_u32 m0, s34, {XL}
    buffer_load_dwordx4 v4, s[56:59], s38 offen lds
    s_add_u32 s38, s38, 8192
    s_add_u32 m0, s34, {XL+1024}
    buffer_load_dwordx4 v4, s[56:59], s38 offen lds
    s_lshl_b32 s32, s31, 15
    s_lshl_b32 s33, s29, 11
    s_add_u32 s32, s32, s33
    s_add_u32 s32, s32, {OF}
    """)
    WT2 = int(E("WT2", "0"))
    if WT2:
        k(f"""
        s_lshr_b32 s36, s2, 3
        s_lshl_b32 s36, s36, 2
        s_add_u32 s36, s36, s26
        s_min_u32 s36, s36, 111
        s_lshl_b32 s36, s36, 15
        s_add_u32 s36, s36, {WGF + int(E("WT", "2"))*8192}
        v_lshlrev_b32 v5, 7, v1
        """)
        for i in range(WT2):
            k("buffer_load_dword v127, v5, s[20:23], s36 offen")
            k("s_add_u32 s36, s36, 8192")
    k("s_barrier")
    for c in range(8):
        k(f"""
        s_add_u32 s40, s32, {c*4096}
        s_add_u32 m0, s34, {65536 + c*8192}
        buffer_load_dwordx4 v{VL16}, s[20:23], s40 offen sc1 lds
        buffer_load_dwordx4 v{VL16}, s[20:23], s40 offen offset:1024 sc1 lds
        """)
    for c in range(8):
        k(f"s_waitcnt vmcnt({2*(7-c)})")
        k("s_barrier")
    p4_ids(k)
    srd(k, 16, PWD, PWD + 1, 1792 * 1024)
    k("s_mul_i32 s42, s26, 7")
    for j in range(7):
        k(f"""
        s_add_u32 s36, s42, {j}
        s_lshr_b32 s37, s36, 2
        s_lshl_b32 s37, s37, 15
        s_and_b32 s39, s36, 3
        s_lshl_b32 s39, s39, 10
        s_add_u32 s37, s37, s39
        v_add_u32 v{120+j}, s37, v{VL16}
        """)
    k("s_lshl_b32 s42, s42, 10")
    k("s_barrier")
    PRE = int(E("PRE3", "4"))
    for c in range(3):
        k(f"s_add_u32 s37, s32, {c*4096}")
        for j in range(7):
            if c * 7 + j == PRE:
                k("s_barrier")
            k(f"""
            s_add_u32 m0, s42, {c*28672 + j*1024}
            buffer_load_dwordx4 v{120+j}, s[20:23], s37 offen sc1 lds
            """)
    k("s_barrier")
    p4_body(k, False)
    p5_loader(k)
    k.label("L_p3C")
    VBA, RES, ACC, T, FR = 12, 20, 64, 80, 120
    k(f"""
    v_and_b32 v2, 31, v1
    v_lshrrev_b32 v3, 5, v1
    s_lshl_b32 s37, s28, 1
    s_add_u32 s37, s37, s29
    s_lshl_b32 s40, s30, 12
    s_add_u32 s40, s40, 65536
    v_add_u32 v{VBA}, s40, v{VL16}
    v_bfe_u32 v4, v1, 2, 2
    v_lshl_add_u32 v5, v3, 2, v4
    v_lshlrev_b32 v5, 7, v5
    v_lshrrev_b32 v4, 1, v4
    v_xor_b32 v4, s29, v4
    v_lshl_add_u32 v5, v4, 6, v5
    v_bfe_u32 v4, v1, 4, 1
    v_lshl_add_u32 v5, v4, 5, v5
    v_and_b32 v4, 3, v1
    v_lshl_add_u32 v{TRA}, v4, 3, v5
    s_lshl_b32 s38, s30, 12
    s_lshl_b32 s39, s29, 2
    v_and_b32 v4, 7, v2
    v_xor_b32 v4, s39, v4
    v_lshlrev_b32 v5, 7, v2
    v_lshl_add_u32 v5, v3, 3, v5
    v_add_u32 v5, s38, v5
    v_add_u32 v5, {XL}, v5
    """)
    for g in range(4):
        k(f"v_xor_b32 v{T+g}, {g}, v4")
        k(f"v_lshl_add_u32 v{T+g}, v{T+g}, 4, v5")
    k(f"""
    s_cmp_lg_u32 s25, 1
    s_cbranch_scc1 L_p3_w
    v_cmp_gt_u32 vcc, 8, v1
    v_lshlrev_b32 v7, 8, v1
    v_add_u32 v7, {40*256}, v7
    s_and_b32 s36, s2, 7
    s_lshl_b32 s36, s36, 8
    v_mov_b32 v8, s36
    v_cndmask_b32 v7, v8, v7, vcc
    v_mov_b32 v8, 32
    v_mov_b32 v9, 128
    v_cndmask_b32 v8, v8, v9, vcc
    """)
    poll(k, 7, 8, 6, int(E('PS1', '3')), int(E('PP1', '10')))
    k.label("L_p3_w")
    k("s_barrier")
    stamp(k, 4)

    def reads3(n):
        c, s_ = n // 4, n % 4
        b = FR + (n % NB) * 8
        k(f"ds_read_b128 {r4(b)}, v{VBA} offset:{c*8192 + s_*1024}")
        k(f"ds_read_b64_tr_b16 {pr(b+4)}, v{TRA} offset:{n*2048}")
        k(f"ds_read_b64_tr_b16 {pr(b+6)}, v{TRA} offset:{n*2048 + 1024}")

    k("s_barrier")
    k("s_waitcnt lgkmcnt(0)")
    for n in range(PD):
        reads3(n)
    for n in range(32):
        if n + PD < 32:
            if (n + PD) % 4 == 0:
                k("s_barrier")
            reads3(n + PD)
            k(f"s_waitcnt lgkmcnt({3*PD})")
        else:
            if n == 30:
                for g in range(4):
                    k(f"ds_read_b64 {pr(RES+2*g)}, v{T+g}")
            k(f"s_waitcnt lgkmcnt({3*(31-n) + (4 if n >= 30 else 0)})")
        b = FR + (n % NB) * 8
        k(f"{MF32} {r16(ACC)}, {r4(b+4)}, {r4(b)}, " + (r16(ACC) if n else "0"))
    k("s_waitcnt lgkmcnt(0)")
    k("s_barrier")
    stamp(k, 5)
    for i in range(8):
        k(f"v_lshlrev_b32 v{T+2*i}, 16, v{RES+i}")
        k(f"v_and_b32 v{T+2*i+1}, 0xffff0000, v{RES+i}")
    for r in range(0, 16, 2):
        k(f"v_pk_add_f32 {pr(ACC+r)}, {pr(ACC+r)}, {pr(T+r)}")
    for i in range(8):
        k(f"v_cvt_pk_bf16_f32 v{HKEEP+i}, v{ACC+2*i}, v{ACC+2*i+1}")
    k(f"""
    s_lshl_b32 s38, s31, 15
    s_lshl_b32 s39, s37, 11
    s_add_u32 s38, s38, s39
    s_add_u32 s38, s38, {HF}
    """)
    mstore(k, [f"buffer_store_dwordx4 {r4(HKEEP)}, v{VL16}, s[20:23], s38 offen",
               f"buffer_store_dwordx4 {r4(HKEEP+4)}, v{VL16}, s[20:23], s38 offen offset:1024"], "h")
    k(f"v_pk_add_f32 {pr(T)}, {pr(ACC)}, {pr(ACC+2)}")
    k(f"v_pk_mul_f32 {pr(T+2)}, {pr(ACC)}, {pr(ACC)}")
    k(f"v_pk_fma_f32 {pr(T+2)}, {pr(ACC+2)}, {pr(ACC+2)}, {pr(T+2)}")
    for r in range(4, 16, 2):
        k(f"v_pk_add_f32 {pr(T)}, {pr(T)}, {pr(ACC+r)}")
        k(f"v_pk_fma_f32 {pr(T+2)}, {pr(ACC+r)}, {pr(ACC+r)}, {pr(T+2)}")
    k(f"""
    v_add_f32 v{T}, v{T}, v{T+1}
    v_add_f32 v{T+1}, v{T+2}, v{T+3}
    v_mov_b32 v{T+2}, v{T}
    v_mov_b32 v{T+3}, v{T+1}
    v_permlane32_swap_b32 v{T}, v{T+2}
    v_permlane32_swap_b32 v{T+1}, v{T+3}
    v_add_f32 v{T}, v{T}, v{T+2}
    v_add_f32 v{T+1}, v{T+1}, v{T+3}
    v_lshlrev_b32 v4, 3, v2
    s_lshl_b32 s38, s31, 12
    s_lshl_b32 s39, s37, 8
    s_add_u32 s38, s38, s39
    s_add_u32 s38, s38, {ST}
    s_mov_b64 exec, 0xffffffff
    """)
    mstore(k, f"buffer_store_dwordx2 {pr(T)}, v4, s[20:23], s38 offen", "h")
    k(f"""
    s_mov_b64 exec, -1
    s_lshr_b32 s45, s27, 1
    s_lshl_b32 s45, s45, 8
    s_and_b32 s39, s27, 1
    s_lshl_b32 s39, s39, 3
    s_add_u32 s39, s39, s28
    s_lshl_b32 s39, s39, 2
    s_add_u32 s45, s45, s39
    s_add_u32 s45, s45, {CNT + 8*256}
    """)
    p4_ids(k)
    k("s_waitcnt vmcnt(0)")
    signal(k, 45, "lflag")
    k(f"""
    s_lshl_b32 s36, s27, 8
    s_add_u32 s36, s36, {8*256}
    """)
    wave_poll_flags(k, 1, 36, 16)
    stamp(k, 6)
    p4_body(k, True)
    p5_compute(k)


def wdma(k, c):
    k(f"""
    s_mov_b32 s41, {(c % 8 if 'w' in E('ABL5', '') else c)*65536}
    s_add_u32 m0, s48, {(c % NWS)*8192}
    buffer_load_dwordx4 v{WD0}, s[16:19], s41 offen lds
    buffer_load_dwordx4 v{WD0+1}, s[16:19], s41 offen offset:1024 lds
    """)


def p4_body(k, X):
    tiles = [0, 1, 2, 3] if X else [4, 5, 6]
    NT = len(tiles)
    VWA, VHA, VCSA, HB, FR, ACC = 10, 13, 14, 16, 24, 40
    if E('ACC64') == '1':
        HB, FR, ACC = 208, 216, 32
    STT, T, CSB = 128, 144, 160
    MEAN, NMEAN, C1, C2 = 117, 118, 120, 122

    NW = 2 if X else 5
    VWD = 124 if X else 88

    def group_ops(c):
        ops = []
        if X:
            for i in range(4):
                p2 = f"s_add_u32 s39, s38, {c*4096}\ns_add_u32 m0, s40, {(c%3)*16384}\n" if i == 0 else ""
                ops.append(p2 + f"buffer_load_dwordx4 v{VL16}, s[20:23], s39 offen offset:{i*1024} sc1 lds")
        if c >= 3:
            for j in range(NW):
                p2 = f"s_add_u32 s37, s32, {c*4096}\n" if j == 0 else ""
                ops.append(p2 + f"s_add_u32 m0, s34, {(c%3)*28672 + j*1024}\nbuffer_load_dwordx4 v{VWD+j}, s[20:23], s37 offen sc1 lds")
        return ops

    for c in range(3):
        for o in group_ops(c):
            k(o)
    for j in range(NW):
        k(f"""
        s_add_u32 s35, s31, {j}
        s_lshr_b32 s36, s35, 2
        s_lshl_b32 s36, s36, 15
        s_and_b32 s35, s35, 3
        s_lshl_b32 s35, s35, 10
        s_add_u32 s35, s35, s36
        v_add_u32 v{VWD+j}, s35, v{VL16}
        """)
    k(f"""
    v_lshrrev_b32 v3, 5, v1
    v_mov_b32 v{VWA}, v{VL16}
    v_add_u32 v{VWA+1}, 28672, v{VWA}
    v_add_u32 v{VWA+2}, {2*28672}, v{VWA}
    v_add_u32 v{VHA}, s40, v{VL16}
    v_lshlrev_b32 v{VCSA}, 4, v3
    v_add_u32 v{VCSA}, {CSL4}, v{VCSA}
    """)

    Q = LdsQ(k)

    def rdh(n):
        c, s_ = n // 4, n % 4
        Q.op(f"ds_read_b128 {r4(HB + 4*(n % 2))}, v{VHA} offset:{(c%3)*16384 + s_*1024}", ("h", n))

    def rdw(n, i):
        c, s_ = n // 4, n % 4
        Q.op(f"ds_read_b128 {r4(FR+4*i)}, v{VWA + c % 3} offset:{tiles[i]*4096 + s_*1024}", ("w", n, i))

    vq = []

    def vop(text, tag):
        k(text)
        vq.append(tag)

    def vwait(tag, lg=""):
        idx = [i for i, t in enumerate(vq) if t == tag]
        n = len(vq) - 1 - max(idx) if idx else None
        if n is not None:
            k(f"s_waitcnt vmcnt({n}) {lg}")
        elif lg:
            k(f"s_waitcnt {lg}")

    for c in range(3):
        vq.extend([("H", c)] * (4 if X else 7))
    vwait(("H", 0), "lgkmcnt(0)")
    k("s_barrier")
    if X and STAMPS:
        stamp(k, 2); k("s_waitcnt lgkmcnt(0)")
    rdh(0)
    for i in range(NT):
        rdw(0, i)
    pend = []
    wpend = []
    for n in range(32):
        last = n == 31
        bar = (n + 1) % 4 == 0 and not last
        if bar:
            c1 = (n + 1) // 4
            for o, t in pend:
                vop(o, t)
            for o in wpend:
                Q.op(o)
            vwait(("H", c1), "lgkmcnt(0)")
            Q.clear()
            k("s_barrier")
            if X and STAMPS and c1 == int(E("MID", "4")):
                stamp(k, 15); k("s_waitcnt lgkmcnt(0)")
            pend = [(o, ("H", c1 + 2)) for o in group_ops(c1 + 2)] if c1 + 2 <= 7 else []
            if c1 == int(E("SL", "1")):
                ops = [f"s_lshl_b32 s36, s29, 12\ns_add_u32 s36, s36, {ST}\nv_lshlrev_b32 v8, 3, v1\n" +
                       f"buffer_load_dwordx2 {pr(STT)}, v8, s[20:23], s36 offen sc1"]
                for i in range(1, 8):
                    ops.append(f"buffer_load_dwordx2 {pr(STT+2*i)}, v8, s[20:23], s36 offen offset:{512*i} sc1")
                if X:
                    ops.append(f"""
                    v_min_u32 v5, 223, v0
                    v_cmp_lt_u32 vcc, 111, v5
                    v_mov_b32 v6, {1792-112}
                    v_cndmask_b32 v6, 0, v6, vcc
                    v_add_u32 v6, v6, v5
                    v_lshlrev_b32 v6, 4, v6
                    v_lshlrev_b32 v9, 2, v5
                    v_add_u32 v9, {CSL4}, v9
                    s_mul_i32 s37, s28, {112*16}
                    s_add_u32 s37, s37, {CS}
                    buffer_load_dwordx4 {r4(T)}, v6, s[20:23], s37 offen sc1""")
                    for q in range(1, 4):
                        ops.append(f"s_add_u32 s37, s37, {3584*16}\nbuffer_load_dwordx4 {r4(T+4*q)}, v6, s[20:23], s37 offen sc1")
                ops = [o.replace("s36", "s43").replace("s37", "s44") for o in ops]
                pend += [(o, "S") for o in ops]
            if not X and YS and c1 in (6, 7):
                cs_ = list(range(28 - YS, 28))
                half = (len(cs_) + 1) // 2
                for c in (cs_[:half] if c1 == 6 else cs_[half:]):
                    r = 200 + 8 * (27 - c)
                    pend.append((f"s_mov_b32 s41, {c*65536}\nbuffer_load_dwordx4 {r4(r)}, v{WD0}, s[16:19], s41 offen", "D"))
                    pend.append((f"buffer_load_dwordx4 {r4(r+4)}, v{WD0+1}, s[16:19], s41 offen offset:1024", "D"))
            if c1 == 6:
                DW = int(E("DW", "0"))
                if not X and DW < 2 and E('TP', 'half') != 'late':
                    pend.append((f"""
                    v_min_u32 v5, 55, v1
                    v_lshlrev_b32 v6, 7, v5
                    s_lshr_b32 s37, s2, 3
                    s_lshl_b32 s37, s37, 2
                    s_add_u32 s37, s37, s26
                    s_mul_i32 s37, s37, {7*1024}
                    s_add_u32 s37, s37, {DW*896*1024}
                    buffer_load_dword v127, v6, s[16:19], s37 offen""", "T"))
                    if DW == 0 and E('TP', 'half') != 'half':
                        pend.append((f"s_add_u32 s37, s37, {896*1024}\nbuffer_load_dword v127, v6, s[16:19], s37 offen", "T"))
        b = HB + 4 * (n % 2)
        if not last:
            rdh(n + 1)
        for i in range(NT):
            A = r16(ACC + 16 * i)
            Q.wait(("h", n), ("w", n, i))
            k(f"{MF32} {A}, {r4(FR+4*i)}, {r4(b)}, " + (A if n else "0"))
            if not last:
                rdw(n + 1, i)
            if pend and (i % 2 == 0 or len(pend) > 6 or E('BURST') == '1'):
                vop(*pend.pop(0))
            if wpend and i == 1:
                Q.op(wpend.pop(0))
        if n == int(E("SN", "13")):
            vwait("S")
            if X:
                for st_ in (8, 4, 2, 1):
                    for i in range(st_):
                        k(f"v_add_f32 v{T+i}, v{T+i}, v{T+i+st_}")
            for i in range(1, 8):
                k(f"v_add_f32 v{STT}, v{STT}, v{STT+2*i}")
                k(f"v_add_f32 v{STT+1}, v{STT+1}, v{STT+2*i+1}")
            k(f"""
            v_mov_b32 v{STT+2}, v{STT}
            v_mov_b32 v{STT+3}, v{STT+1}
            v_permlane32_swap_b32 v{STT}, v{STT+2}
            v_permlane32_swap_b32 v{STT+1}, v{STT+3}
            v_add_f32 v{STT}, v{STT}, v{STT+2}
            v_add_f32 v{STT+1}, v{STT+1}, v{STT+3}
            v_mul_f32 v{MEAN}, {f32(1/512)}, v{STT}
            v_mul_f32 v{C2}, {f32(1/512)}, v{STT+1}
            v_fma_f32 v{C2}, -v{MEAN}, v{MEAN}, v{C2}
            v_max_f32 v{C2}, 0, v{C2}
            v_add_f32 v{C2}, {f32(1e-5)}, v{C2}
            v_rsq_f32 v{C1}, v{C2}
            v_mul_f32 v{C1}, {f32(-LOG2E)}, v{C1}
            v_mov_b32 v{C1+1}, v{C1}
            v_mov_b32 v{C2+1}, v{C2}
            v_sub_f32 v{NMEAN}, 0, v{MEAN}
            v_sub_f32 v{NMEAN+1}, 0, v{MEAN}
            """)
    for o, t in pend:
        vop(o, t)
    if X:
        stamp(k, 7)
        k(f"ds_write_b32 v9, v{T}")
    k("s_waitcnt lgkmcnt(0)")
    k("s_barrier")
    wq = []
    if not X:
        k("s_lshl_b32 s48, s26, 11")
        if EARLYW:
            wq = list(range(NWS))

    def wpop(n=1):
        for _ in range(n):
            if wq:
                wdma(k, wq.pop(0))

    k(f"""
    s_mul_i32 s36, s29, {112*1024}
    s_mul_i32 s37, s28, {7*1024}
    s_add_u32 s36, s36, s37
    s_add_u32 s36, s36, {AF + tiles[0]*1024}
    """)

    def csread(i):
        p = tiles[i]
        d = CSB + (i % 2) * 16
        k(f"ds_read_b128 {r4(d)}, v{VCSA} offset:{p*64}")
        k(f"ds_read_b128 {r4(d+4)}, v{VCSA} offset:{p*64+32}")
        k(f"ds_read_b128 {r4(d+8)}, v{VCSA} offset:{448+p*64}")
        k(f"ds_read_b128 {r4(d+12)}, v{VCSA} offset:{448+p*64+32}")

    csread(0)
    for i in range(NT):
        k("s_waitcnt lgkmcnt(0)")
        if i + 1 < NT:
            csread(i + 1)
        d = CSB + (i % 2) * 16
        A = ACC + 16 * i
        wpop(2)
        for r in range(0, 16, 2):
            k(f"v_pk_fma_f32 {pr(A+r)}, {pr(NMEAN)}, {pr(d+r)}, {pr(A+r)}")
        for r in range(0, 8, 2):
            k(f"v_pk_mul_f32 {pr(T+r)}, {pr(A+r)}, {pr(C1)}")
        for r in range(8):
            k(f"v_exp_f32 v{T+r}, v{T+r}")
        wpop(2)
        for r in range(0, 8, 2):
            k(f"v_pk_mul_f32 {pr(A+r)}, {pr(A+r)}, {pr(A+8+r)}")
        for r in range(0, 8, 2):
            k(f"v_pk_fma_f32 {pr(T+r)}, {pr(T+r)}, {pr(C2)}, {pr(C2)}")
        for r in range(8):
            k(f"v_rcp_f32 v{T+r}, v{T+r}")
        for r in range(0, 8, 2):
            k(f"v_pk_mul_f32 {pr(A+r)}, {pr(A+r)}, {pr(T+r)}")
        if i == NT - 1:
            wpop(99)
        for j in range(4):
            k(f"v_cvt_pk_bf16_f32 v{A+j}, v{A+2*j}, v{A+2*j+1}")
        mstore(k, f"buffer_store_dwordx4 {r4(A)}, v{VL16}, s[20:23], s36 offen offset:{i*1024}", "a")
    k(f"""
    s_lshl_b32 s45, s27, 8
    s_lshl_b32 s39, s28, 2
    s_add_u32 s45, s45, s39
    s_add_u32 s45, s45, {CNT + 24*256}
    """)


def dwrite(c):
    ws = c % NWS
    a, off = (DV, ws * 8192) if ws < 7 else (DV + 1, (ws - 7) * 8192)
    return f"ds_write_b128 v{a}, {r4(DS + 4*(27 - c))} offset:{off}"


def dsetup(k):
    k(f"""
    s_lshl_b32 s35, s25, 10
    v_add_u32 v{DV}, s35, v{VL16}
    v_add_u32 v{DV+1}, 57344, v{DV}
    """)


def p5_loader(k):
    ids64(k)
    k(f"""
    s_lshl_b32 s34, s26, 11
    s_mul_i32 s32, s31, {112*1024}
    s_lshl_b32 s33, s29, 11
    s_add_u32 s32, s32, s33
    s_add_u32 s32, s32, {AF}
    v_add_u32 v{DV}, s34, v{VL16}
    v_add_u32 v{DV+1}, 57344, v{DV}
    """)

    def adma(c):
        k(f"""
        s_add_u32 s40, s32, {(c % 4 if 'a' in E('ABL5', '') else c)*4096}
        s_add_u32 m0, s34, {AOFF + (c % NAS)*8192}
        buffer_load_dwordx4 v{VL16}, s[20:23], s40 offen sc1 lds
        buffer_load_dwordx4 v{VL16}, s[20:23], s40 offen offset:1024 sc1 lds
        """)

    if EARLYW:
        k("s_waitcnt vmcnt(0)")
        k("s_barrier")
    else:
        for c in range(4):
            wdma(k, c)
        k("s_waitcnt vmcnt(8)")
        k("s_barrier")
        for c in range(4, NWS):
            wdma(k, c)
        if E('TP', 'half') in ('late', 'half'):
            k(f"""
            v_min_u32 v5, 55, v1
            v_lshlrev_b32 v6, 7, v5
            s_lshr_b32 s37, s2, 3
            s_lshl_b32 s37, s37, 2
            s_add_u32 s37, s37, s26
            s_mul_i32 s37, s37, {7*1024}
            s_add_u32 s37, s37, {896*1024}
            buffer_load_dword v127, v6, s[16:19], s37 offen
            """)
    k("s_barrier")
    if E("WBL2") == "1":
        k("""
        s_lshr_b32 s36, s2, 3
        s_add_u32 s36, s36, s26
        s_cmp_lg_u32 s36, 0
        s_cbranch_scc1 L_nowb
        buffer_wbl2 sc1
        """)
        k.label("L_nowb")
    order = []
    ia, iw = 0, NWS
    for c in range(NAS - 2):
        adma(c); order.append(("a", c)); ia += 1
    for c in range(28):
        need = max(i for i, g in enumerate(order) if g == ("a", c) or g == ("w", c))
        k(f"s_waitcnt vmcnt({2*(len(order) - 1 - need)}) lgkmcnt(0)")
        k("s_barrier")
        if ia < 28 and ia <= c - 2 + NAS:
            adma(ia); order.append(("a", ia)); ia += 1
        if iw < 28 and iw <= c - 2 + NWS:
            if iw >= 28 - YS:
                ws_ = iw % NWS
                a_, off = (DV, ws_ * 8192) if ws_ < 7 else (DV + 1, (ws_ - 7) * 8192)
                r = 200 + 8 * (27 - iw)
                k(f"ds_write_b128 v{a_}, {r4(r)} offset:{off}")
                k(f"ds_write_b128 v{a_}, {r4(r+4)} offset:{off+1024}")
            else:
                wdma(k, iw); order.append(("w", iw))
            iw += 1
    k("s_endpgm")


def p5_compute(k):
    VBA, VWA, ACC, T, FR = 12, 13, 64, 80, 120
    k("s_waitcnt vmcnt(0)")
    stamp(k, 8)
    signal(k, 45, "lflag")
    ids64(k)
    srd(k, 56, POUT, POUT + 1, 2 * MB)
    k(f"""
    v_and_b32 v2, 31, v1
    v_lshrrev_b32 v3, 5, v1
    s_lshl_b32 s37, s28, 1
    s_add_u32 s37, s37, s29
    s_lshl_b32 s40, s30, 12
    s_add_u32 s40, s40, {AOFF}
    v_add_u32 v{VBA}, s40, v{VL16}
    v_add_u32 v{VWA}, 57344, v{TRA}
    """)
    for i in range(8):
        k(f"v_lshlrev_b32 v{T+2*i}, 16, v{HKEEP+i}")
        k(f"v_and_b32 v{T+2*i+1}, 0xffff0000, v{HKEEP+i}")
    k(f"""
    s_lshr_b32 s36, s27, 1
    s_lshl_b32 s36, s36, 8
    s_add_u32 s36, s36, {24*256}
    """)
    wave_poll_flags(k, 1, 36, 16)
    stamp(k, 9)

    Q = LdsQ(k)
    PD5 = min(PD, 3) if STAGED else PD
    NB5 = PD5 + 1

    def reads(n):
        c, s_ = n // 4, n % 4
        b = FR + (n % NB5) * 8
        ws = c % NWS
        wr, woff = (f"v{TRA}", ws * 8192) if ws < 7 else (f"v{VWA}", (ws - 7) * 8192)
        Q.op(f"ds_read_b128 {r4(b)}, v{VBA} offset:{(c % NAS)*8192 + s_*1024}", n)
        Q.op(f"ds_read_b64_tr_b16 {pr(b+4)}, {wr} offset:{woff + s_*2048}", n)
        Q.op(f"ds_read_b64_tr_b16 {pr(b+6)}, {wr} offset:{woff + s_*2048 + 1024}", n)

    k("s_barrier")
    k("s_waitcnt lgkmcnt(0)")
    for n in range(PD5):
        reads(n)
    KS = 112
    for n in range(KS):
        if n + PD5 < KS:
            if (n + PD5) % 4 == 0:
                c = (n + PD5) // 4
                k("s_barrier")
                iw = c - 2 + NWS
                if STAGED and NWS <= iw < 28:
                    Q.op(dwrite(iw))
            reads(n + PD5)
        Q.wait(n)
        b = FR + (n % NB5) * 8
        k(f"{MF32} {r16(ACC)}, {r4(b+4)}, {r4(b)}, " + (r16(ACC) if n else r16(T)))
    stamp(k, 10)
    for i in range(8):
        k(f"v_cvt_pk_bf16_f32 v{ACC+i}, v{ACC+2*i}, v{ACC+2*i+1}")
    k(f"""
    v_lshlrev_b32 v4, 10, v2
    v_lshl_add_u32 v4, v3, 4, v4
    v_permlane32_swap_b32 v{ACC}, v{ACC+2}
    v_permlane32_swap_b32 v{ACC+1}, v{ACC+3}
    v_permlane32_swap_b32 v{ACC+4}, v{ACC+6}
    v_permlane32_swap_b32 v{ACC+5}, v{ACC+7}
    s_lshl_b32 s38, s31, 15
    s_lshl_b32 s39, s37, 6
    s_add_u32 s38, s38, s39
    buffer_store_dwordx4 {r4(ACC)}, v4, s[56:59], s38 offen {E('OUTP', '')}
    buffer_store_dwordx4 {r4(ACC+4)}, v4, s[56:59], s38 offen offset:32 {E('OUTP', '')}
    """)
    stamp(k, 11); stamp(k, 12, True); stamp_flush(k, 16)
    if DIAG:
        k("""
        s_memrealtime s[94:95]
        s_waitcnt lgkmcnt(0)
        s_sub_u32 s92, s92, s90
        s_lshl_b32 s92, s92, 2
        s_add_u32 s92, s92, s94
        """)
        k.label("L_diag")
        k("""
        s_memrealtime s[94:95]
        s_waitcnt lgkmcnt(0)
        s_sub_u32 s96, s94, s92
        s_cmp_lt_i32 s96, 0
        s_cbranch_scc1 L_diag
        """)
    k.label("L_end")
    k("s_endpgm")


def build(out):
    k = Kern(MONO)
    p1(k)
    p2(k)
    p3(k)
    k.label("L_codeend")
    k("s_nop 0")
    hdr = open("sequential_preLN__softmax_full_mha__swiglu_ffn__prompt.s.ref").read().split("; Override launch")[0]
    l = "grid=(256,1,1) block=(512,1,1) lds=163840"
    hdr += f"; @launch kernel={MONO} {l}\n" if (STAMPS or E("LIST") == "1") else f"; @launch {l}\n"
    open(out, "w").write(hdr + '.amdgcn_target "amdgcn-amd-amdhsa--gfx950"\n' + k.full())


if __name__ == "__main__":
    import sys
    build(sys.argv[1])
```

```python
import os
from dsl import Kern
import common
from common import MB, QF, KF, VF, OF, HF, ST, CS, AF, WGF, CNT, WS_BYTES, LOG2E, f32, srd, MONO

E = os.environ.get
STAMPS = E("STAMPS") == "1"
SPIN = 1 << 20
SMODE = 24
SIDE = 147456
WIDE0 = E('WIDE0', '0') == '1'
PX, PQKV, PWS, PWO, PWD, POUT, PG, PU, PDBG = 4, 6, 8, 10, 12, 14, 60, 62, 64
SB = 66


DIAG = E("DIAG")


def stamp(k, i, rt=False):
    if DIAG and int(DIAG) == i:
        k("s_memrealtime s[92:93]")
    if STAMPS:
        k(f"{'s_memrealtime' if rt else 's_memtime'} s[{SB+2*i}:{SB+1+2*i}]")


def stamp_flush(k, n):
    if not STAMPS:
        return
    k(f"""
    s_waitcnt lgkmcnt(0)
    s_lshl_b32 s51, s2, 4
    s_add_u32 s51, s51, s25
    s_lshl_b32 s51, s51, 6
    s_add_u32 s51, s51, {66*MB}
    v_mov_b32 v0, 0
    """)
    for i in range(n):
        k(f"v_mov_b32 v1, s{SB+2*i}")
        k(f"buffer_store_dword v1, v0, s[20:23], s51 offen offset:{4*i}")


_n = [0]


def uid(p):
    _n[0] += 1
    return f"L_{p}{_n[0]}"


DATAWT = E("DATAWT", "a")


def mstore(k, instrs, kind="flag"):
    if isinstance(instrs, str):
        instrs = [instrs]
    if kind in DATAWT:
        for i in instrs:
            k(i + " sc1")
        return
    g, e = uid("msg"), uid("mse")
    k(f"s_cmp_eq_u32 s{SMODE}, 0")
    k(f"s_cbranch_scc1 {g}")
    for i in instrs:
        k(i)
    k(f"s_branch {e}")
    k.label(g)
    for i in instrs:
        k(i + " sc1")
    k.label(e)


def one_lane(k, instr_fn):
    k("s_mov_b64 exec, 1")
    instr_fn()
    k("s_mov_b64 exec, -1")


def signal(k, soff, kind):
    l = uid("sig")
    k(f"""
    s_barrier
    s_cmp_lg_u32 s25, 0
    s_cbranch_scc1 {l}
    v_mov_b32 v4, 0
    v_mov_b32 v5, 1
    s_mov_b64 exec, 1
    """)
    if kind == "add":
        k(f"buffer_atomic_add v5, v4, s[20:23], s{soff} offen sc1")
    elif kind == "flag":
        k(f"buffer_store_dword v5, v4, s[20:23], s{soff} offen sc1")
    else:
        mstore(k, f"buffer_store_dword v5, v4, s[20:23], s{soff} offen")
    k("s_mov_b64 exec, -1")
    k.label(l)


def poll(k, vaddr, vexp, vtmp, sleep=0, pre=0):
    l = uid("poll")
    k(f"s_mov_b32 s46, {CNT}")
    k("s_mov_b32 s47, 0")
    if pre:
        k(f"s_sleep {pre}")
    k.label(l)
    if sleep:
        k(f"s_sleep {sleep}")
    k(f"""
    buffer_load_dword v{vtmp}, v{vaddr}, s[20:23], s46 offen sc1
    s_add_u32 s47, s47, 1
    s_waitcnt vmcnt(0)
    v_cmp_gt_u32 vcc, v{vexp}, v{vtmp}
    s_cmp_gt_u32 s47, {SPIN}
    s_cbranch_scc1 {l}_out
    s_cbranch_vccnz {l}
    """)
    k.label(f"{l}_out")


def wave_poll_flags(k, wave, sgrp, G, sleep=0, pre=0, stride=2):
    l = uid("wp")
    k(f"""
    s_cmp_lg_u32 s25, {wave}
    s_cbranch_scc1 {l}
    v_and_b32 v7, {G-1}, v1
    v_lshlrev_b32 v7, {stride}, v7
    v_add_u32 v7, s{sgrp}, v7
    v_mov_b32 v8, 1
    """)
    poll(k, 7, 8, 6, sleep, pre)
    k.label(l)
    k("s_barrier")


def pr(x):
    return f"v[{x}:{x+1}]"


def r4(x):
    return f"v[{x}:{x+3}]"


def r16(x):
    return f"v[{x}:{x+15}]"


MF32 = "v_mfma_f32_32x32x16_bf16"
MF16 = "v_mfma_f32_16x16x32_bf16"


def p1(k):
    NST, STAGE, WOFF = 4, 32768, 8192
    SCR = NST * STAGE
    VXD, VWD, VXA, VWA, FR, ACC, CSA, SEL, T, SUM, PF = 10, 12, 20, 28, 40, 80, 128, 144, 156, 164, 168
    k(f"""
    s_load_dwordx4 s[4:7], s[0:1], 0
    s_load_dwordx4 s[64:67], s[0:1], 64
    s_cmp_ge_u32 s2, 256
    s_cbranch_scc1 L_end
    s_getpc_b64 s[46:47]
    """)
    if DIAG:
        k("s_memrealtime s[90:91]")
    k.label("L_pc")
    k(f"""
    """)
    PFM = E("PFM", "0")
    if PFM == "0":
        k(f"""
        v_lshlrev_b32 v2, 6, v0
        v_min_u32 v3, L_codeend-L_pc, v2
        global_load_dword v{PF}, v3, s[46:47]
        v_add_u32 v2, 32768, v2
        v_min_u32 v3, L_codeend-L_pc, v2
        global_load_dword v{PF}, v3, s[46:47]
        """)
    else:
        k(f"""
        v_lshlrev_b32 v2, 7, v0
        v_min_u32 v3, L_p2-L_pc, v2
        global_load_dword v{PF}, v3, s[46:47]
        """)
    k(f"""
    v_and_b32 v1, 63, v0
    v_lshrrev_b32 v2, 6, v0
    """)
    k("v_readfirstlane_b32 s25, v2")
    k(f"""
    s_and_b32 s27, s2, 6
    s_lshl_b32 s27, s27, 2
    s_lshr_b32 s28, s2, 3
    s_and_b32 s41, s28, 7
    s_add_u32 s27, s27, s41
    s_and_b32 s28, s2, 1
    s_lshl_b32 s28, s28, 2
    s_lshr_b32 s29, s2, 6
    s_add_u32 s28, s28, s29
    s_and_b32 s26, s25, 3
    s_getreg_b32 s30, hwreg(HW_REG_XCC_ID)
    s_and_b32 s30, s30, 7
    {E("FAKEXCC", "")}
    s_mul_i32 s31, s30, s30
    s_lshl_b32 s31, s31, 16
    s_lshl_b32 s30, s30, 8
    s_add_u32 s30, s30, s31
    s_add_u32 s51, s30, 1
    s_cmp_lt_u32 s25, 4
    s_cbranch_scc1 L_p1_M
    """)
    k(f"""
    s_lshl_b32 s29, s29, 1
    s_add_u32 s41, s41, s29
    s_and_b32 s41, s41, {E("ROTMASK", "7")}
    v_lshrrev_b32 v8, 3, v1
    v_and_b32 v9, 7, v1
    s_lshl_b32 s30, s27, 16
    s_lshl_b32 s31, s26, 14
    s_add_u32 s30, s30, s31
    v_lshrrev_b32 v5, 1, v8
    v_xor_b32 v5, v5, v9
    v_lshlrev_b32 v5, 4, v5
    v_lshl_add_u32 v5, v8, 10, v5
    v_add_u32 v{VXD}, s30, v5
    v_xor_b32 v5, 64, v5
    v_add_u32 v5, 8192, v5
    v_add_u32 v{VXD+1}, s30, v5
    s_lshl_b32 s34, s26, 11
    s_mul_i32 s31, s26, {16*3072}
    s_lshl_b32 s32, s28, 7
    s_add_u32 s31, s31, s32
    v_bfe_u32 v4, v1, 4, 1
    v_lshlrev_b32 v4, 2, v4
    v_xor_b32 v4, v4, v9
    v_lshlrev_b32 v4, 4, v4
    v_mul_u32_u24 v5, 3072, v8
    v_add3_u32 v{VWD}, v4, v5, s31
    s_add_u32 s35, s34, {WOFF}
    s_waitcnt lgkmcnt(0)
    s_mov_b32 s8, s66
    s_mov_b32 s9, s67
    """)
    srd(k, 52, PX, PX + 1, 2 * MB)
    srd(k, 16, PQKV, PQKV + 1, 512 * 3072)

    def xops(c):
        st = (c % NST) * STAGE
        ops = []
        for i in range(2):
            pre = f"s_add_u32 s36, s41, {c}\ns_and_b32 s36, s36, 7\ns_mul_i32 s37, s36, {64*3072}\ns_lshl_b32 s36, s36, 7\n" if i == 0 else ""
            ops.append(pre + f"s_add_u32 m0, s34, {st + i*1024}\nbuffer_load_dwordx4 v{VXD+i}, s[52:55], s36 offen lds")
        return ops

    def wop(c, j):
        st = (c % NST) * STAGE
        t, i = j >> 1, j & 1
        return (f"s_add_u32 s38, s37, {t*1024 + i*8*3072}\ns_add_u32 m0, s35, {st + t*8192 + i*1024}\n"
                f"buffer_load_dwordx4 v{VWD}, s[16:19], s38 offen lds")

    def group_ops(c):
        return xops(c) + [wop(c, j) for j in range(6)]

    for o in group_ops(0):
        k(o)
    k("s_barrier")
    for o in group_ops(1):
        k(o)
    k(f"""
    s_load_dwordx2 s[10:11], s[0:1], 16
    s_load_dwordx4 s[12:15], s[0:1], 48
    v_and_b32 v2, 31, v1
    v_lshrrev_b32 v3, 5, v1
    v_lshrrev_b32 v4, 1, v2
    v_and_b32 v4, 7, v4
    v_lshlrev_b32 v5, 7, v2
    s_and_b32 s36, s26, 1
    s_lshl_b32 s36, s36, 12
    v_add_u32 v5, s36, v5
    s_lshr_b32 s39, s26, 1
    s_lshl_b32 s39, s39, 2
    v_add_u32 v6, s39, v3
    s_mov_b32 s43, 0xffff0000
    """)
    srd(k, 56, PDBG, PDBG + 1, 256)
    srd(k, 20, PWS, PWS + 1, WS_BYTES)
    for p in range(2):
        k(f"""
        v_add_u32 v7, {2*p}, v6
        v_xor_b32 v7, v7, v4
        v_lshl_add_u32 v{VXA+p}, v7, 4, v5
        v_add_u32 v{VXA+4+p}, {2*STAGE}, v{VXA+p}
        """)
    for i in range(4):
        k(f"v_mov_b32 v{SUM+i}, 0")

    def stats(c, pend):
        fb = FR + 8 * (c % 2)
        for j in range(8):
            if pend:
                k(pend.pop(0))
            lo, hi = T + 2 * (j % 4), T + 2 * (j % 4) + 1
            k(f"""
            v_lshlrev_b32 v{lo}, 16, v{fb+j}
            v_and_b32 v{hi}, s43, v{fb+j}
            v_add_f32 v{SUM}, v{SUM}, v{lo}
            v_add_f32 v{SUM+1}, v{SUM+1}, v{hi}
            v_fmac_f32 v{SUM+2}, v{lo}, v{lo}
            v_fmac_f32 v{SUM+3}, v{hi}, v{hi}
            """)

    for c in range(8):
        k(f"s_waitcnt vmcnt({(8 if c + 1 <= 7 else 0) + (1 if c == 6 else 0)}) lgkmcnt(0)")
        k("s_barrier")
        st = c % NST
        fb = FR + 8 * (c % 2)
        for p in range(2):
            k(f"ds_read_b128 {r4(fb+4*p)}, v{VXA + 4*(st//2) + p} offset:{(st%2)*STAGE}")
        pend = group_ops(c + 2) if c + 2 <= 7 else []
        if c:
            stats(c - 1, pend)
        for o in pend:
            k(o)
        if c == 5:
            k("""
            s_and_b32 s36, s2, 7
            s_lshl_b32 s36, s36, 5
            v_mov_b32 v170, s36
            v_cmp_eq_u32 vcc, 1, v1
            v_mov_b32 v171, 16
            v_cndmask_b32 v170, v170, v171, vcc
            buffer_load_dword v171, v170, s[56:59], 0 offen sc1
            """)
    k("s_waitcnt lgkmcnt(0)")
    stats(7, [])
    k("s_mov_b32 s47, 0")
    k.label("L_t_chk")
    k(f"""
    v_readlane_b32 s36, v171, 0
    v_readlane_b32 s37, v171, 1
    s_and_b32 s38, s36, 255
    s_cmp_gt_u32 s47, {SPIN}
    s_cbranch_scc1 L_t_ok
    s_cmp_lt_u32 s38, 32
    s_cbranch_scc1 L_t_again
    s_cmp_ge_u32 s37, 1
    s_cbranch_scc1 L_t_ok
    """)
    k.label("L_t_again")
    k("""
    buffer_load_dword v171, v170, s[56:59], 0 offen sc1
    s_add_u32 s47, s47, 1
    s_waitcnt vmcnt(0)
    s_branch L_t_chk
    """)
    k.label("L_t_ok")
    k(f"""
    s_lshl_b32 s38, s51, 5
    s_cmp_eq_u32 s36, s38
    s_cselect_b32 s{SMODE}, {E("FORCEMODE", "1")}, 0
    v_mov_b32 v170, {SCR + 1536}
    v_mov_b32 v171, s{SMODE}
    ds_write_b32 v170, v171
    v_add_f32 v164, v164, v165
    v_add_f32 v166, v166, v167
    v_mov_b32 v165, v164
    v_mov_b32 v167, v166
    v_permlane32_swap_b32 v164, v165
    v_permlane32_swap_b32 v166, v167
    v_add_f32 v164, v164, v165
    v_add_f32 v166, v166, v167
    s_lshl_b32 s37, s26, 8
    v_lshlrev_b32 v4, 2, v2
    v_add_u32 v6, s37, v4
    v_add_u32 v6, {SCR+2048}, v6
    ds_write_b32 v6, v164
    ds_write_b32 v6, v166 offset:128
    v_xor_b32 v7, 512, v6
    s_waitcnt lgkmcnt(0)
    s_barrier
    ds_read_b32 v165, v7
    ds_read_b32 v167, v7 offset:128
    v_and_b32 v6, 0xfffffdff, v6
    s_waitcnt lgkmcnt(0)
    v_add_f32 v164, v164, v165
    v_add_f32 v166, v166, v167
    v_mul_f32 v164, {f32(-1/512)}, v164
    v_mul_f32 v166, {f32(1/512)}, v166
    v_fma_f32 v166, -v164, v164, v166
    v_max_f32 v166, 0, v166
    v_add_f32 v166, {f32(1e-5)}, v166
    v_rsq_f32 v165, v166
    ds_write_b32 v6, v164 offset:1024
    ds_write_b32 v6, v165 offset:1152
    s_waitcnt lgkmcnt(0)
    s_barrier
    s_barrier
    """)
    k("s_branch L_p2")
    k.label("L_p1_M")
    k("s_setprio 1")
    k("s_mov_b64 s[48:49], s[46:47]")
    k(f"""
    s_and_b32 s30, s26, 1
    s_lshr_b32 s31, s26, 1
    s_lshl_b32 s29, s27, 1
    s_add_u32 s29, s29, s30
    v_and_b32 v2, 31, v1
    v_lshrrev_b32 v3, 5, v1
    v_lshrrev_b32 v4, 1, v2
    v_and_b32 v4, 7, v4
    v_lshlrev_b32 v5, 7, v2
    s_lshl_b32 s34, s30, 12
    v_add_u32 v5, s34, v5
    v_bfe_u32 v6, v1, 2, 2
    v_lshrrev_b32 v7, 1, v6
    v_xor_b32 v7, s31, v7
    v_lshl_add_u32 v6, v3, 3, v6
    v_lshlrev_b32 v6, 7, v6
    v_lshl_add_u32 v6, v7, 6, v6
    v_bfe_u32 v7, v1, 4, 1
    v_lshl_add_u32 v6, v7, 5, v6
    v_and_b32 v7, 3, v1
    v_lshl_add_u32 v6, v7, 3, v6
    v_add_u32 v6, {WOFF}, v6
    s_waitcnt lgkmcnt(0)
    s_mov_b32 s8, s66
    s_mov_b32 s9, s67
    s_load_dwordx2 s[10:11], s[0:1], 16
    s_load_dwordx4 s[12:15], s[0:1], 48
    s_load_dwordx4 s[60:63], s[0:1], 32
    """)
    stamp(k, 0, True); stamp(k, 1)
    srd(k, 56, PDBG, PDBG + 1, 256)
    srd(k, 20, PWS, PWS + 1, WS_BYTES)
    k(f"""
    s_cmp_lg_u32 s25, 1
    s_cbranch_scc1 L_t_notk
    s_and_b32 s36, s2, 7
    s_lshl_b32 s36, s36, 5
    v_mov_b32 v7, 0
    v_mov_b32 v8, s51
    s_mov_b64 exec, 1
    buffer_atomic_add v8, v7, s[56:59], s36 offen sc1
    s_mov_b64 exec, -1
    """)
    k.label("L_t_notk")
    k("s_barrier")
    if E("TOUCH1", "0") == "1":
        srd(k, 52, PX, PX + 1, 2 * MB)
        srd(k, 16, PQKV, PQKV + 1, 512 * 3072)
        k(f"""
        s_lshr_b32 s36, s2, 3
        s_lshl_b32 s36, s36, 2
        s_add_u32 s36, s36, s26
        v_min_u32 v7, 31, v1
        v_and_b32 v8, 7, v7
        v_max_u32 v8, 2, v8
        v_lshrrev_b32 v7, 3, v7
        v_lshlrev_b32 v7, 10, v7
        v_lshl_add_u32 v7, v8, 7, v7
        s_and_b32 s37, s2, 6
        s_lshl_b32 s37, s37, 18
        s_lshl_b32 s38, s36, 12
        s_add_u32 s37, s37, s38
        v_min_u32 v8, 35, v1
        v_lshrrev_b32 v9, 2, v8
        v_and_b32 v8, 3, v8
        v_lshlrev_b32 v9, 10, v9
        v_lshl_add_u32 v8, v8, 7, v9
        s_mul_i32 s38, s36, {3*3072}
        s_and_b32 s39, s2, 1
        s_lshl_b32 s39, s39, 9
        s_add_u32 s38, s38, s39
        s_add_u32 s38, s38, {128*3072}
        buffer_load_dword v{PF}, v8, s[16:19], s38 offen
        buffer_load_dword v{PF}, v7, s[52:55], s37 offen
        """)
    k(f"""
    s_add_u32 s36, s2, s25
    s_cmp_lg_u32 s36, 0
    s_cbranch_scc1 L_t_nz
    v_lshrrev_b32 v7, 3, v1
    v_and_b32 v9, 7, v1
    v_lshlrev_b32 v7, 8, v7
    v_lshl_add_u32 v7, v9, 4, v7
    v_mov_b32 v8, 0
    v_mov_b32 v9, 0
    v_mov_b32 v10, 0
    v_mov_b32 v11, 0
    """)
    for i in range(8):
        k(f"s_mov_b32 s36, {CNT + i*2048}")
        k("buffer_store_dwordx4 v[8:11], v7, s[20:23], s36 offen sc1")
    if WIDE0:
        k("v_lshlrev_b32 v7, 7, v1")
        for i in range(4):
            k(f"s_mov_b32 s36, {CNT + 16384 + i*8192}")
            k("buffer_store_dword v8, v7, s[20:23], s36 offen sc1")
    k("""
    v_mov_b32 v12, 1
    s_waitcnt vmcnt(0)
    s_mov_b64 exec, 1
    buffer_store_dword v12, v8, s[56:59], 0 offen offset:16 sc1
    s_mov_b64 exec, -1
    """)
    k.label("L_t_nz")
    for p in range(4):
        k(f"""
        s_add_u32 s36, s30, {p}
        s_and_b32 s36, s36, 3
        s_lshl_b32 s37, s36, 1
        s_lshl_b32 s38, s36, 11
        v_add_u32 v7, s37, v3
        v_xor_b32 v7, v7, v4
        v_lshl_add_u32 v{VXA+p}, v7, 4, v5
        v_add_u32 v{VWA+p}, s38, v6
        v_add_u32 v{VXA+4+p}, {2*STAGE}, v{VXA+p}
        v_add_u32 v{VWA+4+p}, {2*STAGE}, v{VWA+p}
        """)
    k("""
    v_and_b32 v7, 15, v1
    v_bfe_u32 v8, v1, 4, 1
    v_sub_u32 v7, v7, v8
    v_mov_b32 v8, 0x3f803f80
    """)
    for t in range(3):
        k(f"v_cmp_eq_u32 vcc, {2*t}, v7")
        for i in range(4):
            k(f"v_cndmask_b32 v{SEL+4*t+i}, 0, v8, vcc")
    k(f"""
    v_lshlrev_b32 v4, 2, v2
    v_add_u32 v4, {SCR+5120}, v4
    v_and_b32 v5, 15, v1
    v_lshlrev_b32 v5, 2, v5
    v_lshrrev_b32 v7, 4, v1
    v_lshl_add_u32 v5, v7, 8, v5
    v_add_u32 v5, {SCR+5120}, v5
    s_lshl_b32 s36, s26, 10
    v_add_u32 v5, s36, v5
    s_lshl_b32 s36, s31, 11
    v_add_u32 v4, s36, v4
    v_lshlrev_b32 v7, 2, v1
    v_add_u32 v7, {SCR+5120}, v7
    v_add_u32 v7, s36, v7
    s_lshl_b32 s37, s30, 8
    s_add_u32 s37, s37, {SCR+3072}
    v_lshlrev_b32 v8, 4, v3
    v_add_u32 v10, s37, v8
    v_lshlrev_b32 v9, 2, v2
    v_add_u32 v9, s37, v9
    s_lshl_b32 s37, s26, 8
    s_add_u32 s37, s37, {SCR+4096}
    v_add_u32 v8, s37, v8
    v_lshlrev_b32 v11, 2, v1
    v_add_u32 v11, s37, v11
    v_mov_b32 v12, {SCR + 1536}
    v_bfe_u32 v13, v1, 4, 1
    v_and_b32 v14, 15, v1
    v_lshlrev_b32 v14, 4, v14
    v_lshl_add_u32 v14, v3, 8, v14
    v_lshl_add_u32 v14, v13, 16, v14
    v_lshlrev_b32 v6, 4, v1
    s_lshl_b32 s38, s28, 18
    s_lshl_b32 s39, s31, 17
    s_add_u32 s38, s38, s39
    s_lshl_b32 s39, s29, 10
    s_add_u32 s38, s38, s39
    s_lshl_b32 s45, s28, {12 if WIDE0 else 8}
    s_lshl_b32 s46, s27, {7 if WIDE0 else 2}
    s_add_u32 s45, s45, s46
    s_add_u32 s45, s45, {CNT + (16384 if WIDE0 else 48*256)}
    s_waitcnt lgkmcnt(0)
    """)
    XB, WB = FR, FR + 12

    def addr(n):
        c, p = n // 4, n % 4
        st = c % NST
        return 4 * (st // 2) + p, (st % 2) * STAGE

    def rdx(n):
        ai, off = addr(n)
        k(f"ds_read_b128 {r4(XB + (n % 3) * 4)}, v{VXA+ai} offset:{off}")

    def rdw(n, t):
        ai, off = addr(n)
        for ab in range(2):
            r = WB + 12 * (n % 2) + 4 * t + 2 * ab
            k(f"ds_read_b64_tr_b16 {pr(r)}, v{VWA+ai} offset:{off + ab*512 + t*8192}")

    k("s_barrier")
    for n in range(2):
        rdx(n)
        for t in range(3):
            rdw(n, t)
    for n in range(32):
        pf = n + 2 < 32
        if (n + 2) % 4 == 0 and pf:
            k("s_barrier")
        if n == 30:
            k("s_barrier")
        if n == 12 and PFM != "0":
            k(f"""
            v_lshlrev_b32 v15, 7, v0
            v_add_u32 v15, L_p2-L_pc, v15
            v_min_u32 v15, L_codeend-L_pc, v15
            global_load_dword v{PF}, v15, s[48:49]
            """)
        X = r4(XB + (n % 3) * 4)
        W = [r4(WB + 12 * (n % 2) + 4 * t) for t in range(3)]
        A = [r16(ACC + 16 * t) for t in range(3)]
        Cc = [a if n else "0" for a in A]
        mf = [f"{MF32} {A[0]}, {W[0]}, {X}, {Cc[0]}", f"{MF32} {A[1]}, {W[1]}, {X}, {Cc[1]}", f"{MF32} {A[2]}, {X}, {W[2]}, {Cc[2]}"]
        if pf:
            rdx(n + 2)
        for t in range(3):
            cnt = 12 if pf else (2 * (2 - t) + 7 if n == 30 else 2 * (2 - t))
            k(f"s_waitcnt lgkmcnt({cnt})")
            k(mf[t])
            if n % 2 == 0:
                cc = "0" if (n == 0 and t == 0) else r4(CSA)
                k(f"{MF16} {r4(CSA)}, {r4(SEL+4*t)}, {W[t]}, {cc}")
            if pf:
                rdw(n + 2, t)
    for r in range(4):
        k(f"ds_write_b32 v5, v{CSA+r} offset:{r*64}")
    k("""
    s_waitcnt lgkmcnt(0)
    s_barrier
    ds_read_b32 v12, v12
    """)
    for w in range(2):
        k(f"ds_read_b32 v{T+w}, v7 offset:{w*1024}")
        k(f"ds_read_b32 v{T+2+w}, v4 offset:{w*1024+256}")
    MR = FR
    for g in range(4):
        k(f"ds_read_b128 {r4(MR+4*g)}, v10 offset:{g*32}")
        k(f"ds_read_b128 {r4(MR+16+4*g)}, v10 offset:{128+g*32}")
    NM, RS, RQ, CV = 164, 166, 170, 172
    k(f"ds_read_b32 v{NM}, v9")
    k(f"ds_read_b32 v{RS}, v9 offset:128")
    k("s_waitcnt lgkmcnt(10)")
    k(f"""
    v_readfirstlane_b32 s{SMODE}, v12
    v_add_f32 v{T}, v{T}, v{T+1}
    v_add_f32 v{CV}, v{T+2}, v{T+3}
    v_add_f32 v{CV+1}, v{T+2}, v{T+3}
    ds_write_b32 v11, v{T}
    s_waitcnt lgkmcnt(0)
    """)
    CQ = CSA
    for t in range(2):
        for g in range(4):
            k(f"ds_read_b128 {r4(CQ+16*t+4*g)}, v8 offset:{t*128 + g*32}")
    AV = ACC + 32
    for r in range(0, 16, 2):
        k(f"v_pk_fma_f32 {pr(AV+r)}, {pr(MR+r)}, {pr(CV)}, {pr(AV+r)}")
    for r in range(0, 16, 2):
        k(f"v_pk_mul_f32 {pr(AV+r)}, {pr(AV+r)}, {pr(MR+16+r)}")
    for i in range(8):
        k(f"v_cvt_pk_bf16_f32 v{AV+i}, v{AV+2*i}, v{AV+2*i+1}")
    k(f"""
    s_add_u32 s39, s38, {VF}
    buffer_store_dwordx4 {r4(AV)}, v14, s[20:23], s39 offen sc1
    buffer_store_dwordx4 {r4(AV+4)}, v14, s[20:23], s39 offen offset:512 sc1
    v_mov_b32 v{NM+1}, v{NM}
    v_mov_b32 v{RS+1}, v{RS}
    v_mul_f32 v{RQ}, {f32(0.25*LOG2E)}, v{RS}
    v_mul_f32 v{RQ+1}, {f32(0.25*LOG2E)}, v{RS}
    s_waitcnt lgkmcnt(0)
    """)
    for t in (1, 0):
        A = ACC + 16 * t
        sc = RQ if t == 0 else RS
        for r in range(0, 16, 2):
            k(f"v_pk_fma_f32 {pr(A+r)}, {pr(NM)}, {pr(CQ+16*t+r)}, {pr(A+r)}")
        for r in range(0, 16, 2):
            k(f"v_pk_mul_f32 {pr(A+r)}, {pr(A+r)}, {pr(sc)}")
        for i in range(8):
            k(f"v_cvt_pk_bf16_f32 v{A+i}, v{A+2*i}, v{A+2*i+1}")
        base = QF if t == 0 else KF
        k(f"s_add_u32 s39, s38, {base}")
        k(f"s_add_u32 s40, s38, {base+65536}")
        k(f"buffer_store_dwordx4 {r4(A)}, v6, s[20:23], s39 offen sc1")
        k(f"buffer_store_dwordx4 {r4(A+4)}, v6, s[20:23], s40 offen sc1")
    stamp(k, 13)
    k("s_setprio 0")
    k("s_waitcnt vmcnt(0)")
    signal(k, 45, "flag")


def side_dma(k, T):
    k(f"""
    s_lshr_b32 s44, s2, 2
    s_cmp_lt_u32 s44, 28
    s_cselect_b32 s16, s{PG}, s{PU}
    s_cselect_b32 s17, s{PG+1}, s{PU+1}
    s_cselect_b32 s36, 0, 28
    s_mov_b32 s18, {512*3584}
    s_mov_b32 s19, 0x20000
    s_sub_u32 s36, s44, s36
    s_lshl_b32 s36, s36, 7
    s_and_b32 s43, s2, 3
    s_lshl_b32 s43, s43, 2
    s_add_u32 s43, s43, s26
    s_mul_i32 s37, s43, {32*3584}
    s_add_u32 s36, s36, s37
    s_cmp_lt_u32 s2, 224
    s_cselect_b32 s36, s36, 0x7ff00000
    v_bfe_u32 v{T}, v1, 2, 1
    v_bfe_u32 v{T+1}, v1, 4, 1
    v_xor_b32 v{T}, v{T}, v{T+1}
    v_and_b32 v{T+1}, 3, v1
    v_lshlrev_b32 v{T+1}, 4, v{T+1}
    v_lshl_add_u32 v{T+1}, v{T}, 6, v{T+1}
    v_lshrrev_b32 v{T}, 3, v1
    v_mul_u32_u24 v{T}, 3584, v{T}
    v_add_u32 v{T}, v{T}, v{T+1}
    s_lshl_b32 s48, s26, 12
    s_add_u32 s48, s48, {SIDE}
    """)
    for i in range(4):
        k(f"s_add_u32 m0, s48, {i*1024}")
        k(f"buffer_load_dwordx4 v{T}, s[16:19], s36 offen lds")
        k(f"s_add_u32 s36, s36, {8*3584}")


def side_job(k):
    TMP, WF, SL, CA = 108, 120, 136, 144
    k(f"""
    s_cmp_lt_u32 s2, 224
    s_cbranch_scc0 L_side_end
    s_lshr_b32 s44, s2, 2
    s_and_b32 s43, s2, 3
    s_lshl_b32 s43, s43, 2
    s_add_u32 s43, s43, s26
    s_lshl_b32 s48, s26, 12
    s_add_u32 s48, s48, {SIDE}
    v_bfe_u32 v{TMP}, v1, 2, 2
    v_lshrrev_b32 v{TMP+1}, 5, v1
    v_lshl_add_u32 v{TMP+1}, v{TMP+1}, 2, v{TMP}
    v_lshlrev_b32 v{TMP+1}, 7, v{TMP+1}
    v_lshrrev_b32 v{TMP}, 1, v{TMP}
    v_lshl_add_u32 v{TMP+1}, v{TMP}, 6, v{TMP+1}
    v_bfe_u32 v{TMP}, v1, 4, 1
    v_lshl_add_u32 v{TMP+1}, v{TMP}, 5, v{TMP+1}
    v_and_b32 v{TMP}, 3, v1
    v_lshl_add_u32 v{TMP+1}, v{TMP}, 3, v{TMP+1}
    v_add_u32 v{TMP+1}, s48, v{TMP+1}
    v_xor_b32 v{TMP+2}, 64, v{TMP+1}
    v_bfe_u32 v{TMP}, v1, 3, 2
    v_mov_b32 v{TMP+3}, 0x3f803f80
    v_cmp_eq_u32 vcc, 0, v{TMP}
    v_cmp_eq_u32 s[38:39], 1, v{TMP}
    """)
    for i in range(4):
        k(f"v_cndmask_b32 v{SL+i}, 0, v{TMP+3}, vcc")
        k(f"v_cndmask_b32 v{SL+4+i}, 0, v{TMP+3}, s[38:39]")
    k(f"""
    v_and_b32 v{TMP}, 47, v1
    v_lshlrev_b32 v{TMP}, 4, v{TMP}
    v_bfe_u32 v{TMP+3}, v1, 4, 1
    v_lshl_add_u32 v{TMP}, v{TMP+3}, 15, v{TMP}
    s_cmp_lt_u32 s44, 28
    s_cselect_b32 s36, 0, {256 - 28*4*32768 + (1<<32)}
    s_lshl_b32 s37, s44, 17
    s_add_u32 s36, s36, s37
    s_lshl_b32 s37, s43, 11
    s_add_u32 s36, s36, s37
    s_add_u32 s36, s36, {WGF}
    s_add_u32 s37, s36, 65536
    s_waitcnt vmcnt(0) lgkmcnt(0)
    """)
    for s_ in range(2):
        for nt in range(2):
            for ab in range(2):
                r = WF + 8 * s_ + 4 * nt + 2 * ab
                k(f"ds_read_b64_tr_b16 {pr(r)}, v{TMP+1+nt} offset:{s_*2048 + ab*1024}")
    k("s_waitcnt lgkmcnt(0)")
    first = True
    for s_ in range(2):
        for nt in range(2):
            r = WF + 8 * s_ + 4 * nt
            k(f"{MF32} {r16(CA)}, {r4(SL+4*nt)}, {r4(r)}, {'0' if first else r16(CA)}")
            first = False
            k(f"buffer_store_dwordx4 {r4(r)}, v{TMP}, s[20:23], s{36+nt} offen offset:{s_*1024} sc1")
    k(f"""
    v_cmp_gt_u32 vcc, 32, v1
    v_lshlrev_b32 v{TMP+1}, 4, v1
    s_lshl_b32 s36, s44, 10
    s_lshl_b32 s37, s26, 2
    s_add_u32 s36, s36, s37
    s_and_b32 s37, s2, 3
    s_mul_i32 s37, s37, {3584*16}
    s_add_u32 s36, s36, s37
    s_add_u32 s36, s36, {CS}
    v_cndmask_b32 v{TMP+2}, v{CA+4}, v{CA}, vcc
    buffer_store_dword v{TMP+2}, v{TMP+1}, s[20:23], s36 offen sc1
    """)
    k.label("L_side_end")


VBASE, VSTR = 65536, 1056
SX, SY = 160, 128


def p2(k):
    Q, KFR, VFR, S, C, O, P0, P1 = 4, 8, 16, 32, 64, 80, 96, 100
    AK, AV0, AV1, TMP, PF, XV = 104, 105, 106, 108, 116, 117
    PDROP, TITER = int(E("PDROP", "5")), int(E("TITER", "2"))
    k.label("L_p2")
    k(f"""
    s_and_b32 s27, s2, 31
    s_lshr_b32 s28, s2, 5
    s_lshl_b32 s28, s28, 3
    s_add_u32 s28, s28, s25
    v_lshlrev_b32 v2, 4, v1
    s_lshl_b32 s29, s27, 16
    s_lshl_b32 s30, s25, 10
    s_add_u32 s31, s29, s30
    s_mul_i32 s32, s25, {VSTR}
    s_add_u32 s32, s32, {VBASE}
    s_lshl_b32 s33, s28, 10
    s_add_u32 s33, s33, s29
    v_mov_b32 v{TMP}, 0x3f803f80
    v_mov_b32 v{TMP+1}, 0x3f803f80
    v_mov_b32 v{TMP+2}, 0x3f803f80
    v_mov_b32 v{TMP+3}, 0x3f803f80
    v_mul_u32_u24 v3, {VSTR}, v1
    v_add_u32 v3, {VBASE+1024}, v3
    """)
    for i in range(16):
        k(f"v_mov_b32 v{O+i}, 0")
    k(f"""
    s_cmp_lg_u32 s25, 3
    s_cbranch_scc1 L_p2_noones
    ds_write_b128 v3, {r4(TMP)}
    ds_write_b128 v3, {r4(O)} offset:16
    """)
    k.label("L_p2_noones")
    k(f"""
    v_mov_b32 v{AK}, v2
    v_and_b32 v3, 15, v1
    v_lshlrev_b32 v3, 4, v3
    v_lshrrev_b32 v{TMP+4}, 5, v1
    v_lshl_add_u32 v3, v{TMP+4}, 8, v3
    v_mov_b32 v{TMP+6}, 1024
    v_and_b32 v{TMP+5}, 11, v1
    v_cmp_eq_u32 vcc, 0, v{TMP+5}
    v_mov_b32 v{TMP+7}, 1040
    v_cndmask_b32 v{TMP+6}, v{TMP+7}, v{TMP+6}, vcc
    v_and_b32 v{TMP+5}, 16, v1
    v_cmp_eq_u32 vcc, 0, v{TMP+5}
    v_subrev_u32 v{TMP+7}, 512, v{TMP+6}
    v_cndmask_b32 v{AV0}, v{TMP+6}, v3, vcc
    v_cndmask_b32 v{AV1}, v{TMP+7}, v3, vcc
    v_add_u32 v{AV0}, {VBASE}, v{AV0}
    v_add_u32 v{AV1}, {VBASE}, v{AV1}
    """)
    for i in range(4):
        k(f"v_mov_b32 v{P1+i}, 0")
        k(f"v_mov_b32 v{VFR+12+i}, 0")
    k("""
    s_cmp_lt_u32 s25, 4
    s_cselect_b32 s42, 99, 1
    s_cselect_b32 s41, 99, 0
    s_mov_b32 s35, 0
    """)
    k(f"""
    s_lshr_b32 s36, s27, 2
    s_lshl_b32 s36, s36, {12 if WIDE0 else 8}
    s_add_u32 s36, s36, {16384 if WIDE0 else 48*256}
    s_waitcnt lgkmcnt(0)
    """)
    wave_poll_flags(k, 1, 36, 32, int(E('PS0', '24')), int(E('PP0', '0')), 7 if WIDE0 else 2)
    stamp(k, 14)

    def dma_tile(t):
        k(f"""
        s_add_u32 s34, s31, {KF + t*1024}
        s_add_u32 m0, s30, {t*1024}
        buffer_load_dwordx4 v2, s[20:23], s34 offen sc1 lds
        s_add_u32 s34, s31, {VF + t*1024}
        s_add_u32 m0, s32, {t*VSTR}
        buffer_load_dwordx4 v2, s[20:23], s34 offen sc1 lds
        """)

    k("s_cmp_lt_u32 s25, 4")
    k("s_cbranch_scc0 L_p2_B")
    for t in range(0, 16, 4):
        dma_tile(t)
    k(f"buffer_load_dwordx4 {r4(Q)}, v2, s[20:23], s33 offen sc1")
    k("s_waitcnt vmcnt(7)")
    k("s_barrier")
    k("s_setprio 1")
    for t in range(16, 32, 4):
        dma_tile(t)
    k("s_waitcnt vmcnt(8)")
    k("s_barrier")
    for t in range(32, 64, 4):
        dma_tile(t)
    side_dma(k, TMP)
    k("s_waitcnt vmcnt(4)")
    k("s_barrier")
    k(f"""
    v_min_u32 v{TMP}, 13, v1
    v_lshlrev_b32 v{TMP}, 7, v{TMP}
    s_lshl_b32 s36, s2, 2
    s_add_u32 s36, s36, s26
    s_mul_i32 s37, s36, {14*128}
    """)
    srd(k, 16, PWD, PWD + 1, 1792 * 1024)
    k(f"""
    buffer_load_dword v{PF}, v{TMP}, s[16:19], s37 offen
    v_min_u32 v{TMP}, 3, v1
    v_lshlrev_b32 v{TMP}, 7, v{TMP}
    s_lshl_b32 s37, s36, 9
    """)
    srd(k, 16, PWO, PWO + 1, 512 * 1024)
    k(f"buffer_load_dword v{PF}, v{TMP}, s[16:19], s37 offen")
    k("s_branch L_p2_go")
    k.label("L_p2_B")
    k(f"""
    buffer_load_dwordx4 {r4(Q)}, v2, s[20:23], s33 offen sc1
    s_waitcnt vmcnt(0)
    s_barrier
    s_setprio 2
    """)
    k.label("L_p2_go")

    def Kr(b): return r4(KFR + 4 * b)
    def Vr(b, j): return r4(VFR + 8 * b + 4 * j)
    def Sr(b): return r16(S + 16 * b)
    Qr, Cr, Or = r4(Q), r16(C), r16(O)
    def rdK(t, b): k(f"ds_read_b128 {Kr(b)}, v{AK} offset:{t*1024}")

    def rdV(t, b):
        k(f"ds_read_b128 {Vr(b,0)}, v{AV0} offset:{t*VSTR}")
        k(f"ds_read_b128 {Vr(b,1)}, v{AV1} offset:{t*VSTR+512}")

    def tilemax(s1):
        k(f"""
        v_max3_f32 v{TMP}, v{s1}, v{s1+1}, v{s1+2}
        v_max3_f32 v{TMP+1}, v{s1+3}, v{s1+4}, v{s1+5}
        v_max3_f32 v{TMP+2}, v{s1+6}, v{s1+7}, v{s1+8}
        v_max3_f32 v{TMP+3}, v{s1+9}, v{s1+10}, v{s1+11}
        v_max3_f32 v{TMP}, v{TMP}, v{s1+12}, v{s1+13}
        v_max3_f32 v{TMP+1}, v{TMP+1}, v{s1+14}, v{s1+15}
        v_max3_f32 v{TMP}, v{TMP}, v{TMP+1}, v{TMP+2}
        v_max_f32 v{TMP}, v{TMP}, v{TMP+3}
        v_mov_b32 v{TMP+1}, v{TMP}
        v_permlane32_swap_b32 v{TMP}, v{TMP+1}
        """)
    k("s_waitcnt lgkmcnt(0)")
    rdK(0, 0)
    rdK(1, 1)
    rdV(0, 0)
    k("s_waitcnt lgkmcnt(3)")
    k(f"{MF32} {Sr(1)}, {Kr(0)}, {Qr}, 0")
    tilemax(S + 16)
    k(f"v_max_f32 v{TMP}, v{TMP}, v{TMP+1}")
    for i in range(16):
        k(f"v_sub_f32 v{C+i}, 0, v{TMP}")
    k(f"{MF32} {Sr(0)}, {Kr(0)}, {Qr}, {Cr}")
    k("s_nop 9")

    def Ex(b, a, n):
        for i in range(a, a + n):
            k(f"v_exp_f32 v{S+16*b+i}, v{S+16*b+i}")

    def CV(dst, b, i):
        k(f"v_cvt_pk_bf16_f32 v{dst}, v{S+16*b+2*i}, v{S+16*b+2*i+1}")

    def tile(t):
        b = t % 2
        nb = 1 - b
        k("s_waitcnt lgkmcnt(0)")
        k(f"{MF32} {Sr(nb)}, {Kr(nb)}, {Qr}, {Cr}")
        rdK(t + 2, b)
        Ex(b, 0, 4)
        k(f"{MF32} {Or}, {Vr(nb,1)}, {r4(P1)}, {Or}")
        rdV(t + 1, nb)
        Ex(b, 4, 2); CV(P0, b, 0)
        Ex(b, 6, 2); CV(P0 + 1, b, 1)
        Ex(b, 8, 2); CV(P0 + 2, b, 2)
        Ex(b, 10, 2); CV(P0 + 3, b, 3)
        Ex(b, 12, 2)
        k(f"{MF32} {Or}, {Vr(b,0)}, {r4(P0)}, {Or}")
        Ex(b, 14, 2)
        for i in range(4):
            CV(P1 + i, b, 4 + i)

    k.raw(".p2align 6")
    k.label("L_p2_loop")
    for t in range(8):
        if t in (2, 6):
            l = uid("nb")
            k(f"s_cmp_lg_u32 s35, s{41 if t == 2 else 42}")
            k(f"s_cbranch_scc1 {l}")
            k("s_barrier")
            k.label(l)
        tile(t)
    k(f"""
    v_add_u32 v{AK}, 8192, v{AK}
    v_add_u32 v{AV0}, {8*VSTR}, v{AV0}
    v_add_u32 v{AV1}, {8*VSTR}, v{AV1}
    s_cmp_lt_u32 s35, 6
    s_cbranch_scc1 L_p2_ev
    """)
    k.label("L_p2_evret")
    k("""
    s_add_u32 s35, s35, 1
    s_cmp_lg_u32 s35, 8
    s_cbranch_scc1 L_p2_loop
    """)
    k.check_backedge("L_p2_loop")
    k(f"{MF32} {Or}, {Vr(1,1)}, {r4(P1)}, {Or}")
    k("s_waitcnt lgkmcnt(0)")
    stamp(k, 3)
    k(f"""
    v_max3_f32 v{TMP}, abs(v{O}), abs(v{O+1}), abs(v{O+2})
    v_max3_f32 v{TMP+1}, abs(v{O+3}), abs(v{O+4}), abs(v{O+5})
    v_max3_f32 v{TMP}, v{TMP}, abs(v{O+6}), abs(v{O+7})
    v_add_f32 v{TMP+2}, v{O}, v{O+1}
    v_add_f32 v{TMP+3}, v{O+2}, v{O+3}
    v_add_f32 v{TMP+4}, v{O+4}, v{O+5}
    v_add_f32 v{TMP+5}, v{O+6}, v{O+7}
    v_add_f32 v{TMP+2}, v{TMP+2}, v{TMP+3}
    v_add_f32 v{TMP+4}, v{TMP+4}, v{TMP+5}
    v_add_f32 v{TMP+2}, v{TMP+2}, v{TMP+4}
    v_max_f32 v{TMP}, v{TMP}, v{TMP+1}
    s_mov_b32 s36, {f32(2.0**100)}
    s_mov_b32 s37, 0x7f000000
    v_cmp_gt_f32 vcc, s36, v{O+8}
    v_cmp_gt_f32 s[38:39], s37, v{TMP}
    v_cmp_o_f32 s[48:49], v{TMP+2}, v{TMP+2}
    s_and_b64 vcc, vcc, s[38:39]
    s_and_b64 vcc, vcc, s[48:49]
    s_cmp_eq_u64 vcc, exec
    s_cbranch_scc0 L_p2_slow
    """)
    k.label("L_p2_fin")
    k(f"v_rcp_f32 v{TMP}, v{O+8}")
    for i in range(8):
        k(f"v_mul_f32 v{O+i}, v{O+i}, v{TMP}")
    for i in range(4):
        k(f"v_cvt_pk_bf16_f32 v{O+i}, v{O+2*i}, v{O+2*i+1}")
    k(f"""
    s_lshl_b32 s36, s28, 15
    s_lshl_b32 s37, s27, 10
    s_add_u32 s36, s36, s37
    s_add_u32 s36, s36, {OF}
    buffer_store_dwordx4 {r4(O)}, v2, s[20:23], s36 offen sc1
    s_branch L_p3
    """)
    k.label("L_p2_ev")
    k("s_cmp_lt_u32 s25, 4")
    k("s_cbranch_scc0 L_p2_evB")

    k("s_cmp_lg_u32 s35, 1")
    k("s_cbranch_scc1 L_p2_evA1")
    side_job(k)
    k("s_branch L_p2_evret")
    k.label("L_p2_evA1")
    k(f"s_cmp_lg_u32 s35, {TITER}")
    k("s_cbranch_scc1 L_p2_evA2")
    k(f"""
    s_lshr_b32 s36, s2, 5
    s_lshl_b32 s36, s36, 8
    s_add_u32 s36, s36, {CNT + 40*256}
    v_mov_b32 v{TMP}, 0
    v_mov_b32 v{TMP+1}, 1
    s_waitcnt vmcnt(0)
    s_mov_b64 exec, 1
    buffer_atomic_add v{TMP+1}, v{TMP}, s[20:23], s36 offen sc1
    s_mov_b64 exec, -1
    """)
    k(f"""
    s_lshr_b32 s36, s2, 3
    s_lshl_b32 s36, s36, 2
    s_add_u32 s36, s36, s26
    v_min_u32 v{TMP}, 31, v1
    v_lshlrev_b32 v{TMP}, 7, v{TMP}
    s_lshl_b32 s37, s36, 12
    """)
    srd(k, 16, PWO, PWO + 1, 512 * 1024)
    k(f"""
    buffer_load_dword v{PF}, v{TMP}, s[16:19], s37 offen
    v_min_u32 v{TMP}, 15, v1
    v_lshlrev_b32 v{TMP}, 7, v{TMP}
    s_and_b32 s38, s2, 7
    s_lshl_b32 s38, s38, 18
    s_lshl_b32 s37, s36, 11
    s_add_u32 s37, s37, s38
    """)
    srd(k, 16, PX, PX + 1, 2 * MB)
    k(f"""
    buffer_load_dword v{PF}, v{TMP}, s[16:19], s37 offen
    s_add_u32 s37, s37, {HF}
    {'' if 'h' in DATAWT else f'buffer_load_dword v{PF}, v{TMP}, s[20:23], s37 offen'}
    s_and_b32 s38, s2, 7
    s_lshl_b32 s38, s38, 15
    s_lshl_b32 s37, s36, 8
    s_add_u32 s37, s37, s38
    s_add_u32 s37, s37, {ST}
    v_min_u32 v{TMP}, 1, v1
    v_lshlrev_b32 v{TMP}, 7, v{TMP}
    {'' if 'h' in DATAWT else f'buffer_load_dword v{PF}, v{TMP}, s[20:23], s37 offen'}
    s_and_b32 s38, s2, 7
    s_mul_i32 s38, s38, {8*112*1024}
    s_mul_i32 s37, s36, {7*1024}
    s_add_u32 s37, s37, s38
    s_add_u32 s37, s37, {AF}
    v_min_u32 v{TMP}, 55, v1
    v_lshlrev_b32 v{TMP}, 7, v{TMP}
    """)
    if "a" not in DATAWT:
        k(f"buffer_load_dword v{PF}, v{TMP}, s[20:23], s37 offen")
    DW = int(E("DW", "0"))
    if DW:
        srd(k, 16, PWD, PWD + 1, 1792 * 1024)
        k(f"s_mul_i32 s37, s36, {7*1024}")
        for i in range(DW):
            k(f"buffer_load_dword v{PF}, v{TMP}, s[16:19], s37 offen")
            k(f"s_add_u32 s37, s37, {896*1024}")
    k("s_branch L_p2_evret")
    k.label("L_p2_evA2")
    if E("CPF", "1") == "1":
        k(f"""
        s_cmp_lg_u32 s35, 5
        s_cbranch_scc1 L_p2_evA3
        s_getpc_b64 s[36:37]
        """)
        k.label("L_pc2")
        k(f"""
        v_lshlrev_b32 v{TMP}, 7, v0
        v_min_u32 v{TMP}, L_codeend-L_pc2, v{TMP}
        global_load_dword v{PF}, v{TMP}, s[36:37]
        s_branch L_p2_evret
        """)
        k.label("L_p2_evA3")
    k(f"s_cmp_lg_u32 s35, {TITER+1}")
    k("s_cbranch_scc1 L_p2_evret")
    k(f"""
    s_lshr_b32 s36, s2, 3
    s_lshl_b32 s36, s36, 2
    s_add_u32 s36, s36, s26
    s_min_u32 s36, s36, 111
    s_lshl_b32 s36, s36, 15
    s_add_u32 s36, s36, {WGF}
    v_lshlrev_b32 v{TMP}, 7, v1
    """)
    for i in range(int(E("WT", "2"))):
        k(f"buffer_load_dword v{PF}, v{TMP}, s[20:23], s36 offen")
        k("s_add_u32 s36, s36, 8192")
    k("s_branch L_p2_evret")
    k.label("L_p2_evB")
    k(f"s_cmp_lg_u32 s35, {PDROP}")
    k("s_cbranch_scc1 L_p2_evret")
    k("s_setprio 0")
    k("s_branch L_p2_evret")
    k.label("L_p2_slow")
    M = TMP + 6
    k(f"v_subrev_u32 v{AK}, 65536, v{AK}")
    k(f"v_subrev_u32 v{AV0}, {64*VSTR}, v{AV0}")
    k(f"v_subrev_u32 v{AV1}, {64*VSTR}, v{AV1}")
    for i in range(16):
        k(f"v_mov_b32 v{O+i}, 0")
    k(f"v_mov_b32 v{M}, 0xff7fffff")
    k("s_mov_b32 s35, 64")
    k.label("L_p2_sloop")
    rdK(0, 0)
    rdV(0, 0)
    k("s_waitcnt lgkmcnt(0)")
    k(f"{MF32} {Sr(0)}, {Kr(0)}, {Qr}, 0")
    tilemax(S)
    k(f"""
    v_max3_f32 v{TMP}, v{TMP}, v{TMP+1}, v{M}
    v_sub_f32 v{TMP+1}, v{M}, v{TMP}
    v_exp_f32 v{TMP+1}, v{TMP+1}
    v_mov_b32 v{M}, v{TMP}
    """)
    for i in range(16):
        k(f"v_mul_f32 v{O+i}, v{O+i}, v{TMP+1}")
    for i in range(16):
        k(f"v_sub_f32 v{S+i}, v{S+i}, v{M}")
    Ex(0, 0, 16)
    for i in range(4):
        CV(P0 + i, 0, i)
        CV(P1 + i, 0, 4 + i)
    k(f"""
    {MF32} {Or}, {Vr(0,0)}, {r4(P0)}, {Or}
    {MF32} {Or}, {Vr(0,1)}, {r4(P1)}, {Or}
    v_add_u32 v{AK}, 1024, v{AK}
    v_add_u32 v{AV0}, {VSTR}, v{AV0}
    v_add_u32 v{AV1}, {VSTR}, v{AV1}
    s_nop 15
    s_sub_u32 s35, s35, 1
    s_cmp_lg_u32 s35, 0
    s_cbranch_scc1 L_p2_sloop
    """)
    k.check_backedge("L_p2_sloop")
    k("s_nop 15")
    k("s_branch L_p2_fin")


HKEEP, VL16, TRA, WD0 = 104, 112, 113, 113
HOFF4 = 3 * 28672
CSL4 = HOFF4 + 3 * 16384
NWS = int(E("NWS", "12"))
NAS = 20 - NWS
AOFF = NWS * 8192
EARLYW = E("EARLYW", "0") == "1"
PD = int(E("PD", "4"))
NB = PD + 1
XL = 131072
STAG = E('STAG', '0') == '1'
EW = int(E('EW', '0'))
STAGED = False
YS = int(E('YS', '0'))
DS, DV = 192, 115


def ids64(k):
    k("""
    s_and_b32 s27, s2, 7
    s_lshl_b32 s27, s27, 2
    s_lshr_b32 s28, s2, 3
    s_and_b32 s28, s28, 3
    s_add_u32 s27, s27, s28
    s_lshr_b32 s28, s2, 5
    s_and_b32 s29, s26, 1
    s_lshr_b32 s30, s26, 1
    s_lshl_b32 s31, s27, 1
    s_add_u32 s31, s31, s30
    """)


def p4_ids(k):
    k(f"""
    s_and_b32 s27, s2, 7
    s_lshl_b32 s27, s27, 1
    s_lshr_b32 s28, s2, 3
    s_and_b32 s28, s28, 1
    s_add_u32 s27, s27, s28
    s_lshr_b32 s28, s2, 4
    s_lshl_b32 s29, s27, 2
    s_add_u32 s29, s29, s26
    s_lshl_b32 s38, s29, 15
    s_add_u32 s38, s38, {HF}
    s_lshl_b32 s40, s26, 12
    s_add_u32 s40, s40, {HOFF4}
    s_cmp_lt_u32 s25, 4
    s_cselect_b32 s31, 2, 5
    s_cselect_b32 s35, 20, 0
    s_mul_i32 s31, s31, s26
    s_add_u32 s31, s31, s35
    s_lshl_b32 s34, s31, 10
    s_mul_i32 s32, s28, {7*32768}
    s_add_u32 s32, s32, {WGF}
    """)


def wstage(k, X, c):
    for o in wstage_ops(X, c):
        k(o)


def wstage_ops(X, c):
    n, base = (3, SX + 12 * (7 - c)) if X else (4, SY + 16 * (7 - c))
    return [f"ds_write_b128 v15, {r4(base + 4*i)} offset:{(c % 3)*28672 + i*1024}" for i in range(n)]


class LdsQ:
    def __init__(self, k):
        self.k, self.q = k, []

    def op(self, text, tag=None):
        self.k(text)
        self.q.append(tag)

    def wait(self, *tags):
        idx = [i for i, t in enumerate(self.q) if t in tags]
        if not idx:
            return
        n = len(self.q) - 1 - max(idx)
        assert n <= 15
        self.k(f"s_waitcnt lgkmcnt({n})")
        self.q = self.q[max(idx) + 1:]

    def clear(self):
        self.q = []


def p3(k):
    k.label("L_p3")
    k(f"v_lshlrev_b32 v{VL16}, 4, v1")
    ids64(k)
    k(f"""
    s_lshr_b32 s45, s2, 5
    s_lshl_b32 s45, s45, 8
    s_add_u32 s45, s45, {CNT}
    s_setprio 0
    s_waitcnt vmcnt(0)
    """)
    signal(k, 45, "add")
    k("s_cmp_lt_u32 s25, 4")
    k("s_cbranch_scc1 L_p3C")
    k(f"""
    s_lshl_b32 s34, s26, 11
    v_lshrrev_b32 v2, 3, v1
    v_bfe_u32 v3, v1, 2, 1
    v_bfe_u32 v4, v1, 4, 1
    v_xor_b32 v3, v3, v4
    v_and_b32 v4, 3, v1
    v_lshlrev_b32 v4, 4, v4
    v_lshl_add_u32 v4, v3, 6, v4
    v_lshl_add_u32 v4, v2, 10, v4
    s_lshl_b32 s35, s26, 14
    s_lshl_b32 s36, s28, 7
    s_add_u32 s35, s35, s36
    v_add_u32 v{WD0}, s35, v4
    v_add_u32 v{WD0+1}, 8192-1024, v{WD0}
    """)
    srd(k, 16, PWO, PWO + 1, 512 * 1024)
    srd(k, 56, PX, PX + 1, 2 * MB)
    for c in range(8):
        k(f"""
        s_mov_b32 s41, {c*65536}
        s_add_u32 m0, s34, {c*8192}
        buffer_load_dwordx4 v{WD0}, s[16:19], s41 offen lds
        buffer_load_dwordx4 v{WD0+1}, s[16:19], s41 offen offset:1024 lds
        """)
    k(f"""
    v_and_b32 v5, 7, v1
    v_xor_b32 v5, v5, v2
    v_lshlrev_b32 v5, 4, v5
    v_lshl_add_u32 v4, v2, 10, v5
    s_lshl_b32 s38, s27, 16
    s_add_u32 s38, s38, s35
    s_add_u32 m0, s34, {XL}
    buffer_load_dwordx4 v4, s[56:59], s38 offen lds
    s_add_u32 s38, s38, 8192
    s_add_u32 m0, s34, {XL+1024}
    buffer_load_dwordx4 v4, s[56:59], s38 offen lds
    s_lshl_b32 s32, s31, 15
    s_lshl_b32 s33, s29, 11
    s_add_u32 s32, s32, s33
    s_add_u32 s32, s32, {OF}
    """)
    WT2 = int(E("WT2", "0"))
    if WT2:
        k(f"""
        s_lshr_b32 s36, s2, 3
        s_lshl_b32 s36, s36, 2
        s_add_u32 s36, s36, s26
        s_min_u32 s36, s36, 111
        s_lshl_b32 s36, s36, 15
        s_add_u32 s36, s36, {WGF + int(E("WT", "2"))*8192}
        v_lshlrev_b32 v5, 7, v1
        """)
        for i in range(WT2):
            k("buffer_load_dword v127, v5, s[20:23], s36 offen")
            k("s_add_u32 s36, s36, 8192")
    k("s_barrier")
    for c in range(8):
        k(f"""
        s_add_u32 s40, s32, {c*4096}
        s_add_u32 m0, s34, {65536 + c*8192}
        buffer_load_dwordx4 v{VL16}, s[20:23], s40 offen sc1 lds
        buffer_load_dwordx4 v{VL16}, s[20:23], s40 offen offset:1024 sc1 lds
        """)
    for c in range(8):
        k(f"s_waitcnt vmcnt({2*(7-c)})")
        k("s_barrier")
    p4_ids(k)
    srd(k, 16, PWD, PWD + 1, 1792 * 1024)
    k("s_mul_i32 s42, s26, 7")
    for j in range(7):
        k(f"""
        s_add_u32 s36, s42, {j}
        s_lshr_b32 s37, s36, 2
        s_lshl_b32 s37, s37, 15
        s_and_b32 s39, s36, 3
        s_lshl_b32 s39, s39, 10
        s_add_u32 s37, s37, s39
        v_add_u32 v{120+j}, s37, v{VL16}
        """)
    k("s_lshl_b32 s42, s42, 10")
    k("s_barrier")
    PRE = int(E("PRE3", "4"))
    for c in range(3):
        k(f"s_add_u32 s37, s32, {c*4096}")
        for j in range(7):
            if c * 7 + j == PRE:
                k("s_barrier")
            k(f"""
            s_add_u32 m0, s42, {c*28672 + j*1024}
            buffer_load_dwordx4 v{120+j}, s[20:23], s37 offen sc1 lds
            """)
    k("s_barrier")
    p4_body(k, False)
    p5_loader(k)
    k.label("L_p3C")
    VBA, RES, ACC, T, FR = 12, 20, 64, 80, 120
    k(f"""
    v_and_b32 v2, 31, v1
    v_lshrrev_b32 v3, 5, v1
    s_lshl_b32 s37, s28, 1
    s_add_u32 s37, s37, s29
    s_lshl_b32 s40, s30, 12
    s_add_u32 s40, s40, 65536
    v_add_u32 v{VBA}, s40, v{VL16}
    v_bfe_u32 v4, v1, 2, 2
    v_lshl_add_u32 v5, v3, 2, v4
    v_lshlrev_b32 v5, 7, v5
    v_lshrrev_b32 v4, 1, v4
    v_xor_b32 v4, s29, v4
    v_lshl_add_u32 v5, v4, 6, v5
    v_bfe_u32 v4, v1, 4, 1
    v_lshl_add_u32 v5, v4, 5, v5
    v_and_b32 v4, 3, v1
    v_lshl_add_u32 v{TRA}, v4, 3, v5
    s_lshl_b32 s38, s30, 12
    s_lshl_b32 s39, s29, 2
    v_and_b32 v4, 7, v2
    v_xor_b32 v4, s39, v4
    v_lshlrev_b32 v5, 7, v2
    v_lshl_add_u32 v5, v3, 3, v5
    v_add_u32 v5, s38, v5
    v_add_u32 v5, {XL}, v5
    """)
    for g in range(4):
        k(f"v_xor_b32 v{T+g}, {g}, v4")
        k(f"v_lshl_add_u32 v{T+g}, v{T+g}, 4, v5")
    k(f"""
    s_cmp_lg_u32 s25, 1
    s_cbranch_scc1 L_p3_w
    v_cmp_gt_u32 vcc, 8, v1
    v_lshlrev_b32 v7, 8, v1
    v_add_u32 v7, {40*256}, v7
    s_and_b32 s36, s2, 7
    s_lshl_b32 s36, s36, 8
    v_mov_b32 v8, s36
    v_cndmask_b32 v7, v8, v7, vcc
    v_mov_b32 v8, 32
    v_mov_b32 v9, 128
    v_cndmask_b32 v8, v8, v9, vcc
    """)
    poll(k, 7, 8, 6, int(E('PS1', '12')), int(E('PP1', '0')))
    k.label("L_p3_w")
    k("s_barrier")
    stamp(k, 4)

    def reads3(n):
        c, s_ = n // 4, n % 4
        b = FR + (n % NB) * 8
        k(f"ds_read_b128 {r4(b)}, v{VBA} offset:{c*8192 + s_*1024}")
        k(f"ds_read_b64_tr_b16 {pr(b+4)}, v{TRA} offset:{n*2048}")
        k(f"ds_read_b64_tr_b16 {pr(b+6)}, v{TRA} offset:{n*2048 + 1024}")

    k("s_barrier")
    k("s_waitcnt lgkmcnt(0)")
    for n in range(PD):
        reads3(n)
    for n in range(32):
        if n + PD < 32:
            if (n + PD) % 4 == 0:
                k("s_barrier")
            reads3(n + PD)
            k(f"s_waitcnt lgkmcnt({3*PD})")
        else:
            if n == 30:
                for g in range(4):
                    k(f"ds_read_b64 {pr(RES+2*g)}, v{T+g}")
            k(f"s_waitcnt lgkmcnt({3*(31-n) + (4 if n >= 30 else 0)})")
        b = FR + (n % NB) * 8
        k(f"{MF32} {r16(ACC)}, {r4(b+4)}, {r4(b)}, " + (r16(ACC) if n else "0"))
    k("s_waitcnt lgkmcnt(0)")
    k("s_barrier")
    stamp(k, 5)
    for i in range(8):
        k(f"v_lshlrev_b32 v{T+2*i}, 16, v{RES+i}")
        k(f"v_and_b32 v{T+2*i+1}, 0xffff0000, v{RES+i}")
    for r in range(0, 16, 2):
        k(f"v_pk_add_f32 {pr(ACC+r)}, {pr(ACC+r)}, {pr(T+r)}")
    for i in range(8):
        k(f"v_cvt_pk_bf16_f32 v{HKEEP+i}, v{ACC+2*i}, v{ACC+2*i+1}")
    k(f"""
    s_lshl_b32 s38, s31, 15
    s_lshl_b32 s39, s37, 11
    s_add_u32 s38, s38, s39
    s_add_u32 s38, s38, {HF}
    """)
    mstore(k, [f"buffer_store_dwordx4 {r4(HKEEP)}, v{VL16}, s[20:23], s38 offen",
               f"buffer_store_dwordx4 {r4(HKEEP+4)}, v{VL16}, s[20:23], s38 offen offset:1024"], "h")
    k(f"v_pk_add_f32 {pr(T)}, {pr(ACC)}, {pr(ACC+2)}")
    k(f"v_pk_mul_f32 {pr(T+2)}, {pr(ACC)}, {pr(ACC)}")
    k(f"v_pk_fma_f32 {pr(T+2)}, {pr(ACC+2)}, {pr(ACC+2)}, {pr(T+2)}")
    for r in range(4, 16, 2):
        k(f"v_pk_add_f32 {pr(T)}, {pr(T)}, {pr(ACC+r)}")
        k(f"v_pk_fma_f32 {pr(T+2)}, {pr(ACC+r)}, {pr(ACC+r)}, {pr(T+2)}")
    k(f"""
    v_add_f32 v{T}, v{T}, v{T+1}
    v_add_f32 v{T+1}, v{T+2}, v{T+3}
    v_mov_b32 v{T+2}, v{T}
    v_mov_b32 v{T+3}, v{T+1}
    v_permlane32_swap_b32 v{T}, v{T+2}
    v_permlane32_swap_b32 v{T+1}, v{T+3}
    v_add_f32 v{T}, v{T}, v{T+2}
    v_add_f32 v{T+1}, v{T+1}, v{T+3}
    v_lshlrev_b32 v4, 3, v2
    s_lshl_b32 s38, s31, 12
    s_lshl_b32 s39, s37, 8
    s_add_u32 s38, s38, s39
    s_add_u32 s38, s38, {ST}
    s_mov_b64 exec, 0xffffffff
    """)
    mstore(k, f"buffer_store_dwordx2 {pr(T)}, v4, s[20:23], s38 offen", "h")
    k(f"""
    s_mov_b64 exec, -1
    s_lshr_b32 s45, s27, 1
    s_lshl_b32 s45, s45, 8
    s_and_b32 s39, s27, 1
    s_lshl_b32 s39, s39, 3
    s_add_u32 s39, s39, s28
    s_lshl_b32 s39, s39, 2
    s_add_u32 s45, s45, s39
    s_add_u32 s45, s45, {CNT + 8*256}
    """)
    p4_ids(k)
    k("s_waitcnt vmcnt(0)")
    signal(k, 45, "lflag")
    k(f"""
    s_lshl_b32 s36, s27, 8
    s_add_u32 s36, s36, {8*256}
    """)
    wave_poll_flags(k, 1, 36, 16)
    stamp(k, 6)
    p4_body(k, True)
    p5_compute(k)


def wdma(k, c):
    k(f"""
    s_mov_b32 s41, {(c % 8 if 'w' in E('ABL5', '') else c)*65536}
    s_add_u32 m0, s48, {(c % NWS)*8192}
    buffer_load_dwordx4 v{WD0}, s[16:19], s41 offen lds
    buffer_load_dwordx4 v{WD0+1}, s[16:19], s41 offen offset:1024 lds
    """)


def p4_body(k, X):
    tiles = [0, 1, 2, 3] if X else [4, 5, 6]
    NT = len(tiles)
    VWA, VHA, VCSA, HB, FR, ACC = 10, 13, 14, 16, 24, 40
    if E('ACC64') == '1':
        HB, FR, ACC = 208, 216, 32
    STT, T, CSB = 128, 144, 160
    MEAN, NMEAN, C1, C2 = 117, 118, 120, 122

    NW = 2 if X else 5
    VWD = 124 if X else 88

    def group_ops(c):
        ops = []
        if X:
            for i in range(4):
                p2 = f"s_add_u32 s39, s38, {c*4096}\ns_add_u32 m0, s40, {(c%3)*16384}\n" if i == 0 else ""
                ops.append(p2 + f"buffer_load_dwordx4 v{VL16}, s[20:23], s39 offen offset:{i*1024} sc1 lds")
        if c >= 3:
            for j in range(NW):
                p2 = f"s_add_u32 s37, s32, {c*4096}\n" if j == 0 else ""
                ops.append(p2 + f"s_add_u32 m0, s34, {(c%3)*28672 + j*1024}\nbuffer_load_dwordx4 v{VWD+j}, s[20:23], s37 offen sc1 lds")
        return ops

    for c in range(3):
        for o in group_ops(c):
            k(o)
    for j in range(NW):
        k(f"""
        s_add_u32 s35, s31, {j}
        s_lshr_b32 s36, s35, 2
        s_lshl_b32 s36, s36, 15
        s_and_b32 s35, s35, 3
        s_lshl_b32 s35, s35, 10
        s_add_u32 s35, s35, s36
        v_add_u32 v{VWD+j}, s35, v{VL16}
        """)
    k(f"""
    v_lshrrev_b32 v3, 5, v1
    v_mov_b32 v{VWA}, v{VL16}
    v_add_u32 v{VWA+1}, 28672, v{VWA}
    v_add_u32 v{VWA+2}, {2*28672}, v{VWA}
    v_add_u32 v{VHA}, s40, v{VL16}
    v_lshlrev_b32 v{VCSA}, 4, v3
    v_add_u32 v{VCSA}, {CSL4}, v{VCSA}
    """)

    Q = LdsQ(k)

    def rdh(n):
        c, s_ = n // 4, n % 4
        Q.op(f"ds_read_b128 {r4(HB + 4*(n % 2))}, v{VHA} offset:{(c%3)*16384 + s_*1024}", ("h", n))

    def rdw(n, i):
        c, s_ = n // 4, n % 4
        Q.op(f"ds_read_b128 {r4(FR+4*i)}, v{VWA + c % 3} offset:{tiles[i]*4096 + s_*1024}", ("w", n, i))

    vq = []

    def vop(text, tag):
        k(text)
        vq.append(tag)

    def vwait(tag, lg=""):
        idx = [i for i, t in enumerate(vq) if t == tag]
        n = len(vq) - 1 - max(idx) if idx else None
        if n is not None:
            k(f"s_waitcnt vmcnt({n}) {lg}")
        elif lg:
            k(f"s_waitcnt {lg}")

    for c in range(3):
        vq.extend([("H", c)] * (4 if X else 7))
    vwait(("H", 0), "lgkmcnt(0)")
    k("s_barrier")
    if X and STAMPS:
        stamp(k, 2); k("s_waitcnt lgkmcnt(0)")
    rdh(0)
    for i in range(NT):
        rdw(0, i)
    pend = []
    wpend = []
    for n in range(32):
        last = n == 31
        bar = (n + 1) % 4 == 0 and not last
        if bar:
            c1 = (n + 1) // 4
            for o, t in pend:
                vop(o, t)
            for o in wpend:
                Q.op(o)
            vwait(("H", c1), "lgkmcnt(0)")
            Q.clear()
            k("s_barrier")
            if STAG and not X and c1 == 7:
                k("s_setprio 1")
            if X and STAMPS and c1 == int(E("MID", "4")):
                stamp(k, 15); k("s_waitcnt lgkmcnt(0)")
            pend = [(o, ("H", c1 + 2)) for o in group_ops(c1 + 2)] if c1 + 2 <= 7 else []
            if c1 == int(E("SL", "1")):
                ops = [f"s_lshl_b32 s36, s29, 12\ns_add_u32 s36, s36, {ST}\nv_lshlrev_b32 v8, 3, v1\n" +
                       f"buffer_load_dwordx2 {pr(STT)}, v8, s[20:23], s36 offen sc1"]
                for i in range(1, 8):
                    ops.append(f"buffer_load_dwordx2 {pr(STT+2*i)}, v8, s[20:23], s36 offen offset:{512*i} sc1")
                if X:
                    ops.append(f"""
                    v_min_u32 v5, 223, v0
                    v_cmp_lt_u32 vcc, 111, v5
                    v_mov_b32 v6, {1792-112}
                    v_cndmask_b32 v6, 0, v6, vcc
                    v_add_u32 v6, v6, v5
                    v_lshlrev_b32 v6, 4, v6
                    v_lshlrev_b32 v9, 2, v5
                    v_add_u32 v9, {CSL4}, v9
                    s_mul_i32 s37, s28, {112*16}
                    s_add_u32 s37, s37, {CS}
                    buffer_load_dwordx4 {r4(T)}, v6, s[20:23], s37 offen sc1""")
                    for q in range(1, 4):
                        ops.append(f"s_add_u32 s37, s37, {3584*16}\nbuffer_load_dwordx4 {r4(T+4*q)}, v6, s[20:23], s37 offen sc1")
                ops = [o.replace("s36", "s43").replace("s37", "s44") for o in ops]
                pend += [(o, "S") for o in ops]
            if not X and YS and c1 in (6, 7):
                cs_ = list(range(28 - YS, 28))
                half = (len(cs_) + 1) // 2
                for c in (cs_[:half] if c1 == 6 else cs_[half:]):
                    r = 200 + 8 * (27 - c)
                    pend.append((f"s_mov_b32 s41, {c*65536}\nbuffer_load_dwordx4 {r4(r)}, v{WD0}, s[16:19], s41 offen", "D"))
                    pend.append((f"buffer_load_dwordx4 {r4(r+4)}, v{WD0+1}, s[16:19], s41 offen offset:1024", "D"))
            if c1 == 6:
                DW = int(E("DW", "0"))
                if not X and DW < 2 and E('TP', 'half') != 'late':
                    pend.append((f"""
                    v_min_u32 v5, 55, v1
                    v_lshlrev_b32 v6, 7, v5
                    s_lshr_b32 s37, s2, 3
                    s_lshl_b32 s37, s37, 2
                    s_add_u32 s37, s37, s26
                    s_mul_i32 s37, s37, {7*1024}
                    s_add_u32 s37, s37, {DW*896*1024}
                    buffer_load_dword v127, v6, s[16:19], s37 offen""", "T"))
                    if DW == 0 and E('TP', 'half') != 'half':
                        pend.append((f"s_add_u32 s37, s37, {896*1024}\nbuffer_load_dword v127, v6, s[16:19], s37 offen", "T"))
        b = HB + 4 * (n % 2)
        if not last:
            rdh(n + 1)
        for i in range(NT):
            A = r16(ACC + 16 * i)
            Q.wait(("h", n), ("w", n, i))
            k(f"{MF32} {A}, {r4(FR+4*i)}, {r4(b)}, " + (A if n else "0"))
            if not last:
                rdw(n + 1, i)
            if pend and (i % 2 == 0 or len(pend) > 6 or E('BURST') == '1'):
                vop(*pend.pop(0))
            if wpend and i == 1:
                Q.op(wpend.pop(0))
        if n == int(E("SN", "13")):
            vwait("S")
            if X:
                for st_ in (8, 4, 2, 1):
                    for i in range(st_):
                        k(f"v_add_f32 v{T+i}, v{T+i}, v{T+i+st_}")
                if STAG:
                    Q.op(f"ds_write_b32 v9, v{T}")
            for i in range(1, 8):
                k(f"v_add_f32 v{STT}, v{STT}, v{STT+2*i}")
                k(f"v_add_f32 v{STT+1}, v{STT+1}, v{STT+2*i+1}")
            k(f"""
            v_mov_b32 v{STT+2}, v{STT}
            v_mov_b32 v{STT+3}, v{STT+1}
            v_permlane32_swap_b32 v{STT}, v{STT+2}
            v_permlane32_swap_b32 v{STT+1}, v{STT+3}
            v_add_f32 v{STT}, v{STT}, v{STT+2}
            v_add_f32 v{STT+1}, v{STT+1}, v{STT+3}
            v_mul_f32 v{MEAN}, {f32(1/512)}, v{STT}
            v_mul_f32 v{C2}, {f32(1/512)}, v{STT+1}
            v_fma_f32 v{C2}, -v{MEAN}, v{MEAN}, v{C2}
            v_max_f32 v{C2}, 0, v{C2}
            v_add_f32 v{C2}, {f32(1e-5)}, v{C2}
            v_rsq_f32 v{C1}, v{C2}
            v_mul_f32 v{C1}, {f32(-LOG2E)}, v{C1}
            v_mov_b32 v{C1+1}, v{C1}
            v_mov_b32 v{C2+1}, v{C2}
            v_sub_f32 v{NMEAN}, 0, v{MEAN}
            v_sub_f32 v{NMEAN+1}, 0, v{MEAN}
            """)
    for o, t in pend:
        vop(o, t)
    if X:
        stamp(k, 7)
        if not STAG:
            k(f"ds_write_b32 v9, v{T}")
    k("s_waitcnt lgkmcnt(0)")
    if X or not STAG:
        k("s_barrier")
    elif STAG:
        k("s_setprio 0")
    wq = []
    if not X:
        k("s_lshl_b32 s48, s26, 11")
        wq = list(range(EW))

    def wpop(n=1):
        for _ in range(n):
            if wq:
                wdma(k, wq.pop(0))

    k(f"""
    s_mul_i32 s36, s29, {112*1024}
    s_mul_i32 s37, s28, {7*1024}
    s_add_u32 s36, s36, s37
    s_add_u32 s36, s36, {AF + tiles[0]*1024}
    """)

    def csread(i):
        p = tiles[i]
        d = CSB + (i % 2) * 16
        k(f"ds_read_b128 {r4(d)}, v{VCSA} offset:{p*64}")
        k(f"ds_read_b128 {r4(d+4)}, v{VCSA} offset:{p*64+32}")
        k(f"ds_read_b128 {r4(d+8)}, v{VCSA} offset:{448+p*64}")
        k(f"ds_read_b128 {r4(d+12)}, v{VCSA} offset:{448+p*64+32}")

    csread(0)
    for i in range(NT):
        k("s_waitcnt lgkmcnt(0)")
        if i + 1 < NT:
            csread(i + 1)
        d = CSB + (i % 2) * 16
        A = ACC + 16 * i
        wpop(2)
        for r in range(0, 16, 2):
            k(f"v_pk_fma_f32 {pr(A+r)}, {pr(NMEAN)}, {pr(d+r)}, {pr(A+r)}")
        for r in range(0, 8, 2):
            k(f"v_pk_mul_f32 {pr(T+r)}, {pr(A+r)}, {pr(C1)}")
        for r in range(8):
            k(f"v_exp_f32 v{T+r}, v{T+r}")
        wpop(2)
        for r in range(0, 8, 2):
            k(f"v_pk_mul_f32 {pr(A+r)}, {pr(A+r)}, {pr(A+8+r)}")
        for r in range(0, 8, 2):
            k(f"v_pk_fma_f32 {pr(T+r)}, {pr(T+r)}, {pr(C2)}, {pr(C2)}")
        for r in range(8):
            k(f"v_rcp_f32 v{T+r}, v{T+r}")
        for r in range(0, 8, 2):
            k(f"v_pk_mul_f32 {pr(A+r)}, {pr(A+r)}, {pr(T+r)}")
        if i == NT - 1:
            wpop(99)
        for j in range(4):
            k(f"v_cvt_pk_bf16_f32 v{A+j}, v{A+2*j}, v{A+2*j+1}")
        mstore(k, f"buffer_store_dwordx4 {r4(A)}, v{VL16}, s[20:23], s36 offen offset:{i*1024}", "a")
        if STAG and not X and i == int(E("STAGB", "1")):
            k("s_barrier")
    k(f"""
    s_lshl_b32 s45, s27, 8
    s_lshl_b32 s39, s28, 2
    s_add_u32 s45, s45, s39
    s_add_u32 s45, s45, {CNT + 24*256}
    """)


def dwrite(c):
    ws = c % NWS
    a, off = (DV, ws * 8192) if ws < 7 else (DV + 1, (ws - 7) * 8192)
    return f"ds_write_b128 v{a}, {r4(DS + 4*(27 - c))} offset:{off}"


def dsetup(k):
    k(f"""
    s_lshl_b32 s35, s25, 10
    v_add_u32 v{DV}, s35, v{VL16}
    v_add_u32 v{DV+1}, 57344, v{DV}
    """)


def p5_loader(k):
    ids64(k)
    k(f"""
    s_lshl_b32 s34, s26, 11
    s_mul_i32 s32, s31, {112*1024}
    s_lshl_b32 s33, s29, 11
    s_add_u32 s32, s32, s33
    s_add_u32 s32, s32, {AF}
    v_add_u32 v{DV}, s34, v{VL16}
    v_add_u32 v{DV+1}, 57344, v{DV}
    """)

    def adma(c):
        k(f"""
        s_add_u32 s40, s32, {(c % 4 if 'a' in E('ABL5', '') else c)*4096}
        s_add_u32 m0, s34, {AOFF + (c % NAS)*8192}
        buffer_load_dwordx4 v{VL16}, s[20:23], s40 offen sc1 lds
        buffer_load_dwordx4 v{VL16}, s[20:23], s40 offen offset:1024 sc1 lds
        """)

    if True:
        n1 = min(NWS, EW + int(E("EW2", "4")))
        for c in range(EW, n1):
            wdma(k, c)
        k(f"s_waitcnt vmcnt({2*(n1-EW)})")
        k("s_barrier")
        for c in range(n1, NWS):
            wdma(k, c)
        if E('TP', 'half') in ('late', 'half'):
            k(f"""
            v_min_u32 v5, 55, v1
            v_lshlrev_b32 v6, 7, v5
            s_lshr_b32 s37, s2, 3
            s_lshl_b32 s37, s37, 2
            s_add_u32 s37, s37, s26
            s_mul_i32 s37, s37, {7*1024}
            s_add_u32 s37, s37, {896*1024}
            buffer_load_dword v127, v6, s[16:19], s37 offen
            """)
    k("s_barrier")
    if E("WBL2") == "1":
        k("""
        s_lshr_b32 s36, s2, 3
        s_add_u32 s36, s36, s26
        s_cmp_lg_u32 s36, 0
        s_cbranch_scc1 L_nowb
        buffer_wbl2 sc1
        """)
        k.label("L_nowb")
    order = []
    ia, iw = 0, NWS
    for c in range(NAS - 2):
        adma(c); order.append(("a", c)); ia += 1
    for c in range(28):
        need = max(i for i, g in enumerate(order) if g == ("a", c) or g == ("w", c))
        k(f"s_waitcnt vmcnt({2*(len(order) - 1 - need)}) lgkmcnt(0)")
        k("s_barrier")
        if ia < 28 and ia <= c - 2 + NAS:
            adma(ia); order.append(("a", ia)); ia += 1
        if iw < 28 and iw <= c - 2 + NWS:
            if iw >= 28 - YS:
                ws_ = iw % NWS
                a_, off = (DV, ws_ * 8192) if ws_ < 7 else (DV + 1, (ws_ - 7) * 8192)
                r = 200 + 8 * (27 - iw)
                k(f"ds_write_b128 v{a_}, {r4(r)} offset:{off}")
                k(f"ds_write_b128 v{a_}, {r4(r+4)} offset:{off+1024}")
            else:
                wdma(k, iw); order.append(("w", iw))
            iw += 1
    k("s_endpgm")


def p5_compute(k):
    VBA, VWA, ACC, T, FR = 12, 13, 64, 80, 120
    k("s_waitcnt vmcnt(0)")
    stamp(k, 8)
    signal(k, 45, "lflag")
    ids64(k)
    srd(k, 56, POUT, POUT + 1, 2 * MB)
    k(f"""
    v_and_b32 v2, 31, v1
    v_lshrrev_b32 v3, 5, v1
    s_lshl_b32 s37, s28, 1
    s_add_u32 s37, s37, s29
    s_lshl_b32 s40, s30, 12
    s_add_u32 s40, s40, {AOFF}
    v_add_u32 v{VBA}, s40, v{VL16}
    v_add_u32 v{VWA}, 57344, v{TRA}
    """)
    for i in range(8):
        k(f"v_lshlrev_b32 v{T+2*i}, 16, v{HKEEP+i}")
        k(f"v_and_b32 v{T+2*i+1}, 0xffff0000, v{HKEEP+i}")
    k(f"""
    s_lshr_b32 s36, s27, 1
    s_lshl_b32 s36, s36, 8
    s_add_u32 s36, s36, {24*256}
    """)
    wave_poll_flags(k, 1, 36, 16)
    stamp(k, 9)

    Q = LdsQ(k)
    PD5 = min(PD, 3) if STAGED else PD
    NB5 = PD5 + 1

    def reads(n):
        c, s_ = n // 4, n % 4
        b = FR + (n % NB5) * 8
        ws = c % NWS
        wr, woff = (f"v{TRA}", ws * 8192) if ws < 7 else (f"v{VWA}", (ws - 7) * 8192)
        Q.op(f"ds_read_b128 {r4(b)}, v{VBA} offset:{(c % NAS)*8192 + s_*1024}", n)
        Q.op(f"ds_read_b64_tr_b16 {pr(b+4)}, {wr} offset:{woff + s_*2048}", n)
        Q.op(f"ds_read_b64_tr_b16 {pr(b+6)}, {wr} offset:{woff + s_*2048 + 1024}", n)

    k("s_barrier")
    k("s_waitcnt lgkmcnt(0)")
    for n in range(PD5):
        reads(n)
    KS = 112
    for n in range(KS):
        if n + PD5 < KS:
            if (n + PD5) % 4 == 0:
                c = (n + PD5) // 4
                k("s_barrier")
                iw = c - 2 + NWS
                if STAGED and NWS <= iw < 28:
                    Q.op(dwrite(iw))
            reads(n + PD5)
        Q.wait(n)
        b = FR + (n % NB5) * 8
        k(f"{MF32} {r16(ACC)}, {r4(b+4)}, {r4(b)}, " + (r16(ACC) if n else r16(T)))
    stamp(k, 10)
    for i in range(8):
        k(f"v_cvt_pk_bf16_f32 v{ACC+i}, v{ACC+2*i}, v{ACC+2*i+1}")
    k(f"""
    v_lshlrev_b32 v4, 10, v2
    v_lshl_add_u32 v4, v3, 4, v4
    v_permlane32_swap_b32 v{ACC}, v{ACC+2}
    v_permlane32_swap_b32 v{ACC+1}, v{ACC+3}
    v_permlane32_swap_b32 v{ACC+4}, v{ACC+6}
    v_permlane32_swap_b32 v{ACC+5}, v{ACC+7}
    s_lshl_b32 s38, s31, 15
    s_lshl_b32 s39, s37, 6
    s_add_u32 s38, s38, s39
    buffer_store_dwordx4 {r4(ACC)}, v4, s[56:59], s38 offen {E('OUTP', '')}
    buffer_store_dwordx4 {r4(ACC+4)}, v4, s[56:59], s38 offen offset:32 {E('OUTP', '')}
    """)
    stamp(k, 11); stamp(k, 12, True); stamp_flush(k, 16)
    if DIAG:
        k("""
        s_memrealtime s[94:95]
        s_waitcnt lgkmcnt(0)
        s_sub_u32 s92, s92, s90
        s_lshl_b32 s92, s92, 2
        s_add_u32 s92, s92, s94
        """)
        k.label("L_diag")
        k("""
        s_memrealtime s[94:95]
        s_waitcnt lgkmcnt(0)
        s_sub_u32 s96, s94, s92
        s_cmp_lt_i32 s96, 0
        s_cbranch_scc1 L_diag
        """)
    k.label("L_end")
    k("s_endpgm")


def build(out):
    k = Kern(MONO)
    p1(k)
    p2(k)
    p3(k)
    k.label("L_codeend")
    k("s_nop 0")
    hdr = open("sequential_preLN__softmax_full_mha__swiglu_ffn__prompt.s.ref").read().split("; Override launch")[0]
    l = "grid=(256,1,1) block=(512,1,1) lds=163840"
    hdr += f"; @launch kernel={MONO} {l}\n" if (STAMPS or E("LIST") == "1") else f"; @launch {l}\n"
    open(out, "w").write(hdr + '.amdgcn_target "amdgcn-amd-amdhsa--gfx950"\n' + k.full())


if __name__ == "__main__":
    import sys
    build(sys.argv[1])
```

```python
import os
from dsl import Kern
import common
from common import MB, QF, KF, VF, OF, HF, ST, CS, AF, WGF, CNT, WS_BYTES, LOG2E, f32, srd, MONO

E = os.environ.get
STAMPS = E("STAMPS") == "1"
SPIN = 1 << 20
SMODE = 24
SIDE = 147456
WIDE0 = E('WIDE0', '0') == '1'
PX, PQKV, PWS, PWO, PWD, POUT, PG, PU, PDBG = 4, 6, 8, 10, 12, 14, 60, 62, 64
SB = 66


DIAG = E("DIAG")


def stamp(k, i, rt=False):
    if DIAG and int(DIAG) == i:
        k("s_memrealtime s[92:93]")
    if STAMPS:
        k(f"{'s_memrealtime' if rt else 's_memtime'} s[{SB+2*i}:{SB+1+2*i}]")


def stamp_flush(k, n):
    if not STAMPS:
        return
    k(f"""
    s_waitcnt lgkmcnt(0)
    s_lshl_b32 s51, s2, 4
    s_add_u32 s51, s51, s25
    s_lshl_b32 s51, s51, 6
    s_add_u32 s51, s51, {66*MB}
    v_mov_b32 v0, 0
    """)
    for i in range(n):
        k(f"v_mov_b32 v1, s{SB+2*i}")
        k(f"buffer_store_dword v1, v0, s[20:23], s51 offen offset:{4*i}")


_n = [0]


def uid(p):
    _n[0] += 1
    return f"L_{p}{_n[0]}"


DATAWT = E("DATAWT", "ah")
MAP2D = E("MAP2D", "0") == "1"
NL = int(E("NL", "13"))
WREG = E("WREG", "0") == "1"


def mstore(k, instrs, kind="flag"):
    if isinstance(instrs, str):
        instrs = [instrs]
    if kind in DATAWT:
        for i in instrs:
            k(i + " sc1")
        return
    g, e = uid("msg"), uid("mse")
    k(f"s_cmp_eq_u32 s{SMODE}, 0")
    k(f"s_cbranch_scc1 {g}")
    for i in instrs:
        k(i)
    k(f"s_branch {e}")
    k.label(g)
    for i in instrs:
        k(i + " sc1")
    k.label(e)


def one_lane(k, instr_fn):
    k("s_mov_b64 exec, 1")
    instr_fn()
    k("s_mov_b64 exec, -1")


def signal(k, soff, kind):
    l = uid("sig")
    k(f"""
    s_barrier
    s_cmp_lg_u32 s25, 0
    s_cbranch_scc1 {l}
    v_mov_b32 v4, 0
    v_mov_b32 v5, 1
    s_mov_b64 exec, 1
    """)
    if kind == "add":
        k(f"buffer_atomic_add v5, v4, s[20:23], s{soff} offen sc1")
    elif kind == "flag":
        k(f"buffer_store_dword v5, v4, s[20:23], s{soff} offen sc1")
    else:
        mstore(k, f"buffer_store_dword v5, v4, s[20:23], s{soff} offen")
    k("s_mov_b64 exec, -1")
    k.label(l)


def poll(k, vaddr, vexp, vtmp, sleep=0, pre=0):
    l = uid("poll")
    k(f"s_mov_b32 s46, {CNT}")
    k("s_mov_b32 s47, 0")
    if pre:
        k(f"s_sleep {pre}")
    k.label(l)
    if sleep:
        k(f"s_sleep {sleep}")
    k(f"""
    buffer_load_dword v{vtmp}, v{vaddr}, s[20:23], s46 offen sc1
    s_add_u32 s47, s47, 1
    s_waitcnt vmcnt(0)
    v_cmp_gt_u32 vcc, v{vexp}, v{vtmp}
    s_cmp_gt_u32 s47, {SPIN}
    s_cbranch_scc1 {l}_out
    s_cbranch_vccnz {l}
    """)
    k.label(f"{l}_out")


def wave_poll_flags(k, wave, sgrp, G, sleep=0, pre=0, stride=2):
    l = uid("wp")
    k(f"""
    s_cmp_lg_u32 s25, {wave}
    s_cbranch_scc1 {l}
    v_and_b32 v7, {G-1}, v1
    v_lshlrev_b32 v7, {stride}, v7
    v_add_u32 v7, s{sgrp}, v7
    v_mov_b32 v8, 1
    """)
    poll(k, 7, 8, 6, sleep, pre)
    k.label(l)
    k("s_barrier")


def pr(x):
    return f"v[{x}:{x+1}]"


def r4(x):
    return f"v[{x}:{x+3}]"


def r16(x):
    return f"v[{x}:{x+15}]"


MF32 = "v_mfma_f32_32x32x16_bf16"
MF16 = "v_mfma_f32_16x16x32_bf16"


def p1(k):
    NST, STAGE, WOFF = 4, 32768, 8192
    SCR = NST * STAGE
    VXD, VWD, VXA, VWA, FR, ACC, CSA, SEL, T, SUM, PF = 10, 12, 20, 28, 40, 80, 128, 144, 156, 164, 168
    k(f"""
    s_load_dwordx4 s[4:7], s[0:1], 0
    s_load_dwordx4 s[64:67], s[0:1], 64
    s_cmp_ge_u32 s2, 256
    s_cbranch_scc1 L_end
    s_getpc_b64 s[46:47]
    """)
    if DIAG:
        k("s_memrealtime s[90:91]")
    k.label("L_pc")
    k(f"""
    """)
    PFM = E("PFM", "0")
    if PFM == "0":
        k(f"""
        v_lshlrev_b32 v2, 6, v0
        v_min_u32 v3, L_codeend-L_pc, v2
        global_load_dword v{PF}, v3, s[46:47]
        v_add_u32 v2, 32768, v2
        v_min_u32 v3, L_codeend-L_pc, v2
        global_load_dword v{PF}, v3, s[46:47]
        """)
    else:
        k(f"""
        v_lshlrev_b32 v2, 7, v0
        v_min_u32 v3, L_p2-L_pc, v2
        global_load_dword v{PF}, v3, s[46:47]
        """)
    k(f"""
    v_and_b32 v1, 63, v0
    v_lshrrev_b32 v2, 6, v0
    """)
    k("v_readfirstlane_b32 s25, v2")
    k(f"""
    s_and_b32 s27, s2, 6
    s_lshl_b32 s27, s27, 2
    s_lshr_b32 s28, s2, 3
    s_and_b32 s41, s28, 7
    s_add_u32 s27, s27, s41
    s_and_b32 s28, s2, 1
    s_lshl_b32 s28, s28, 2
    s_lshr_b32 s29, s2, 6
    s_add_u32 s28, s28, s29
    s_and_b32 s26, s25, 3
    """)
    if not MAP2D:
        k(f"""
    s_getreg_b32 s30, hwreg(HW_REG_XCC_ID)
    s_and_b32 s30, s30, 7
    {E("FAKEXCC", "")}
    s_mul_i32 s31, s30, s30
    s_lshl_b32 s31, s31, 16
    s_lshl_b32 s30, s30, 8
    s_add_u32 s30, s30, s31
    s_add_u32 s51, s30, 1
    """)
    k(f"""
    s_cmp_lt_u32 s25, 4
    s_cbranch_scc1 L_p1_M
    """)
    k(f"""
    s_lshl_b32 s29, s29, 1
    s_add_u32 s41, s41, s29
    s_and_b32 s41, s41, {E("ROTMASK", "7")}
    v_lshrrev_b32 v8, 3, v1
    v_and_b32 v9, 7, v1
    s_lshl_b32 s30, s27, 16
    s_lshl_b32 s31, s26, 14
    s_add_u32 s30, s30, s31
    v_lshrrev_b32 v5, 1, v8
    v_xor_b32 v5, v5, v9
    v_lshlrev_b32 v5, 4, v5
    v_lshl_add_u32 v5, v8, 10, v5
    v_add_u32 v{VXD}, s30, v5
    v_xor_b32 v5, 64, v5
    v_add_u32 v5, 8192, v5
    v_add_u32 v{VXD+1}, s30, v5
    s_lshl_b32 s34, s26, 11
    s_mul_i32 s31, s26, {16*3072}
    s_lshl_b32 s32, s28, 7
    s_add_u32 s31, s31, s32
    v_bfe_u32 v4, v1, 4, 1
    v_lshlrev_b32 v4, 2, v4
    v_xor_b32 v4, v4, v9
    v_lshlrev_b32 v4, 4, v4
    v_mul_u32_u24 v5, 3072, v8
    v_add3_u32 v{VWD}, v4, v5, s31
    s_add_u32 s35, s34, {WOFF}
    s_waitcnt lgkmcnt(0)
    s_mov_b32 s8, s66
    s_mov_b32 s9, s67
    """)
    srd(k, 52, PX, PX + 1, 2 * MB)
    srd(k, 16, PQKV, PQKV + 1, 512 * 3072)

    def xops(c):
        st = (c % NST) * STAGE
        ops = []
        for i in range(2):
            pre = f"s_add_u32 s36, s41, {c}\ns_and_b32 s36, s36, 7\ns_mul_i32 s37, s36, {64*3072}\ns_lshl_b32 s36, s36, 7\n" if i == 0 else ""
            ops.append(pre + f"s_add_u32 m0, s34, {st + i*1024}\nbuffer_load_dwordx4 v{VXD+i}, s[52:55], s36 offen lds")
        return ops

    def wop(c, j):
        st = (c % NST) * STAGE
        t, i = j >> 1, j & 1
        return (f"s_add_u32 s38, s37, {t*1024 + i*8*3072}\ns_add_u32 m0, s35, {st + t*8192 + i*1024}\n"
                f"buffer_load_dwordx4 v{VWD}, s[16:19], s38 offen lds")

    def group_ops(c):
        return xops(c) + [wop(c, j) for j in range(6)]

    for o in group_ops(0):
        k(o)
    k("s_barrier")
    for o in group_ops(1):
        k(o)
    k(f"""
    s_load_dwordx2 s[10:11], s[0:1], 16
    s_load_dwordx4 s[12:15], s[0:1], 48
    v_and_b32 v2, 31, v1
    v_lshrrev_b32 v3, 5, v1
    v_lshrrev_b32 v4, 1, v2
    v_and_b32 v4, 7, v4
    v_lshlrev_b32 v5, 7, v2
    s_and_b32 s36, s26, 1
    s_lshl_b32 s36, s36, 12
    v_add_u32 v5, s36, v5
    s_lshr_b32 s39, s26, 1
    s_lshl_b32 s39, s39, 2
    v_add_u32 v6, s39, v3
    s_mov_b32 s43, 0xffff0000
    """)
    srd(k, 56, PDBG, PDBG + 1, 256)
    srd(k, 20, PWS, PWS + 1, WS_BYTES)
    for p in range(2):
        k(f"""
        v_add_u32 v7, {2*p}, v6
        v_xor_b32 v7, v7, v4
        v_lshl_add_u32 v{VXA+p}, v7, 4, v5
        v_add_u32 v{VXA+4+p}, {2*STAGE}, v{VXA+p}
        """)
    for i in range(4):
        k(f"v_mov_b32 v{SUM+i}, 0")

    def stats(c, pend):
        fb = FR + 8 * (c % 2)
        for j in range(8):
            if pend:
                k(pend.pop(0))
            lo, hi = T + 2 * (j % 4), T + 2 * (j % 4) + 1
            k(f"""
            v_lshlrev_b32 v{lo}, 16, v{fb+j}
            v_and_b32 v{hi}, s43, v{fb+j}
            v_add_f32 v{SUM}, v{SUM}, v{lo}
            v_add_f32 v{SUM+1}, v{SUM+1}, v{hi}
            v_fmac_f32 v{SUM+2}, v{lo}, v{lo}
            v_fmac_f32 v{SUM+3}, v{hi}, v{hi}
            """)

    for c in range(8):
        k(f"s_waitcnt vmcnt({(8 if c + 1 <= 7 else 0) + (1 if c == 6 else 0)}) lgkmcnt(0)")
        k("s_barrier")
        st = c % NST
        fb = FR + 8 * (c % 2)
        for p in range(2):
            k(f"ds_read_b128 {r4(fb+4*p)}, v{VXA + 4*(st//2) + p} offset:{(st%2)*STAGE}")
        pend = group_ops(c + 2) if c + 2 <= 7 else []
        if c:
            stats(c - 1, pend)
        for o in pend:
            k(o)
        if c == 5:
            k("""
            s_and_b32 s36, s2, 7
            s_lshl_b32 s36, s36, 5
            v_mov_b32 v170, s36
            v_cmp_eq_u32 vcc, 1, v1
            v_mov_b32 v171, 16
            v_cndmask_b32 v170, v170, v171, vcc
            buffer_load_dword v171, v170, s[56:59], 0 offen sc1
            """)
    k("s_waitcnt lgkmcnt(0)")
    stats(7, [])
    k("s_mov_b32 s47, 0")
    k.label("L_t_chk")
    k(f"""
    v_readlane_b32 s36, v171, 0
    v_readlane_b32 s37, v171, 1
    s_and_b32 s38, s36, 255
    s_cmp_gt_u32 s47, {SPIN}
    s_cbranch_scc1 L_t_ok
    s_cmp_lt_u32 s38, {0 if MAP2D else 32}
    s_cbranch_scc1 L_t_again
    s_cmp_ge_u32 s37, 1
    s_cbranch_scc1 L_t_ok
    """)
    k.label("L_t_again")
    k("""
    buffer_load_dword v171, v170, s[56:59], 0 offen sc1
    s_add_u32 s47, s47, 1
    s_waitcnt vmcnt(0)
    s_branch L_t_chk
    """)
    k.label("L_t_ok")
    k(f"""
    {'s_mov_b32 s51, 0' if MAP2D else ''}
    s_lshl_b32 s38, s51, 5
    s_cmp_eq_u32 s36, s38
    s_cselect_b32 s{SMODE}, {E("FORCEMODE", "1")}, 0
    v_mov_b32 v170, {SCR + 1536}
    v_mov_b32 v171, s{SMODE}
    ds_write_b32 v170, v171
    v_add_f32 v164, v164, v165
    v_add_f32 v166, v166, v167
    v_mov_b32 v165, v164
    v_mov_b32 v167, v166
    v_permlane32_swap_b32 v164, v165
    v_permlane32_swap_b32 v166, v167
    v_add_f32 v164, v164, v165
    v_add_f32 v166, v166, v167
    s_lshl_b32 s37, s26, 8
    v_lshlrev_b32 v4, 2, v2
    v_add_u32 v6, s37, v4
    v_add_u32 v6, {SCR+2048}, v6
    ds_write_b32 v6, v164
    ds_write_b32 v6, v166 offset:128
    v_xor_b32 v7, 512, v6
    s_waitcnt lgkmcnt(0)
    s_barrier
    ds_read_b32 v165, v7
    ds_read_b32 v167, v7 offset:128
    v_and_b32 v6, 0xfffffdff, v6
    s_waitcnt lgkmcnt(0)
    v_add_f32 v164, v164, v165
    v_add_f32 v166, v166, v167
    v_mul_f32 v164, {f32(-1/512)}, v164
    v_mul_f32 v166, {f32(1/512)}, v166
    v_fma_f32 v166, -v164, v164, v166
    v_max_f32 v166, 0, v166
    v_add_f32 v166, {f32(1e-5)}, v166
    v_rsq_f32 v165, v166
    ds_write_b32 v6, v164 offset:1024
    ds_write_b32 v6, v165 offset:1152
    s_waitcnt lgkmcnt(0)
    s_barrier
    s_barrier
    """)
    k("s_branch L_p2")
    k.label("L_p1_M")
    k("s_setprio 1")
    k("s_mov_b64 s[48:49], s[46:47]")
    k(f"""
    s_and_b32 s30, s26, 1
    s_lshr_b32 s31, s26, 1
    s_lshl_b32 s29, s27, 1
    s_add_u32 s29, s29, s30
    v_and_b32 v2, 31, v1
    v_lshrrev_b32 v3, 5, v1
    v_lshrrev_b32 v4, 1, v2
    v_and_b32 v4, 7, v4
    v_lshlrev_b32 v5, 7, v2
    s_lshl_b32 s34, s30, 12
    v_add_u32 v5, s34, v5
    v_bfe_u32 v6, v1, 2, 2
    v_lshrrev_b32 v7, 1, v6
    v_xor_b32 v7, s31, v7
    v_lshl_add_u32 v6, v3, 3, v6
    v_lshlrev_b32 v6, 7, v6
    v_lshl_add_u32 v6, v7, 6, v6
    v_bfe_u32 v7, v1, 4, 1
    v_lshl_add_u32 v6, v7, 5, v6
    v_and_b32 v7, 3, v1
    v_lshl_add_u32 v6, v7, 3, v6
    v_add_u32 v6, {WOFF}, v6
    s_waitcnt lgkmcnt(0)
    s_mov_b32 s8, s66
    s_mov_b32 s9, s67
    s_load_dwordx2 s[10:11], s[0:1], 16
    s_load_dwordx4 s[12:15], s[0:1], 48
    s_load_dwordx4 s[60:63], s[0:1], 32
    """)
    stamp(k, 0, True); stamp(k, 1)
    srd(k, 56, PDBG, PDBG + 1, 256)
    srd(k, 20, PWS, PWS + 1, WS_BYTES)
    if not MAP2D:
      k(f"""
    s_cmp_lg_u32 s25, 1
    s_cbranch_scc1 L_t_notk
    s_and_b32 s36, s2, 7
    s_lshl_b32 s36, s36, 5
    v_mov_b32 v7, 0
    v_mov_b32 v8, s51
    s_mov_b64 exec, 1
    buffer_atomic_add v8, v7, s[56:59], s36 offen sc1
    s_mov_b64 exec, -1
    """)
    k.label("L_t_notk")
    k("s_barrier")
    if E("TOUCH1", "0") == "1":
        srd(k, 52, PX, PX + 1, 2 * MB)
        srd(k, 16, PQKV, PQKV + 1, 512 * 3072)
        k(f"""
        s_lshr_b32 s36, s2, 3
        s_lshl_b32 s36, s36, 2
        s_add_u32 s36, s36, s26
        v_min_u32 v7, 31, v1
        v_and_b32 v8, 7, v7
        v_max_u32 v8, 2, v8
        v_lshrrev_b32 v7, 3, v7
        v_lshlrev_b32 v7, 10, v7
        v_lshl_add_u32 v7, v8, 7, v7
        s_and_b32 s37, s2, 6
        s_lshl_b32 s37, s37, 18
        s_lshl_b32 s38, s36, 12
        s_add_u32 s37, s37, s38
        v_min_u32 v8, 35, v1
        v_lshrrev_b32 v9, 2, v8
        v_and_b32 v8, 3, v8
        v_lshlrev_b32 v9, 10, v9
        v_lshl_add_u32 v8, v8, 7, v9
        s_mul_i32 s38, s36, {3*3072}
        s_and_b32 s39, s2, 1
        s_lshl_b32 s39, s39, 9
        s_add_u32 s38, s38, s39
        s_add_u32 s38, s38, {128*3072}
        buffer_load_dword v{PF}, v8, s[16:19], s38 offen
        buffer_load_dword v{PF}, v7, s[52:55], s37 offen
        """)
    k(f"""
    s_add_u32 s36, s2, s25
    s_cmp_lg_u32 s36, 0
    s_cbranch_scc1 L_t_nz
    v_lshrrev_b32 v7, 3, v1
    v_and_b32 v9, 7, v1
    v_lshlrev_b32 v7, 8, v7
    v_lshl_add_u32 v7, v9, 4, v7
    v_mov_b32 v8, 0
    v_mov_b32 v9, 0
    v_mov_b32 v10, 0
    v_mov_b32 v11, 0
    """)
    for i in range(8):
        k(f"s_mov_b32 s36, {CNT + i*2048}")
        k("buffer_store_dwordx4 v[8:11], v7, s[20:23], s36 offen sc1")
    if WIDE0:
        k("v_lshlrev_b32 v7, 7, v1")
        for i in range(4):
            k(f"s_mov_b32 s36, {CNT + 16384 + i*8192}")
            k("buffer_store_dword v8, v7, s[20:23], s36 offen sc1")
    k("""
    v_mov_b32 v12, 1
    s_waitcnt vmcnt(0)
    s_mov_b64 exec, 1
    buffer_store_dword v12, v8, s[56:59], 0 offen offset:16 sc1
    s_mov_b64 exec, -1
    """)
    k.label("L_t_nz")
    for p in range(4):
        k(f"""
        s_add_u32 s36, s30, {p}
        s_and_b32 s36, s36, 3
        s_lshl_b32 s37, s36, 1
        s_lshl_b32 s38, s36, 11
        v_add_u32 v7, s37, v3
        v_xor_b32 v7, v7, v4
        v_lshl_add_u32 v{VXA+p}, v7, 4, v5
        v_add_u32 v{VWA+p}, s38, v6
        v_add_u32 v{VXA+4+p}, {2*STAGE}, v{VXA+p}
        v_add_u32 v{VWA+4+p}, {2*STAGE}, v{VWA+p}
        """)
    k("""
    v_and_b32 v7, 15, v1
    v_bfe_u32 v8, v1, 4, 1
    v_sub_u32 v7, v7, v8
    v_mov_b32 v8, 0x3f803f80
    """)
    for t in range(3):
        k(f"v_cmp_eq_u32 vcc, {2*t}, v7")
        for i in range(4):
            k(f"v_cndmask_b32 v{SEL+4*t+i}, 0, v8, vcc")
    k(f"""
    v_lshlrev_b32 v4, 2, v2
    v_add_u32 v4, {SCR+5120}, v4
    v_and_b32 v5, 15, v1
    v_lshlrev_b32 v5, 2, v5
    v_lshrrev_b32 v7, 4, v1
    v_lshl_add_u32 v5, v7, 8, v5
    v_add_u32 v5, {SCR+5120}, v5
    s_lshl_b32 s36, s26, 10
    v_add_u32 v5, s36, v5
    s_lshl_b32 s36, s31, 11
    v_add_u32 v4, s36, v4
    v_lshlrev_b32 v7, 2, v1
    v_add_u32 v7, {SCR+5120}, v7
    v_add_u32 v7, s36, v7
    s_lshl_b32 s37, s30, 8
    s_add_u32 s37, s37, {SCR+3072}
    v_lshlrev_b32 v8, 4, v3
    v_add_u32 v10, s37, v8
    v_lshlrev_b32 v9, 2, v2
    v_add_u32 v9, s37, v9
    s_lshl_b32 s37, s26, 8
    s_add_u32 s37, s37, {SCR+4096}
    v_add_u32 v8, s37, v8
    v_lshlrev_b32 v11, 2, v1
    v_add_u32 v11, s37, v11
    v_mov_b32 v12, {SCR + 1536}
    v_bfe_u32 v13, v1, 4, 1
    v_and_b32 v14, 15, v1
    v_lshlrev_b32 v14, 4, v14
    v_lshl_add_u32 v14, v3, 8, v14
    v_lshl_add_u32 v14, v13, 16, v14
    v_lshlrev_b32 v6, 4, v1
    s_lshl_b32 s38, s28, 18
    s_lshl_b32 s39, s31, 17
    s_add_u32 s38, s38, s39
    s_lshl_b32 s39, s29, 10
    s_add_u32 s38, s38, s39
    s_lshl_b32 s45, s28, {12 if WIDE0 else 8}
    s_lshl_b32 s46, s27, {7 if WIDE0 else 2}
    s_add_u32 s45, s45, s46
    s_add_u32 s45, s45, {CNT + (16384 if WIDE0 else 48*256)}
    s_waitcnt lgkmcnt(0)
    """)
    XB, WB = FR, FR + 12

    def addr(n):
        c, p = n // 4, n % 4
        st = c % NST
        return 4 * (st // 2) + p, (st % 2) * STAGE

    def rdx(n):
        ai, off = addr(n)
        k(f"ds_read_b128 {r4(XB + (n % 3) * 4)}, v{VXA+ai} offset:{off}")

    def rdw(n, t):
        ai, off = addr(n)
        for ab in range(2):
            r = WB + 12 * (n % 2) + 4 * t + 2 * ab
            k(f"ds_read_b64_tr_b16 {pr(r)}, v{VWA+ai} offset:{off + ab*512 + t*8192}")

    k("s_barrier")
    for n in range(2):
        rdx(n)
        for t in range(3):
            rdw(n, t)
    for n in range(32):
        pf = n + 2 < 32
        if (n + 2) % 4 == 0 and pf:
            k("s_barrier")
        if n == 30:
            k("s_barrier")
        if n == 12 and PFM != "0":
            k(f"""
            v_lshlrev_b32 v15, 7, v0
            v_add_u32 v15, L_p2-L_pc, v15
            v_min_u32 v15, L_codeend-L_pc, v15
            global_load_dword v{PF}, v15, s[48:49]
            """)
        X = r4(XB + (n % 3) * 4)
        W = [r4(WB + 12 * (n % 2) + 4 * t) for t in range(3)]
        A = [r16(ACC + 16 * t) for t in range(3)]
        Cc = [a if n else "0" for a in A]
        mf = [f"{MF32} {A[0]}, {W[0]}, {X}, {Cc[0]}", f"{MF32} {A[1]}, {W[1]}, {X}, {Cc[1]}", f"{MF32} {A[2]}, {X}, {W[2]}, {Cc[2]}"]
        if pf:
            rdx(n + 2)
        for t in range(3):
            cnt = 12 if pf else (2 * (2 - t) + 7 if n == 30 else 2 * (2 - t))
            k(f"s_waitcnt lgkmcnt({cnt})")
            k(mf[t])
            if n % 2 == 0:
                cc = "0" if (n == 0 and t == 0) else r4(CSA)
                k(f"{MF16} {r4(CSA)}, {r4(SEL+4*t)}, {W[t]}, {cc}")
            if pf:
                rdw(n + 2, t)
    for r in range(4):
        k(f"ds_write_b32 v5, v{CSA+r} offset:{r*64}")
    k("""
    s_waitcnt lgkmcnt(0)
    s_barrier
    ds_read_b32 v12, v12
    """)
    for w in range(2):
        k(f"ds_read_b32 v{T+w}, v7 offset:{w*1024}")
        k(f"ds_read_b32 v{T+2+w}, v4 offset:{w*1024+256}")
    MR = FR
    for g in range(4):
        k(f"ds_read_b128 {r4(MR+4*g)}, v10 offset:{g*32}")
        k(f"ds_read_b128 {r4(MR+16+4*g)}, v10 offset:{128+g*32}")
    NM, RS, RQ, CV = 164, 166, 170, 172
    k(f"ds_read_b32 v{NM}, v9")
    k(f"ds_read_b32 v{RS}, v9 offset:128")
    k("s_waitcnt lgkmcnt(10)")
    k(f"""
    v_readfirstlane_b32 s{SMODE}, v12
    v_add_f32 v{T}, v{T}, v{T+1}
    v_add_f32 v{CV}, v{T+2}, v{T+3}
    v_add_f32 v{CV+1}, v{T+2}, v{T+3}
    ds_write_b32 v11, v{T}
    s_waitcnt lgkmcnt(0)
    """)
    CQ = CSA
    for t in range(2):
        for g in range(4):
            k(f"ds_read_b128 {r4(CQ+16*t+4*g)}, v8 offset:{t*128 + g*32}")
    AV = ACC + 32
    for r in range(0, 16, 2):
        k(f"v_pk_fma_f32 {pr(AV+r)}, {pr(MR+r)}, {pr(CV)}, {pr(AV+r)}")
    for r in range(0, 16, 2):
        k(f"v_pk_mul_f32 {pr(AV+r)}, {pr(AV+r)}, {pr(MR+16+r)}")
    for i in range(8):
        k(f"v_cvt_pk_bf16_f32 v{AV+i}, v{AV+2*i}, v{AV+2*i+1}")
    k(f"""
    s_add_u32 s39, s38, {VF}
    buffer_store_dwordx4 {r4(AV)}, v14, s[20:23], s39 offen sc1
    buffer_store_dwordx4 {r4(AV+4)}, v14, s[20:23], s39 offen offset:512 sc1
    v_mov_b32 v{NM+1}, v{NM}
    v_mov_b32 v{RS+1}, v{RS}
    v_mul_f32 v{RQ}, {f32(0.25*LOG2E)}, v{RS}
    v_mul_f32 v{RQ+1}, {f32(0.25*LOG2E)}, v{RS}
    s_waitcnt lgkmcnt(0)
    """)
    for t in (1, 0):
        A = ACC + 16 * t
        sc = RQ if t == 0 else RS
        for r in range(0, 16, 2):
            k(f"v_pk_fma_f32 {pr(A+r)}, {pr(NM)}, {pr(CQ+16*t+r)}, {pr(A+r)}")
        for r in range(0, 16, 2):
            k(f"v_pk_mul_f32 {pr(A+r)}, {pr(A+r)}, {pr(sc)}")
        for i in range(8):
            k(f"v_cvt_pk_bf16_f32 v{A+i}, v{A+2*i}, v{A+2*i+1}")
        base = QF if t == 0 else KF
        k(f"s_add_u32 s39, s38, {base}")
        k(f"s_add_u32 s40, s38, {base+65536}")
        k(f"buffer_store_dwordx4 {r4(A)}, v6, s[20:23], s39 offen sc1")
        k(f"buffer_store_dwordx4 {r4(A+4)}, v6, s[20:23], s40 offen sc1")
    stamp(k, 13)
    k("s_setprio 0")
    k("s_waitcnt vmcnt(0)")
    signal(k, 45, "flag")


def side_dma(k, T):
    k(f"""
    s_lshr_b32 s44, s2, 2
    s_cmp_lt_u32 s44, 28
    s_cselect_b32 s16, s{PG}, s{PU}
    s_cselect_b32 s17, s{PG+1}, s{PU+1}
    s_cselect_b32 s36, 0, 28
    s_mov_b32 s18, {512*3584}
    s_mov_b32 s19, 0x20000
    s_sub_u32 s36, s44, s36
    s_lshl_b32 s36, s36, 7
    s_and_b32 s43, s2, 3
    s_lshl_b32 s43, s43, 2
    s_add_u32 s43, s43, s26
    s_mul_i32 s37, s43, {32*3584}
    s_add_u32 s36, s36, s37
    s_cmp_lt_u32 s2, 224
    s_cselect_b32 s36, s36, 0x7ff00000
    v_bfe_u32 v{T}, v1, 2, 1
    v_bfe_u32 v{T+1}, v1, 4, 1
    v_xor_b32 v{T}, v{T}, v{T+1}
    v_and_b32 v{T+1}, 3, v1
    v_lshlrev_b32 v{T+1}, 4, v{T+1}
    v_lshl_add_u32 v{T+1}, v{T}, 6, v{T+1}
    v_lshrrev_b32 v{T}, 3, v1
    v_mul_u32_u24 v{T}, 3584, v{T}
    v_add_u32 v{T}, v{T}, v{T+1}
    s_lshl_b32 s48, s26, 12
    s_add_u32 s48, s48, {SIDE}
    """)
    for i in range(4):
        k(f"s_add_u32 m0, s48, {i*1024}")
        k(f"buffer_load_dwordx4 v{T}, s[16:19], s36 offen lds")
        k(f"s_add_u32 s36, s36, {8*3584}")


def side_job(k):
    TMP, WF, SL, CA = 108, 120, 136, 144
    k(f"""
    s_cmp_lt_u32 s2, 224
    s_cbranch_scc0 L_side_end
    s_lshr_b32 s44, s2, 2
    s_and_b32 s43, s2, 3
    s_lshl_b32 s43, s43, 2
    s_add_u32 s43, s43, s26
    s_lshl_b32 s48, s26, 12
    s_add_u32 s48, s48, {SIDE}
    v_bfe_u32 v{TMP}, v1, 2, 2
    v_lshrrev_b32 v{TMP+1}, 5, v1
    v_lshl_add_u32 v{TMP+1}, v{TMP+1}, 2, v{TMP}
    v_lshlrev_b32 v{TMP+1}, 7, v{TMP+1}
    v_lshrrev_b32 v{TMP}, 1, v{TMP}
    v_lshl_add_u32 v{TMP+1}, v{TMP}, 6, v{TMP+1}
    v_bfe_u32 v{TMP}, v1, 4, 1
    v_lshl_add_u32 v{TMP+1}, v{TMP}, 5, v{TMP+1}
    v_and_b32 v{TMP}, 3, v1
    v_lshl_add_u32 v{TMP+1}, v{TMP}, 3, v{TMP+1}
    v_add_u32 v{TMP+1}, s48, v{TMP+1}
    v_xor_b32 v{TMP+2}, 64, v{TMP+1}
    v_bfe_u32 v{TMP}, v1, 3, 2
    v_mov_b32 v{TMP+3}, 0x3f803f80
    v_cmp_eq_u32 vcc, 0, v{TMP}
    v_cmp_eq_u32 s[38:39], 1, v{TMP}
    """)
    for i in range(4):
        k(f"v_cndmask_b32 v{SL+i}, 0, v{TMP+3}, vcc")
        k(f"v_cndmask_b32 v{SL+4+i}, 0, v{TMP+3}, s[38:39]")
    k(f"""
    v_and_b32 v{TMP}, 47, v1
    v_lshlrev_b32 v{TMP}, 4, v{TMP}
    v_bfe_u32 v{TMP+3}, v1, 4, 1
    v_lshl_add_u32 v{TMP}, v{TMP+3}, 15, v{TMP}
    s_cmp_lt_u32 s44, 28
    s_cselect_b32 s36, 0, {256 - 28*4*32768 + (1<<32)}
    s_lshl_b32 s37, s44, 17
    s_add_u32 s36, s36, s37
    s_lshl_b32 s37, s43, 11
    s_add_u32 s36, s36, s37
    s_add_u32 s36, s36, {WGF}
    s_add_u32 s37, s36, 65536
    s_waitcnt vmcnt(0) lgkmcnt(0)
    """)
    for s_ in range(2):
        for nt in range(2):
            for ab in range(2):
                r = WF + 8 * s_ + 4 * nt + 2 * ab
                k(f"ds_read_b64_tr_b16 {pr(r)}, v{TMP+1+nt} offset:{s_*2048 + ab*1024}")
    k("s_waitcnt lgkmcnt(0)")
    first = True
    for s_ in range(2):
        for nt in range(2):
            r = WF + 8 * s_ + 4 * nt
            k(f"{MF32} {r16(CA)}, {r4(SL+4*nt)}, {r4(r)}, {'0' if first else r16(CA)}")
            first = False
            k(f"buffer_store_dwordx4 {r4(r)}, v{TMP}, s[20:23], s{36+nt} offen offset:{s_*1024} sc1")
    k(f"""
    v_cmp_gt_u32 vcc, 32, v1
    v_lshlrev_b32 v{TMP+1}, 4, v1
    s_lshl_b32 s36, s44, 10
    s_lshl_b32 s37, s26, 2
    s_add_u32 s36, s36, s37
    s_and_b32 s37, s2, 3
    s_mul_i32 s37, s37, {3584*16}
    s_add_u32 s36, s36, s37
    s_add_u32 s36, s36, {CS}
    v_cndmask_b32 v{TMP+2}, v{CA+4}, v{CA}, vcc
    buffer_store_dword v{TMP+2}, v{TMP+1}, s[20:23], s36 offen sc1
    """)
    k.label("L_side_end")


VBASE, VSTR = 65536, 1056
SX, SY = 160, 128


def p2(k):
    Q, KFR, VFR, S, C, O, P0, P1 = 4, 8, 16, 32, 64, 80, 96, 100
    AK, AV0, AV1, TMP, PF, XV = 104, 105, 106, 108, 116, 117
    PDROP, TITER = int(E("PDROP", "5")), int(E("TITER", "2"))
    k.label("L_p2")
    k(f"""
    s_and_b32 s27, s2, 31
    s_lshr_b32 s28, s2, 5
    s_lshl_b32 s28, s28, 3
    s_add_u32 s28, s28, s25
    v_lshlrev_b32 v2, 4, v1
    s_lshl_b32 s29, s27, 16
    s_lshl_b32 s30, s25, 10
    s_add_u32 s31, s29, s30
    s_mul_i32 s32, s25, {VSTR}
    s_add_u32 s32, s32, {VBASE}
    s_lshl_b32 s33, s28, 10
    s_add_u32 s33, s33, s29
    v_mov_b32 v{TMP}, 0x3f803f80
    v_mov_b32 v{TMP+1}, 0x3f803f80
    v_mov_b32 v{TMP+2}, 0x3f803f80
    v_mov_b32 v{TMP+3}, 0x3f803f80
    v_mul_u32_u24 v3, {VSTR}, v1
    v_add_u32 v3, {VBASE+1024}, v3
    """)
    for i in range(16):
        k(f"v_mov_b32 v{O+i}, 0")
    k(f"""
    s_cmp_lg_u32 s25, 3
    s_cbranch_scc1 L_p2_noones
    ds_write_b128 v3, {r4(TMP)}
    ds_write_b128 v3, {r4(O)} offset:16
    """)
    k.label("L_p2_noones")
    k(f"""
    v_mov_b32 v{AK}, v2
    v_and_b32 v3, 15, v1
    v_lshlrev_b32 v3, 4, v3
    v_lshrrev_b32 v{TMP+4}, 5, v1
    v_lshl_add_u32 v3, v{TMP+4}, 8, v3
    v_mov_b32 v{TMP+6}, 1024
    v_and_b32 v{TMP+5}, 11, v1
    v_cmp_eq_u32 vcc, 0, v{TMP+5}
    v_mov_b32 v{TMP+7}, 1040
    v_cndmask_b32 v{TMP+6}, v{TMP+7}, v{TMP+6}, vcc
    v_and_b32 v{TMP+5}, 16, v1
    v_cmp_eq_u32 vcc, 0, v{TMP+5}
    v_subrev_u32 v{TMP+7}, 512, v{TMP+6}
    v_cndmask_b32 v{AV0}, v{TMP+6}, v3, vcc
    v_cndmask_b32 v{AV1}, v{TMP+7}, v3, vcc
    v_add_u32 v{AV0}, {VBASE}, v{AV0}
    v_add_u32 v{AV1}, {VBASE}, v{AV1}
    """)
    for i in range(4):
        k(f"v_mov_b32 v{P1+i}, 0")
        k(f"v_mov_b32 v{VFR+12+i}, 0")
    k("""
    s_cmp_lt_u32 s25, 4
    s_cselect_b32 s42, 99, 1
    s_cselect_b32 s41, 99, 0
    s_mov_b32 s35, 0
    """)
    if WREG:
        k(f"""
        s_cselect_b32 s50, 4, 3
        s_cselect_b32 s36, {SIDE - 135168}, 0
        s_mul_i32 s50, s50, s26
        s_lshl_b32 s50, s50, 10
        s_add_u32 s50, s50, s36
        s_add_u32 s50, s50, 135168
        v_lshrrev_b32 v117, 2, v1
        v_lshlrev_b32 v117, 10, v117
        v_and_b32 v3, 3, v1
        v_lshl_add_u32 v117, v3, 4, v117
        s_lshr_b32 s36, s25, 1
        s_lshl_b32 s36, s36, 14
        s_lshr_b32 s37, s2, 5
        s_lshl_b32 s37, s37, 7
        s_add_u32 s36, s36, s37
        s_and_b32 s37, s25, 1
        s_lshl_b32 s37, s37, 6
        s_add_u32 s36, s36, s37
        v_add_u32 v117, s36, v117
        v_bfe_u32 v118, v1, 2, 2
        v_lshrrev_b32 v119, 5, v1
        v_lshl_add_u32 v118, v119, 2, v118
        v_lshlrev_b32 v118, 6, v118
        v_bfe_u32 v119, v1, 4, 1
        v_lshl_add_u32 v118, v119, 5, v118
        v_lshl_add_u32 v118, v3, 3, v118
        v_add_u32 v118, s50, v118
        """)
    k(f"""
    s_lshr_b32 s36, s27, 2
    s_lshl_b32 s36, s36, {12 if WIDE0 else 8}
    s_add_u32 s36, s36, {16384 if WIDE0 else 48*256}
    s_waitcnt lgkmcnt(0)
    """)
    wave_poll_flags(k, 1, 36, 32, int(E('PS0', '24')), int(E('PP0', '0')), 7 if WIDE0 else 2)
    stamp(k, 14)

    def dma_tile(t):
        k(f"""
        s_add_u32 s34, s31, {KF + t*1024}
        s_add_u32 m0, s30, {t*1024}
        buffer_load_dwordx4 v2, s[20:23], s34 offen sc1 lds
        s_add_u32 s34, s31, {VF + t*1024}
        s_add_u32 m0, s32, {t*VSTR}
        buffer_load_dwordx4 v2, s[20:23], s34 offen sc1 lds
        """)

    k("s_cmp_lt_u32 s25, 4")
    k("s_cbranch_scc0 L_p2_B")
    for t in range(0, 16, 4):
        dma_tile(t)
    k(f"buffer_load_dwordx4 {r4(Q)}, v2, s[20:23], s33 offen sc1")
    k("s_waitcnt vmcnt(7)")
    k("s_barrier")
    k("s_setprio 1")
    for t in range(16, 32, 4):
        dma_tile(t)
    k("s_waitcnt vmcnt(8)")
    k("s_barrier")
    for t in range(32, 64, 4):
        dma_tile(t)
    side_dma(k, TMP)
    k("s_waitcnt vmcnt(4)")
    k("s_barrier")
    k(f"""
    v_min_u32 v{TMP}, 13, v1
    v_lshlrev_b32 v{TMP}, 7, v{TMP}
    s_lshl_b32 s36, s2, 2
    s_add_u32 s36, s36, s26
    s_mul_i32 s37, s36, {14*128}
    """)
    srd(k, 16, PWD, PWD + 1, 1792 * 1024)
    k(f"""
    buffer_load_dword v{PF}, v{TMP}, s[16:19], s37 offen
    v_min_u32 v{TMP}, 3, v1
    v_lshlrev_b32 v{TMP}, 7, v{TMP}
    s_lshl_b32 s37, s36, 9
    """)
    srd(k, 16, PWO, PWO + 1, 512 * 1024)
    k(f"buffer_load_dword v{PF}, v{TMP}, s[16:19], s37 offen")
    k("s_branch L_p2_go")
    k.label("L_p2_B")
    k(f"""
    buffer_load_dwordx4 {r4(Q)}, v2, s[20:23], s33 offen sc1
    s_waitcnt vmcnt(0)
    s_barrier
    s_setprio 2
    """)
    k.label("L_p2_go")

    def Kr(b): return r4(KFR + 4 * b)
    def Vr(b, j): return r4(VFR + 8 * b + 4 * j)
    def Sr(b): return r16(S + 16 * b)
    Qr, Cr, Or = r4(Q), r16(C), r16(O)
    def rdK(t, b): k(f"ds_read_b128 {Kr(b)}, v{AK} offset:{t*1024}")

    def rdV(t, b):
        k(f"ds_read_b128 {Vr(b,0)}, v{AV0} offset:{t*VSTR}")
        k(f"ds_read_b128 {Vr(b,1)}, v{AV1} offset:{t*VSTR+512}")

    def tilemax(s1):
        k(f"""
        v_max3_f32 v{TMP}, v{s1}, v{s1+1}, v{s1+2}
        v_max3_f32 v{TMP+1}, v{s1+3}, v{s1+4}, v{s1+5}
        v_max3_f32 v{TMP+2}, v{s1+6}, v{s1+7}, v{s1+8}
        v_max3_f32 v{TMP+3}, v{s1+9}, v{s1+10}, v{s1+11}
        v_max3_f32 v{TMP}, v{TMP}, v{s1+12}, v{s1+13}
        v_max3_f32 v{TMP+1}, v{TMP+1}, v{s1+14}, v{s1+15}
        v_max3_f32 v{TMP}, v{TMP}, v{TMP+1}, v{TMP+2}
        v_max_f32 v{TMP}, v{TMP}, v{TMP+3}
        v_mov_b32 v{TMP+1}, v{TMP}
        v_permlane32_swap_b32 v{TMP}, v{TMP+1}
        """)
    k("s_waitcnt lgkmcnt(0)")
    rdK(0, 0)
    rdK(1, 1)
    rdV(0, 0)
    k("s_waitcnt lgkmcnt(3)")
    k(f"{MF32} {Sr(1)}, {Kr(0)}, {Qr}, 0")
    tilemax(S + 16)
    k(f"v_max_f32 v{TMP}, v{TMP}, v{TMP+1}")
    for i in range(16):
        k(f"v_sub_f32 v{C+i}, 0, v{TMP}")
    k(f"{MF32} {Sr(0)}, {Kr(0)}, {Qr}, {Cr}")
    k("s_nop 9")

    def Ex(b, a, n):
        for i in range(a, a + n):
            k(f"v_exp_f32 v{S+16*b+i}, v{S+16*b+i}")

    def CV(dst, b, i):
        k(f"v_cvt_pk_bf16_f32 v{dst}, v{S+16*b+2*i}, v{S+16*b+2*i+1}")

    def tile(t):
        b = t % 2
        nb = 1 - b
        k("s_waitcnt lgkmcnt(0)")
        k(f"{MF32} {Sr(nb)}, {Kr(nb)}, {Qr}, {Cr}")
        rdK(t + 2, b)
        Ex(b, 0, 4)
        k(f"{MF32} {Or}, {Vr(nb,1)}, {r4(P1)}, {Or}")
        rdV(t + 1, nb)
        Ex(b, 4, 2); CV(P0, b, 0)
        Ex(b, 6, 2); CV(P0 + 1, b, 1)
        Ex(b, 8, 2); CV(P0 + 2, b, 2)
        Ex(b, 10, 2); CV(P0 + 3, b, 3)
        Ex(b, 12, 2)
        k(f"{MF32} {Or}, {Vr(b,0)}, {r4(P0)}, {Or}")
        Ex(b, 14, 2)
        for i in range(4):
            CV(P1 + i, b, 4 + i)

    work = {}

    def add(code, fn):
        work.setdefault(code, []).append(fn)

    def wd_round(r, batches, wait):
        def fn():
            k(f"s_waitcnt vmcnt({wait})")
            if r > 0:
                for j, f in enumerate(batches[r - 1]):
                    for ab in range(2):
                        k(f"ds_read_b64_tr_b16 {pr(192 + 4*f + 2*ab)}, v118 offset:{j*1024 + ab*512}")
            if r < len(batches):
                if r > 0:
                    k("s_waitcnt lgkmcnt(0)")
                for j, f in enumerate(batches[r]):
                    k(f"s_mov_b32 s36, {(NL + f)*65536}")
                    k(f"s_add_u32 m0, s50, {j*1024}")
                    k("buffer_load_dwordx4 v117, s[56:59], s36 offen lds")
        return fn

    WT = int(E("WT", "2"))
    WA0, WB0 = int(E("WA0", "2")), int(E("WB0", "2"))
    if WREG:
        srd(k, 56, PWD, PWD + 1, 1792 * 1024)
        frs = list(range(28 - NL))
        younger = {TITER: 3, TITER + 1: WT, 5: 1}
        for base, first, batch, yg in ((0, WA0, 4, younger), (8, WB0, 3, {})):
            batches = [frs[i:i + batch] for i in range(0, 28 - NL, batch)]
            for r in range(len(batches) + 1):
                assert first + r <= 7
                add(base + first + r, wd_round(r, batches, yg.get(first + r - 1, 0) if r else 0))
    add(1, lambda: side_job(k))

    def ev_t1():
        assert DATAWT == "ah"
        k(f"""
        s_lshr_b32 s36, s2, 5
        s_lshl_b32 s36, s36, 8
        s_add_u32 s36, s36, {CNT + 40*256}
        v_mov_b32 v{TMP}, 0
        v_mov_b32 v{TMP+1}, 1
        s_waitcnt vmcnt({4 if WREG and WA0 <= TITER else 0})
        s_mov_b64 exec, 1
        buffer_atomic_add v{TMP+1}, v{TMP}, s[20:23], s36 offen sc1
        s_mov_b64 exec, -1
        s_lshr_b32 s36, s2, 3
        s_lshl_b32 s36, s36, 2
        s_add_u32 s36, s36, s26
        v_min_u32 v{TMP}, 31, v1
        v_lshlrev_b32 v{TMP}, 7, v{TMP}
        s_lshl_b32 s37, s36, 12
        """)
        srd(k, 16, PWO, PWO + 1, 512 * 1024)
        k(f"""
        buffer_load_dword v{PF}, v{TMP}, s[16:19], s37 offen
        v_min_u32 v{TMP}, 15, v1
        v_lshlrev_b32 v{TMP}, 7, v{TMP}
        s_and_b32 s38, s2, 7
        s_lshl_b32 s38, s38, 18
        s_lshl_b32 s37, s36, 11
        s_add_u32 s37, s37, s38
        """)
        srd(k, 16, PX, PX + 1, 2 * MB)
        k(f"buffer_load_dword v{PF}, v{TMP}, s[16:19], s37 offen")

    def ev_t2():
        k(f"""
        s_lshr_b32 s36, s2, 3
        s_lshl_b32 s36, s36, 2
        s_add_u32 s36, s36, s26
        s_min_u32 s36, s36, 111
        """)
        if MAP2D:
            k(f"""
            s_lshl_b32 s36, s36, 14
            s_and_b32 s37, s2, 1
            s_mul_i32 s37, s37, {56*32768}
            s_add_u32 s36, s36, s37
            """)
        else:
            k("s_lshl_b32 s36, s36, 15")
        k(f"""
        s_add_u32 s36, s36, {WGF}
        v_lshlrev_b32 v{TMP}, 7, v1
        """)
        for i in range(WT):
            k(f"buffer_load_dword v{PF}, v{TMP}, s[20:23], s36 offen")
            k("s_add_u32 s36, s36, 8192")

    def ev_code():
        k("s_getpc_b64 s[36:37]")
        k.label("L_pc2")
        k(f"""
        v_lshlrev_b32 v{TMP}, 7, v0
        v_min_u32 v{TMP}, L_codeend-L_pc2, v{TMP}
        global_load_dword v{PF}, v{TMP}, s[36:37]
        """)

    add(TITER, ev_t1)
    add(TITER + 1, ev_t2)
    add(5, ev_code)
    add(8 + PDROP, lambda: k("s_setprio 0"))
    k("""
    s_lshr_b32 s40, s25, 2
    s_lshl_b32 s40, s40, 3
    """)
    k.raw(".p2align 6")
    k.label("L_p2_loop")
    for t in range(8):
        if t in (2, 6):
            l = uid("nb")
            k(f"s_cmp_lg_u32 s35, s{41 if t == 2 else 42}")
            k(f"s_cbranch_scc1 {l}")
            k("s_barrier")
            k.label(l)
        tile(t)
    k(f"""
    v_add_u32 v{AK}, 8192, v{AK}
    v_add_u32 v{AV0}, {8*VSTR}, v{AV0}
    v_add_u32 v{AV1}, {8*VSTR}, v{AV1}
    """)
    for code in sorted(work):
        k(f"s_cmp_eq_u32 s40, {code}")
        k(f"s_cbranch_scc1 L_p2_h{code}")
    k.label("L_p2_evret")
    k("""
    s_add_u32 s40, s40, 1
    s_add_u32 s35, s35, 1
    s_cmp_lg_u32 s35, 8
    s_cbranch_scc1 L_p2_loop
    """)
    k.check_backedge("L_p2_loop")
    k(f"{MF32} {Or}, {Vr(1,1)}, {r4(P1)}, {Or}")
    k("s_waitcnt lgkmcnt(0)")
    stamp(k, 3)
    k(f"""
    v_max3_f32 v{TMP}, abs(v{O}), abs(v{O+1}), abs(v{O+2})
    v_max3_f32 v{TMP+1}, abs(v{O+3}), abs(v{O+4}), abs(v{O+5})
    v_max3_f32 v{TMP}, v{TMP}, abs(v{O+6}), abs(v{O+7})
    v_add_f32 v{TMP+2}, v{O}, v{O+1}
    v_add_f32 v{TMP+3}, v{O+2}, v{O+3}
    v_add_f32 v{TMP+4}, v{O+4}, v{O+5}
    v_add_f32 v{TMP+5}, v{O+6}, v{O+7}
    v_add_f32 v{TMP+2}, v{TMP+2}, v{TMP+3}
    v_add_f32 v{TMP+4}, v{TMP+4}, v{TMP+5}
    v_add_f32 v{TMP+2}, v{TMP+2}, v{TMP+4}
    v_max_f32 v{TMP}, v{TMP}, v{TMP+1}
    s_mov_b32 s36, {f32(2.0**100)}
    s_mov_b32 s37, 0x7f000000
    v_cmp_gt_f32 vcc, s36, v{O+8}
    v_cmp_gt_f32 s[38:39], s37, v{TMP}
    v_cmp_o_f32 s[48:49], v{TMP+2}, v{TMP+2}
    s_and_b64 vcc, vcc, s[38:39]
    s_and_b64 vcc, vcc, s[48:49]
    s_cmp_eq_u64 vcc, exec
    s_cbranch_scc0 L_p2_slow
    """)
    k.label("L_p2_fin")
    k(f"v_rcp_f32 v{TMP}, v{O+8}")
    for i in range(8):
        k(f"v_mul_f32 v{O+i}, v{O+i}, v{TMP}")
    for i in range(4):
        k(f"v_cvt_pk_bf16_f32 v{O+i}, v{O+2*i}, v{O+2*i+1}")
    k(f"""
    s_lshl_b32 s36, s28, 15
    s_lshl_b32 s37, s27, 10
    s_add_u32 s36, s36, s37
    s_add_u32 s36, s36, {OF}
    buffer_store_dwordx4 {r4(O)}, v2, s[20:23], s36 offen sc1
    s_branch L_p3
    """)
    for code, fns in sorted(work.items()):
        k.label(f"L_p2_h{code}")
        for fn in fns:
            fn()
        k("s_branch L_p2_evret")
    k.label("L_p2_slow")
    M = TMP + 6
    k(f"v_subrev_u32 v{AK}, 65536, v{AK}")
    k(f"v_subrev_u32 v{AV0}, {64*VSTR}, v{AV0}")
    k(f"v_subrev_u32 v{AV1}, {64*VSTR}, v{AV1}")
    for i in range(16):
        k(f"v_mov_b32 v{O+i}, 0")
    k(f"v_mov_b32 v{M}, 0xff7fffff")
    k("s_mov_b32 s35, 64")
    k.label("L_p2_sloop")
    rdK(0, 0)
    rdV(0, 0)
    k("s_waitcnt lgkmcnt(0)")
    k(f"{MF32} {Sr(0)}, {Kr(0)}, {Qr}, 0")
    tilemax(S)
    k(f"""
    v_max3_f32 v{TMP}, v{TMP}, v{TMP+1}, v{M}
    v_sub_f32 v{TMP+1}, v{M}, v{TMP}
    v_exp_f32 v{TMP+1}, v{TMP+1}
    v_mov_b32 v{M}, v{TMP}
    """)
    for i in range(16):
        k(f"v_mul_f32 v{O+i}, v{O+i}, v{TMP+1}")
    for i in range(16):
        k(f"v_sub_f32 v{S+i}, v{S+i}, v{M}")
    Ex(0, 0, 16)
    for i in range(4):
        CV(P0 + i, 0, i)
        CV(P1 + i, 0, 4 + i)
    k(f"""
    {MF32} {Or}, {Vr(0,0)}, {r4(P0)}, {Or}
    {MF32} {Or}, {Vr(0,1)}, {r4(P1)}, {Or}
    v_add_u32 v{AK}, 1024, v{AK}
    v_add_u32 v{AV0}, {VSTR}, v{AV0}
    v_add_u32 v{AV1}, {VSTR}, v{AV1}
    s_nop 15
    s_sub_u32 s35, s35, 1
    s_cmp_lg_u32 s35, 0
    s_cbranch_scc1 L_p2_sloop
    """)
    k.check_backedge("L_p2_sloop")
    k("s_nop 15")
    k("s_branch L_p2_fin")


HKEEP, VL16, TRA, WD0 = 104, 112, 113, 113
HOFF4 = 3 * 28672
CSL4 = HOFF4 + 3 * 16384
NWS = NL if WREG else int(E("NWS", "12"))
NAS = 20 - NWS
AOFF = NWS * 8192
EARLYW = E("EARLYW", "0") == "1"
PD = int(E("PD", "4"))
NB = PD + 1
XL = 131072
STAG = E('STAG', '0') == '1'
EW = int(E('EW', '0'))
STAGED = False
YS = int(E('YS', '0'))
DS, DV = 192, 115


def ids64(k):
    k("""
    s_and_b32 s27, s2, 7
    s_lshl_b32 s27, s27, 2
    s_lshr_b32 s28, s2, 3
    s_and_b32 s28, s28, 3
    s_add_u32 s27, s27, s28
    s_lshr_b32 s28, s2, 5
    s_and_b32 s29, s26, 1
    s_lshr_b32 s30, s26, 1
    s_lshl_b32 s31, s27, 1
    s_add_u32 s31, s31, s30
    """)


def p4_ids(k):
    if MAP2D:
        k("""
        s_lshr_b32 s27, s2, 1
        s_and_b32 s27, s27, 3
        s_lshl_b32 s27, s27, 2
        s_lshr_b32 s28, s2, 3
        s_and_b32 s28, s28, 3
        s_add_u32 s27, s27, s28
        s_and_b32 s28, s2, 1
        s_lshl_b32 s28, s28, 3
        s_lshr_b32 s29, s2, 5
        s_add_u32 s28, s28, s29
        """)
    else:
        k("""
        s_and_b32 s27, s2, 7
        s_lshl_b32 s27, s27, 1
        s_lshr_b32 s28, s2, 3
        s_and_b32 s28, s28, 1
        s_add_u32 s27, s27, s28
        s_lshr_b32 s28, s2, 4
        """)
    k(f"""
    s_lshl_b32 s29, s27, 2
    s_add_u32 s29, s29, s26
    s_lshl_b32 s38, s29, 15
    s_add_u32 s38, s38, {HF}
    s_lshl_b32 s40, s26, 12
    s_add_u32 s40, s40, {HOFF4}
    s_cmp_lt_u32 s25, 4
    s_cselect_b32 s31, 2, 5
    s_cselect_b32 s35, 20, 0
    s_mul_i32 s31, s31, s26
    s_add_u32 s31, s31, s35
    s_lshl_b32 s34, s31, 10
    s_mul_i32 s32, s28, {7*32768}
    s_add_u32 s32, s32, {WGF}
    """)


def wstage(k, X, c):
    for o in wstage_ops(X, c):
        k(o)


def wstage_ops(X, c):
    n, base = (3, SX + 12 * (7 - c)) if X else (4, SY + 16 * (7 - c))
    return [f"ds_write_b128 v15, {r4(base + 4*i)} offset:{(c % 3)*28672 + i*1024}" for i in range(n)]


class LdsQ:
    def __init__(self, k):
        self.k, self.q = k, []

    def op(self, text, tag=None):
        self.k(text)
        self.q.append(tag)

    def wait(self, *tags):
        idx = [i for i, t in enumerate(self.q) if t in tags]
        if not idx:
            return
        n = len(self.q) - 1 - max(idx)
        assert n <= 15
        self.k(f"s_waitcnt lgkmcnt({n})")
        self.q = self.q[max(idx) + 1:]

    def clear(self):
        self.q = []


def p3(k):
    k.label("L_p3")
    k(f"v_lshlrev_b32 v{VL16}, 4, v1")
    ids64(k)
    k(f"""
    s_lshr_b32 s45, s2, 5
    s_lshl_b32 s45, s45, 8
    s_add_u32 s45, s45, {CNT}
    s_setprio 0
    s_waitcnt vmcnt(0)
    """)
    signal(k, 45, "add")
    k("s_cmp_lt_u32 s25, 4")
    k("s_cbranch_scc1 L_p3C")
    k(f"""
    s_lshl_b32 s34, s26, 11
    v_lshrrev_b32 v2, 3, v1
    v_bfe_u32 v3, v1, 2, 1
    v_bfe_u32 v4, v1, 4, 1
    v_xor_b32 v3, v3, v4
    v_and_b32 v4, 3, v1
    v_lshlrev_b32 v4, 4, v4
    v_lshl_add_u32 v4, v3, 6, v4
    v_lshl_add_u32 v4, v2, 10, v4
    s_lshl_b32 s35, s26, 14
    s_lshl_b32 s36, s28, 7
    s_add_u32 s35, s35, s36
    v_add_u32 v{WD0}, s35, v4
    v_add_u32 v{WD0+1}, 8192-1024, v{WD0}
    """)
    srd(k, 16, PWO, PWO + 1, 512 * 1024)
    srd(k, 56, PX, PX + 1, 2 * MB)
    for c in range(8):
        k(f"""
        s_mov_b32 s41, {c*65536}
        s_add_u32 m0, s34, {c*8192}
        buffer_load_dwordx4 v{WD0}, s[16:19], s41 offen lds
        buffer_load_dwordx4 v{WD0+1}, s[16:19], s41 offen offset:1024 lds
        """)
    k(f"""
    v_and_b32 v5, 7, v1
    v_xor_b32 v5, v5, v2
    v_lshlrev_b32 v5, 4, v5
    v_lshl_add_u32 v4, v2, 10, v5
    s_lshl_b32 s38, s27, 16
    s_add_u32 s38, s38, s35
    s_add_u32 m0, s34, {XL}
    buffer_load_dwordx4 v4, s[56:59], s38 offen lds
    s_add_u32 s38, s38, 8192
    s_add_u32 m0, s34, {XL+1024}
    buffer_load_dwordx4 v4, s[56:59], s38 offen lds
    s_lshl_b32 s32, s31, 15
    s_lshl_b32 s33, s29, 11
    s_add_u32 s32, s32, s33
    s_add_u32 s32, s32, {OF}
    """)
    WT2 = int(E("WT2", "0"))
    if WT2:
        k(f"""
        s_lshr_b32 s36, s2, 3
        s_lshl_b32 s36, s36, 2
        s_add_u32 s36, s36, s26
        s_min_u32 s36, s36, 111
        s_lshl_b32 s36, s36, 15
        s_add_u32 s36, s36, {WGF + int(E("WT", "2"))*8192}
        v_lshlrev_b32 v5, 7, v1
        """)
        for i in range(WT2):
            k("buffer_load_dword v127, v5, s[20:23], s36 offen")
            k("s_add_u32 s36, s36, 8192")
    k("s_barrier")
    for c in range(8):
        k(f"""
        s_add_u32 s40, s32, {c*4096}
        s_add_u32 m0, s34, {65536 + c*8192}
        buffer_load_dwordx4 v{VL16}, s[20:23], s40 offen sc1 lds
        buffer_load_dwordx4 v{VL16}, s[20:23], s40 offen offset:1024 sc1 lds
        """)
    for c in range(8):
        k(f"s_waitcnt vmcnt({2*(7-c)})")
        k("s_barrier")
    p4_ids(k)
    srd(k, 16, PWD, PWD + 1, 1792 * 1024)
    k("s_mul_i32 s42, s26, 7")
    for j in range(7):
        k(f"""
        s_add_u32 s36, s42, {j}
        s_lshr_b32 s37, s36, 2
        s_lshl_b32 s37, s37, 15
        s_and_b32 s39, s36, 3
        s_lshl_b32 s39, s39, 10
        s_add_u32 s37, s37, s39
        v_add_u32 v{120+j}, s37, v{VL16}
        """)
    k("s_lshl_b32 s42, s42, 10")
    k("s_barrier")
    PRE = int(E("PRE3", "4"))
    for c in range(3):
        k(f"s_add_u32 s37, s32, {c*4096}")
        for j in range(7):
            if c * 7 + j == PRE:
                k("s_barrier")
            k(f"""
            s_add_u32 m0, s42, {c*28672 + j*1024}
            buffer_load_dwordx4 v{120+j}, s[20:23], s37 offen sc1 lds
            """)
    k("s_barrier")
    p4_body(k, False)
    if WREG:
        p5_reg(k, False)
    else:
        p5_loader(k)
    k.label("L_p3C")
    VBA, RES, ACC, T, FR = 12, 20, 64, 80, 120
    k(f"""
    v_and_b32 v2, 31, v1
    v_lshrrev_b32 v3, 5, v1
    s_lshl_b32 s37, s28, 1
    s_add_u32 s37, s37, s29
    s_lshl_b32 s40, s30, 12
    s_add_u32 s40, s40, 65536
    v_add_u32 v{VBA}, s40, v{VL16}
    v_bfe_u32 v4, v1, 2, 2
    v_lshl_add_u32 v5, v3, 2, v4
    v_lshlrev_b32 v5, 7, v5
    v_lshrrev_b32 v4, 1, v4
    v_xor_b32 v4, s29, v4
    v_lshl_add_u32 v5, v4, 6, v5
    v_bfe_u32 v4, v1, 4, 1
    v_lshl_add_u32 v5, v4, 5, v5
    v_and_b32 v4, 3, v1
    v_lshl_add_u32 v{TRA}, v4, 3, v5
    s_lshl_b32 s38, s30, 12
    s_lshl_b32 s39, s29, 2
    v_and_b32 v4, 7, v2
    v_xor_b32 v4, s39, v4
    v_lshlrev_b32 v5, 7, v2
    v_lshl_add_u32 v5, v3, 3, v5
    v_add_u32 v5, s38, v5
    v_add_u32 v5, {XL}, v5
    """)
    for g in range(4):
        k(f"v_xor_b32 v{T+g}, {g}, v4")
        k(f"v_lshl_add_u32 v{T+g}, v{T+g}, 4, v5")
    k(f"""
    s_cmp_lg_u32 s25, 1
    s_cbranch_scc1 L_p3_w
    v_cmp_gt_u32 vcc, 8, v1
    v_lshlrev_b32 v7, 8, v1
    v_add_u32 v7, {40*256}, v7
    s_and_b32 s36, s2, 7
    s_lshl_b32 s36, s36, 8
    v_mov_b32 v8, s36
    v_cndmask_b32 v7, v8, v7, vcc
    v_mov_b32 v8, 32
    v_mov_b32 v9, 128
    v_cndmask_b32 v8, v8, v9, vcc
    """)
    poll(k, 7, 8, 6, int(E('PS1', '12')), int(E('PP1', '0')))
    k.label("L_p3_w")
    k("s_barrier")
    stamp(k, 4)

    def reads3(n):
        c, s_ = n // 4, n % 4
        b = FR + (n % NB) * 8
        k(f"ds_read_b128 {r4(b)}, v{VBA} offset:{c*8192 + s_*1024}")
        k(f"ds_read_b64_tr_b16 {pr(b+4)}, v{TRA} offset:{n*2048}")
        k(f"ds_read_b64_tr_b16 {pr(b+6)}, v{TRA} offset:{n*2048 + 1024}")

    k("s_barrier")
    k("s_waitcnt lgkmcnt(0)")
    for n in range(PD):
        reads3(n)
    for n in range(32):
        if n + PD < 32:
            if (n + PD) % 4 == 0:
                k("s_barrier")
            reads3(n + PD)
            k(f"s_waitcnt lgkmcnt({3*PD})")
        else:
            if n == 30:
                for g in range(4):
                    k(f"ds_read_b64 {pr(RES+2*g)}, v{T+g}")
            k(f"s_waitcnt lgkmcnt({3*(31-n) + (4 if n >= 30 else 0)})")
        b = FR + (n % NB) * 8
        k(f"{MF32} {r16(ACC)}, {r4(b+4)}, {r4(b)}, " + (r16(ACC) if n else "0"))
    k("s_waitcnt lgkmcnt(0)")
    k("s_barrier")
    stamp(k, 5)
    for i in range(8):
        k(f"v_lshlrev_b32 v{T+2*i}, 16, v{RES+i}")
        k(f"v_and_b32 v{T+2*i+1}, 0xffff0000, v{RES+i}")
    for r in range(0, 16, 2):
        k(f"v_pk_add_f32 {pr(ACC+r)}, {pr(ACC+r)}, {pr(T+r)}")
    for i in range(8):
        k(f"v_cvt_pk_bf16_f32 v{HKEEP+i}, v{ACC+2*i}, v{ACC+2*i+1}")
    k(f"""
    s_lshl_b32 s38, s31, 15
    s_lshl_b32 s39, s37, 11
    s_add_u32 s38, s38, s39
    s_add_u32 s38, s38, {HF}
    """)
    mstore(k, [f"buffer_store_dwordx4 {r4(HKEEP)}, v{VL16}, s[20:23], s38 offen",
               f"buffer_store_dwordx4 {r4(HKEEP+4)}, v{VL16}, s[20:23], s38 offen offset:1024"], "h")
    k(f"v_pk_add_f32 {pr(T)}, {pr(ACC)}, {pr(ACC+2)}")
    k(f"v_pk_mul_f32 {pr(T+2)}, {pr(ACC)}, {pr(ACC)}")
    k(f"v_pk_fma_f32 {pr(T+2)}, {pr(ACC+2)}, {pr(ACC+2)}, {pr(T+2)}")
    for r in range(4, 16, 2):
        k(f"v_pk_add_f32 {pr(T)}, {pr(T)}, {pr(ACC+r)}")
        k(f"v_pk_fma_f32 {pr(T+2)}, {pr(ACC+r)}, {pr(ACC+r)}, {pr(T+2)}")
    k(f"""
    v_add_f32 v{T}, v{T}, v{T+1}
    v_add_f32 v{T+1}, v{T+2}, v{T+3}
    v_mov_b32 v{T+2}, v{T}
    v_mov_b32 v{T+3}, v{T+1}
    v_permlane32_swap_b32 v{T}, v{T+2}
    v_permlane32_swap_b32 v{T+1}, v{T+3}
    v_add_f32 v{T}, v{T}, v{T+2}
    v_add_f32 v{T+1}, v{T+1}, v{T+3}
    v_lshlrev_b32 v4, 3, v2
    s_lshl_b32 s38, s31, 12
    s_lshl_b32 s39, s37, 8
    s_add_u32 s38, s38, s39
    s_add_u32 s38, s38, {ST}
    s_mov_b64 exec, 0xffffffff
    """)
    mstore(k, f"buffer_store_dwordx2 {pr(T)}, v4, s[20:23], s38 offen", "h")
    k(f"""
    s_mov_b64 exec, -1
    s_lshr_b32 s45, s27, 1
    s_lshl_b32 s45, s45, 8
    s_and_b32 s39, s27, 1
    s_lshl_b32 s39, s39, 3
    s_add_u32 s39, s39, s28
    s_lshl_b32 s39, s39, 2
    s_add_u32 s45, s45, s39
    s_add_u32 s45, s45, {CNT + 8*256}
    """)
    p4_ids(k)
    k("s_waitcnt vmcnt(0)")
    signal(k, 45, "flag" if MAP2D else "lflag")
    k(f"""
    s_lshl_b32 s36, s27, 8
    s_add_u32 s36, s36, {8*256}
    """)
    wave_poll_flags(k, 1, 36, 16, int(E('PS2', '0')))
    stamp(k, 6)
    p4_body(k, True)
    if WREG:
        p5_reg(k, True)
    else:
        p5_compute(k)


def wdma(k, c):
    k(f"""
    s_mov_b32 s41, {(c % 8 if 'w' in E('ABL5', '') else c)*65536}
    s_add_u32 m0, s48, {(c % NWS)*8192}
    buffer_load_dwordx4 v{WD0}, s[16:19], s41 offen lds
    buffer_load_dwordx4 v{WD0+1}, s[16:19], s41 offen offset:1024 lds
    """)


def p4_body(k, X):
    tiles = [0, 1, 2, 3] if X else [4, 5, 6]
    NT = len(tiles)
    VWA, VHA, VCSA, HB, FR, ACC = 10, 13, 14, 16, 24, 40
    if E('ACC64') == '1':
        HB, FR, ACC = 208, 216, 32
    STT, T, CSB = 128, 144, 160
    MEAN, NMEAN, C1, C2 = 117, 118, 120, 122

    NW = 2 if X else 5
    VWD = 124 if X else 88

    def group_ops(c):
        ops = []
        if X:
            for i in range(4):
                p2 = f"s_add_u32 s39, s38, {c*4096}\ns_add_u32 m0, s40, {(c%3)*16384}\n" if i == 0 else ""
                ops.append(p2 + f"buffer_load_dwordx4 v{VL16}, s[20:23], s39 offen offset:{i*1024} sc1 lds")
        if c >= 3:
            for j in range(NW):
                p2 = f"s_add_u32 s37, s32, {c*4096}\n" if j == 0 else ""
                ops.append(p2 + f"s_add_u32 m0, s34, {(c%3)*28672 + j*1024}\nbuffer_load_dwordx4 v{VWD+j}, s[20:23], s37 offen sc1 lds")
        return ops

    for c in range(3):
        for o in group_ops(c):
            k(o)
    for j in range(NW):
        k(f"""
        s_add_u32 s35, s31, {j}
        s_lshr_b32 s36, s35, 2
        s_lshl_b32 s36, s36, 15
        s_and_b32 s35, s35, 3
        s_lshl_b32 s35, s35, 10
        s_add_u32 s35, s35, s36
        v_add_u32 v{VWD+j}, s35, v{VL16}
        """)
    k(f"""
    v_lshrrev_b32 v3, 5, v1
    v_mov_b32 v{VWA}, v{VL16}
    v_add_u32 v{VWA+1}, 28672, v{VWA}
    v_add_u32 v{VWA+2}, {2*28672}, v{VWA}
    v_add_u32 v{VHA}, s40, v{VL16}
    v_lshlrev_b32 v{VCSA}, 4, v3
    v_add_u32 v{VCSA}, {CSL4}, v{VCSA}
    """)

    Q = LdsQ(k)

    def rdh(n):
        c, s_ = n // 4, n % 4
        Q.op(f"ds_read_b128 {r4(HB + 4*(n % 2))}, v{VHA} offset:{(c%3)*16384 + s_*1024}", ("h", n))

    def rdw(n, i):
        c, s_ = n // 4, n % 4
        Q.op(f"ds_read_b128 {r4(FR+4*i)}, v{VWA + c % 3} offset:{tiles[i]*4096 + s_*1024}", ("w", n, i))

    vq = []

    def vop(text, tag):
        k(text)
        vq.append(tag)

    def vwait(tag, lg=""):
        idx = [i for i, t in enumerate(vq) if t == tag]
        n = len(vq) - 1 - max(idx) if idx else None
        if n is not None:
            k(f"s_waitcnt vmcnt({n}) {lg}")
        elif lg:
            k(f"s_waitcnt {lg}")

    for c in range(3):
        vq.extend([("H", c)] * (4 if X else 7))
    vwait(("H", 0), "lgkmcnt(0)")
    k("s_barrier")
    if X and STAMPS:
        stamp(k, 2); k("s_waitcnt lgkmcnt(0)")
    rdh(0)
    for i in range(NT):
        rdw(0, i)
    pend = []
    wpend = []
    for n in range(32):
        last = n == 31
        bar = (n + 1) % 4 == 0 and not last
        if bar:
            c1 = (n + 1) // 4
            for o, t in pend:
                vop(o, t)
            for o in wpend:
                Q.op(o)
            vwait(("H", c1), "lgkmcnt(0)")
            Q.clear()
            k("s_barrier")
            if STAG and not X and c1 == 7:
                k("s_setprio 1")
            if X and STAMPS and c1 == int(E("MID", "4")):
                stamp(k, 15); k("s_waitcnt lgkmcnt(0)")
            pend = [(o, ("H", c1 + 2)) for o in group_ops(c1 + 2)] if c1 + 2 <= 7 else []
            if c1 == int(E("SL", "1")):
                ops = [f"s_lshl_b32 s36, s29, 12\ns_add_u32 s36, s36, {ST}\nv_lshlrev_b32 v8, 3, v1\n" +
                       f"buffer_load_dwordx2 {pr(STT)}, v8, s[20:23], s36 offen sc1"]
                for i in range(1, 8):
                    ops.append(f"buffer_load_dwordx2 {pr(STT+2*i)}, v8, s[20:23], s36 offen offset:{512*i} sc1")
                if X:
                    ops.append(f"""
                    v_min_u32 v5, 223, v0
                    v_cmp_lt_u32 vcc, 111, v5
                    v_mov_b32 v6, {1792-112}
                    v_cndmask_b32 v6, 0, v6, vcc
                    v_add_u32 v6, v6, v5
                    v_lshlrev_b32 v6, 4, v6
                    v_lshlrev_b32 v9, 2, v5
                    v_add_u32 v9, {CSL4}, v9
                    s_mul_i32 s37, s28, {112*16}
                    s_add_u32 s37, s37, {CS}
                    buffer_load_dwordx4 {r4(T)}, v6, s[20:23], s37 offen sc1""")
                    for q in range(1, 4):
                        ops.append(f"s_add_u32 s37, s37, {3584*16}\nbuffer_load_dwordx4 {r4(T+4*q)}, v6, s[20:23], s37 offen sc1")
                ops = [o.replace("s36", "s43").replace("s37", "s44") for o in ops]
                pend += [(o, "S") for o in ops]
            if not X and YS and c1 in (6, 7):
                cs_ = list(range(28 - YS, 28))
                half = (len(cs_) + 1) // 2
                for c in (cs_[:half] if c1 == 6 else cs_[half:]):
                    r = 200 + 8 * (27 - c)
                    pend.append((f"s_mov_b32 s41, {c*65536}\nbuffer_load_dwordx4 {r4(r)}, v{WD0}, s[16:19], s41 offen", "D"))
                    pend.append((f"buffer_load_dwordx4 {r4(r+4)}, v{WD0+1}, s[16:19], s41 offen offset:1024", "D"))
            if c1 == 6:
                DW = int(E("DW", "0"))
                if not X and DW < 2 and E('TP', 'half') != 'late':
                    pend.append((f"""
                    v_min_u32 v5, 55, v1
                    v_lshlrev_b32 v6, 7, v5
                    s_lshr_b32 s37, s2, 3
                    s_lshl_b32 s37, s37, 2
                    s_add_u32 s37, s37, s26
                    s_mul_i32 s37, s37, {7*1024}
                    s_add_u32 s37, s37, {DW*896*1024}
                    buffer_load_dword v127, v6, s[16:19], s37 offen""", "T"))
                    if DW == 0 and E('TP', 'half') != 'half':
                        pend.append((f"s_add_u32 s37, s37, {896*1024}\nbuffer_load_dword v127, v6, s[16:19], s37 offen", "T"))
        b = HB + 4 * (n % 2)
        if not last:
            rdh(n + 1)
        for i in range(NT):
            A = r16(ACC + 16 * i)
            Q.wait(("h", n), ("w", n, i))
            k(f"{MF32} {A}, {r4(FR+4*i)}, {r4(b)}, " + (A if n else "0"))
            if not last:
                rdw(n + 1, i)
            if pend and (i % 2 == 0 or len(pend) > 6 or E('BURST') == '1'):
                vop(*pend.pop(0))
            if wpend and i == 1:
                Q.op(wpend.pop(0))
        if n == int(E("SN", "13")):
            vwait("S")
            if X:
                for st_ in (8, 4, 2, 1):
                    for i in range(st_):
                        k(f"v_add_f32 v{T+i}, v{T+i}, v{T+i+st_}")
                if STAG:
                    Q.op(f"ds_write_b32 v9, v{T}")
            for i in range(1, 8):
                k(f"v_add_f32 v{STT}, v{STT}, v{STT+2*i}")
                k(f"v_add_f32 v{STT+1}, v{STT+1}, v{STT+2*i+1}")
            k(f"""
            v_mov_b32 v{STT+2}, v{STT}
            v_mov_b32 v{STT+3}, v{STT+1}
            v_permlane32_swap_b32 v{STT}, v{STT+2}
            v_permlane32_swap_b32 v{STT+1}, v{STT+3}
            v_add_f32 v{STT}, v{STT}, v{STT+2}
            v_add_f32 v{STT+1}, v{STT+1}, v{STT+3}
            v_mul_f32 v{MEAN}, {f32(1/512)}, v{STT}
            v_mul_f32 v{C2}, {f32(1/512)}, v{STT+1}
            v_fma_f32 v{C2}, -v{MEAN}, v{MEAN}, v{C2}
            v_max_f32 v{C2}, 0, v{C2}
            v_add_f32 v{C2}, {f32(1e-5)}, v{C2}
            v_rsq_f32 v{C1}, v{C2}
            v_mul_f32 v{C1}, {f32(-LOG2E)}, v{C1}
            v_mov_b32 v{C1+1}, v{C1}
            v_mov_b32 v{C2+1}, v{C2}
            v_sub_f32 v{NMEAN}, 0, v{MEAN}
            v_sub_f32 v{NMEAN+1}, 0, v{MEAN}
            """)
    for o, t in pend:
        vop(o, t)
    if X:
        stamp(k, 7)
        if not STAG:
            k(f"ds_write_b32 v9, v{T}")
    k("s_waitcnt lgkmcnt(0)")
    if X or not STAG:
        k("s_barrier")
    elif STAG:
        k("s_setprio 0")
    wq = []
    if not X:
        k("s_lshl_b32 s48, s26, 11")
        wq = list(range(EW))

    def wpop(n=1):
        for _ in range(n):
            if wq:
                wdma(k, wq.pop(0))

    k(f"""
    s_mul_i32 s36, s29, {112*1024}
    s_mul_i32 s37, s28, {7*1024}
    s_add_u32 s36, s36, s37
    s_add_u32 s36, s36, {AF + tiles[0]*1024}
    """)

    def csread(i):
        p = tiles[i]
        d = CSB + (i % 2) * 16
        k(f"ds_read_b128 {r4(d)}, v{VCSA} offset:{p*64}")
        k(f"ds_read_b128 {r4(d+4)}, v{VCSA} offset:{p*64+32}")
        k(f"ds_read_b128 {r4(d+8)}, v{VCSA} offset:{448+p*64}")
        k(f"ds_read_b128 {r4(d+12)}, v{VCSA} offset:{448+p*64+32}")

    csread(0)
    for i in range(NT):
        k("s_waitcnt lgkmcnt(0)")
        if i + 1 < NT:
            csread(i + 1)
        d = CSB + (i % 2) * 16
        A = ACC + 16 * i
        wpop(2)
        for r in range(0, 16, 2):
            k(f"v_pk_fma_f32 {pr(A+r)}, {pr(NMEAN)}, {pr(d+r)}, {pr(A+r)}")
        for r in range(0, 8, 2):
            k(f"v_pk_mul_f32 {pr(T+r)}, {pr(A+r)}, {pr(C1)}")
        for r in range(8):
            k(f"v_exp_f32 v{T+r}, v{T+r}")
        wpop(2)
        for r in range(0, 8, 2):
            k(f"v_pk_mul_f32 {pr(A+r)}, {pr(A+r)}, {pr(A+8+r)}")
        for r in range(0, 8, 2):
            k(f"v_pk_fma_f32 {pr(T+r)}, {pr(T+r)}, {pr(C2)}, {pr(C2)}")
        for r in range(8):
            k(f"v_rcp_f32 v{T+r}, v{T+r}")
        for r in range(0, 8, 2):
            k(f"v_pk_mul_f32 {pr(A+r)}, {pr(A+r)}, {pr(T+r)}")
        if i == NT - 1:
            wpop(99)
        for j in range(4):
            k(f"v_cvt_pk_bf16_f32 v{A+j}, v{A+2*j}, v{A+2*j+1}")
        mstore(k, f"buffer_store_dwordx4 {r4(A)}, v{VL16}, s[20:23], s36 offen offset:{i*1024}", "a")
        if STAG and not X and i == int(E("STAGB", "1")):
            k("s_barrier")
    k(f"""
    s_lshl_b32 s45, s27, 8
    s_lshl_b32 s39, s28, 2
    s_add_u32 s45, s45, s39
    s_add_u32 s45, s45, {CNT + 24*256}
    """)


def dwrite(c):
    ws = c % NWS
    a, off = (DV, ws * 8192) if ws < 7 else (DV + 1, (ws - 7) * 8192)
    return f"ds_write_b128 v{a}, {r4(DS + 4*(27 - c))} offset:{off}"


def dsetup(k):
    k(f"""
    s_lshl_b32 s35, s25, 10
    v_add_u32 v{DV}, s35, v{VL16}
    v_add_u32 v{DV+1}, 57344, v{DV}
    """)


def p5_loader(k):
    ids64(k)
    k(f"""
    s_lshl_b32 s34, s26, 11
    s_mul_i32 s32, s31, {112*1024}
    s_lshl_b32 s33, s29, 11
    s_add_u32 s32, s32, s33
    s_add_u32 s32, s32, {AF}
    v_add_u32 v{DV}, s34, v{VL16}
    v_add_u32 v{DV+1}, 57344, v{DV}
    """)

    def adma(c):
        k(f"""
        s_add_u32 s40, s32, {(c % 4 if 'a' in E('ABL5', '') else c)*4096}
        s_add_u32 m0, s34, {AOFF + (c % NAS)*8192}
        buffer_load_dwordx4 v{VL16}, s[20:23], s40 offen sc1 lds
        buffer_load_dwordx4 v{VL16}, s[20:23], s40 offen offset:1024 sc1 lds
        """)

    if True:
        n1 = min(NWS, EW + int(E("EW2", "4")))
        for c in range(EW, n1):
            wdma(k, c)
        k(f"s_waitcnt vmcnt({2*(n1-EW)})")
        k("s_barrier")
        for c in range(n1, NWS):
            wdma(k, c)
        if E('TP', 'half') in ('late', 'half'):
            k(f"""
            v_min_u32 v5, 55, v1
            v_lshlrev_b32 v6, 7, v5
            s_lshr_b32 s37, s2, 3
            s_lshl_b32 s37, s37, 2
            s_add_u32 s37, s37, s26
            s_mul_i32 s37, s37, {7*1024}
            s_add_u32 s37, s37, {896*1024}
            buffer_load_dword v127, v6, s[16:19], s37 offen
            """)
    k("s_barrier")
    if E("WBL2") == "1":
        k("""
        s_lshr_b32 s36, s2, 3
        s_add_u32 s36, s36, s26
        s_cmp_lg_u32 s36, 0
        s_cbranch_scc1 L_nowb
        buffer_wbl2 sc1
        """)
        k.label("L_nowb")
    order = []
    ia, iw = 0, NWS
    for c in range(NAS - 2):
        adma(c); order.append(("a", c)); ia += 1
    for c in range(28):
        need = max(i for i, g in enumerate(order) if g == ("a", c) or g == ("w", c))
        k(f"s_waitcnt vmcnt({2*(len(order) - 1 - need)}) lgkmcnt(0)")
        k("s_barrier")
        if ia < 28 and ia <= c - 2 + NAS:
            adma(ia); order.append(("a", ia)); ia += 1
        if iw < 28 and iw <= c - 2 + NWS:
            if iw >= 28 - YS:
                ws_ = iw % NWS
                a_, off = (DV, ws_ * 8192) if ws_ < 7 else (DV + 1, (ws_ - 7) * 8192)
                r = 200 + 8 * (27 - iw)
                k(f"ds_write_b128 v{a_}, {r4(r)} offset:{off}")
                k(f"ds_write_b128 v{a_}, {r4(r+4)} offset:{off+1024}")
            else:
                wdma(k, iw); order.append(("w", iw))
            iw += 1
    k("s_endpgm")


def p5_compute(k):
    VBA, VWA, ACC, T, FR = 12, 13, 64, 80, 120
    k("s_waitcnt vmcnt(0)")
    stamp(k, 8)
    signal(k, 45, "flag" if MAP2D else "lflag")
    ids64(k)
    srd(k, 56, POUT, POUT + 1, 2 * MB)
    k(f"""
    v_and_b32 v2, 31, v1
    v_lshrrev_b32 v3, 5, v1
    s_lshl_b32 s37, s28, 1
    s_add_u32 s37, s37, s29
    s_lshl_b32 s40, s30, 12
    s_add_u32 s40, s40, {AOFF}
    v_add_u32 v{VBA}, s40, v{VL16}
    v_add_u32 v{VWA}, 57344, v{TRA}
    """)
    for i in range(8):
        k(f"v_lshlrev_b32 v{T+2*i}, 16, v{HKEEP+i}")
        k(f"v_and_b32 v{T+2*i+1}, 0xffff0000, v{HKEEP+i}")
    k(f"""
    s_lshr_b32 s36, s27, 1
    s_lshl_b32 s36, s36, 8
    s_add_u32 s36, s36, {24*256}
    """)
    wave_poll_flags(k, 1, 36, 16, int(E('PS3', '0')))
    stamp(k, 9)

    Q = LdsQ(k)
    PD5 = min(PD, 3) if STAGED else PD
    NB5 = PD5 + 1

    def reads(n):
        c, s_ = n // 4, n % 4
        b = FR + (n % NB5) * 8
        ws = c % NWS
        wr, woff = (f"v{TRA}", ws * 8192) if ws < 7 else (f"v{VWA}", (ws - 7) * 8192)
        Q.op(f"ds_read_b128 {r4(b)}, v{VBA} offset:{(c % NAS)*8192 + s_*1024}", n)
        Q.op(f"ds_read_b64_tr_b16 {pr(b+4)}, {wr} offset:{woff + s_*2048}", n)
        Q.op(f"ds_read_b64_tr_b16 {pr(b+6)}, {wr} offset:{woff + s_*2048 + 1024}", n)

    k("s_barrier")
    k("s_waitcnt lgkmcnt(0)")
    for n in range(PD5):
        reads(n)
    KS = 112
    for n in range(KS):
        if n + PD5 < KS:
            if (n + PD5) % 4 == 0:
                c = (n + PD5) // 4
                k("s_barrier")
                iw = c - 2 + NWS
                if STAGED and NWS <= iw < 28:
                    Q.op(dwrite(iw))
            reads(n + PD5)
        Q.wait(n)
        b = FR + (n % NB5) * 8
        k(f"{MF32} {r16(ACC)}, {r4(b+4)}, {r4(b)}, " + (r16(ACC) if n else r16(T)))
    stamp(k, 10)
    for i in range(8):
        k(f"v_cvt_pk_bf16_f32 v{ACC+i}, v{ACC+2*i}, v{ACC+2*i+1}")
    k(f"""
    v_lshlrev_b32 v4, 10, v2
    v_lshl_add_u32 v4, v3, 4, v4
    v_permlane32_swap_b32 v{ACC}, v{ACC+2}
    v_permlane32_swap_b32 v{ACC+1}, v{ACC+3}
    v_permlane32_swap_b32 v{ACC+4}, v{ACC+6}
    v_permlane32_swap_b32 v{ACC+5}, v{ACC+7}
    s_lshl_b32 s38, s31, 15
    s_lshl_b32 s39, s37, 6
    s_add_u32 s38, s38, s39
    buffer_store_dwordx4 {r4(ACC)}, v4, s[56:59], s38 offen {E('OUTP', '')}
    buffer_store_dwordx4 {r4(ACC+4)}, v4, s[56:59], s38 offen offset:32 {E('OUTP', '')}
    """)
    stamp(k, 11); stamp(k, 12, True); stamp_flush(k, 16)
    if DIAG:
        k("""
        s_memrealtime s[94:95]
        s_waitcnt lgkmcnt(0)
        s_sub_u32 s92, s92, s90
        s_lshl_b32 s92, s92, 2
        s_add_u32 s92, s92, s94
        """)
        k.label("L_diag")
        k("""
        s_memrealtime s[94:95]
        s_waitcnt lgkmcnt(0)
        s_sub_u32 s96, s94, s92
        s_cmp_lt_i32 s96, 0
        s_cbranch_scc1 L_diag
        """)
    k.label("L_end")
    k("s_endpgm")


def p5_reg(k, X):
    NA = 20 - NL
    AO = NL * 8192
    VBA, VTR, VTR2, ACC, FR, T = 12, 13, 14, 16, 48, 120
    if X:
        k("s_waitcnt vmcnt(0)")
        stamp(k, 8)
        signal(k, 45, "flag" if MAP2D else "lflag")
    else:
        for c in range(4):
            wdma(k, c)
        k("s_waitcnt vmcnt(8)")
        k("s_barrier")
        for c in range(4, NL):
            wdma(k, c)
    ids64(k)
    k(f"""
    s_lshr_b32 s33, s25, 1
    s_lshr_b32 s34, s25, 2
    s_lshl_b32 s32, s27, 1
    s_add_u32 s32, s32, s34
    s_mul_i32 s32, s32, {112*1024}
    s_lshl_b32 s34, s26, 10
    s_add_u32 s32, s32, s34
    s_add_u32 s32, s32, {AF}
    s_lshl_b32 s34, s25, 10
    s_add_u32 s34, s34, {AO}
    s_lshl_b32 s35, s33, 10
    s_add_u32 s35, s35, {AO}
    v_add_u32 v{VBA}, s35, v{VL16}
    v_lshrrev_b32 v3, 5, v1
    v_bfe_u32 v4, v1, 2, 2
    v_lshl_add_u32 v5, v3, 2, v4
    v_lshlrev_b32 v5, 7, v5
    v_lshrrev_b32 v4, 1, v4
    v_xor_b32 v4, s29, v4
    v_lshl_add_u32 v5, v4, 6, v5
    v_bfe_u32 v4, v1, 4, 1
    v_lshl_add_u32 v5, v4, 5, v5
    v_and_b32 v4, 3, v1
    v_lshl_add_u32 v5, v4, 3, v5
    s_lshl_b32 s35, s33, 11
    v_add_u32 v{VTR}, s35, v5
    v_add_u32 v{VTR2}, 49152, v{VTR}
    s_lshr_b32 s36, s27, 1
    s_lshl_b32 s36, s36, 8
    s_add_u32 s36, s36, {24*256}
    """)
    if X:
        wave_poll_flags(k, 1, 36, 16, int(E('PS3', '0')))
        stamp(k, 9)
    else:
        k("s_barrier")

    def adma(c):
        k(f"""
        s_add_u32 s40, s32, {c*4096}
        s_add_u32 m0, s34, {(c % NA)*8192}
        buffer_load_dwordx4 v{VL16}, s[20:23], s40 offen sc1 lds
        """)

    Q = LdsQ(k)

    def reads(c):
        b = FR + (c % 3) * 12
        for mt in range(2):
            Q.op(f"ds_read_b128 {r4(b+4*mt)}, v{VBA} offset:{(c % NA)*8192 + mt*4096}", c)
        if c < NL:
            a_, off = (VTR, c * 8192) if c < 6 else (VTR2, (c - 6) * 8192)
            for ab in range(2):
                Q.op(f"ds_read_b64_tr_b16 {pr(b+8+2*ab)}, v{a_} offset:{off + ab*1024}", c)

    P5 = int(E("P5D", "1"))
    issued = NA - 1
    for c in range(issued):
        adma(c)
    k("s_waitcnt lgkmcnt(0)")
    for c in range(P5):
        k(f"s_waitcnt vmcnt({issued - 1 - c})")
        k("s_barrier")
        reads(c)
    for c in range(28):
        if c + P5 < 28:
            k(f"s_waitcnt vmcnt({issued - 1 - (c + P5)})")
            k("s_barrier")
            if issued < 28 and issued <= c - 1 + NA:
                adma(issued)
                issued += 1
            reads(c + P5)
        Q.wait(c)
        b = FR + (c % 3) * 12
        Wf = r4(b + 8) if c < NL else r4(192 + 4 * (c - NL))
        for mt in range(2):
            A = r16(ACC + 16 * mt)
            k(f"{MF32} {A}, {Wf}, {r4(b+4*mt)}, " + (A if c else "0"))
    if X:
        stamp(k, 10)
    k(f"""
    s_lshl_b32 s35, s29, 14
    s_lshl_b32 s36, s33, 12
    s_add_u32 s35, s35, s36
    v_add_u32 v{VBA}, s35, v{VL16}
    """)

    def put(mt):
        for g in range(4):
            k(f"ds_write_b128 v{VBA}, {r4(ACC+16*mt+4*g)} offset:{mt*32768 + g*1024}")

    if not X:
        put(0); put(1)
        k("s_waitcnt lgkmcnt(0)")
        k("s_barrier")
        k("s_endpgm")
        return
    k("s_nop 7")
    k("s_cmp_eq_u32 s30, 0")
    k("s_cbranch_scc1 L_p5_m0")
    put(0)
    k("s_waitcnt lgkmcnt(0)")
    for i in range(16):
        k(f"v_mov_b32 v{ACC+i}, v{ACC+16+i}")
    k("s_branch L_p5_m")
    k.label("L_p5_m0")
    put(1)
    k.label("L_p5_m")
    srd(k, 56, POUT, POUT + 1, 2 * MB)
    k(f"""
    v_and_b32 v2, 31, v1
    s_lshl_b32 s37, s28, 1
    s_add_u32 s37, s37, s29
    s_lshl_b32 s35, s30, 15
    s_lshl_b32 s36, s29, 14
    s_add_u32 s35, s35, s36
    v_add_u32 v{VTR}, s35, v{VL16}
    s_xor_b32 s36, s33, 1
    s_lshl_b32 s36, s36, 12
    v_add_u32 v{VTR2}, s36, v{VTR}
    """)
    for i in range(8):
        k(f"v_lshlrev_b32 v{T+2*i}, 16, v{HKEEP+i}")
        k(f"v_and_b32 v{T+2*i+1}, 0xffff0000, v{HKEEP+i}")
    for r in range(0, 16, 2):
        k(f"v_pk_add_f32 {pr(ACC+r)}, {pr(ACC+r)}, {pr(T+r)}")
    k("s_waitcnt lgkmcnt(0)")
    k("s_barrier")
    P = 48
    for g in range(4):
        k(f"ds_read_b128 {r4(P+4*g)}, v{VTR2} offset:{g*1024}")
    for q in (2, 3):
        for g in range(4):
            k(f"ds_read_b128 {r4(P+16*(q-1)+4*g)}, v{VTR} offset:{q*4096 + g*1024}")
    for j in range(3):
        k(f"s_waitcnt lgkmcnt({8 - 4*j})")
        for r in range(0, 16, 2):
            k(f"v_pk_add_f32 {pr(ACC+r)}, {pr(ACC+r)}, {pr(P+16*j+r)}")
    for i in range(8):
        k(f"v_cvt_pk_bf16_f32 v{ACC+i}, v{ACC+2*i}, v{ACC+2*i+1}")
    k(f"""
    v_lshlrev_b32 v4, 10, v2
    v_lshl_add_u32 v4, v3, 4, v4
    v_permlane32_swap_b32 v{ACC}, v{ACC+2}
    v_permlane32_swap_b32 v{ACC+1}, v{ACC+3}
    v_permlane32_swap_b32 v{ACC+4}, v{ACC+6}
    v_permlane32_swap_b32 v{ACC+5}, v{ACC+7}
    s_lshl_b32 s38, s31, 15
    s_lshl_b32 s39, s37, 6
    s_add_u32 s38, s38, s39
    buffer_store_dwordx4 {r4(ACC)}, v4, s[56:59], s38 offen
    buffer_store_dwordx4 {r4(ACC+4)}, v4, s[56:59], s38 offen offset:32
    """)
    stamp(k, 11); stamp(k, 12, True); stamp_flush(k, 16)
    k.label("L_end")
    k("s_endpgm")


def build(out):
    k = Kern(MONO)
    p1(k)
    p2(k)
    p3(k)
    k.label("L_codeend")
    k("s_nop 0")
    hdr = open("sequential_preLN__softmax_full_mha__swiglu_ffn__prompt.s.ref").read().split("; Override launch")[0]
    l = "grid=(256,1,1) block=(512,1,1) lds=163840"
    hdr += f"; @launch kernel={MONO} {l}\n" if (STAMPS or E("LIST") == "1") else f"; @launch {l}\n"
    open(out, "w").write(hdr + '.amdgcn_target "amdgcn-amd-amdhsa--gfx950"\n' + k.full())


if __name__ == "__main__":
    import sys
    build(sys.argv[1])
```

```python
import os
from dsl import Kern
import common
from common import MB, QF, KF, VF, OF, HF, ST, CS, AF, WGF, CNT, WS_BYTES, LOG2E, f32, srd, MONO

E = os.environ.get
STAMPS = E("STAMPS") == "1"
SPIN = 1 << 20
SMODE = 24
SIDE = 147456
WIDE0 = E('WIDE0', '0') == '1'
PX, PQKV, PWS, PWO, PWD, POUT, PG, PU, PDBG = 4, 6, 8, 10, 12, 14, 60, 62, 64
SB = 66


DIAG = E("DIAG")


def stamp(k, i, rt=False):
    if DIAG and int(DIAG) == i:
        k("s_memrealtime s[92:93]")
    if STAMPS:
        k(f"{'s_memrealtime' if rt else 's_memtime'} s[{SB+2*i}:{SB+1+2*i}]")


def stamp_flush(k, n):
    if not STAMPS:
        return
    k(f"""
    s_waitcnt lgkmcnt(0)
    s_lshl_b32 s51, s2, 4
    s_add_u32 s51, s51, s25
    s_lshl_b32 s51, s51, 6
    s_add_u32 s51, s51, {66*MB}
    v_mov_b32 v0, 0
    """)
    for i in range(n):
        k(f"v_mov_b32 v1, s{SB+2*i}")
        k(f"buffer_store_dword v1, v0, s[20:23], s51 offen offset:{4*i}")


_n = [0]


def uid(p):
    _n[0] += 1
    return f"L_{p}{_n[0]}"


DATAWT = E("DATAWT", "ah")
MAP2D = E("MAP2D", "0") == "1"
NL = int(E("NL", "13"))
WREG = E("WREG", "0") == "1"


def mstore(k, instrs, kind="flag"):
    if isinstance(instrs, str):
        instrs = [instrs]
    if kind in DATAWT:
        for i in instrs:
            k(i + " sc1")
        return
    g, e = uid("msg"), uid("mse")
    k(f"s_cmp_eq_u32 s{SMODE}, 0")
    k(f"s_cbranch_scc1 {g}")
    for i in instrs:
        k(i)
    k(f"s_branch {e}")
    k.label(g)
    for i in instrs:
        k(i + " sc1")
    k.label(e)


def one_lane(k, instr_fn):
    k("s_mov_b64 exec, 1")
    instr_fn()
    k("s_mov_b64 exec, -1")


def signal(k, soff, kind):
    l = uid("sig")
    k(f"""
    s_barrier
    s_cmp_lg_u32 s25, 0
    s_cbranch_scc1 {l}
    v_mov_b32 v4, 0
    v_mov_b32 v5, 1
    s_mov_b64 exec, 1
    """)
    if kind == "add":
        k(f"buffer_atomic_add v5, v4, s[20:23], s{soff} offen sc1")
    elif kind == "flag":
        k(f"buffer_store_dword v5, v4, s[20:23], s{soff} offen sc1")
    else:
        mstore(k, f"buffer_store_dword v5, v4, s[20:23], s{soff} offen")
    k("s_mov_b64 exec, -1")
    k.label(l)


def poll(k, vaddr, vexp, vtmp, sleep=0, pre=0):
    l = uid("poll")
    k(f"s_mov_b32 s46, {CNT}")
    k("s_mov_b32 s47, 0")
    if pre:
        k(f"s_sleep {pre}")
    k.label(l)
    if sleep:
        k.c("spin-wait back-off: early probes cache the flag line and slow the publishing stores down")
        k(f"s_sleep {sleep}")
    k(f"""
    buffer_load_dword v{vtmp}, v{vaddr}, s[20:23], s46 offen sc1
    s_add_u32 s47, s47, 1
    s_waitcnt vmcnt(0)
    v_cmp_gt_u32 vcc, v{vexp}, v{vtmp}
    s_cmp_gt_u32 s47, {SPIN}
    s_cbranch_scc1 {l}_out
    s_cbranch_vccnz {l}
    """)
    k.label(f"{l}_out")


def wave_poll_flags(k, wave, sgrp, G, sleep=0, pre=0, stride=2):
    l = uid("wp")
    k(f"""
    s_cmp_lg_u32 s25, {wave}
    s_cbranch_scc1 {l}
    v_and_b32 v7, {G-1}, v1
    v_lshlrev_b32 v7, {stride}, v7
    v_add_u32 v7, s{sgrp}, v7
    v_mov_b32 v8, 1
    """)
    poll(k, 7, 8, 6, sleep, pre)
    k.label(l)
    k("s_barrier")


def pr(x):
    return f"v[{x}:{x+1}]"


def r4(x):
    return f"v[{x}:{x+3}]"


def r16(x):
    return f"v[{x}:{x+15}]"


MF32 = "v_mfma_f32_32x32x16_bf16"
MF16 = "v_mfma_f32_16x16x32_bf16"


def p1(k):
    NST, STAGE, WOFF = 4, 32768, 8192
    SCR = NST * STAGE
    VXD, VWD, VXA, VWA, FR, ACC, CSA, SEL, T, SUM, PF = 10, 12, 20, 28, 40, 80, 128, 144, 156, 164, 168
    k(f"""
    s_load_dwordx4 s[4:7], s[0:1], 0
    s_load_dwordx4 s[64:67], s[0:1], 64
    s_cmp_ge_u32 s2, 256
    s_cbranch_scc1 L_end
    s_getpc_b64 s[46:47]
    """)
    if DIAG:
        k("s_memrealtime s[90:91]")
    k.label("L_pc")
    k.c("instruction-cache help: pull this kernel's own code into L2 with one data load per line (speed only)")
    k(f"""
    """)
    PFM = E("PFM", "0")
    if PFM == "0":
        k(f"""
        v_lshlrev_b32 v2, 6, v0
        v_min_u32 v3, L_codeend-L_pc, v2
        global_load_dword v{PF}, v3, s[46:47]
        v_add_u32 v2, 32768, v2
        v_min_u32 v3, L_codeend-L_pc, v2
        global_load_dword v{PF}, v3, s[46:47]
        """)
    else:
        k(f"""
        v_lshlrev_b32 v2, 7, v0
        v_min_u32 v3, L_p2-L_pc, v2
        global_load_dword v{PF}, v3, s[46:47]
        """)
    k(f"""
    v_and_b32 v1, 63, v0
    v_lshrrev_b32 v2, 6, v0
    """)
    k("v_readfirstlane_b32 s25, v2")
    k(f"""
    s_and_b32 s27, s2, 6
    s_lshl_b32 s27, s27, 2
    s_lshr_b32 s28, s2, 3
    s_and_b32 s41, s28, 7
    s_add_u32 s27, s27, s41
    s_and_b32 s28, s2, 1
    s_lshl_b32 s28, s28, 2
    s_lshr_b32 s29, s2, 6
    s_add_u32 s28, s28, s29
    s_and_b32 s26, s25, 3
    """)
    if not MAP2D:
        k(f"""
    s_getreg_b32 s30, hwreg(HW_REG_XCC_ID)
    s_and_b32 s30, s30, 7
    {E("FAKEXCC", "")}
    s_mul_i32 s31, s30, s30
    s_lshl_b32 s31, s31, 16
    s_lshl_b32 s30, s30, 8
    s_add_u32 s30, s30, s31
    s_add_u32 s51, s30, 1
    """)
    k(f"""
    s_cmp_lt_u32 s25, 4
    s_cbranch_scc1 L_p1_M
    """)
    k(f"""
    s_lshl_b32 s29, s29, 1
    s_add_u32 s41, s41, s29
    s_and_b32 s41, s41, {E("ROTMASK", "7")}
    v_lshrrev_b32 v8, 3, v1
    v_and_b32 v9, 7, v1
    s_lshl_b32 s30, s27, 16
    s_lshl_b32 s31, s26, 14
    s_add_u32 s30, s30, s31
    v_lshrrev_b32 v5, 1, v8
    v_xor_b32 v5, v5, v9
    v_lshlrev_b32 v5, 4, v5
    v_lshl_add_u32 v5, v8, 10, v5
    v_add_u32 v{VXD}, s30, v5
    v_xor_b32 v5, 64, v5
    v_add_u32 v5, 8192, v5
    v_add_u32 v{VXD+1}, s30, v5
    s_lshl_b32 s34, s26, 11
    s_mul_i32 s31, s26, {16*3072}
    s_lshl_b32 s32, s28, 7
    s_add_u32 s31, s31, s32
    v_bfe_u32 v4, v1, 4, 1
    v_lshlrev_b32 v4, 2, v4
    v_xor_b32 v4, v4, v9
    v_lshlrev_b32 v4, 4, v4
    v_mul_u32_u24 v5, 3072, v8
    v_add3_u32 v{VWD}, v4, v5, s31
    s_add_u32 s35, s34, {WOFF}
    s_waitcnt lgkmcnt(0)
    s_mov_b32 s8, s66
    s_mov_b32 s9, s67
    """)
    srd(k, 52, PX, PX + 1, 2 * MB)
    srd(k, 16, PQKV, PQKV + 1, 512 * 3072)

    def xops(c):
        st = (c % NST) * STAGE
        ops = []
        for i in range(2):
            pre = f"s_add_u32 s36, s41, {c}\ns_and_b32 s36, s36, 7\ns_mul_i32 s37, s36, {64*3072}\ns_lshl_b32 s36, s36, 7\n" if i == 0 else ""
            ops.append(pre + f"s_add_u32 m0, s34, {st + i*1024}\nbuffer_load_dwordx4 v{VXD+i}, s[52:55], s36 offen lds")
        return ops

    def wop(c, j):
        st = (c % NST) * STAGE
        t, i = j >> 1, j & 1
        return (f"s_add_u32 s38, s37, {t*1024 + i*8*3072}\ns_add_u32 m0, s35, {st + t*8192 + i*1024}\n"
                f"buffer_load_dwordx4 v{VWD}, s[16:19], s38 offen lds")

    def group_ops(c):
        return xops(c) + [wop(c, j) for j in range(6)]

    for o in group_ops(0):
        k(o)
    k("s_barrier")
    for o in group_ops(1):
        k(o)
    k(f"""
    s_load_dwordx2 s[10:11], s[0:1], 16
    s_load_dwordx4 s[12:15], s[0:1], 48
    v_and_b32 v2, 31, v1
    v_lshrrev_b32 v3, 5, v1
    v_lshrrev_b32 v4, 1, v2
    v_and_b32 v4, 7, v4
    v_lshlrev_b32 v5, 7, v2
    s_and_b32 s36, s26, 1
    s_lshl_b32 s36, s36, 12
    v_add_u32 v5, s36, v5
    s_lshr_b32 s39, s26, 1
    s_lshl_b32 s39, s39, 2
    v_add_u32 v6, s39, v3
    s_mov_b32 s43, 0xffff0000
    """)
    srd(k, 56, PDBG, PDBG + 1, 256)
    srd(k, 20, PWS, PWS + 1, WS_BYTES)
    for p in range(2):
        k(f"""
        v_add_u32 v7, {2*p}, v6
        v_xor_b32 v7, v7, v4
        v_lshl_add_u32 v{VXA+p}, v7, 4, v5
        v_add_u32 v{VXA+4+p}, {2*STAGE}, v{VXA+p}
        """)
    for i in range(4):
        k(f"v_mov_b32 v{SUM+i}, 0")

    def stats(c, pend):
        fb = FR + 8 * (c % 2)
        for j in range(8):
            if pend:
                k(pend.pop(0))
            lo, hi = T + 2 * (j % 4), T + 2 * (j % 4) + 1
            k(f"""
            v_lshlrev_b32 v{lo}, 16, v{fb+j}
            v_and_b32 v{hi}, s43, v{fb+j}
            v_add_f32 v{SUM}, v{SUM}, v{lo}
            v_add_f32 v{SUM+1}, v{SUM+1}, v{hi}
            v_fmac_f32 v{SUM+2}, v{lo}, v{lo}
            v_fmac_f32 v{SUM+3}, v{hi}, v{hi}
            """)

    for c in range(8):
        k(f"s_waitcnt vmcnt({(8 if c + 1 <= 7 else 0) + (1 if c == 6 else 0)}) lgkmcnt(0)")
        k("s_barrier")
        st = c % NST
        fb = FR + 8 * (c % 2)
        for p in range(2):
            k(f"ds_read_b128 {r4(fb+4*p)}, v{VXA + 4*(st//2) + p} offset:{(st%2)*STAGE}")
        pend = group_ops(c + 2) if c + 2 <= 7 else []
        if c:
            stats(c - 1, pend)
        for o in pend:
            k(o)
        if c == 5:
            k("""
            s_and_b32 s36, s2, 7
            s_lshl_b32 s36, s36, 5
            v_mov_b32 v170, s36
            v_cmp_eq_u32 vcc, 1, v1
            v_mov_b32 v171, 16
            v_cndmask_b32 v170, v170, v171, vcc
            buffer_load_dword v171, v170, s[56:59], 0 offen sc1
            """)
    k("s_waitcnt lgkmcnt(0)")
    stats(7, [])
    k("s_mov_b32 s47, 0")
    k.c('d_debug word 8c = census of id-class c (count | sum xcc | sum xcc^2); word 4 = hand-off words zeroed.')
    k.c('if every workgroup of the class sits on this die the row-block flags may stay in its L2 (s24=1), else device-wide')
    k.label("L_t_chk")
    k(f"""
    v_readlane_b32 s36, v171, 0
    v_readlane_b32 s37, v171, 1
    s_and_b32 s38, s36, 255
    s_cmp_gt_u32 s47, {SPIN}
    s_cbranch_scc1 L_t_ok
    s_cmp_lt_u32 s38, {0 if MAP2D else 32}
    s_cbranch_scc1 L_t_again
    s_cmp_ge_u32 s37, 1
    s_cbranch_scc1 L_t_ok
    """)
    k.label("L_t_again")
    k("""
    buffer_load_dword v171, v170, s[56:59], 0 offen sc1
    s_add_u32 s47, s47, 1
    s_waitcnt vmcnt(0)
    s_branch L_t_chk
    """)
    k.label("L_t_ok")
    k(f"""
    {'s_mov_b32 s51, 0' if MAP2D else ''}
    s_lshl_b32 s38, s51, 5
    s_cmp_eq_u32 s36, s38
    s_cselect_b32 s{SMODE}, {E("FORCEMODE", "1")}, 0
    v_mov_b32 v170, {SCR + 1536}
    v_mov_b32 v171, s{SMODE}
    ds_write_b32 v170, v171
    v_add_f32 v164, v164, v165
    v_add_f32 v166, v166, v167
    v_mov_b32 v165, v164
    v_mov_b32 v167, v166
    v_permlane32_swap_b32 v164, v165
    v_permlane32_swap_b32 v166, v167
    v_add_f32 v164, v164, v165
    v_add_f32 v166, v166, v167
    s_lshl_b32 s37, s26, 8
    v_lshlrev_b32 v4, 2, v2
    v_add_u32 v6, s37, v4
    v_add_u32 v6, {SCR+2048}, v6
    ds_write_b32 v6, v164
    ds_write_b32 v6, v166 offset:128
    v_xor_b32 v7, 512, v6
    s_waitcnt lgkmcnt(0)
    s_barrier
    ds_read_b32 v165, v7
    ds_read_b32 v167, v7 offset:128
    v_and_b32 v6, 0xfffffdff, v6
    s_waitcnt lgkmcnt(0)
    v_add_f32 v164, v164, v165
    v_add_f32 v166, v166, v167
    v_mul_f32 v164, {f32(-1/512)}, v164
    v_mul_f32 v166, {f32(1/512)}, v166
    v_fma_f32 v166, -v164, v164, v166
    v_max_f32 v166, 0, v166
    v_add_f32 v166, {f32(1e-5)}, v166
    v_rsq_f32 v165, v166
    ds_write_b32 v6, v164 offset:1024
    ds_write_b32 v6, v165 offset:1152
    s_waitcnt lgkmcnt(0)
    s_barrier
    s_barrier
    """)
    k("s_branch L_p2")
    k.c('---- P1, MFMA waves 0-3: q|k|v = rstd*(x@Wqkv - mean*colsum(Wqkv)) (LayerNorm folded into the epilogue)')
    k.label("L_p1_M")
    k("s_setprio 1")
    k("s_mov_b64 s[48:49], s[46:47]")
    k(f"""
    s_and_b32 s30, s26, 1
    s_lshr_b32 s31, s26, 1
    s_lshl_b32 s29, s27, 1
    s_add_u32 s29, s29, s30
    v_and_b32 v2, 31, v1
    v_lshrrev_b32 v3, 5, v1
    v_lshrrev_b32 v4, 1, v2
    v_and_b32 v4, 7, v4
    v_lshlrev_b32 v5, 7, v2
    s_lshl_b32 s34, s30, 12
    v_add_u32 v5, s34, v5
    v_bfe_u32 v6, v1, 2, 2
    v_lshrrev_b32 v7, 1, v6
    v_xor_b32 v7, s31, v7
    v_lshl_add_u32 v6, v3, 3, v6
    v_lshlrev_b32 v6, 7, v6
    v_lshl_add_u32 v6, v7, 6, v6
    v_bfe_u32 v7, v1, 4, 1
    v_lshl_add_u32 v6, v7, 5, v6
    v_and_b32 v7, 3, v1
    v_lshl_add_u32 v6, v7, 3, v6
    v_add_u32 v6, {WOFF}, v6
    s_waitcnt lgkmcnt(0)
    s_mov_b32 s8, s66
    s_mov_b32 s9, s67
    s_load_dwordx2 s[10:11], s[0:1], 16
    s_load_dwordx4 s[12:15], s[0:1], 48
    s_load_dwordx4 s[60:63], s[0:1], 32
    """)
    stamp(k, 0, True); stamp(k, 1)
    srd(k, 56, PDBG, PDBG + 1, 256)
    srd(k, 20, PWS, PWS + 1, WS_BYTES)
    if not MAP2D:
      k(f"""
    s_cmp_lg_u32 s25, 1
    s_cbranch_scc1 L_t_notk
    s_and_b32 s36, s2, 7
    s_lshl_b32 s36, s36, 5
    v_mov_b32 v7, 0
    v_mov_b32 v8, s51
    s_mov_b64 exec, 1
    buffer_atomic_add v8, v7, s[56:59], s36 offen sc1
    s_mov_b64 exec, -1
    """)
    k.label("L_t_notk")
    k("s_barrier")
    if E("TOUCH1", "0") == "1":
        srd(k, 52, PX, PX + 1, 2 * MB)
        srd(k, 16, PQKV, PQKV + 1, 512 * 3072)
        k(f"""
        s_lshr_b32 s36, s2, 3
        s_lshl_b32 s36, s36, 2
        s_add_u32 s36, s36, s26
        v_min_u32 v7, 31, v1
        v_and_b32 v8, 7, v7
        v_max_u32 v8, 2, v8
        v_lshrrev_b32 v7, 3, v7
        v_lshlrev_b32 v7, 10, v7
        v_lshl_add_u32 v7, v8, 7, v7
        s_and_b32 s37, s2, 6
        s_lshl_b32 s37, s37, 18
        s_lshl_b32 s38, s36, 12
        s_add_u32 s37, s37, s38
        v_min_u32 v8, 35, v1
        v_lshrrev_b32 v9, 2, v8
        v_and_b32 v8, 3, v8
        v_lshlrev_b32 v9, 10, v9
        v_lshl_add_u32 v8, v8, 7, v9
        s_mul_i32 s38, s36, {3*3072}
        s_and_b32 s39, s2, 1
        s_lshl_b32 s39, s39, 9
        s_add_u32 s38, s38, s39
        s_add_u32 s38, s38, {128*3072}
        buffer_load_dword v{PF}, v8, s[16:19], s38 offen
        buffer_load_dword v{PF}, v7, s[52:55], s37 offen
        """)
    k(f"""
    s_add_u32 s36, s2, s25
    s_cmp_lg_u32 s36, 0
    s_cbranch_scc1 L_t_nz
    v_lshrrev_b32 v7, 3, v1
    v_and_b32 v9, 7, v1
    v_lshlrev_b32 v7, 8, v7
    v_lshl_add_u32 v7, v9, 4, v7
    v_mov_b32 v8, 0
    v_mov_b32 v9, 0
    v_mov_b32 v10, 0
    v_mov_b32 v11, 0
    """)
    for i in range(8):
        k(f"s_mov_b32 s36, {CNT + i*2048}")
        k("buffer_store_dwordx4 v[8:11], v7, s[20:23], s36 offen sc1")
    if WIDE0:
        k("v_lshlrev_b32 v7, 7, v1")
        for i in range(4):
            k(f"s_mov_b32 s36, {CNT + 16384 + i*8192}")
            k("buffer_store_dword v8, v7, s[20:23], s36 offen sc1")
    k("""
    v_mov_b32 v12, 1
    s_waitcnt vmcnt(0)
    s_mov_b64 exec, 1
    buffer_store_dword v12, v8, s[56:59], 0 offen offset:16 sc1
    s_mov_b64 exec, -1
    """)
    k.label("L_t_nz")
    for p in range(4):
        k(f"""
        s_add_u32 s36, s30, {p}
        s_and_b32 s36, s36, 3
        s_lshl_b32 s37, s36, 1
        s_lshl_b32 s38, s36, 11
        v_add_u32 v7, s37, v3
        v_xor_b32 v7, v7, v4
        v_lshl_add_u32 v{VXA+p}, v7, 4, v5
        v_add_u32 v{VWA+p}, s38, v6
        v_add_u32 v{VXA+4+p}, {2*STAGE}, v{VXA+p}
        v_add_u32 v{VWA+4+p}, {2*STAGE}, v{VWA+p}
        """)
    k("""
    v_and_b32 v7, 15, v1
    v_bfe_u32 v8, v1, 4, 1
    v_sub_u32 v7, v7, v8
    v_mov_b32 v8, 0x3f803f80
    """)
    for t in range(3):
        k(f"v_cmp_eq_u32 vcc, {2*t}, v7")
        for i in range(4):
            k(f"v_cndmask_b32 v{SEL+4*t+i}, 0, v8, vcc")
    k(f"""
    v_lshlrev_b32 v4, 2, v2
    v_add_u32 v4, {SCR+5120}, v4
    v_and_b32 v5, 15, v1
    v_lshlrev_b32 v5, 2, v5
    v_lshrrev_b32 v7, 4, v1
    v_lshl_add_u32 v5, v7, 8, v5
    v_add_u32 v5, {SCR+5120}, v5
    s_lshl_b32 s36, s26, 10
    v_add_u32 v5, s36, v5
    s_lshl_b32 s36, s31, 11
    v_add_u32 v4, s36, v4
    v_lshlrev_b32 v7, 2, v1
    v_add_u32 v7, {SCR+5120}, v7
    v_add_u32 v7, s36, v7
    s_lshl_b32 s37, s30, 8
    s_add_u32 s37, s37, {SCR+3072}
    v_lshlrev_b32 v8, 4, v3
    v_add_u32 v10, s37, v8
    v_lshlrev_b32 v9, 2, v2
    v_add_u32 v9, s37, v9
    s_lshl_b32 s37, s26, 8
    s_add_u32 s37, s37, {SCR+4096}
    v_add_u32 v8, s37, v8
    v_lshlrev_b32 v11, 2, v1
    v_add_u32 v11, s37, v11
    v_mov_b32 v12, {SCR + 1536}
    v_bfe_u32 v13, v1, 4, 1
    v_and_b32 v14, 15, v1
    v_lshlrev_b32 v14, 4, v14
    v_lshl_add_u32 v14, v3, 8, v14
    v_lshl_add_u32 v14, v13, 16, v14
    v_lshlrev_b32 v6, 4, v1
    s_lshl_b32 s38, s28, 18
    s_lshl_b32 s39, s31, 17
    s_add_u32 s38, s38, s39
    s_lshl_b32 s39, s29, 10
    s_add_u32 s38, s38, s39
    s_lshl_b32 s45, s28, {12 if WIDE0 else 8}
    s_lshl_b32 s46, s27, {7 if WIDE0 else 2}
    s_add_u32 s45, s45, s46
    s_add_u32 s45, s45, {CNT + (16384 if WIDE0 else 48*256)}
    s_waitcnt lgkmcnt(0)
    """)
    XB, WB = FR, FR + 12

    def addr(n):
        c, p = n // 4, n % 4
        st = c % NST
        return 4 * (st // 2) + p, (st % 2) * STAGE

    def rdx(n):
        ai, off = addr(n)
        k(f"ds_read_b128 {r4(XB + (n % 3) * 4)}, v{VXA+ai} offset:{off}")

    def rdw(n, t):
        ai, off = addr(n)
        for ab in range(2):
            r = WB + 12 * (n % 2) + 4 * t + 2 * ab
            k(f"ds_read_b64_tr_b16 {pr(r)}, v{VWA+ai} offset:{off + ab*512 + t*8192}")

    k("s_barrier")
    if E("SP1") == "1":
        stamp(k, 2); k("s_waitcnt lgkmcnt(0)")
    for n in range(2):
        rdx(n)
        for t in range(3):
            rdw(n, t)
    for n in range(32):
        pf = n + 2 < 32
        if (n + 2) % 4 == 0 and pf:
            k("s_barrier")
        if n == 30:
            k("s_barrier")
        if n == 12 and PFM != "0":
            k(f"""
            v_lshlrev_b32 v15, 7, v0
            v_add_u32 v15, L_p2-L_pc, v15
            v_min_u32 v15, L_codeend-L_pc, v15
            global_load_dword v{PF}, v15, s[48:49]
            """)
        X = r4(XB + (n % 3) * 4)
        W = [r4(WB + 12 * (n % 2) + 4 * t) for t in range(3)]
        A = [r16(ACC + 16 * t) for t in range(3)]
        Cc = [a if n else "0" for a in A]
        mf = [f"{MF32} {A[0]}, {W[0]}, {X}, {Cc[0]}", f"{MF32} {A[1]}, {W[1]}, {X}, {Cc[1]}", f"{MF32} {A[2]}, {X}, {W[2]}, {Cc[2]}"]
        if pf:
            rdx(n + 2)
        for t in range(3):
            cnt = 12 if pf else (2 * (2 - t) + 7 if n == 30 else 2 * (2 - t))
            k(f"s_waitcnt lgkmcnt({cnt})")
            k(mf[t])
            if n % 2 == 0:
                cc = "0" if (n == 0 and t == 0) else r4(CSA)
                k(f"{MF16} {r4(CSA)}, {r4(SEL+4*t)}, {W[t]}, {cc}")
            if pf:
                rdw(n + 2, t)
    if E("SP1") == "1":
        stamp(k, 15); k("s_waitcnt lgkmcnt(0)")
    for r in range(4):
        k(f"ds_write_b32 v5, v{CSA+r} offset:{r*64}")
    k("""
    s_waitcnt lgkmcnt(0)
    s_barrier
    ds_read_b32 v12, v12
    """)
    for w in range(2):
        k(f"ds_read_b32 v{T+w}, v7 offset:{w*1024}")
        k(f"ds_read_b32 v{T+2+w}, v4 offset:{w*1024+256}")
    MR = FR
    for g in range(4):
        k(f"ds_read_b128 {r4(MR+4*g)}, v10 offset:{g*32}")
        k(f"ds_read_b128 {r4(MR+16+4*g)}, v10 offset:{128+g*32}")
    NM, RS, RQ, CV = 164, 166, 170, 172
    k(f"ds_read_b32 v{NM}, v9")
    k(f"ds_read_b32 v{RS}, v9 offset:128")
    k("s_waitcnt lgkmcnt(10)")
    k(f"""
    v_readfirstlane_b32 s{SMODE}, v12
    v_add_f32 v{T}, v{T}, v{T+1}
    v_add_f32 v{CV}, v{T+2}, v{T+3}
    v_add_f32 v{CV+1}, v{T+2}, v{T+3}
    ds_write_b32 v11, v{T}
    s_waitcnt lgkmcnt(0)
    """)
    CQ = CSA
    for t in range(2):
        for g in range(4):
            k(f"ds_read_b128 {r4(CQ+16*t+4*g)}, v8 offset:{t*128 + g*32}")
    AV = ACC + 32
    for r in range(0, 16, 2):
        k(f"v_pk_fma_f32 {pr(AV+r)}, {pr(MR+r)}, {pr(CV)}, {pr(AV+r)}")
    for r in range(0, 16, 2):
        k(f"v_pk_mul_f32 {pr(AV+r)}, {pr(AV+r)}, {pr(MR+16+r)}")
    for i in range(8):
        k(f"v_cvt_pk_bf16_f32 v{AV+i}, v{AV+2*i}, v{AV+2*i+1}")
    k(f"""
    s_add_u32 s39, s38, {VF}
    buffer_store_dwordx4 {r4(AV)}, v14, s[20:23], s39 offen sc1
    buffer_store_dwordx4 {r4(AV+4)}, v14, s[20:23], s39 offen offset:512 sc1
    v_mov_b32 v{NM+1}, v{NM}
    v_mov_b32 v{RS+1}, v{RS}
    v_mul_f32 v{RQ}, {f32(0.25*LOG2E)}, v{RS}
    v_mul_f32 v{RQ+1}, {f32(0.25*LOG2E)}, v{RS}
    s_waitcnt lgkmcnt(0)
    """)
    for t in (1, 0):
        A = ACC + 16 * t
        sc = RQ if t == 0 else RS
        for r in range(0, 16, 2):
            k(f"v_pk_fma_f32 {pr(A+r)}, {pr(NM)}, {pr(CQ+16*t+r)}, {pr(A+r)}")
        for r in range(0, 16, 2):
            k(f"v_pk_mul_f32 {pr(A+r)}, {pr(A+r)}, {pr(sc)}")
        for i in range(8):
            k(f"v_cvt_pk_bf16_f32 v{A+i}, v{A+2*i}, v{A+2*i+1}")
        base = QF if t == 0 else KF
        k(f"s_add_u32 s39, s38, {base}")
        k(f"s_add_u32 s40, s38, {base+65536}")
        k(f"buffer_store_dwordx4 {r4(A)}, v6, s[20:23], s39 offen sc1")
        k(f"buffer_store_dwordx4 {r4(A+4)}, v6, s[20:23], s40 offen sc1")
    stamp(k, 13)
    k("s_setprio 0")
    k("s_waitcnt vmcnt(0)")
    signal(k, 45, "flag")


def side_dma(k, T):
    k(f"""
    s_lshr_b32 s44, s2, 2
    s_cmp_lt_u32 s44, 28
    s_cselect_b32 s16, s{PG}, s{PU}
    s_cselect_b32 s17, s{PG+1}, s{PU+1}
    s_cselect_b32 s36, 0, 28
    s_mov_b32 s18, {512*3584}
    s_mov_b32 s19, 0x20000
    s_sub_u32 s36, s44, s36
    s_lshl_b32 s36, s36, 7
    s_and_b32 s43, s2, 3
    s_lshl_b32 s43, s43, 2
    s_add_u32 s43, s43, s26
    s_mul_i32 s37, s43, {32*3584}
    s_add_u32 s36, s36, s37
    s_cmp_lt_u32 s2, 224
    s_cselect_b32 s36, s36, 0x7ff00000
    v_bfe_u32 v{T}, v1, 2, 1
    v_bfe_u32 v{T+1}, v1, 4, 1
    v_xor_b32 v{T}, v{T}, v{T+1}
    v_and_b32 v{T+1}, 3, v1
    v_lshlrev_b32 v{T+1}, 4, v{T+1}
    v_lshl_add_u32 v{T+1}, v{T}, 6, v{T+1}
    v_lshrrev_b32 v{T}, 3, v1
    v_mul_u32_u24 v{T}, 3584, v{T}
    v_add_u32 v{T}, v{T}, v{T+1}
    s_lshl_b32 s48, s26, 12
    s_add_u32 s48, s48, {SIDE}
    """)
    for i in range(4):
        k(f"s_add_u32 m0, s48, {i*1024}")
        k(f"buffer_load_dwordx4 v{T}, s[16:19], s36 offen lds")
        k(f"s_add_u32 s36, s36, {8*3584}")


def side_job(k):
    TMP, WF, SL, CA = 108, 120, 136, 144
    k(f"""
    s_cmp_lt_u32 s2, 224
    s_cbranch_scc0 L_side_end
    s_lshr_b32 s44, s2, 2
    s_and_b32 s43, s2, 3
    s_lshl_b32 s43, s43, 2
    s_add_u32 s43, s43, s26
    s_lshl_b32 s48, s26, 12
    s_add_u32 s48, s48, {SIDE}
    v_bfe_u32 v{TMP}, v1, 2, 2
    v_lshrrev_b32 v{TMP+1}, 5, v1
    v_lshl_add_u32 v{TMP+1}, v{TMP+1}, 2, v{TMP}
    v_lshlrev_b32 v{TMP+1}, 7, v{TMP+1}
    v_lshrrev_b32 v{TMP}, 1, v{TMP}
    v_lshl_add_u32 v{TMP+1}, v{TMP}, 6, v{TMP+1}
    v_bfe_u32 v{TMP}, v1, 4, 1
    v_lshl_add_u32 v{TMP+1}, v{TMP}, 5, v{TMP+1}
    v_and_b32 v{TMP}, 3, v1
    v_lshl_add_u32 v{TMP+1}, v{TMP}, 3, v{TMP+1}
    v_add_u32 v{TMP+1}, s48, v{TMP+1}
    v_xor_b32 v{TMP+2}, 64, v{TMP+1}
    v_bfe_u32 v{TMP}, v1, 3, 2
    v_mov_b32 v{TMP+3}, 0x3f803f80
    v_cmp_eq_u32 vcc, 0, v{TMP}
    v_cmp_eq_u32 s[38:39], 1, v{TMP}
    """)
    for i in range(4):
        k(f"v_cndmask_b32 v{SL+i}, 0, v{TMP+3}, vcc")
        k(f"v_cndmask_b32 v{SL+4+i}, 0, v{TMP+3}, s[38:39]")
    k(f"""
    v_and_b32 v{TMP}, 47, v1
    v_lshlrev_b32 v{TMP}, 4, v{TMP}
    v_bfe_u32 v{TMP+3}, v1, 4, 1
    v_lshl_add_u32 v{TMP}, v{TMP+3}, 15, v{TMP}
    s_cmp_lt_u32 s44, 28
    s_cselect_b32 s36, 0, {256 - 28*4*32768 + (1<<32)}
    s_lshl_b32 s37, s44, 17
    s_add_u32 s36, s36, s37
    s_lshl_b32 s37, s43, 11
    s_add_u32 s36, s36, s37
    s_add_u32 s36, s36, {WGF}
    s_add_u32 s37, s36, 65536
    s_waitcnt vmcnt(0) lgkmcnt(0)
    """)
    for s_ in range(2):
        for nt in range(2):
            for ab in range(2):
                r = WF + 8 * s_ + 4 * nt + 2 * ab
                k(f"ds_read_b64_tr_b16 {pr(r)}, v{TMP+1+nt} offset:{s_*2048 + ab*1024}")
    k("s_waitcnt lgkmcnt(0)")
    first = True
    for s_ in range(2):
        for nt in range(2):
            r = WF + 8 * s_ + 4 * nt
            k(f"{MF32} {r16(CA)}, {r4(SL+4*nt)}, {r4(r)}, {'0' if first else r16(CA)}")
            first = False
            k(f"buffer_store_dwordx4 {r4(r)}, v{TMP}, s[20:23], s{36+nt} offen offset:{s_*1024} sc1")
    k(f"""
    v_cmp_gt_u32 vcc, 32, v1
    v_lshlrev_b32 v{TMP+1}, 4, v1
    s_lshl_b32 s36, s44, 10
    s_lshl_b32 s37, s26, 2
    s_add_u32 s36, s36, s37
    s_and_b32 s37, s2, 3
    s_mul_i32 s37, s37, {3584*16}
    s_add_u32 s36, s36, s37
    s_add_u32 s36, s36, {CS}
    v_cndmask_b32 v{TMP+2}, v{CA+4}, v{CA}, vcc
    buffer_store_dword v{TMP+2}, v{TMP+1}, s[20:23], s36 offen sc1
    """)
    k.label("L_side_end")


VBASE, VSTR = 65536, 1056
AL8 = E('AL8', '0') == '1'
SX, SY = 160, 128


def p2(k):
    Q, KFR, VFR, S, C, O, P0, P1 = 4, 8, 16, 32, 64, 80, 96, 100
    AK, AV0, AV1, TMP, PF, XV = 104, 105, 106, 108, 116, 117
    PDROP, TITER = int(E("PDROP", "5")), int(E("TITER", "2"))
    k.c('---- P2: attention, one head x 256 queries per workgroup, K/V of the head resident in LDS')
    k.label("L_p2")
    k(f"""
    s_and_b32 s27, s2, 31
    s_lshr_b32 s28, s2, 5
    s_lshl_b32 s28, s28, 3
    s_add_u32 s28, s28, s25
    v_lshlrev_b32 v2, 4, v1
    s_lshl_b32 s29, s27, 16
    s_lshl_b32 s30, s25, 10
    s_add_u32 s31, s29, s30
    s_mul_i32 s32, s25, {VSTR}
    s_add_u32 s32, s32, {VBASE}
    s_lshl_b32 s33, s28, 10
    s_add_u32 s33, s33, s29
    v_mov_b32 v{TMP}, 0x3f803f80
    v_mov_b32 v{TMP+1}, 0x3f803f80
    v_mov_b32 v{TMP+2}, 0x3f803f80
    v_mov_b32 v{TMP+3}, 0x3f803f80
    v_mul_u32_u24 v3, {VSTR}, v1
    v_add_u32 v3, {VBASE+1024}, v3
    """)
    for i in range(16):
        k(f"v_mov_b32 v{O+i}, 0")
    k(f"""
    s_cmp_lg_u32 s25, 3
    s_cbranch_scc1 L_p2_noones
    ds_write_b128 v3, {r4(TMP)}
    ds_write_b128 v3, {r4(O)} offset:16
    """)
    k.label("L_p2_noones")
    k(f"""
    v_mov_b32 v{AK}, v2
    v_and_b32 v3, 15, v1
    v_lshlrev_b32 v3, 4, v3
    v_lshrrev_b32 v{TMP+4}, 5, v1
    v_lshl_add_u32 v3, v{TMP+4}, 8, v3
    v_mov_b32 v{TMP+6}, 1024
    v_and_b32 v{TMP+5}, 11, v1
    v_cmp_eq_u32 vcc, 0, v{TMP+5}
    v_mov_b32 v{TMP+7}, 1040
    v_cndmask_b32 v{TMP+6}, v{TMP+7}, v{TMP+6}, vcc
    v_and_b32 v{TMP+5}, 16, v1
    v_cmp_eq_u32 vcc, 0, v{TMP+5}
    v_subrev_u32 v{TMP+7}, 512, v{TMP+6}
    v_cndmask_b32 v{AV0}, v{TMP+6}, v3, vcc
    v_cndmask_b32 v{AV1}, v{TMP+7}, v3, vcc
    v_add_u32 v{AV0}, {VBASE}, v{AV0}
    v_add_u32 v{AV1}, {VBASE}, v{AV1}
    """)
    for i in range(4):
        k(f"v_mov_b32 v{P1+i}, 0")
        k(f"v_mov_b32 v{VFR+12+i}, 0")
    k("""
    s_cmp_lt_u32 s25, 4
    s_cselect_b32 s42, 99, 1
    s_cselect_b32 s41, 99, 0
    s_mov_b32 s35, 0
    """)
    if WREG:
        k(f"""
        s_cselect_b32 s50, 4, 3
        s_cselect_b32 s36, {SIDE - 135168}, 0
        s_mul_i32 s50, s50, s26
        s_lshl_b32 s50, s50, 10
        s_add_u32 s50, s50, s36
        s_add_u32 s50, s50, 135168
        v_lshrrev_b32 v117, 2, v1
        v_lshlrev_b32 v117, 10, v117
        v_and_b32 v3, 3, v1
        v_lshl_add_u32 v117, v3, 4, v117
        s_lshr_b32 s36, s25, 1
        s_lshl_b32 s36, s36, 14
        s_lshr_b32 s37, s2, 5
        s_lshl_b32 s37, s37, 7
        s_add_u32 s36, s36, s37
        s_and_b32 s37, s25, 1
        s_lshl_b32 s37, s37, 6
        s_add_u32 s36, s36, s37
        v_add_u32 v117, s36, v117
        v_bfe_u32 v118, v1, 2, 2
        v_lshrrev_b32 v119, 5, v1
        v_lshl_add_u32 v118, v119, 2, v118
        v_lshlrev_b32 v118, 6, v118
        v_bfe_u32 v119, v1, 4, 1
        v_lshl_add_u32 v118, v119, 5, v118
        v_lshl_add_u32 v118, v3, 3, v118
        v_add_u32 v118, s50, v118
        """)
    k(f"""
    s_lshr_b32 s36, s27, 2
    s_lshl_b32 s36, s36, {12 if WIDE0 else 8}
    s_add_u32 s36, s36, {16384 if WIDE0 else 48*256}
    s_waitcnt lgkmcnt(0)
    """)
    wave_poll_flags(k, 1, 36, 32, int(E('PS0', '24')), int(E('PP0', '0')), 7 if WIDE0 else 2)
    stamp(k, 14)

    def dma_tile(t):
        k(f"""
        s_add_u32 s34, s31, {KF + t*1024}
        s_add_u32 m0, s30, {t*1024}
        buffer_load_dwordx4 v2, s[20:23], s34 offen sc1 lds
        s_add_u32 s34, s31, {VF + t*1024}
        s_add_u32 m0, s32, {t*VSTR}
        buffer_load_dwordx4 v2, s[20:23], s34 offen sc1 lds
        """)

    k("s_cmp_lt_u32 s25, 4")
    k("s_cbranch_scc0 L_p2_B")
    for t in range(0, 16, 4):
        dma_tile(t)
    k(f"buffer_load_dwordx4 {r4(Q)}, v2, s[20:23], s33 offen sc1")
    k("s_waitcnt vmcnt(7)")
    k("s_barrier")
    k("s_setprio 1")
    for t in range(16, 32, 4):
        dma_tile(t)
    k("s_waitcnt vmcnt(8)")
    k("s_barrier")
    for t in range(32, 64, 4):
        dma_tile(t)
    side_dma(k, TMP)
    k("s_waitcnt vmcnt(4)")
    k("s_barrier")
    k(f"""
    v_min_u32 v{TMP}, 13, v1
    v_lshlrev_b32 v{TMP}, 7, v{TMP}
    s_lshl_b32 s36, s2, 2
    s_add_u32 s36, s36, s26
    s_mul_i32 s37, s36, {14*128}
    """)
    srd(k, 16, PWD, PWD + 1, 1792 * 1024)
    k(f"""
    buffer_load_dword v{PF}, v{TMP}, s[16:19], s37 offen
    v_min_u32 v{TMP}, 3, v1
    v_lshlrev_b32 v{TMP}, 7, v{TMP}
    s_lshl_b32 s37, s36, 9
    """)
    srd(k, 16, PWO, PWO + 1, 512 * 1024)
    k(f"buffer_load_dword v{PF}, v{TMP}, s[16:19], s37 offen")
    k("s_branch L_p2_go")
    k.label("L_p2_B")
    k(f"""
    buffer_load_dwordx4 {r4(Q)}, v2, s[20:23], s33 offen sc1
    s_waitcnt vmcnt(0)
    s_barrier
    s_setprio 2
    """)
    k.label("L_p2_go")

    def Kr(b): return r4(KFR + 4 * b)
    def Vr(b, j): return r4(VFR + 8 * b + 4 * j)
    def Sr(b): return r16(S + 16 * b)
    Qr, Cr, Or = r4(Q), r16(C), r16(O)
    def rdK(t, b): k(f"ds_read_b128 {Kr(b)}, v{AK} offset:{t*1024}")

    def rdV(t, b):
        k(f"ds_read_b128 {Vr(b,0)}, v{AV0} offset:{t*VSTR}")
        k(f"ds_read_b128 {Vr(b,1)}, v{AV1} offset:{t*VSTR+512}")

    def tilemax(s1):
        k(f"""
        v_max3_f32 v{TMP}, v{s1}, v{s1+1}, v{s1+2}
        v_max3_f32 v{TMP+1}, v{s1+3}, v{s1+4}, v{s1+5}
        v_max3_f32 v{TMP+2}, v{s1+6}, v{s1+7}, v{s1+8}
        v_max3_f32 v{TMP+3}, v{s1+9}, v{s1+10}, v{s1+11}
        v_max3_f32 v{TMP}, v{TMP}, v{s1+12}, v{s1+13}
        v_max3_f32 v{TMP+1}, v{TMP+1}, v{s1+14}, v{s1+15}
        v_max3_f32 v{TMP}, v{TMP}, v{TMP+1}, v{TMP+2}
        v_max_f32 v{TMP}, v{TMP}, v{TMP+3}
        v_mov_b32 v{TMP+1}, v{TMP}
        v_permlane32_swap_b32 v{TMP}, v{TMP+1}
        """)
    k("s_waitcnt lgkmcnt(0)")
    rdK(0, 0)
    k.c('stand-in for the row max = true max over the first 32 keys (subtracted through the MFMA C operand);')
    k.c('the run-time check after the loop falls back to the true running max (L_p2_slow)')
    rdK(1, 1)
    rdV(0, 0)
    k("s_waitcnt lgkmcnt(3)")
    k(f"{MF32} {Sr(1)}, {Kr(0)}, {Qr}, 0")
    tilemax(S + 16)
    k(f"v_max_f32 v{TMP}, v{TMP}, v{TMP+1}")
    for i in range(16):
        k(f"v_sub_f32 v{C+i}, 0, v{TMP}")
    k(f"{MF32} {Sr(0)}, {Kr(0)}, {Qr}, {Cr}")
    k("s_nop 9")

    def Ex(b, a, n):
        for i in range(a, a + n):
            k(f"v_exp_f32 v{S+16*b+i}, v{S+16*b+i}")

    def CV(dst, b, i):
        k(f"v_cvt_pk_bf16_f32 v{dst}, v{S+16*b+2*i}, v{S+16*b+2*i+1}")

    def tile(t):
        b = t % 2
        nb = 1 - b
        if not AL8:
            k("s_waitcnt lgkmcnt(0)")
        k(f"{MF32} {Sr(nb)}, {Kr(nb)}, {Qr}, {Cr}")
        rdK(t + 2, b)
        Ex(b, 0, 4)
        k(f"{MF32} {Or}, {Vr(nb,1)}, {r4(P1)}, {Or}")
        rdV(t + 1, nb)
        Ex(b, 4, 2); CV(P0, b, 0)
        Ex(b, 6, 2); CV(P0 + 1, b, 1)
        Ex(b, 8, 2); CV(P0 + 2, b, 2)
        Ex(b, 10, 2); CV(P0 + 3, b, 3)
        Ex(b, 12, 2)
        k(f"{MF32} {Or}, {Vr(b,0)}, {r4(P0)}, {Or}")
        if AL8:
            Ex(b, 14, 1)
            k("s_waitcnt lgkmcnt(0)")
            k(f"v_exp_f32_e64 v{S+16*b+15}, v{S+16*b+15}")
        else:
            Ex(b, 14, 2)
        for i in range(4):
            CV(P1 + i, b, 4 + i)

    work = {}

    def add(code, fn):
        work.setdefault(code, []).append(fn)

    def wd_round(r, batches, wait):
        def fn():
            k(f"s_waitcnt vmcnt({wait})")
            if r > 0:
                for j, f in enumerate(batches[r - 1]):
                    for ab in range(2):
                        k(f"ds_read_b64_tr_b16 {pr(192 + 4*f + 2*ab)}, v118 offset:{j*1024 + ab*512}")
            if r < len(batches):
                if r > 0:
                    k("s_waitcnt lgkmcnt(0)")
                for j, f in enumerate(batches[r]):
                    k(f"s_mov_b32 s36, {(NL + f)*65536}")
                    k(f"s_add_u32 m0, s50, {j*1024}")
                    k("buffer_load_dwordx4 v117, s[56:59], s36 offen lds")
        return fn

    WT = int(E("WT", "2"))
    WA0, WB0 = int(E("WA0", "2")), int(E("WB0", "2"))
    if WREG:
        srd(k, 56, PWD, PWD + 1, 1792 * 1024)
        frs = list(range(28 - NL))
        younger = {TITER: 3, TITER + 1: WT, 5: 1}
        for base, first, batch, yg in ((0, WA0, 4, younger), (8, WB0, 3, {})):
            batches = [frs[i:i + batch] for i in range(0, 28 - NL, batch)]
            for r in range(len(batches) + 1):
                assert first + r <= 7
                add(base + first + r, wd_round(r, batches, yg.get(first + r - 1, 0) if r else 0))
    add(1, lambda: side_job(k))

    def ev_t1():
        assert DATAWT == "ah"
        k(f"""
        s_lshr_b32 s36, s2, 5
        s_lshl_b32 s36, s36, 8
        s_add_u32 s36, s36, {CNT + 40*256}
        v_mov_b32 v{TMP}, 0
        v_mov_b32 v{TMP+1}, 1
        s_waitcnt vmcnt({4 if WREG and WA0 <= TITER else 0})
        s_mov_b64 exec, 1
        buffer_atomic_add v{TMP+1}, v{TMP}, s[20:23], s36 offen sc1
        s_mov_b64 exec, -1
        s_lshr_b32 s36, s2, 3
        s_lshl_b32 s36, s36, 2
        s_add_u32 s36, s36, s26
        v_min_u32 v{TMP}, 31, v1
        v_lshlrev_b32 v{TMP}, 7, v{TMP}
        s_lshl_b32 s37, s36, 12
        """)
        srd(k, 16, PWO, PWO + 1, 512 * 1024)
        k(f"""
        buffer_load_dword v{PF}, v{TMP}, s[16:19], s37 offen
        v_min_u32 v{TMP}, 15, v1
        v_lshlrev_b32 v{TMP}, 7, v{TMP}
        s_and_b32 s38, s2, 7
        s_lshl_b32 s38, s38, 18
        s_lshl_b32 s37, s36, 11
        s_add_u32 s37, s37, s38
        """)
        srd(k, 16, PX, PX + 1, 2 * MB)
        k(f"buffer_load_dword v{PF}, v{TMP}, s[16:19], s37 offen")

    def ev_t2():
        k(f"""
        s_lshr_b32 s36, s2, 3
        s_lshl_b32 s36, s36, 2
        s_add_u32 s36, s36, s26
        s_min_u32 s36, s36, 111
        """)
        if MAP2D:
            k(f"""
            s_lshl_b32 s36, s36, 14
            s_and_b32 s37, s2, 1
            s_mul_i32 s37, s37, {56*32768}
            s_add_u32 s36, s36, s37
            """)
        else:
            k("s_lshl_b32 s36, s36, 15")
        k(f"""
        s_add_u32 s36, s36, {WGF}
        v_lshlrev_b32 v{TMP}, 7, v1
        """)
        for i in range(WT):
            k(f"buffer_load_dword v{PF}, v{TMP}, s[20:23], s36 offen")
            k("s_add_u32 s36, s36, 8192")

    def ev_code():
        k("s_getpc_b64 s[36:37]")
        k.label("L_pc2")
        k(f"""
        v_lshlrev_b32 v{TMP}, 7, v0
        v_min_u32 v{TMP}, L_codeend-L_pc2, v{TMP}
        global_load_dword v{PF}, v{TMP}, s[36:37]
        """)

    add(TITER, ev_t1)
    add(TITER + 1, ev_t2)
    add(5, ev_code)
    add(8 + PDROP, lambda: k("s_setprio 0"))
    k("""
    s_lshr_b32 s40, s25, 2
    s_lshl_b32 s40, s40, 3
    """)
    k("s_waitcnt lgkmcnt(0)")
    k.raw(".p2align 6")
    for _ in range(int(E("LPAD", "0"))):
        k("s_nop 0")
    k.label("L_p2_loop")
    for t in range(8):
        if t in (2, 6):
            if E("OOB", "0") == "1":
                k(f"s_cmp_eq_u32 s35, s{41 if t == 2 else 42}")
                k(f"s_cbranch_scc1 L_p2_bar{t}")
                k.label(f"L_p2_barret{t}")
            else:
                l = uid("nb")
                k(f"s_cmp_lg_u32 s35, s{41 if t == 2 else 42}")
                k(f"s_cbranch_scc1 {l}")
                k("s_barrier")
                k.label(l)
        tile(t)
    k(f"""
    v_add_u32 v{AK}, 8192, v{AK}
    v_add_u32 v{AV0}, {8*VSTR}, v{AV0}
    v_add_u32 v{AV1}, {8*VSTR}, v{AV1}
    """)
    for code in sorted(work):
        k(f"s_cmp_eq_u32 s40, {code}")
        k(f"s_cbranch_scc1 L_p2_h{code}")
    k.label("L_p2_evret")
    k("""
    s_add_u32 s40, s40, 1
    s_add_u32 s35, s35, 1
    s_cmp_lg_u32 s35, 8
    s_cbranch_scc1 L_p2_loop
    """)
    k.check_backedge("L_p2_loop")
    k(f"{MF32} {Or}, {Vr(1,1)}, {r4(P1)}, {Or}")
    k("s_waitcnt lgkmcnt(0)")
    stamp(k, 3)
    k.c('run-time check: row sum < 2^100, every O finite; otherwise redo this wave with the true running max')
    k(f"""
    v_max3_f32 v{TMP}, abs(v{O}), abs(v{O+1}), abs(v{O+2})
    v_max3_f32 v{TMP+1}, abs(v{O+3}), abs(v{O+4}), abs(v{O+5})
    v_max3_f32 v{TMP}, v{TMP}, abs(v{O+6}), abs(v{O+7})
    v_add_f32 v{TMP+2}, v{O}, v{O+1}
    v_add_f32 v{TMP+3}, v{O+2}, v{O+3}
    v_add_f32 v{TMP+4}, v{O+4}, v{O+5}
    v_add_f32 v{TMP+5}, v{O+6}, v{O+7}
    v_add_f32 v{TMP+2}, v{TMP+2}, v{TMP+3}
    v_add_f32 v{TMP+4}, v{TMP+4}, v{TMP+5}
    v_add_f32 v{TMP+2}, v{TMP+2}, v{TMP+4}
    v_max_f32 v{TMP}, v{TMP}, v{TMP+1}
    s_mov_b32 s36, {f32(2.0**100)}
    s_mov_b32 s37, 0x7f000000
    v_cmp_gt_f32 vcc, s36, v{O+8}
    v_cmp_gt_f32 s[38:39], s37, v{TMP}
    v_cmp_o_f32 s[48:49], v{TMP+2}, v{TMP+2}
    s_and_b64 vcc, vcc, s[38:39]
    s_and_b64 vcc, vcc, s[48:49]
    s_cmp_eq_u64 vcc, exec
    s_cbranch_scc0 L_p2_slow
    """)
    k.label("L_p2_fin")
    k(f"v_rcp_f32 v{TMP}, v{O+8}")
    for i in range(8):
        k(f"v_mul_f32 v{O+i}, v{O+i}, v{TMP}")
    for i in range(4):
        k(f"v_cvt_pk_bf16_f32 v{O+i}, v{O+2*i}, v{O+2*i+1}")
    k(f"""
    s_lshl_b32 s36, s28, 15
    s_lshl_b32 s37, s27, 10
    s_add_u32 s36, s36, s37
    s_add_u32 s36, s36, {OF}
    buffer_store_dwordx4 {r4(O)}, v2, s[20:23], s36 offen sc1
    s_branch L_p3
    """)
    if E("OOB", "0") == "1":
        for t in (2, 6):
            k.label(f"L_p2_bar{t}")
            k("s_barrier")
            k(f"s_branch L_p2_barret{t}")
    for code, fns in sorted(work.items()):
        k.label(f"L_p2_h{code}")
        for fn in fns:
            fn()
        k("s_branch L_p2_evret")
    k.c('fallback: online softmax with the true running max, rescale every key tile')
    k.label("L_p2_slow")
    M = TMP + 6
    k(f"v_subrev_u32 v{AK}, 65536, v{AK}")
    k(f"v_subrev_u32 v{AV0}, {64*VSTR}, v{AV0}")
    k(f"v_subrev_u32 v{AV1}, {64*VSTR}, v{AV1}")
    for i in range(16):
        k(f"v_mov_b32 v{O+i}, 0")
    k(f"v_mov_b32 v{M}, 0xff7fffff")
    k("s_mov_b32 s35, 64")
    k.label("L_p2_sloop")
    rdK(0, 0)
    rdV(0, 0)
    k("s_waitcnt lgkmcnt(0)")
    k(f"{MF32} {Sr(0)}, {Kr(0)}, {Qr}, 0")
    tilemax(S)
    k(f"""
    v_max3_f32 v{TMP}, v{TMP}, v{TMP+1}, v{M}
    v_sub_f32 v{TMP+1}, v{M}, v{TMP}
    v_exp_f32 v{TMP+1}, v{TMP+1}
    v_mov_b32 v{M}, v{TMP}
    """)
    for i in range(16):
        k(f"v_mul_f32 v{O+i}, v{O+i}, v{TMP+1}")
    for i in range(16):
        k(f"v_sub_f32 v{S+i}, v{S+i}, v{M}")
    Ex(0, 0, 16)
    for i in range(4):
        CV(P0 + i, 0, i)
        CV(P1 + i, 0, 4 + i)
    k(f"""
    {MF32} {Or}, {Vr(0,0)}, {r4(P0)}, {Or}
    {MF32} {Or}, {Vr(0,1)}, {r4(P1)}, {Or}
    v_add_u32 v{AK}, 1024, v{AK}
    v_add_u32 v{AV0}, {VSTR}, v{AV0}
    v_add_u32 v{AV1}, {VSTR}, v{AV1}
    s_nop 15
    s_sub_u32 s35, s35, 1
    s_cmp_lg_u32 s35, 0
    s_cbranch_scc1 L_p2_sloop
    """)
    k.check_backedge("L_p2_sloop")
    k("s_nop 15")
    k("s_branch L_p2_fin")


HKEEP, VL16, TRA, WD0 = 104, 112, 113, 113
HOFF4 = 3 * 28672
CSL4 = HOFF4 + 3 * 16384
NWS = NL if WREG else int(E("NWS", "12"))
NAS = 20 - NWS
AOFF = NWS * 8192
EARLYW = E("EARLYW", "0") == "1"
PD = int(E("PD", "4"))
NB = PD + 1
XL = 131072
STAG = E('STAG', '0') == '1'
EW = int(E('EW', '0'))
STAGED = False
YS = int(E('YS', '0'))
DS, DV = 192, 115


def ids64(k):
    k("""
    s_and_b32 s27, s2, 7
    s_lshl_b32 s27, s27, 2
    s_lshr_b32 s28, s2, 3
    s_and_b32 s28, s28, 3
    s_add_u32 s27, s27, s28
    s_lshr_b32 s28, s2, 5
    s_and_b32 s29, s26, 1
    s_lshr_b32 s30, s26, 1
    s_lshl_b32 s31, s27, 1
    s_add_u32 s31, s31, s30
    """)


def p4_ids(k):
    if MAP2D:
        k("""
        s_lshr_b32 s27, s2, 1
        s_and_b32 s27, s27, 3
        s_lshl_b32 s27, s27, 2
        s_lshr_b32 s28, s2, 3
        s_and_b32 s28, s28, 3
        s_add_u32 s27, s27, s28
        s_and_b32 s28, s2, 1
        s_lshl_b32 s28, s28, 3
        s_lshr_b32 s29, s2, 5
        s_add_u32 s28, s28, s29
        """)
    else:
        k("""
        s_and_b32 s27, s2, 7
        s_lshl_b32 s27, s27, 1
        s_lshr_b32 s28, s2, 3
        s_and_b32 s28, s28, 1
        s_add_u32 s27, s27, s28
        s_lshr_b32 s28, s2, 4
        """)
    k(f"""
    s_lshl_b32 s29, s27, 2
    s_add_u32 s29, s29, s26
    s_lshl_b32 s38, s29, 15
    s_add_u32 s38, s38, {HF}
    s_lshl_b32 s40, s26, 12
    s_add_u32 s40, s40, {HOFF4}
    s_cmp_lt_u32 s25, 4
    s_cselect_b32 s31, 2, 5
    s_cselect_b32 s35, 20, 0
    s_mul_i32 s31, s31, s26
    s_add_u32 s31, s31, s35
    s_lshl_b32 s34, s31, 10
    s_mul_i32 s32, s28, {7*32768}
    s_add_u32 s32, s32, {WGF}
    """)


def wstage(k, X, c):
    for o in wstage_ops(X, c):
        k(o)


def wstage_ops(X, c):
    n, base = (3, SX + 12 * (7 - c)) if X else (4, SY + 16 * (7 - c))
    return [f"ds_write_b128 v15, {r4(base + 4*i)} offset:{(c % 3)*28672 + i*1024}" for i in range(n)]


class LdsQ:
    def __init__(self, k):
        self.k, self.q = k, []

    def op(self, text, tag=None):
        self.k(text)
        self.q.append(tag)

    def wait(self, *tags):
        idx = [i for i, t in enumerate(self.q) if t in tags]
        if not idx:
            return
        n = len(self.q) - 1 - max(idx)
        assert n <= 15
        self.k(f"s_waitcnt lgkmcnt({n})")
        self.q = self.q[max(idx) + 1:]

    def clear(self):
        self.q = []


def p3(k):
    k.c('---- P3: h = x + o@wo (+ row statistics) ; P4: a = silu(LN(h)@Wg)*(LN(h)@Wu) ; P5: out = h + a@Wd')
    k.label("L_p3")
    k(f"v_lshlrev_b32 v{VL16}, 4, v1")
    ids64(k)
    k(f"""
    s_lshr_b32 s45, s2, 5
    s_lshl_b32 s45, s45, 8
    s_add_u32 s45, s45, {CNT}
    s_setprio 0
    s_waitcnt vmcnt(0)
    """)
    signal(k, 45, "add")
    k("s_cmp_lt_u32 s25, 4")
    k("s_cbranch_scc1 L_p3C")
    k(f"""
    s_lshl_b32 s34, s26, 11
    v_lshrrev_b32 v2, 3, v1
    v_bfe_u32 v3, v1, 2, 1
    v_bfe_u32 v4, v1, 4, 1
    v_xor_b32 v3, v3, v4
    v_and_b32 v4, 3, v1
    v_lshlrev_b32 v4, 4, v4
    v_lshl_add_u32 v4, v3, 6, v4
    v_lshl_add_u32 v4, v2, 10, v4
    s_lshl_b32 s35, s26, 14
    s_lshl_b32 s36, s28, 7
    s_add_u32 s35, s35, s36
    v_add_u32 v{WD0}, s35, v4
    v_add_u32 v{WD0+1}, 8192-1024, v{WD0}
    """)
    srd(k, 16, PWO, PWO + 1, 512 * 1024)
    srd(k, 56, PX, PX + 1, 2 * MB)
    for c in range(8):
        k(f"""
        s_mov_b32 s41, {c*65536}
        s_add_u32 m0, s34, {c*8192}
        buffer_load_dwordx4 v{WD0}, s[16:19], s41 offen lds
        buffer_load_dwordx4 v{WD0+1}, s[16:19], s41 offen offset:1024 lds
        """)
    k(f"""
    v_and_b32 v5, 7, v1
    v_xor_b32 v5, v5, v2
    v_lshlrev_b32 v5, 4, v5
    v_lshl_add_u32 v4, v2, 10, v5
    s_lshl_b32 s38, s27, 16
    s_add_u32 s38, s38, s35
    s_add_u32 m0, s34, {XL}
    buffer_load_dwordx4 v4, s[56:59], s38 offen lds
    s_add_u32 s38, s38, 8192
    s_add_u32 m0, s34, {XL+1024}
    buffer_load_dwordx4 v4, s[56:59], s38 offen lds
    s_lshl_b32 s32, s31, 15
    s_lshl_b32 s33, s29, 11
    s_add_u32 s32, s32, s33
    s_add_u32 s32, s32, {OF}
    """)
    WT2 = int(E("WT2", "0"))
    if WT2:
        k(f"""
        s_lshr_b32 s36, s2, 3
        s_lshl_b32 s36, s36, 2
        s_add_u32 s36, s36, s26
        s_min_u32 s36, s36, 111
        s_lshl_b32 s36, s36, 15
        s_add_u32 s36, s36, {WGF + int(E("WT", "2"))*8192}
        v_lshlrev_b32 v5, 7, v1
        """)
        for i in range(WT2):
            k("buffer_load_dword v127, v5, s[20:23], s36 offen")
            k("s_add_u32 s36, s36, 8192")
    k("s_barrier")
    for c in range(8):
        k(f"""
        s_add_u32 s40, s32, {c*4096}
        s_add_u32 m0, s34, {65536 + c*8192}
        buffer_load_dwordx4 v{VL16}, s[20:23], s40 offen sc1 lds
        buffer_load_dwordx4 v{VL16}, s[20:23], s40 offen offset:1024 sc1 lds
        """)
    for c in range(8):
        k(f"s_waitcnt vmcnt({2*(7-c)})")
        k("s_barrier")
    p4_ids(k)
    srd(k, 16, PWD, PWD + 1, 1792 * 1024)
    k("s_mul_i32 s42, s26, 7")
    for j in range(7):
        k(f"""
        s_add_u32 s36, s42, {j}
        s_lshr_b32 s37, s36, 2
        s_lshl_b32 s37, s37, 15
        s_and_b32 s39, s36, 3
        s_lshl_b32 s39, s39, 10
        s_add_u32 s37, s37, s39
        v_add_u32 v{120+j}, s37, v{VL16}
        """)
    k("s_lshl_b32 s42, s42, 10")
    k("s_barrier")
    PRE = int(E("PRE3", "4"))
    for c in range(3):
        k(f"s_add_u32 s37, s32, {c*4096}")
        for j in range(7):
            if c * 7 + j == PRE:
                k("s_barrier")
            k(f"""
            s_add_u32 m0, s42, {c*28672 + j*1024}
            buffer_load_dwordx4 v{120+j}, s[20:23], s37 offen sc1 lds
            """)
    k("s_barrier")
    p4_body(k, False)
    if WREG:
        p5_reg(k, False)
    else:
        p5_loader(k)
    k.label("L_p3C")
    VBA, RES, ACC, T, FR = 12, 20, 64, 80, 120
    k(f"""
    v_and_b32 v2, 31, v1
    v_lshrrev_b32 v3, 5, v1
    s_lshl_b32 s37, s28, 1
    s_add_u32 s37, s37, s29
    s_lshl_b32 s40, s30, 12
    s_add_u32 s40, s40, 65536
    v_add_u32 v{VBA}, s40, v{VL16}
    v_bfe_u32 v4, v1, 2, 2
    v_lshl_add_u32 v5, v3, 2, v4
    v_lshlrev_b32 v5, 7, v5
    v_lshrrev_b32 v4, 1, v4
    v_xor_b32 v4, s29, v4
    v_lshl_add_u32 v5, v4, 6, v5
    v_bfe_u32 v4, v1, 4, 1
    v_lshl_add_u32 v5, v4, 5, v5
    v_and_b32 v4, 3, v1
    v_lshl_add_u32 v{TRA}, v4, 3, v5
    s_lshl_b32 s38, s30, 12
    s_lshl_b32 s39, s29, 2
    v_and_b32 v4, 7, v2
    v_xor_b32 v4, s39, v4
    v_lshlrev_b32 v5, 7, v2
    v_lshl_add_u32 v5, v3, 3, v5
    v_add_u32 v5, s38, v5
    v_add_u32 v5, {XL}, v5
    """)
    for g in range(4):
        k(f"v_xor_b32 v{T+g}, {g}, v4")
        k(f"v_lshl_add_u32 v{T+g}, v{T+g}, 4, v5")
    k(f"""
    s_cmp_lg_u32 s25, 1
    s_cbranch_scc1 L_p3_w
    v_cmp_gt_u32 vcc, 8, v1
    v_lshlrev_b32 v7, 8, v1
    v_add_u32 v7, {40*256}, v7
    s_and_b32 s36, s2, 7
    s_lshl_b32 s36, s36, 8
    v_mov_b32 v8, s36
    v_cndmask_b32 v7, v8, v7, vcc
    v_mov_b32 v8, 32
    v_mov_b32 v9, 128
    v_cndmask_b32 v8, v8, v9, vcc
    """)
    poll(k, 7, 8, 6, int(E('PS1', '12')), int(E('PP1', '0')))
    k.label("L_p3_w")
    k("s_barrier")
    stamp(k, 4)

    def reads3(n):
        c, s_ = n // 4, n % 4
        b = FR + (n % NB) * 8
        k(f"ds_read_b128 {r4(b)}, v{VBA} offset:{c*8192 + s_*1024}")
        k(f"ds_read_b64_tr_b16 {pr(b+4)}, v{TRA} offset:{n*2048}")
        k(f"ds_read_b64_tr_b16 {pr(b+6)}, v{TRA} offset:{n*2048 + 1024}")

    k("s_barrier")
    k("s_waitcnt lgkmcnt(0)")
    for n in range(PD):
        reads3(n)
    for n in range(32):
        if n + PD < 32:
            if (n + PD) % 4 == 0:
                k("s_barrier")
            reads3(n + PD)
            k(f"s_waitcnt lgkmcnt({3*PD})")
        else:
            if n == 30:
                for g in range(4):
                    k(f"ds_read_b64 {pr(RES+2*g)}, v{T+g}")
            k(f"s_waitcnt lgkmcnt({3*(31-n) + (4 if n >= 30 else 0)})")
        b = FR + (n % NB) * 8
        k(f"{MF32} {r16(ACC)}, {r4(b+4)}, {r4(b)}, " + (r16(ACC) if n else "0"))
    k("s_waitcnt lgkmcnt(0)")
    k("s_barrier")
    stamp(k, 5)
    for i in range(8):
        k(f"v_lshlrev_b32 v{T+2*i}, 16, v{RES+i}")
        k(f"v_and_b32 v{T+2*i+1}, 0xffff0000, v{RES+i}")
    for r in range(0, 16, 2):
        k(f"v_pk_add_f32 {pr(ACC+r)}, {pr(ACC+r)}, {pr(T+r)}")
    for i in range(8):
        k(f"v_cvt_pk_bf16_f32 v{HKEEP+i}, v{ACC+2*i}, v{ACC+2*i+1}")
    k(f"""
    s_lshl_b32 s38, s31, 15
    s_lshl_b32 s39, s37, 11
    s_add_u32 s38, s38, s39
    s_add_u32 s38, s38, {HF}
    """)
    mstore(k, [f"buffer_store_dwordx4 {r4(HKEEP)}, v{VL16}, s[20:23], s38 offen",
               f"buffer_store_dwordx4 {r4(HKEEP+4)}, v{VL16}, s[20:23], s38 offen offset:1024"], "h")
    k(f"v_pk_add_f32 {pr(T)}, {pr(ACC)}, {pr(ACC+2)}")
    k(f"v_pk_mul_f32 {pr(T+2)}, {pr(ACC)}, {pr(ACC)}")
    k(f"v_pk_fma_f32 {pr(T+2)}, {pr(ACC+2)}, {pr(ACC+2)}, {pr(T+2)}")
    for r in range(4, 16, 2):
        k(f"v_pk_add_f32 {pr(T)}, {pr(T)}, {pr(ACC+r)}")
        k(f"v_pk_fma_f32 {pr(T+2)}, {pr(ACC+r)}, {pr(ACC+r)}, {pr(T+2)}")
    k(f"""
    v_add_f32 v{T}, v{T}, v{T+1}
    v_add_f32 v{T+1}, v{T+2}, v{T+3}
    v_mov_b32 v{T+2}, v{T}
    v_mov_b32 v{T+3}, v{T+1}
    v_permlane32_swap_b32 v{T}, v{T+2}
    v_permlane32_swap_b32 v{T+1}, v{T+3}
    v_add_f32 v{T}, v{T}, v{T+2}
    v_add_f32 v{T+1}, v{T+1}, v{T+3}
    v_lshlrev_b32 v4, 3, v2
    s_lshl_b32 s38, s31, 12
    s_lshl_b32 s39, s37, 8
    s_add_u32 s38, s38, s39
    s_add_u32 s38, s38, {ST}
    s_mov_b64 exec, 0xffffffff
    """)
    mstore(k, f"buffer_store_dwordx2 {pr(T)}, v4, s[20:23], s38 offen", "h")
    k(f"""
    s_mov_b64 exec, -1
    s_lshr_b32 s45, s27, 1
    s_lshl_b32 s45, s45, 8
    s_and_b32 s39, s27, 1
    s_lshl_b32 s39, s39, 3
    s_add_u32 s39, s39, s28
    s_lshl_b32 s39, s39, 2
    s_add_u32 s45, s45, s39
    s_add_u32 s45, s45, {CNT + 8*256}
    """)
    p4_ids(k)
    k("s_waitcnt vmcnt(0)")
    signal(k, 45, "flag" if MAP2D else "lflag")
    k(f"""
    s_lshl_b32 s36, s27, 8
    s_add_u32 s36, s36, {8*256}
    """)
    wave_poll_flags(k, 1, 36, 16, int(E('PS2', '0')))
    stamp(k, 6)
    p4_body(k, True)
    if WREG:
        p5_reg(k, True)
    else:
        p5_compute(k)


def wdma(k, c):
    k(f"""
    s_mov_b32 s41, {(c % 8 if 'w' in E('ABL5', '') else c)*65536}
    s_add_u32 m0, s48, {(c % NWS)*8192}
    buffer_load_dwordx4 v{WD0}, s[16:19], s41 offen lds
    buffer_load_dwordx4 v{WD0+1}, s[16:19], s41 offen offset:1024 lds
    """)


def p4_body(k, X):
    tiles = [0, 1, 2, 3] if X else [4, 5, 6]
    NT = len(tiles)
    VWA, VHA, VCSA, HB, FR, ACC = 10, 13, 14, 16, 24, 40
    if E('ACC64') == '1':
        HB, FR, ACC = 208, 216, 32
    STT, T, CSB = 128, 144, 160
    MEAN, NMEAN, C1, C2 = 117, 118, 120, 122

    NW = 2 if X else 5
    VWD = 124 if X else 88

    def group_ops(c):
        ops = []
        if X:
            for i in range(4):
                p2 = f"s_add_u32 s39, s38, {c*4096}\ns_add_u32 m0, s40, {(c%3)*16384}\n" if i == 0 else ""
                ops.append(p2 + f"buffer_load_dwordx4 v{VL16}, s[20:23], s39 offen offset:{i*1024} sc1 lds")
        if c >= 3:
            for j in range(NW):
                p2 = f"s_add_u32 s37, s32, {c*4096}\n" if j == 0 else ""
                ops.append(p2 + f"s_add_u32 m0, s34, {(c%3)*28672 + j*1024}\nbuffer_load_dwordx4 v{VWD+j}, s[20:23], s37 offen sc1 lds")
        return ops

    for c in range(3):
        for o in group_ops(c):
            k(o)
    for j in range(NW):
        k(f"""
        s_add_u32 s35, s31, {j}
        s_lshr_b32 s36, s35, 2
        s_lshl_b32 s36, s36, 15
        s_and_b32 s35, s35, 3
        s_lshl_b32 s35, s35, 10
        s_add_u32 s35, s35, s36
        v_add_u32 v{VWD+j}, s35, v{VL16}
        """)
    k(f"""
    v_lshrrev_b32 v3, 5, v1
    v_mov_b32 v{VWA}, v{VL16}
    v_add_u32 v{VWA+1}, 28672, v{VWA}
    v_add_u32 v{VWA+2}, {2*28672}, v{VWA}
    v_add_u32 v{VHA}, s40, v{VL16}
    v_lshlrev_b32 v{VCSA}, 4, v3
    v_add_u32 v{VCSA}, {CSL4}, v{VCSA}
    """)

    Q = LdsQ(k)

    def rdh(n):
        c, s_ = n // 4, n % 4
        Q.op(f"ds_read_b128 {r4(HB + 4*(n % 2))}, v{VHA} offset:{(c%3)*16384 + s_*1024}", ("h", n))

    def rdw(n, i):
        c, s_ = n // 4, n % 4
        Q.op(f"ds_read_b128 {r4(FR+4*i)}, v{VWA + c % 3} offset:{tiles[i]*4096 + s_*1024}", ("w", n, i))

    vq = []

    def vop(text, tag):
        k(text)
        vq.append(tag)

    def vwait(tag, lg=""):
        idx = [i for i, t in enumerate(vq) if t == tag]
        n = len(vq) - 1 - max(idx) if idx else None
        if n is not None:
            k(f"s_waitcnt vmcnt({n}) {lg}")
        elif lg:
            k(f"s_waitcnt {lg}")

    for c in range(3):
        vq.extend([("H", c)] * (4 if X else 7))
    vwait(("H", 0), "lgkmcnt(0)")
    k("s_barrier")
    if X and STAMPS and E('SP1') != '1':
        stamp(k, 2); k("s_waitcnt lgkmcnt(0)")
    rdh(0)
    for i in range(NT):
        rdw(0, i)
    pend = []
    wpend = []
    for n in range(32):
        last = n == 31
        bar = (n + 1) % 4 == 0 and not last
        if bar:
            c1 = (n + 1) // 4
            for o, t in pend:
                vop(o, t)
            for o in wpend:
                Q.op(o)
            vwait(("H", c1), "lgkmcnt(0)")
            Q.clear()
            k("s_barrier")
            if STAG and not X and c1 == 7:
                k("s_setprio 1")
            if X and STAMPS and E("SP1") != "1" and c1 == int(E("MID", "4")):
                stamp(k, 15); k("s_waitcnt lgkmcnt(0)")
            pend = [(o, ("H", c1 + 2)) for o in group_ops(c1 + 2)] if c1 + 2 <= 7 else []
            if c1 == int(E("SL", "1")):
                ops = [f"s_lshl_b32 s36, s29, 12\ns_add_u32 s36, s36, {ST}\nv_lshlrev_b32 v8, 3, v1\n" +
                       f"buffer_load_dwordx2 {pr(STT)}, v8, s[20:23], s36 offen sc1"]
                for i in range(1, 8):
                    ops.append(f"buffer_load_dwordx2 {pr(STT+2*i)}, v8, s[20:23], s36 offen offset:{512*i} sc1")
                if X:
                    ops.append(f"""
                    v_min_u32 v5, 223, v0
                    v_cmp_lt_u32 vcc, 111, v5
                    v_mov_b32 v6, {1792-112}
                    v_cndmask_b32 v6, 0, v6, vcc
                    v_add_u32 v6, v6, v5
                    v_lshlrev_b32 v6, 4, v6
                    v_lshlrev_b32 v9, 2, v5
                    v_add_u32 v9, {CSL4}, v9
                    s_mul_i32 s37, s28, {112*16}
                    s_add_u32 s37, s37, {CS}
                    buffer_load_dwordx4 {r4(T)}, v6, s[20:23], s37 offen sc1""")
                    for q in range(1, 4):
                        ops.append(f"s_add_u32 s37, s37, {3584*16}\nbuffer_load_dwordx4 {r4(T+4*q)}, v6, s[20:23], s37 offen sc1")
                ops = [o.replace("s36", "s43").replace("s37", "s44") for o in ops]
                pend += [(o, "S") for o in ops]
            if not X and YS and c1 in (6, 7):
                cs_ = list(range(28 - YS, 28))
                half = (len(cs_) + 1) // 2
                for c in (cs_[:half] if c1 == 6 else cs_[half:]):
                    r = 200 + 8 * (27 - c)
                    pend.append((f"s_mov_b32 s41, {c*65536}\nbuffer_load_dwordx4 {r4(r)}, v{WD0}, s[16:19], s41 offen", "D"))
                    pend.append((f"buffer_load_dwordx4 {r4(r+4)}, v{WD0+1}, s[16:19], s41 offen offset:1024", "D"))
            if c1 == 6:
                DW = int(E("DW", "0"))
                if not X and DW < 2 and E('TP', 'half') != 'late':
                    pend.append((f"""
                    v_min_u32 v5, 55, v1
                    v_lshlrev_b32 v6, 7, v5
                    s_lshr_b32 s37, s2, 3
                    s_lshl_b32 s37, s37, 2
                    s_add_u32 s37, s37, s26
                    s_mul_i32 s37, s37, {7*1024}
                    s_add_u32 s37, s37, {DW*896*1024}
                    buffer_load_dword v127, v6, s[16:19], s37 offen""", "T"))
                    if DW == 0 and E('TP', 'half') != 'half':
                        pend.append((f"s_add_u32 s37, s37, {896*1024}\nbuffer_load_dword v127, v6, s[16:19], s37 offen", "T"))
        b = HB + 4 * (n % 2)
        if not last:
            rdh(n + 1)
        for i in range(NT):
            A = r16(ACC + 16 * i)
            Q.wait(("h", n), ("w", n, i))
            k(f"{MF32} {A}, {r4(FR+4*i)}, {r4(b)}, " + (A if n else "0"))
            if not last:
                rdw(n + 1, i)
            if pend and (i % 2 == 0 or len(pend) > 6 or E('BURST') == '1'):
                vop(*pend.pop(0))
            if wpend and i == 1:
                Q.op(wpend.pop(0))
        if n == int(E("SN", "13")):
            vwait("S")
            if X:
                for st_ in (8, 4, 2, 1):
                    for i in range(st_):
                        k(f"v_add_f32 v{T+i}, v{T+i}, v{T+i+st_}")
                if STAG:
                    Q.op(f"ds_write_b32 v9, v{T}")
            for i in range(1, 8):
                k(f"v_add_f32 v{STT}, v{STT}, v{STT+2*i}")
                k(f"v_add_f32 v{STT+1}, v{STT+1}, v{STT+2*i+1}")
            k(f"""
            v_mov_b32 v{STT+2}, v{STT}
            v_mov_b32 v{STT+3}, v{STT+1}
            v_permlane32_swap_b32 v{STT}, v{STT+2}
            v_permlane32_swap_b32 v{STT+1}, v{STT+3}
            v_add_f32 v{STT}, v{STT}, v{STT+2}
            v_add_f32 v{STT+1}, v{STT+1}, v{STT+3}
            v_mul_f32 v{MEAN}, {f32(1/512)}, v{STT}
            v_mul_f32 v{C2}, {f32(1/512)}, v{STT+1}
            v_fma_f32 v{C2}, -v{MEAN}, v{MEAN}, v{C2}
            v_max_f32 v{C2}, 0, v{C2}
            v_add_f32 v{C2}, {f32(1e-5)}, v{C2}
            v_rsq_f32 v{C1}, v{C2}
            v_mul_f32 v{C1}, {f32(-LOG2E)}, v{C1}
            v_mov_b32 v{C1+1}, v{C1}
            v_mov_b32 v{C2+1}, v{C2}
            v_sub_f32 v{NMEAN}, 0, v{MEAN}
            v_sub_f32 v{NMEAN+1}, 0, v{MEAN}
            """)
    for o, t in pend:
        vop(o, t)
    if X:
        stamp(k, 7)
        if not STAG:
            k(f"ds_write_b32 v9, v{T}")
    k("s_waitcnt lgkmcnt(0)")
    if X or not STAG:
        k("s_barrier")
    elif STAG:
        k("s_setprio 0")
    wq = []
    if not X:
        k("s_lshl_b32 s48, s26, 11")
        wq = list(range(EW))

    def wpop(n=1):
        for _ in range(n):
            if wq:
                wdma(k, wq.pop(0))

    k(f"""
    s_mul_i32 s36, s29, {112*1024}
    s_mul_i32 s37, s28, {7*1024}
    s_add_u32 s36, s36, s37
    s_add_u32 s36, s36, {AF + tiles[0]*1024}
    """)

    def csread(i):
        p = tiles[i]
        d = CSB + (i % 2) * 16
        k(f"ds_read_b128 {r4(d)}, v{VCSA} offset:{p*64}")
        k(f"ds_read_b128 {r4(d+4)}, v{VCSA} offset:{p*64+32}")
        k(f"ds_read_b128 {r4(d+8)}, v{VCSA} offset:{448+p*64}")
        k(f"ds_read_b128 {r4(d+12)}, v{VCSA} offset:{448+p*64+32}")

    csread(0)
    for i in range(NT):
        k("s_waitcnt lgkmcnt(0)")
        if i + 1 < NT:
            csread(i + 1)
        d = CSB + (i % 2) * 16
        A = ACC + 16 * i
        wpop(2)
        for r in range(0, 16, 2):
            k(f"v_pk_fma_f32 {pr(A+r)}, {pr(NMEAN)}, {pr(d+r)}, {pr(A+r)}")
        for r in range(0, 8, 2):
            k(f"v_pk_mul_f32 {pr(T+r)}, {pr(A+r)}, {pr(C1)}")
        for r in range(8):
            k(f"v_exp_f32 v{T+r}, v{T+r}")
        wpop(2)
        for r in range(0, 8, 2):
            k(f"v_pk_mul_f32 {pr(A+r)}, {pr(A+r)}, {pr(A+8+r)}")
        for r in range(0, 8, 2):
            k(f"v_pk_fma_f32 {pr(T+r)}, {pr(T+r)}, {pr(C2)}, {pr(C2)}")
        for r in range(8):
            k(f"v_rcp_f32 v{T+r}, v{T+r}")
        for r in range(0, 8, 2):
            k(f"v_pk_mul_f32 {pr(A+r)}, {pr(A+r)}, {pr(T+r)}")
        if i == NT - 1:
            wpop(99)
        for j in range(4):
            k(f"v_cvt_pk_bf16_f32 v{A+j}, v{A+2*j}, v{A+2*j+1}")
        mstore(k, f"buffer_store_dwordx4 {r4(A)}, v{VL16}, s[20:23], s36 offen offset:{i*1024}", "a")
        if STAG and not X and i == int(E("STAGB", "1")):
            k("s_barrier")
    k(f"""
    s_lshl_b32 s45, s27, 8
    s_lshl_b32 s39, s28, 2
    s_add_u32 s45, s45, s39
    s_add_u32 s45, s45, {CNT + 24*256}
    """)


def dwrite(c):
    ws = c % NWS
    a, off = (DV, ws * 8192) if ws < 7 else (DV + 1, (ws - 7) * 8192)
    return f"ds_write_b128 v{a}, {r4(DS + 4*(27 - c))} offset:{off}"


def dsetup(k):
    k(f"""
    s_lshl_b32 s35, s25, 10
    v_add_u32 v{DV}, s35, v{VL16}
    v_add_u32 v{DV+1}, 57344, v{DV}
    """)


def p5_loader(k):
    ids64(k)
    k(f"""
    s_lshl_b32 s34, s26, 11
    s_mul_i32 s32, s31, {112*1024}
    s_lshl_b32 s33, s29, 11
    s_add_u32 s32, s32, s33
    s_add_u32 s32, s32, {AF}
    v_add_u32 v{DV}, s34, v{VL16}
    v_add_u32 v{DV+1}, 57344, v{DV}
    """)

    def adma(c):
        k(f"""
        s_add_u32 s40, s32, {(c % 4 if 'a' in E('ABL5', '') else c)*4096}
        s_add_u32 m0, s34, {AOFF + (c % NAS)*8192}
        buffer_load_dwordx4 v{VL16}, s[20:23], s40 offen sc1 lds
        buffer_load_dwordx4 v{VL16}, s[20:23], s40 offen offset:1024 sc1 lds
        """)

    if True:
        n1 = min(NWS, EW + int(E("EW2", "4")))
        for c in range(EW, n1):
            wdma(k, c)
        k(f"s_waitcnt vmcnt({2*(n1-EW)})")
        k("s_barrier")
        for c in range(n1, NWS):
            wdma(k, c)
        if E('TP', 'half') in ('late', 'half'):
            k(f"""
            v_min_u32 v5, 55, v1
            v_lshlrev_b32 v6, 7, v5
            s_lshr_b32 s37, s2, 3
            s_lshl_b32 s37, s37, 2
            s_add_u32 s37, s37, s26
            s_mul_i32 s37, s37, {7*1024}
            s_add_u32 s37, s37, {896*1024}
            buffer_load_dword v127, v6, s[16:19], s37 offen
            """)
    k("s_barrier")
    if E("WBL2") == "1":
        k("""
        s_lshr_b32 s36, s2, 3
        s_add_u32 s36, s36, s26
        s_cmp_lg_u32 s36, 0
        s_cbranch_scc1 L_nowb
        buffer_wbl2 sc1
        """)
        k.label("L_nowb")
    order = []
    ia, iw = 0, NWS
    for c in range(NAS - 2):
        adma(c); order.append(("a", c)); ia += 1
    for c in range(28):
        need = max(i for i, g in enumerate(order) if g == ("a", c) or g == ("w", c))
        k(f"s_waitcnt vmcnt({2*(len(order) - 1 - need)}) lgkmcnt(0)")
        k("s_barrier")
        if ia < 28 and ia <= c - 2 + NAS:
            adma(ia); order.append(("a", ia)); ia += 1
        if iw < 28 and iw <= c - 2 + NWS:
            if iw >= 28 - YS:
                ws_ = iw % NWS
                a_, off = (DV, ws_ * 8192) if ws_ < 7 else (DV + 1, (ws_ - 7) * 8192)
                r = 200 + 8 * (27 - iw)
                k(f"ds_write_b128 v{a_}, {r4(r)} offset:{off}")
                k(f"ds_write_b128 v{a_}, {r4(r+4)} offset:{off+1024}")
            else:
                wdma(k, iw); order.append(("w", iw))
            iw += 1
    k("s_endpgm")


def p5_compute(k):
    VBA, VWA, ACC, T, FR = 12, 13, 64, 80, 120
    k("s_waitcnt vmcnt(0)")
    stamp(k, 8)
    signal(k, 45, "flag" if MAP2D else "lflag")
    ids64(k)
    srd(k, 56, POUT, POUT + 1, 2 * MB)
    k(f"""
    v_and_b32 v2, 31, v1
    v_lshrrev_b32 v3, 5, v1
    s_lshl_b32 s37, s28, 1
    s_add_u32 s37, s37, s29
    s_lshl_b32 s40, s30, 12
    s_add_u32 s40, s40, {AOFF}
    v_add_u32 v{VBA}, s40, v{VL16}
    v_add_u32 v{VWA}, 57344, v{TRA}
    """)
    for i in range(8):
        k(f"v_lshlrev_b32 v{T+2*i}, 16, v{HKEEP+i}")
        k(f"v_and_b32 v{T+2*i+1}, 0xffff0000, v{HKEEP+i}")
    k(f"""
    s_lshr_b32 s36, s27, 1
    s_lshl_b32 s36, s36, 8
    s_add_u32 s36, s36, {24*256}
    """)
    wave_poll_flags(k, 1, 36, 16, int(E('PS3', '0')))
    stamp(k, 9)

    Q = LdsQ(k)
    PD5 = min(PD, 3) if STAGED else PD
    NB5 = PD5 + 1

    def reads(n):
        c, s_ = n // 4, n % 4
        b = FR + (n % NB5) * 8
        ws = c % NWS
        wr, woff = (f"v{TRA}", ws * 8192) if ws < 7 else (f"v{VWA}", (ws - 7) * 8192)
        Q.op(f"ds_read_b128 {r4(b)}, v{VBA} offset:{(c % NAS)*8192 + s_*1024}", n)
        Q.op(f"ds_read_b64_tr_b16 {pr(b+4)}, {wr} offset:{woff + s_*2048}", n)
        Q.op(f"ds_read_b64_tr_b16 {pr(b+6)}, {wr} offset:{woff + s_*2048 + 1024}", n)

    k("s_barrier")
    k("s_waitcnt lgkmcnt(0)")
    for n in range(PD5):
        reads(n)
    KS = 112
    for n in range(KS):
        if n + PD5 < KS:
            if (n + PD5) % 4 == 0:
                c = (n + PD5) // 4
                k("s_barrier")
                iw = c - 2 + NWS
                if STAGED and NWS <= iw < 28:
                    Q.op(dwrite(iw))
            reads(n + PD5)
        Q.wait(n)
        b = FR + (n % NB5) * 8
        k(f"{MF32} {r16(ACC)}, {r4(b+4)}, {r4(b)}, " + (r16(ACC) if n else r16(T)))
    stamp(k, 10)
    for i in range(8):
        k(f"v_cvt_pk_bf16_f32 v{ACC+i}, v{ACC+2*i}, v{ACC+2*i+1}")
    k(f"""
    v_lshlrev_b32 v4, 10, v2
    v_lshl_add_u32 v4, v3, 4, v4
    v_permlane32_swap_b32 v{ACC}, v{ACC+2}
    v_permlane32_swap_b32 v{ACC+1}, v{ACC+3}
    v_permlane32_swap_b32 v{ACC+4}, v{ACC+6}
    v_permlane32_swap_b32 v{ACC+5}, v{ACC+7}
    s_lshl_b32 s38, s31, 15
    s_lshl_b32 s39, s37, 6
    s_add_u32 s38, s38, s39
    buffer_store_dwordx4 {r4(ACC)}, v4, s[56:59], s38 offen {E('OUTP', '')}
    buffer_store_dwordx4 {r4(ACC+4)}, v4, s[56:59], s38 offen offset:32 {E('OUTP', '')}
    """)
    stamp(k, 11); stamp(k, 12, True); stamp_flush(k, 16)
    if DIAG:
        k("""
        s_memrealtime s[94:95]
        s_waitcnt lgkmcnt(0)
        s_sub_u32 s92, s92, s90
        s_lshl_b32 s92, s92, 2
        s_add_u32 s92, s92, s94
        """)
        k.label("L_diag")
        k("""
        s_memrealtime s[94:95]
        s_waitcnt lgkmcnt(0)
        s_sub_u32 s96, s94, s92
        s_cmp_lt_i32 s96, 0
        s_cbranch_scc1 L_diag
        """)
    k.label("L_end")
    k("s_endpgm")


def p5_reg(k, X):
    NA = 20 - NL
    AO = NL * 8192
    VBA, VTR, VTR2, ACC, FR, T = 12, 13, 14, 16, 48, 120
    if X:
        k("s_waitcnt vmcnt(0)")
        stamp(k, 8)
        signal(k, 45, "flag" if MAP2D else "lflag")
    else:
        for c in range(4):
            wdma(k, c)
        k("s_waitcnt vmcnt(8)")
        k("s_barrier")
        for c in range(4, NL):
            wdma(k, c)
    ids64(k)
    k(f"""
    s_lshr_b32 s33, s25, 1
    s_lshr_b32 s34, s25, 2
    s_lshl_b32 s32, s27, 1
    s_add_u32 s32, s32, s34
    s_mul_i32 s32, s32, {112*1024}
    s_lshl_b32 s34, s26, 10
    s_add_u32 s32, s32, s34
    s_add_u32 s32, s32, {AF}
    s_lshl_b32 s34, s25, 10
    s_add_u32 s34, s34, {AO}
    s_lshl_b32 s35, s33, 10
    s_add_u32 s35, s35, {AO}
    v_add_u32 v{VBA}, s35, v{VL16}
    v_lshrrev_b32 v3, 5, v1
    v_bfe_u32 v4, v1, 2, 2
    v_lshl_add_u32 v5, v3, 2, v4
    v_lshlrev_b32 v5, 7, v5
    v_lshrrev_b32 v4, 1, v4
    v_xor_b32 v4, s29, v4
    v_lshl_add_u32 v5, v4, 6, v5
    v_bfe_u32 v4, v1, 4, 1
    v_lshl_add_u32 v5, v4, 5, v5
    v_and_b32 v4, 3, v1
    v_lshl_add_u32 v5, v4, 3, v5
    s_lshl_b32 s35, s33, 11
    v_add_u32 v{VTR}, s35, v5
    v_add_u32 v{VTR2}, 49152, v{VTR}
    s_lshr_b32 s36, s27, 1
    s_lshl_b32 s36, s36, 8
    s_add_u32 s36, s36, {24*256}
    """)
    if X:
        wave_poll_flags(k, 1, 36, 16, int(E('PS3', '0')))
        stamp(k, 9)
    else:
        k("s_barrier")

    def adma(c):
        k(f"""
        s_add_u32 s40, s32, {c*4096}
        s_add_u32 m0, s34, {(c % NA)*8192}
        buffer_load_dwordx4 v{VL16}, s[20:23], s40 offen sc1 lds
        """)

    Q = LdsQ(k)

    def reads(c):
        b = FR + (c % 3) * 12
        for mt in range(2):
            Q.op(f"ds_read_b128 {r4(b+4*mt)}, v{VBA} offset:{(c % NA)*8192 + mt*4096}", c)
        if c < NL:
            a_, off = (VTR, c * 8192) if c < 6 else (VTR2, (c - 6) * 8192)
            for ab in range(2):
                Q.op(f"ds_read_b64_tr_b16 {pr(b+8+2*ab)}, v{a_} offset:{off + ab*1024}", c)

    P5 = int(E("P5D", "1"))
    issued = NA - 1
    for c in range(issued):
        adma(c)
    k("s_waitcnt lgkmcnt(0)")
    for c in range(P5):
        k(f"s_waitcnt vmcnt({issued - 1 - c})")
        k("s_barrier")
        reads(c)
    for c in range(28):
        if c + P5 < 28:
            k(f"s_waitcnt vmcnt({issued - 1 - (c + P5)})")
            k("s_barrier")
            if issued < 28 and issued <= c - 1 + NA:
                adma(issued)
                issued += 1
            reads(c + P5)
        Q.wait(c)
        b = FR + (c % 3) * 12
        Wf = r4(b + 8) if c < NL else r4(192 + 4 * (c - NL))
        for mt in range(2):
            A = r16(ACC + 16 * mt)
            k(f"{MF32} {A}, {Wf}, {r4(b+4*mt)}, " + (A if c else "0"))
    if X:
        stamp(k, 10)
    k(f"""
    s_lshl_b32 s35, s29, 14
    s_lshl_b32 s36, s33, 12
    s_add_u32 s35, s35, s36
    v_add_u32 v{VBA}, s35, v{VL16}
    """)

    def put(mt):
        for g in range(4):
            k(f"ds_write_b128 v{VBA}, {r4(ACC+16*mt+4*g)} offset:{mt*32768 + g*1024}")

    if not X:
        put(0); put(1)
        k("s_waitcnt lgkmcnt(0)")
        k("s_barrier")
        k("s_endpgm")
        return
    k("s_nop 7")
    k("s_cmp_eq_u32 s30, 0")
    k("s_cbranch_scc1 L_p5_m0")
    put(0)
    k("s_waitcnt lgkmcnt(0)")
    for i in range(16):
        k(f"v_mov_b32 v{ACC+i}, v{ACC+16+i}")
    k("s_branch L_p5_m")
    k.label("L_p5_m0")
    put(1)
    k.label("L_p5_m")
    srd(k, 56, POUT, POUT + 1, 2 * MB)
    k(f"""
    v_and_b32 v2, 31, v1
    s_lshl_b32 s37, s28, 1
    s_add_u32 s37, s37, s29
    s_lshl_b32 s35, s30, 15
    s_lshl_b32 s36, s29, 14
    s_add_u32 s35, s35, s36
    v_add_u32 v{VTR}, s35, v{VL16}
    s_xor_b32 s36, s33, 1
    s_lshl_b32 s36, s36, 12
    v_add_u32 v{VTR2}, s36, v{VTR}
    """)
    for i in range(8):
        k(f"v_lshlrev_b32 v{T+2*i}, 16, v{HKEEP+i}")
        k(f"v_and_b32 v{T+2*i+1}, 0xffff0000, v{HKEEP+i}")
    for r in range(0, 16, 2):
        k(f"v_pk_add_f32 {pr(ACC+r)}, {pr(ACC+r)}, {pr(T+r)}")
    k("s_waitcnt lgkmcnt(0)")
    k("s_barrier")
    P = 48
    for g in range(4):
        k(f"ds_read_b128 {r4(P+4*g)}, v{VTR2} offset:{g*1024}")
    for q in (2, 3):
        for g in range(4):
            k(f"ds_read_b128 {r4(P+16*(q-1)+4*g)}, v{VTR} offset:{q*4096 + g*1024}")
    for j in range(3):
        k(f"s_waitcnt lgkmcnt({8 - 4*j})")
        for r in range(0, 16, 2):
            k(f"v_pk_add_f32 {pr(ACC+r)}, {pr(ACC+r)}, {pr(P+16*j+r)}")
    for i in range(8):
        k(f"v_cvt_pk_bf16_f32 v{ACC+i}, v{ACC+2*i}, v{ACC+2*i+1}")
    k(f"""
    v_lshlrev_b32 v4, 10, v2
    v_lshl_add_u32 v4, v3, 4, v4
    v_permlane32_swap_b32 v{ACC}, v{ACC+2}
    v_permlane32_swap_b32 v{ACC+1}, v{ACC+3}
    v_permlane32_swap_b32 v{ACC+4}, v{ACC+6}
    v_permlane32_swap_b32 v{ACC+5}, v{ACC+7}
    s_lshl_b32 s38, s31, 15
    s_lshl_b32 s39, s37, 6
    s_add_u32 s38, s38, s39
    buffer_store_dwordx4 {r4(ACC)}, v4, s[56:59], s38 offen
    buffer_store_dwordx4 {r4(ACC+4)}, v4, s[56:59], s38 offen offset:32
    """)
    stamp(k, 11); stamp(k, 12, True); stamp_flush(k, 16)
    k.label("L_end")
    k("s_endpgm")


def build(out):
    k = Kern(MONO)
    p1(k)
    p2(k)
    p3(k)
    k.label("L_codeend")
    k("s_nop 0")
    hdr = open("sequential_preLN__softmax_full_mha__swiglu_ffn__prompt.s.ref").read().split("; Override launch")[0]
    l = "grid=(256,1,1) block=(512,1,1) lds=163840"
    hdr += ("; One persistent kernel, 256 workgroups (one per CU) x 8 waves; five phases separated by flag hand-offs\n"
            "; (write-through data stores, drained, then a flag; bounded polls).  Generated by my own script (gen/mono.py).\n")
    hdr += f"; @launch kernel={MONO} {l}\n" if (STAMPS or E("LIST") == "1") else f"; @launch {l}\n"
    open(out, "w").write(hdr + '.amdgcn_target "amdgcn-amd-amdhsa--gfx950"\n' + k.full())


if __name__ == "__main__":
    import sys
    build(sys.argv[1])
```
